```python
import torch

def _softmax(x, axis=-1):
    return torch.softmax(x, dim=axis)
def _gelu(x):
    return torch.nn.functional.gelu(x, approximate="tanh")
def _silu(x):
    return torch.nn.functional.silu(x)
def _sigmoid(x):
    return torch.sigmoid(x)
def _layernorm(x, axis=-1, eps=1e-5):
    m = x.mean(dim=axis, keepdim=True)
    v = x.var(dim=axis, keepdim=True, unbiased=False)
    return (x - m) / torch.sqrt(v + eps)
def _scatter_add(tgt, idx, src, axis=0):
    return tgt.clone().index_add_(axis, idx, src)
def _segment_sum(src, seg, n):
    out = torch.zeros((n,) + src.shape[1:], dtype=src.dtype)
    return out.index_add_(0, seg, src)
def _pad(x, pw):
    flat = tuple(v for pair in reversed(pw) for v in pair)
    return torch.nn.functional.pad(x, flat)

kernel_name = 'gated_mix__gqa_block_cached__glu_gated_reglu__decode'

def setup_inputs():

    _w = (lambda a: (lambda t: t.to(torch.bfloat16) if t.is_floating_point() else t)(torch.as_tensor(a)))
    def _A_setup():
        B, Sq, D = 1, 1, 1024
        Hq, Hkv, Sk, Dh = 32, 4, 65536, 128
        assert Hq % Hkv == 0, (Hq, Hkv)
        return {
            "x": _w((lambda *s: torch.randn(*s, dtype=torch.bfloat16) * 0.05)(B, Sq, D)),
            "k_cache": _w((lambda *s: torch.randn(*s, dtype=torch.bfloat16) * 3.2)(B, Hkv, Sk, Dh)),
            "v_cache": _w((lambda *s: torch.randn(*s, dtype=torch.bfloat16) * 1.6)(B, Hkv, Sk, Dh)),
            "wq": _w((lambda *s: torch.randn(*s, dtype=torch.bfloat16) * 3.2)(D, Hq * Dh) * (D ** -0.5)),
            "wo": _w((lambda *s: torch.randn(*s, dtype=torch.bfloat16) * 1.6)(Hq * Dh, D) * ((Hq * Dh) ** -0.5)),
        }
    _A_in = _A_setup()

    def _B_setup():
        B, S, D, F = 1, 1, 1024, 3584
        return {
            "x": _w((lambda *s: torch.randn(*s, dtype=torch.bfloat16) * 0.05)(B, S, D)),
            "W_gate": _w((lambda *s: torch.randn(*s, dtype=torch.bfloat16) * 1.6)(D, F) * (2.0 / D) ** 0.5),
            "W_up": _w((lambda *s: torch.randn(*s, dtype=torch.bfloat16) * 1.6)(D, F) * (2.0 / D) ** 0.5),
            "W_down": _w((lambda *s: torch.randn(*s, dtype=torch.bfloat16) * 1.6)(F, D) * (1.0 / F) ** 0.5),
        }
    _B_in = _B_setup()

    return {
        "A_x": _A_in["x"],
        "A_k_cache": _A_in["k_cache"],
        "A_v_cache": _A_in["v_cache"],
        "A_wq": _A_in["wq"],
        "A_wo": _A_in["wo"],
        "B_x": _B_in["x"],
        "B_W_gate": _B_in["W_gate"],
        "B_W_up": _B_in["W_up"],
        "B_W_down": _B_in["W_down"],
        "gate_w": _w((lambda *s: torch.randn(*s, dtype=torch.bfloat16) * 0.05)(1024) * 16.0),
    }

def reference(A_x, A_k_cache, A_v_cache, A_wq, A_wo, B_x, B_W_gate, B_W_up, B_W_down, gate_w):
    def _A_ref(x, k_cache, v_cache, wq, wo):
        B, Sq, D = x.shape
        Hq, Dh = 32, 128
        Hkv = k_cache.shape[1]
        rep = Hq // Hkv
        q = (lambda x, *d: x.permute(*d))((x @ wq).reshape(B, Sq, Hq, Dh), 0, 2, 1, 3)
        k = (lambda x, n, axis: torch.repeat_interleave(x, n, dim=axis))(k_cache, rep, axis=1)
        v = (lambda x, n, axis: torch.repeat_interleave(x, n, dim=axis))(v_cache, rep, axis=1)
        scores = torch.einsum("bhqd,bhkd->bhqk", q, k) * (Dh ** -0.5)
        p = _softmax(scores, axis=-1)
        o = torch.einsum("bhqk,bhkd->bhqd", p, v)
        return (lambda x, *d: x.permute(*d))(o, 0, 2, 1, 3).reshape(B, Sq, Hq * Dh) @ wo

    def _B_ref(x, W_gate, W_up, W_down):
        gate = torch.einsum("bsd,df->bsf", x, W_gate)
        up = torch.einsum("bsd,df->bsf", x, W_up)
        gate = gate * (lambda x, dt: x.to(dt))(gate > 0, gate.dtype)
        h = gate * up
        return torch.einsum("bsf,fd->bsd", h, W_down)

    x = A_x
    g = _sigmoid((x * gate_w).sum(-1, keepdims=True))
    a = _A_ref(x, A_k_cache, A_v_cache, A_wq, A_wo)
    b = _B_ref(x, B_W_gate, B_W_up, B_W_down)
    return g * a + (1 - g) * b
```

```python
NAME = "gated_mix__gqa_block_cached__glu_gated_reglu__decode"
class Asm:
    def __init__(self):
        self.lines = []
        self.lab = 0
    def __call__(self, s):
        for l in s.strip("\n").split("\n"):
            self.lines.append("    " + l.strip() if not (l.strip().endswith(":") and not l.strip().startswith(";")) else l.strip())
    def label(self, base="L"):
        self.lab += 1
        return "%s_%d" % (base, self.lab)
    def text(self):
        return "\n".join(self.lines) + "\n"

def wrap_single(body, grid, block, lds, vgpr, sgpr=102, accum=None, header=""):
    if accum is None:
        accum = (vgpr + 3) // 4 * 4
        if accum > 256: accum = 256
    k = NAME + "_kernel"
    return f"""{header}; @launch grid=({grid},1,1) block=({block},1,1) lds={lds}
.amdgcn_target "amdgcn-amd-amdhsa--gfx950"
.text
.globl {k}
.p2align 8
.type {k},@function
{k}:
{body}
.section .rodata,"a"
.p2align 6
.amdhsa_kernel {k}
  .amdhsa_next_free_vgpr {vgpr}
  .amdhsa_next_free_sgpr {sgpr}
  .amdhsa_accum_offset {accum}
  .amdhsa_group_segment_fixed_size 0
  .amdhsa_kernarg_size 104
  .amdhsa_user_sgpr_count 2
  .amdhsa_user_sgpr_kernarg_segment_ptr 1
  .amdhsa_system_sgpr_workgroup_id_x 1
  .amdhsa_float_denorm_mode_32 3
  .amdhsa_float_denorm_mode_16_64 3
.end_amdhsa_kernel
"""
```

```python
import re
TRANS = ("v_exp_f32", "v_rcp_f32", "v_log_f32", "v_rsq_f32", "v_sqrt_f32", "v_sin_f32", "v_cos_f32")
def regs(tok):
    tok = tok.strip()
    tok = tok.lstrip("-")
    m = re.fullmatch(r"abs\((.*)\)", tok)
    if m: tok = m.group(1)
    m = re.fullmatch(r"([vsa])(\d+)", tok)
    if m: return {(m.group(1), int(m.group(2)))}
    m = re.fullmatch(r"([vsa])\[(\d+):(\d+)\]", tok)
    if m: return {(m.group(1), i) for i in range(int(m.group(2)), int(m.group(3)) + 1)}
    if tok == "vcc": return {("s", 106), ("s", 107)}
    if tok == "vcc_lo": return {("s", 106)}
    if tok == "vcc_hi": return {("s", 107)}
    if tok == "exec": return {("s", 126), ("s", 127)}
    if tok == "m0": return {("s", 124)}
    return set()
class Ins:
    def __init__(self, line):
        self.line = line
        l = line.split(";")[0].strip()
        self.label = l.endswith(":")
        self.op = ""; self.w = set(); self.r = set(); self.ops = []
        self.ws = 0
        if self.label or not l or l.startswith("."):
            self.kind = "none"; return
        parts = l.split(None, 1)
        op = parts[0]; self.op = op
        rest = parts[1] if len(parts) > 1 else ""
        ops = []; cur = ""; d = 0
        for ch in rest:
            if ch in "[(": d += 1
            if ch in "])": d -= 1
            if ch == "," and d == 0: ops.append(cur.strip()); cur = ""
            else: cur += ch
        if cur.strip(): ops.append(cur.strip())
        mods = ""
        if ops:
            t = ops[-1].split(None, 1)
            ops[-1] = t[0]; mods = t[1] if len(t) > 1 else ""
        self.ops = ops; self.mods = mods
        R = [regs(o) for o in ops]
        self.ws = 1
        self.dpp = ("_dpp" in op) or ("row_" in mods) or ("quad_perm" in mods)
        if op == "s_nop":
            self.kind = "nop"; self.ws = int(ops[0], 0) + 1; return
        if op.startswith("v_mfma"):
            self.kind = "mfma"; self.w = R[0]; self.A = R[1]; self.B = R[2]; self.C = R[3]; self.r = R[1] | R[2] | R[3]
            self.passes = 4 if "16x16x32" in op or "16x16x16" in op else 8
            if "f32_16x16x4_f32" in op: self.passes = 8
            return
        if op.startswith("v_"):
            self.kind = "valu"
            if op.startswith("v_permlane"):
                self.w = R[0] | R[1]; self.r = R[0] | R[1]
            elif op.startswith("v_cmp"):
                self.w = R[0]; self.r = set().union(*R[1:])
            elif op.startswith(("v_add_co", "v_sub_co", "v_addc_co", "v_subb_co")):
                self.w = R[0] | R[1]; self.r = set().union(*R[2:])
            else:
                self.w = R[0]; self.r = set().union(*R[1:]) if len(R) > 1 else set()
                if op.startswith(("v_dot2c", "v_fmac", "v_pk_fmac", "v_writelane")) or self.dpp: self.r |= R[0]
                if op.startswith("v_cndmask") and len(ops) == 3: self.r |= regs("vcc")
            return
        if op.startswith(("buffer_", "global_")):
            self.kind = "vmem"
            allr = set().union(*R) if R else set()
            if "load" in op and " lds" not in (" " + mods) and "_lds" not in op:
                self.w = R[0]; self.r = set().union(*R[1:])
            elif "atomic" in op and "sc0" in mods:
                self.w = R[0]; self.r = allr
            else:
                self.r = allr
                if "store" in op:
                    self.sdata = R[0] if op.startswith("buffer_") else R[1]
            if " lds" in (" " + mods) or "_lds" in op: self.r |= regs("m0")
            return
        if op.startswith("ds_"):
            self.kind = "ds"
            if "read" in op or "rtn" in op or "permute" in op or "swizzle" in op:
                self.w = R[0]; self.r = set().union(*R[1:])
            else:
                self.r = set().union(*R)
            return
        self.kind = "salu"
        if op.startswith(("s_cmp", "s_cbranch", "s_branch", "s_waitcnt", "s_barrier", "s_sleep", "s_endpgm", "s_setprio", "s_bitcmp")):
            self.r = set().union(*R) if R else set()
        else:
            self.w = R[0] if R else set(); self.r = set().union(*R[1:]) if len(R) > 1 else set()
            if "saveexec" in op: self.w |= regs("exec")

def V(s): return {x for x in s if x[0] in "va"}
def S(s): return {x for x in s if x[0] == "s"}
def need(p, c):
    n = 0
    isdot = lambda i: i.kind == "valu" and i.op.startswith("v_dot")
    if p.kind == "valu":
        wv = V(p.w); wsr = S(p.w)
        if c.kind == "valu":
            if c.dpp and wv & c.r: n = max(n, 2)
            if c.op.startswith("v_permlane") and wv & c.r: n = max(n, 2)
            if c.op.startswith(("v_readlane", "v_readfirstlane")) and wv & c.r: n = max(n, 1)
            if p.op.startswith(TRANS) and not c.op.startswith(TRANS) and wv & c.r: n = max(n, 1)
            if wsr & c.r:
                n = max(n, 2)
                if c.op.startswith(("v_readlane", "v_writelane")) and wsr & regs(c.ops[2]): n = max(n, 4)
        if c.kind == "mfma" and wv & c.r: n = max(n, 2)
        if c.kind == "vmem" and wsr & c.r: n = max(n, 5)
        if p.op.startswith(TRANS) and c.kind in ("vmem", "ds") and wv & c.r: n = max(n, 1)
        if isdot(p):
            if c.kind != "none" and c.kind != "nop" and wv & (c.r | c.w):
                if c.op == p.op:
                    srcab = set().union(*[regs(o) for o in c.ops[1:3]])
                    if wv & srcab: n = max(n, 3)
                else: n = max(n, 3)
    if p.kind == "mfma":
        t = {4: (6, 8, 3), 8: (10, 12, 7)}[p.passes]
        if c.kind == "mfma":
            if p.w & c.C and not (p.w == c.C and p.passes == c.passes): n = max(n, t[0])
            if p.w & (c.A | c.B): n = max(n, t[1])
            if p.w & c.w and not (p.w == c.C): n = max(n, t[1])
        elif c.kind in ("valu", "vmem", "ds"):
            if p.w & (c.r | c.w): n = max(n, t[1])
            if c.kind == "valu" and V(p.C) & c.w: n = max(n, t[2])
    if p.kind == "vmem" and hasattr(p, "sdata") and len(p.sdata) >= 3:
        if c.kind == "valu" and p.sdata & c.w: n = max(n, 2)
        elif c.kind in ("vmem", "ds", "mfma") and p.sdata & c.w: n = max(n, 1)
    if p.kind == "salu" and regs("m0") & p.w and c.kind == "vmem" and regs("m0") & c.r: n = max(n, 1)
    return n

def fix(lines):
    out = []
    for line in lines:
        c = Ins(line)
        if c.kind not in ("none", "nop"):
            dist = 0; req = 0
            for p in reversed(out):
                if p.kind == "none": continue
                if p.op in ("s_branch", "s_endpgm"): break
                r = need(p, c) - dist
                req = max(req, r)
                dist += p.ws
                if dist > 24: break
            while req > 0:
                k = min(req, 16)
                out.append(Ins("    s_nop %d" % (k - 1))); req -= k
        out.append(c)
    labels = {i.line.strip()[:-1]: k for k, i in enumerate(out) if i.label}
    for k, b in enumerate(out):
        if b.op.startswith(("s_cbranch", "s_branch")):
            tgt = labels[b.ops[0]]
            pre = [p for p in out[max(0, k - 30):k + 1] if p.kind != "none"]
            post = []
            for q in out[tgt:tgt + 40]:
                if q.kind == "none": continue
                post.append(q)
                if q.op in ("s_branch", "s_endpgm"): break
            dpost = 0
            for c in post:
                dist = dpost
                for p in reversed(pre):
                    if need(p, c) > dist:
                        raise Exception("branch hazard: %s -> %s via %s" % (p.line, c.line, b.line))
                    dist += p.ws
                dpost += c.ws
    return [i.line for i in out]
```

```python
import sys, math
from asmlib import *
import hazard

HEADER = open("cdna_kernels/" + NAME + ".s.ref").read().split("; Override launch")[0]

WS_E = 0
WS_QG = 0x1000
WS_ML = 0x10000
WS_OP = 0x100000
WS_FP = 0x300000
WS_SIZE = 0x500000
STAMP_OFF = 128 << 20
L_CNT = 0
C_Q, C_F, C_QS, C_ST, C_ML, C_R2 = 0, 4, 8, 12, 16, 20
L_QRED = 64
L_FRED = 2112
L_QS = 6720
L_H = 8896
L_ST = 8960
L_MLP = 9472
L_F = 9984
L_RED1 = 10240
L_RED2 = 10752
L_ORED = 11264
L_END = L_ORED + 8 * 4224

sW, sWV = 2, 3
K_, V_, WQ_, WO_, WG_, WU_, WD_, X_, GW_, WS_, OUT_ = 4, 8, 12, 16, 20, 24, 28, 32, 36, 40, 44
def srd(b): return f"s[{b}:{b+3}]"
sG, sI, sCB, sCBF = 48, 49, 50, 51
sKV = 52
sT0, sT1, sT2, sT3 = 53, 54, 55, 56
sSELLO, sSELHI, sC = 57, 58, 59
sCAP = 60
sA, sB = 61, 62
sM0 = 64
sO = 68
sST = 76
sARG = 76

vL, vT4, vT16, vTAG, vKO, vVO, vWQO, vWFO = 0, 1, 2, 3, 4, 5, 6, 7
vA0, vA1, vA2, vA3 = 8, 9, 10, 11
vB0, vB1, vB2, vB3 = 12, 13, 14, 15
vT = 16
vQ = 32
vP = 48
vS = 64
vACC = 96
vRING = 128

def gen(WIN=2, C2=64, stamps=False, nt=True, lds=82440, qpoll_at="K2a", sleep1=2, cover="after"):
    a = Asm()
    NT = " nt" if nt else ""
    nst = [0]
    def stamp():
        if stamps:
            k = nst[0]; nst[0] += 1
            a(f"s_memrealtime s[{sST+2*k}:{sST+2*k+1}]")
    def B(k): return vRING + 32 * k
    def vr(b, n): return f"v[{b}:{b+n-1}]"

    def red_bits345(op, v, t):
        a(f"v_{op}_f32_dpp v{v}, v{v}, v{v} row_ror:8 row_mask:0xf bank_mask:0xf")
        red_bits45(op, v, t)
    def red_bits45(op, v, t):
        a(f"v_mov_b32 v{t}, v{v}")
        a(f"v_permlane16_swap_b32 v{v}, v{t}")
        a(f"v_{op}_f32 v{v}, v{v}, v{t}")
        a(f"v_mov_b32 v{t}, v{v}")
        a(f"v_permlane32_swap_b32 v{v}, v{t}")
        a(f"v_{op}_f32 v{v}, v{v}, v{t}")
    def red2_bits345(v0, v1, t0, t1):
        a(f"v_add_f32_dpp v{v0}, v{v0}, v{v0} row_ror:8 row_mask:0xf bank_mask:0xf")
        a(f"v_add_f32_dpp v{v1}, v{v1}, v{v1} row_ror:8 row_mask:0xf bank_mask:0xf")
        for sw in ("16", "32"):
            a(f"v_mov_b32 v{t0}, v{v0}")
            a(f"v_mov_b32 v{t1}, v{v1}")
            a(f"v_permlane{sw}_swap_b32 v{v0}, v{t0}")
            a(f"v_permlane{sw}_swap_b32 v{v1}, v{t1}")
            a(f"v_add_f32 v{v0}, v{v0}, v{t0}")
            a(f"v_add_f32 v{v1}, v{v1}, v{t1}")
    def reduce_ml(vm, vl, vM, t):
        a(f"v_mov_b32 v{vM}, v{vm}")
        red_bits345("max", vM, t)
        a(f"v_sub_f32 v{t}, v{vm}, v{vM}")
        a(f"v_exp_f32 v{t}, v{t}")
        a(f"v_mul_f32 v{vl}, v{vl}, v{t}")
        red_bits345("add", vl, t)
    def arrive_last(cnt, skip):
        a(f"""
        s_waitcnt lgkmcnt(0)
        v_mov_b32 v{vA0}, {cnt}
        v_mov_b32 v{vA1}, 1
        s_mov_b64 exec, 1
        ds_add_rtn_u32 v{vA0}, v{vA0}, v{vA1}
        s_mov_b64 exec, -1
        s_waitcnt lgkmcnt(0)
        v_readfirstlane_b32 s{sT0}, v{vA0}
        s_cmp_lg_u32 s{sT0}, 7
        s_cbranch_scc1 {skip}
        """)
    def poll_retry(loads, tagregs, tmp, sleep):
        lc = a.label("Lchk"); ld = a.label("Ldone")
        a(f"s_mov_b32 s{sCAP}, 0")
        a(f"{lc}:")
        a(f"v_xor_b32 v{tmp}, v{tagregs[0]}, v{vTAG}")
        for r in tagregs[1:]:
            a(f"v_xor_b32 v{tmp+1}, v{r}, v{vTAG}")
            a(f"v_or_b32 v{tmp}, v{tmp}, v{tmp+1}")
        a(f"v_cmp_ne_u32 vcc, 0, v{tmp}")
        a(f"s_and_b64 exec, exec, vcc")
        a(f"s_cbranch_scc0 {ld}")
        a(f"s_add_u32 s{sCAP}, s{sCAP}, 1")
        a(f"s_cmp_gt_u32 s{sCAP}, 0x40000")
        a(f"s_cbranch_scc1 {ld}")
        if sleep: a(f"s_sleep {sleep}")
        for l in loads: a(l)
        a("s_waitcnt vmcnt(0)")
        a(f"s_branch {lc}")
        a(f"{ld}:")
        a("s_mov_b64 exec, -1")

    if stamps: a(f"s_memrealtime s[{sM0}:{sM0+1}]")
    a(f"""
    s_cmp_ge_u32 s2, 256
    s_cbranch_scc1 L_end
    s_load_dwordx16 s[76:91], s[0:1], 0
    s_load_dwordx8 s[92:99], s[0:1], 64
    s_load_dwordx2 s[{WS_}:{WS_+1}], s[0:1], 96
    v_lshrrev_b32 v{vA0}, 6, v0
    v_lshlrev_b32 v{vT4}, 2, v0
    v_lshlrev_b32 v{vT16}, 4, v0
    v_readfirstlane_b32 s{sWV}, v{vA0}
    v_and_b32 v{vL}, 63, v0
    s_lshr_b32 s{sG}, s2, 6
    s_and_b32 s{sI}, s2, 63
    s_and_b32 s{sT0}, s2, 7
    s_lshr_b32 s{sT1}, s{sI}, 3
    s_lshl_b32 s{sCB}, s{sT0}, 3
    s_add_u32 s{sCB}, s{sCB}, s{sT1}
    s_lshr_b32 s{sT1}, s2, 3
    s_mul_i32 s{sCBF}, s{sT0}, 28
    s_add_u32 s{sCBF}, s{sCBF}, s{sT1}
    s_cmp_lt_u32 s{sT1}, 28
    s_cselect_b32 s{WG_+2}, {1024*7168}, 0
    s_cselect_b32 s{WU_+2}, {1024*7168}, 0
    s_cselect_b32 s{WD_+2}, {3584*2048}, 0
    s_cselect_b32 s{sCBF}, s{sCBF}, 0
    s_mov_b32 s{WQ_+2}, {1024*8192}
    s_mov_b32 s{WQ_+3}, 0x20000
    s_mov_b32 s{X_+2}, 2048
    s_mov_b32 s{X_+3}, 0x20000
    s_mov_b32 s{GW_+2}, 2048
    s_mov_b32 s{GW_+3}, 0x20000
    s_mov_b32 s{WS_+2}, {WS_SIZE if not stamps else (256<<20)}
    s_mov_b32 s{WS_+3}, 0x20000
    s_mov_b32 s{WG_+3}, 0x20000
    s_mov_b32 s{WU_+3}, 0x20000
    v_lshrrev_b32 v{vA0}, 1, v{vL}
    v_and_b32 v{vA1}, 1, v{vL}
    v_lshlrev_b32 v{vA1}, 4, v{vA1}
    v_lshl_add_u32 v{vWQO}, v{vA0}, 15, v{vA1}
    v_mul_u32_u24 v{vWFO}, {4*7168}, v{vA0}
    v_add_u32 v{vWFO}, v{vWFO}, v{vA1}
    v_lshlrev_b32 v{vA2}, 3, v{vA0}
    s_lshl_b32 s{sA}, s{sWV}, 20
    s_lshl_b32 s{sT0}, s{sG}, 11
    s_add_u32 s{sA}, s{sA}, s{sT0}
    s_lshl_b32 s{sT0}, s{sCB}, 5
    s_add_u32 s{sA}, s{sA}, s{sT0}
    s_mul_i32 s{sB}, s{sWV}, {128*7168}
    s_lshl_b32 s{sT0}, s{sCBF}, 5
    s_add_u32 s{sB}, s{sB}, s{sT0}
    s_lshl_b32 s{sT3}, s{sWV}, 8
    s_add_u32 s{sT0}, s{sA}, 8192
    s_add_u32 s{sT1}, s{sA}, 16384
    s_add_u32 s{sT2}, s{sA}, 24576
    s_waitcnt lgkmcnt(0)
    s_mov_b64 s[{WQ_}:{WQ_+1}], s[82:83]
    s_mov_b64 s[{X_}:{X_+1}], s[76:77]
    s_mov_b64 s[{GW_}:{GW_+1}], s[94:95]
    """)
    WQR = B(2); WGR = B(2) + 16; WUR = B(3)
    vXP = vB0
    groups = []
    g0 = [f"buffer_load_dwordx4 {vr(WQR+4*j,4)}, v{vWQO}, {srd(WQ_)}, s{[sA,sT0,sT1,sT2][j]} offen{NT}" for j in range(4)]
    g0 += [f"buffer_load_dwordx2 {vr(vXP,2)}, v{vA2}, {srd(X_)}, s{sT3} offen",
           f"buffer_load_dwordx2 {vr(vXP+2,2)}, v{vA2}, {srd(GW_)}, s{sT3} offen",
           f"buffer_load_dword v{vTAG}, off, {srd(WS_)}, 0 sc1"]
    for l in g0: a(l)
    a(f"""
    s_mov_b64 s[{WG_}:{WG_+1}], s[88:89]
    s_mov_b64 s[{WU_}:{WU_+1}], s[90:91]
    s_add_u32 s{sT0}, s{sB}, 7168
    s_add_u32 s{sT1}, s{sB}, {2*7168}
    s_add_u32 s{sT2}, s{sB}, {3*7168}
    """)
    for j in range(4): a(f"buffer_load_dwordx4 {vr(WGR+4*j,4)}, v{vWFO}, {srd(WG_)}, s{[sB,sT0,sT1,sT2][j]} offen{NT}")
    for j in range(4): a(f"buffer_load_dwordx4 {vr(WUR+4*j,4)}, v{vWFO}, {srd(WU_)}, s{[sB,sT0,sT1,sT2][j]} offen{NT}")
    a(f"""
    s_mov_b64 s[{K_}:{K_+1}], s[78:79]
    s_mov_b64 s[{V_}:{V_+1}], s[80:81]
    s_mov_b64 s[{WO_}:{WO_+1}], s[84:85]
    s_mov_b64 s[{WD_}:{WD_+1}], s[92:93]
    s_mov_b64 s[{OUT_}:{OUT_+1}], s[96:97]
    s_mov_b32 s{K_+2}, 0x4000000
    s_mov_b32 s{K_+3}, 0x20000
    s_mov_b32 s{V_+2}, 0x4000000
    s_mov_b32 s{V_+3}, 0x20000
    s_mov_b32 s{WO_+2}, {4096*2048}
    s_mov_b32 s{WO_+3}, 0x20000
    s_mov_b32 s{WD_+3}, 0x20000
    s_mov_b32 s{OUT_+2}, 2048
    s_mov_b32 s{OUT_+3}, 0x20000
    s_mov_b32 s{sSELLO}, 0x05040100
    s_mov_b32 s{sSELHI}, 0x07060302
    s_mov_b32 s{sC}, {hex(f2u(128**-0.5 * math.log2(math.e)))}
    s_lshl_b32 s{sKV}, s2, 18
    s_lshl_b32 s{sT0}, s{sWV}, 13
    s_add_u32 s{sKV}, s{sKV}, s{sT0}
    v_and_b32 v{vA0}, 3, v{vL}
    v_lshlrev_b32 v{vA0}, 10, v{vA0}
    v_bfe_u32 v{vA1}, v{vL}, 2, 2
    v_lshl_add_u32 v{vA0}, v{vA1}, 8, v{vA0}
    v_lshrrev_b32 v{vA1}, 4, v{vL}
    v_lshl_add_u32 v{vKO}, v{vA1}, 4, v{vA0}
    v_lshlrev_b32 v{vVO}, 4, v{vL}
    v_mov_b32 v{vA0}, 0
    v_lshlrev_b32 v{vA1}, 2, v{vL}
    s_cmp_lg_u32 s{sWV}, 0
    s_cbranch_scc1 L_noinit
    s_mov_b64 exec, 0xffff
    ds_write_b32 v{vA1}, v{vA0}
    s_mov_b64 exec, -1
    s_waitcnt lgkmcnt(0)
    L_noinit:
    """)
    if stamps:
        for k in range(13): a(f"s_mov_b64 s[{sST+2*k}:{sST+2*k+1}], s[{sM0}:{sM0+1}]")
        nst[0] = 1
    for r in range(25): a(f"v_mov_b32 v{vS+r}, 0")
    a("s_barrier")

    def kgroup(t, u):
        base = B(t) + 16 * u
        pre = [f"s_add_u32 s{sT3}, s{sKV}, {t*65536 + u*4096}"]
        return pre, [f"buffer_load_dwordx4 {vr(base+4*s,4)}, v{vKO}, {srd(K_)}, s{sT3} offen offset:{s*64}{NT}" for s in range(4)]
    def vgroup(t, u):
        base = B(t) + 16 * u
        pre = [f"s_add_u32 s{sT3}, s{sKV}, {t*65536 + u*4096}"]
        return pre, [f"buffer_load_dwordx4 {vr(base+4*s,4)}, v{vVO}, {srd(V_)}, s{sT3} offen offset:{s*1024}{NT}" for s in range(4)]
    vQG = vB0
    qload = f"buffer_load_dwordx2 {vr(vQG,2)}, v{vA3}, {srd(WS_)}, s{sA} offen sc1"
    qpre = [f"v_lshrrev_b32 v{vA3}, 1, v{vT16}", f"s_lshl_b32 s{sA}, s{sG}, 12", f"s_add_u32 s{sA}, s{sA}, {WS_QG}"]
    vML = vB0
    mlload = f"buffer_load_dwordx4 {vr(vML,4)}, v{vT16}, {srd(WS_)}, s{sA} offen sc1"
    mlpre = [f"s_lshl_b32 s{sA}, s{sG}, 13", f"s_add_u32 s{sA}, s{sA}, {WS_ML}"]

    G = []
    G.append(("wq", [], g0)); G.append(("gate", [], [0]*4)); G.append(("up", [], [0]*4))
    PRE_ISSUED = 3
    for t in range(4):
        for u in range(2):
            n = f"K{t}{'ab'[u]}"
            p, l = kgroup(t, u)
            if n == qpoll_at: p, l = qpre + p, [qload] + l
            G.append((n, p, l))
    COV = B(0)
    def wogroup():
        pre = [f"s_lshl_b32 s{sB}, s{sG}, 3", f"s_lshr_b32 s{sT0}, s{sI}, 3", f"s_add_u32 s{sB}, s{sB}, s{sT0}",
               f"s_lshl_b32 s{sB}, s{sB}, 7", f"s_and_b32 s{sT0}, s{sI}, 7", f"s_add_u32 s{sB}, s{sB}, s{sT0}", f"s_lshl_b32 s{sB}, s{sB}, 11"]
        l = []
        for e in range(16):
            l.append((f"s_add_u32 s{sT3}, s{sB}, {e*16384}", f"buffer_load_dword v{COV+e}, v{vT4}, {srd(WO_)}, s{sT3} offen{NT}"))
        return pre, l
    def wdgroup():
        pre = [f"s_lshl_b32 s{sB}, s{sCBF}, 15"]
        l = []
        for e in range(16):
            if e % 2 == 0:
                l.append((f"s_add_u32 s{sT3}, s{sB}, {e*2048}", f"buffer_load_dword v{COV+16+e}, v{vT4}, {srd(WD_)}, s{sT3} offen{NT}"))
            else:
                l.append(f"buffer_load_dword v{COV+16+e}, v{vT4}, {srd(WD_)}, s{sT3} offen offset:2048{NT}")
        return pre, l
    for t in range(4):
        for u in range(2):
            n = f"V{t}{'ab'[u]}"
            p, l = vgroup(t, u)
            if n == "V3a": p, l = mlpre + p, [mlload] + l
            G.append((n, p, l))
    p, l = wdgroup(); G.append(("wd", p, l))
    p, l = wogroup(); G.append(("wo", p, l))
    names = [g[0] for g in G]

    vX = vT
    aq, ag, au, az = vS, vS + 8, vS + 16, vS + 24
    def gemv(W, acc):
        for j in range(4):
            for w in range(4):
                a(f"v_dot2c_f32_bf16 v{acc+2*w}, v{W+4*j+w}, v{vX+2*j}")
                a(f"v_dot2c_f32_bf16 v{acc+2*w+1}, v{W+4*j+w}, v{vX+2*j+1}")
    def dppred(accs):
        for n in (2, 4, 8):
            for r in accs: a(f"v_add_f32_dpp v{r}, v{r}, v{r} row_ror:{n} row_mask:0xf bank_mask:0xf")
    def task_q():
        a(f"v_add_u32 v{vTAG}, 1, v{vTAG}")
        for h in range(2):
            a(f"v_and_b32 v{vX+4*h}, 0xffff, v{vXP+h}")
            a(f"v_lshlrev_b32 v{vX+4*h+1}, 16, v{vXP+h}")
            a(f"v_lshrrev_b32 v{vX+4*h+2}, 16, v{vXP+h}")
            a(f"v_and_b32 v{vX+4*h+3}, 0xffff0000, v{vXP+h}")
        gemv(WQR, aq)
        dppred(range(aq, aq + 8))
        skip = a.label("Lq")
        a(f"""
        v_lshrrev_b32 v{vA0}, 4, v{vL}
        v_lshlrev_b32 v{vA0}, 6, v{vA0}
        v_and_b32 v{vA1}, 1, v{vL}
        v_lshl_add_u32 v{vA0}, v{vA1}, 5, v{vA0}
        s_lshl_b32 s{sT0}, s{sWV}, 8
        v_add_u32 v{vA0}, s{sT0}, v{vA0}
        s_mov_b32 exec_lo, 0x00030003
        s_mov_b32 exec_hi, 0x00030003
        ds_write_b128 v{vA0}, {vr(aq,4)} offset:{L_QRED}
        ds_write_b128 v{vA0}, {vr(aq+4,4)} offset:{L_QRED+16}
        s_mov_b64 exec, -1
        """)
        arrive_last(C_Q, skip)
        a(f"""
        v_lshrrev_b32 v{vA0}, 4, v{vL}
        v_lshlrev_b32 v{vA0}, 9, v{vA0}
        v_and_b32 v{vA1}, 15, v{vL}
        v_lshl_add_u32 v{vA0}, v{vA1}, 2, v{vA0}
        v_add_u32 v{vA0}, {L_QRED}, v{vA0}
        """)
        for k in range(4): a(f"ds_read2_b32 {vr(aq+2*k,2)}, v{vA0} offset0:{32*k} offset1:{32*k+16}")
        a("s_waitcnt lgkmcnt(0)")
        for k in range(4): a(f"v_add_f32 v{aq+2*k}, v{aq+2*k}, v{aq+2*k+1}")
        a(f"v_add_f32 v{aq}, v{aq}, v{aq+2}"); a(f"v_add_f32 v{aq+4}, v{aq+4}, v{aq+6}"); a(f"v_add_f32 v{aq}, v{aq}, v{aq+4}")
        red_bits45("add", aq, vA0)
        a(f"""
        v_mov_b32_dpp v{vA1}, v{aq} quad_perm:[1,0,3,2] row_mask:0xf bank_mask:0xf
        v_cvt_pk_bf16_f32 v{vA0}, v{aq}, v{vA1}
        v_mov_b32 v{vA1}, v{vTAG}
        v_lshlrev_b32 v{vA2}, 2, v{vL}
        s_lshl_b32 s{sT0}, s{sG}, 12
        s_lshl_b32 s{sT1}, s{sCB}, 6
        s_add_u32 s{sT0}, s{sT0}, s{sT1}
        s_add_u32 s{sT0}, s{sT0}, {WS_QG}
        s_mov_b64 exec, 0x5555
        buffer_store_dwordx2 {vr(vA0,2)}, v{vA2}, {srd(WS_)}, s{sT0} offen sc1
        s_mov_b64 exec, -1
        {skip}:
        """)
        stamp()
    def task_gate():
        gemv(WGR, ag)
        for h in range(2):
            a(f"v_lshlrev_b32 v{vA0}, 16, v{vXP+2+h}")
            a(f"v_and_b32 v{vA1}, 0xffff0000, v{vXP+2+h}")
            a(f"v_mul_f32 v{vA0}, v{vA0}, v{vX+4*h+1}")
            a(f"v_mul_f32 v{vA1}, v{vA1}, v{vX+4*h+3}")
            a(f"v_cvt_pk_bf16_f32 v{vA0}, v{vA0}, v{vA1}")
            a(f"v_lshlrev_b32 v{vA1}, 16, v{vA0}")
            a(f"v_and_b32 v{vA0}, 0xffff0000, v{vA0}")
            a(f"v_add_f32 v{az}, v{az}, v{vA1}")
            a(f"v_add_f32 v{az}, v{az}, v{vA0}")
        dppred(list(range(ag, ag + 8)) + [az])
    def task_up():
        gemv(WUR, au)
        dppred(range(au, au + 8))
        skip = a.label("Lf")
        a(f"""
        v_lshrrev_b32 v{vA0}, 4, v{vL}
        s_lshl_b32 s{sT0}, s{sWV}, 2
        v_add_u32 v{vA0}, s{sT0}, v{vA0}
        v_mul_u32_u24 v{vA0}, 144, v{vA0}
        v_and_b32 v{vA1}, 1, v{vL}
        v_lshl_add_u32 v{vA1}, v{vA1}, 5, v{vA0}
        s_mov_b32 exec_lo, 0x00030003
        s_mov_b32 exec_hi, 0x00030003
        ds_write_b128 v{vA1}, {vr(ag,4)} offset:{L_FRED}
        ds_write_b128 v{vA1}, {vr(ag+4,4)} offset:{L_FRED+16}
        ds_write_b128 v{vA1}, {vr(au,4)} offset:{L_FRED+64}
        ds_write_b128 v{vA1}, {vr(au+4,4)} offset:{L_FRED+80}
        ds_write_b32 v{vA0}, v{az} offset:{L_FRED+128}
        s_mov_b64 exec, -1
        """)
        arrive_last(C_F, skip)
        a(f"""
        v_lshrrev_b32 v{vA0}, 4, v{vL}
        v_mul_u32_u24 v{vA0}, {8*144}, v{vA0}
        v_and_b32 v{vA1}, 15, v{vL}
        v_lshl_add_u32 v{vA1}, v{vA1}, 2, v{vA0}
        """)
        for k in range(8):
            a(f"ds_read_b32 v{ag+k}, v{vA1} offset:{L_FRED+144*k}")
            a(f"ds_read_b32 v{au+k}, v{vA1} offset:{L_FRED+144*k+64}")
            a(f"ds_read_b32 v{aq+k}, v{vA0} offset:{L_FRED+144*k+128}")
            if k in (3,): a("s_waitcnt lgkmcnt(0)")
        a("s_waitcnt lgkmcnt(0)")
        for step in (1, 2, 4):
            for base in (ag, au, aq):
                for k in range(0, 8, 2 * step):
                    a(f"v_add_f32 v{base+k}, v{base+k}, v{base+k+step}")
        red_bits45("add", ag, vA0); red_bits45("add", au, vA0); red_bits45("add", aq, vA0)
        a(f"""
        v_cvt_pk_bf16_f32 v{vA0}, v{ag}, v{au}
        v_lshlrev_b32 v{vA1}, 16, v{vA0}
        v_and_b32 v{vA0}, 0xffff0000, v{vA0}
        v_max_f32 v{vA1}, 0, v{vA1}
        v_mul_f32 v{vA0}, v{vA0}, v{vA1}
        v_mov_b32_dpp v{vA1}, v{vA0} quad_perm:[1,0,3,2] row_mask:0xf bank_mask:0xf
        v_cvt_pk_bf16_f32 v{vA0}, v{vA0}, v{vA1}
        v_lshlrev_b32 v{vA2}, 1, v{vL}
        s_mov_b64 exec, 0x5555
        ds_write_b32 v{vA2}, v{vA0} offset:{L_H}
        s_mov_b64 exec, -1
        v_cvt_pk_bf16_f32 v{vA0}, v{aq}, v{aq}
        v_and_b32 v{vA0}, 0xffff0000, v{vA0}
        v_mul_f32 v{vA0}, {hex(f2u(-math.log2(math.e)))}, v{vA0}
        v_exp_f32 v{vA0}, v{vA0}
        v_add_f32 v{vA0}, 1.0, v{vA0}
        v_rcp_f32 v{vA0}, v{vA0}
        v_cvt_pk_bf16_f32 v{vA0}, v{vA0}, v{vA0}
        v_and_b32 v{vA0}, 0xffff0000, v{vA0}
        v_sub_f32 v{vA1}, 1.0, v{vA0}
        v_cvt_pk_bf16_f32 v{vA1}, v{vA1}, v{vA1}
        v_and_b32 v{vA1}, 0xffff0000, v{vA1}
        v_mov_b32 v{vA2}, 0
        s_mov_b64 exec, 1
        ds_write_b64 v{vA2}, {vr(vA0,2)} offset:{L_H+32}
        s_mov_b64 exec, -1
        {skip}:
        """)
    def task_qcheck():
        poll_retry([qload], [vQG + 1], vA0, 2)
        a(f"""
        s_mul_i32 s{sT0}, s{sWV}, 272
        v_lshl_add_u32 v{vA0}, v{vL}, 2, s{sT0}
        ds_write_b32 v{vA0}, v{vQG} offset:{L_QS}
        s_waitcnt lgkmcnt(0)
        v_mov_b32 v{vA0}, {C_QS}
        v_mov_b32 v{vA1}, 1
        s_mov_b64 exec, 1
        ds_add_u32 v{vA0}, v{vA1}
        s_mov_b64 exec, -1
        """)
        stamp()
    def task_qwait():
        l = a.label("Lqw"); d = a.label("Lqd")
        a(f"""
        v_mov_b32 v{vA0}, {C_QS}
        s_mov_b32 s{sCAP}, 0
        {l}:
        ds_read_b32 v{vA1}, v{vA0}
        s_waitcnt lgkmcnt(0)
        v_readfirstlane_b32 s{sT0}, v{vA1}
        s_cmp_ge_u32 s{sT0}, 8
        s_cbranch_scc1 {d}
        s_add_u32 s{sCAP}, s{sCAP}, 1
        s_cmp_gt_u32 s{sCAP}, 0x400000
        s_cbranch_scc1 {d}
        s_sleep 1
        s_branch {l}
        {d}:
        v_and_b32 v{vA0}, 7, v{vL}
        v_mul_u32_u24 v{vA0}, 272, v{vA0}
        v_lshrrev_b32 v{vA1}, 4, v{vL}
        v_lshl_add_u32 v{vA0}, v{vA1}, 4, v{vA0}
        """)
        for s in range(4): a(f"ds_read_b128 {vr(vQ+4*s,4)}, v{vA0} offset:{L_QS+64*s}")
        a("s_waitcnt lgkmcnt(0)")
    def task_k(t, u):
        base = B(t) + 16 * u; d = vS + 8 * t + 4 * u
        for s in range(4):
            c = "0" if s == 0 else vr(d, 4)
            a(f"v_mfma_f32_16x16x32_bf16 {vr(d,4)}, {vr(base+4*s,4)}, {vr(vQ+4*s,4)}, {c}")
    def task_softmax():
        m = vA0; lsum = vA1
        a(f"v_max3_f32 v{m}, v{vS}, v{vS+1}, v{vS+2}")
        a(f"v_max3_f32 v{vA2}, v{vS+3}, v{vS+4}, v{vS+5}")
        for k in range(6, 30, 4):
            a(f"v_max3_f32 v{m}, v{m}, v{vS+k}, v{vS+k+1}")
            a(f"v_max3_f32 v{vA2}, v{vA2}, v{vS+k+2}, v{vS+k+3}")
        a(f"v_max3_f32 v{m}, v{m}, v{vS+30}, v{vS+31}")
        a(f"v_max_f32 v{m}, v{m}, v{vA2}")
        red_bits45("max", m, vA2)
        a(f"v_mul_f32 v{m}, s{sC}, v{m}")
        for k in range(32): a(f"v_fma_f32 v{vS+k}, v{vS+k}, s{sC}, -v{m}")
        for k in range(32): a(f"v_exp_f32 v{vS+k}, v{vS+k}")
        for k in range(16): a(f"v_cvt_pk_bf16_f32 v{vP+k}, v{vS+2*k}, v{vS+2*k+1}")
        for step in (1, 2, 4, 8, 16):
            for k in range(0, 32, 2 * step): a(f"v_add_f32 v{vS+k}, v{vS+k}, v{vS+k+step}")
        a(f"v_mov_b32 v{lsum}, v{vS}")
        red_bits45("add", lsum, vA2)
        skip = a.label("Ls")
        a(f"""
        s_lshl_b32 s{sT0}, s{sWV}, 6
        v_lshl_add_u32 v{vA2}, v{vL}, 3, s{sT0}
        s_mov_b64 exec, 0xff
        ds_write_b64 v{vA2}, {vr(vA0,2)} offset:{L_ST}
        s_mov_b64 exec, -1
        """)
        arrive_last(C_ST, skip)
        a(f"""
        v_lshlrev_b32 v{vA2}, 3, v{vL}
        ds_read_b64 {vr(vT,2)}, v{vA2} offset:{L_ST}
        s_waitcnt lgkmcnt(0)
        """)
        reduce_ml(vT, vT + 1, vA0, vA3)
        a(f"""
        v_mov_b32 v{vA1}, v{vTAG}
        v_mov_b32 v{vA2}, v{vT+1}
        v_mov_b32 v{vA3}, v{vTAG}
        s_lshl_b32 s{sT0}, s2, 7
        s_add_u32 s{sT0}, s{sT0}, {WS_ML}
        s_mov_b64 exec, 0xff
        buffer_store_dwordx4 {vr(vA0,4)}, v{vVO}, {srd(WS_)}, s{sT0} offen sc1
        s_mov_b64 exec, -1
        {skip}:
        """)
        stamp()
    def task_v(t):
        R = B(t)
        for w in range(4):
            T = vT + 8 * (w % 2)
            for b, sel in ((0, sSELLO), (1, sSELHI)):
                for uu in range(4):
                    a(f"v_perm_b32 v{T+4*b+uu}, v{R+4*(2*uu+1)+w}, v{R+4*(2*uu)+w}, s{sel}")
            for b in range(2):
                i = 2 * w + b
                c = "0" if t == 0 else vr(vACC + 4 * i, 4)
                a(f"v_mfma_f32_16x16x32_bf16 {vr(vACC+4*i,4)}, {vr(T+4*b,4)}, {vr(vP+4*t,4)}, {c}")
    def task_ml():
        poll_retry([mlload], [vML + 1, vML + 3], vA0, 2)
        reduce_ml(vML, vML + 2, vA0, vA3)
        skip = a.label("Lm")
        a(f"""
        v_mov_b32 v{vA1}, v{vML+2}
        s_lshl_b32 s{sT0}, s{sWV}, 6
        v_lshl_add_u32 v{vA2}, v{vL}, 3, s{sT0}
        s_mov_b64 exec, 0xff
        ds_write_b64 v{vA2}, {vr(vA0,2)} offset:{L_MLP}
        s_mov_b64 exec, -1
        """)
        arrive_last(C_ML, skip)
        a(f"""
        v_lshlrev_b32 v{vA2}, 3, v{vL}
        ds_read_b64 {vr(vS,2)}, v{vA2} offset:{L_MLP}
        ds_read_b32 v{vS+2}, v{vA2} offset:{L_ST}
        s_waitcnt lgkmcnt(0)
        """)
        reduce_ml(vS, vS + 1, vA0, vA3)
        a(f"""
        v_sub_f32 v{vA1}, v{vS+2}, v{vA0}
        v_exp_f32 v{vA1}, v{vA1}
        v_rcp_f32 v{vA2}, v{vS+1}
        v_mul_f32 v{vA1}, v{vA1}, v{vA2}
        v_and_b32 v{vA2}, 7, v{vL}
        v_lshlrev_b32 v{vA2}, 5, v{vA2}
        v_lshrrev_b32 v{vA3}, 3, v{vL}
        v_lshl_add_u32 v{vA2}, v{vA3}, 2, v{vA2}
        ds_write_b32 v{vA2}, v{vA1} offset:{L_F}
        {skip}:
        """)
    def task_publish_o():
        stamp()
        a(f"""
        v_and_b32 v{vA0}, 7, v{vL}
        v_mul_u32_u24 v{vA0}, 528, v{vA0}
        v_lshrrev_b32 v{vA1}, 4, v{vL}
        v_lshl_add_u32 v{vA0}, v{vA1}, 4, v{vA0}
        s_mul_i32 s{sT0}, s{sWV}, 4224
        v_add_u32 v{vA0}, s{sT0}, v{vA0}
        s_mul_i32 s{sT0}, s{sWV}, 528
        v_lshl_add_u32 v{vA1}, v{vL}, 3, s{sT0}
        s_lshl_b32 s{sT0}, s{sWV}, 5
        v_mov_b32 v{vA2}, s{sT0}
        s_mov_b32 exec_lo, 0x00ff00ff
        s_mov_b32 exec_hi, 0x00ff00ff
        """)
        for i in range(8): a(f"ds_write_b128 v{vA0}, {vr(vACC+4*i,4)} offset:{L_ORED+64*i}")
        a(f"""
        s_mov_b64 exec, -1
        s_lshl_b32 s{sT0}, s2, 13
        s_add_u32 s{sT0}, s{sT0}, {WS_OP}
        s_waitcnt lgkmcnt(0)
        s_barrier
        ds_read_b128 {vr(vT,4)}, v{vA2} offset:{L_F}
        ds_read_b128 {vr(vT+4,4)}, v{vA2} offset:{L_F+16}
        """)
        for w in range(8): a(f"ds_read_b64 {vr(vS+2*w,2)}, v{vA1} offset:{L_ORED+4224*w}")
        a(f"v_mov_b32 v{vB1}, v{vTAG}")
        a(f"v_mov_b32 v{vB3}, v{vTAG}")
        a("s_waitcnt lgkmcnt(7)")
        a(f"v_mul_f32 v{vB0}, v{vS}, v{vT}")
        a(f"v_mul_f32 v{vB2}, v{vS+1}, v{vT}")
        for w in range(1, 8):
            a(f"s_waitcnt lgkmcnt({7-w})")
            a(f"v_fmac_f32 v{vB0}, v{vS+2*w}, v{vT+w}")
            a(f"v_fmac_f32 v{vB2}, v{vS+2*w+1}, v{vT+w}")
        a(f"buffer_store_dwordx4 {vr(vB0,4)}, v{vT16}, {srd(WS_)}, s{sT0} offen sc1")
        stamp()

    tasks = {n: [] for n in names}
    tasks["wq"] = [task_q]; tasks["gate"] = [task_gate]; tasks["up"] = [task_up]
    qi = names.index(qpoll_at)
    tasks[qpoll_at].append(task_qcheck)
    nxt = names[qi + 1]
    tasks[nxt].append(task_qwait)
    for t in range(4):
        for u in range(2):
            n = f"K{t}{'ab'[u]}"
            at = n if names.index(n) > qi + 1 else nxt
            tasks[at].append(lambda t=t, u=u: (task_k(t, u), consumed.add(f"K{t}{'ab'[u]}")))
    tasks["K3b"].append(task_softmax)
    for t in range(4):
        tasks[f"V{t}b"].append(lambda t=t: (task_v(t), consumed.add(f"V{t}")))
    tasks["V3a"].append(task_ml)
    tasks["V3b"].append(task_publish_o)
    consumed = set()
    prereq = {"K2a": "gate", "K2b": "gate", "K3a": "up", "K3b": "up", "wd": "V0", "wo": "V0"}
    for t in range(4):
        for u in "ab": prereq[f"V{t}{u}"] = f"K{t}{u}"
    cnt = [len(g[2]) for g in G]
    n = len(G)
    arrived = 0
    def run_tasks(k):
        for f in tasks[names[k]]: f()
        consumed.add(names[k])if names[k] in ("wq", "gate", "up") else None
    issued = PRE_ISSUED
    stop_at = names.index("V3b")
    while arrived <= stop_at:
        out = sum(cnt[arrived + 1:issued])
        a(f"s_waitcnt vmcnt({min(out,63)})")
        while issued < n and issued - (arrived + 1) < WIN:
            nm, pre, loads = G[issued]
            if nm in prereq and prereq[nm] not in consumed: break
            for p in pre: a(p)
            for l in loads:
                if isinstance(l, tuple):
                    for x in l: a(x)
                else: a(l)
            issued += 1
        run_tasks(arrived)
        arrived += 1
        while issued < n and issued - arrived < WIN:
            nm, pre, loads = G[issued]
            if nm in prereq and prereq[nm] not in consumed: break
            for p in pre: a(p)
            for l in loads:
                if isinstance(l, tuple):
                    for x in l: a(x)
                else: a(l)
            issued += 1
    assert issued == n, (issued, n)

    vH1 = vS
    a(f"""
    v_lshrrev_b32 v{vA0}, 7, v{vT16}
    v_lshlrev_b32 v{vA0}, 13, v{vA0}
    v_and_b32 v{vA1}, 0x70, v{vT16}
    v_add_u32 v{vA3}, v{vA0}, v{vA1}
    s_lshl_b32 s{sA}, s{sG}, 19
    s_lshl_b32 s{sT0}, s{sI}, 7
    s_add_u32 s{sA}, s{sA}, s{sT0}
    s_add_u32 s{sA}, s{sA}, {WS_OP}
    """)
    h1 = f"buffer_load_dwordx4 {vr(vH1,4)}, v{vA3}, {srd(WS_)}, s{sA} offen sc1"
    a(h1)
    PW = B(1)
    a(f"v_mov_b32 v{vA2}, 0")
    a(f"ds_read_b128 {vr(vT,4)}, v{vA2} offset:{L_H}")
    a(f"ds_read_b128 {vr(vT+4,4)}, v{vA2} offset:{L_H+16}")
    a(f"ds_read_b64 {vr(vT+8,2)}, v{vA2} offset:{L_H+32}")
    a(f"v_mov_b32 v{vT+10}, 0"); a(f"v_mov_b32 v{vT+11}, 0"); a(f"v_mov_b32 v{vT+12}, 0"); a(f"v_mov_b32 v{vT+13}, 0")
    a("s_waitcnt vmcnt(18)")
    for p in range(8):
        a(f"v_perm_b32 v{PW+16+2*p}, v{COV+16+2*p+1}, v{COV+16+2*p}, s{sSELLO}")
        a(f"v_perm_b32 v{PW+16+2*p+1}, v{COV+16+2*p+1}, v{COV+16+2*p}, s{sSELHI}")
    a("s_waitcnt lgkmcnt(0)")
    for p in range(8):
        a(f"v_dot2c_f32_bf16 v{vT+10}, v{PW+16+2*p}, v{vT+p}")
        a(f"v_dot2c_f32_bf16 v{vT+11}, v{PW+16+2*p+1}, v{vT+p}")
    a("s_waitcnt vmcnt(2)")
    for p in range(8):
        a(f"v_perm_b32 v{PW+2*p}, v{COV+2*p+1}, v{COV+2*p}, s{sSELLO}")
        a(f"v_perm_b32 v{PW+2*p+1}, v{COV+2*p+1}, v{COV+2*p}, s{sSELHI}")
    a(f"v_mul_f32 v{vB0}, v{vT+10}, v{vT+9}")
    a(f"v_mul_f32 v{vB2}, v{vT+11}, v{vT+9}")
    a(f"s_lshl_b32 s{sT1}, s{sWV}, 6")
    a(f"v_lshl_add_u32 v{vA2}, v{vL}, 3, s{sT1}")
    a(f"v_lshlrev_b32 v{vT+14}, 3, v{vL}")
    a(f"s_lshl_b32 s{sB}, s2, 13")
    a(f"s_add_u32 s{sB}, s{sB}, {WS_FP}")
    a("s_waitcnt vmcnt(0)")
    stamp()
    poll_retry([h1], [vH1 + 1, vH1 + 3], vA0, sleep1)
    stamp()
    a(f"v_mov_b32 v{vH1+1}, v{vH1+2}")
    red2_bits345(vH1, vH1 + 1, vA0, vA1)
    a(f"""
    s_mov_b64 exec, 0xff
    ds_write_b64 v{vA2}, {vr(vH1,2)} offset:{L_RED1}
    s_mov_b64 exec, -1
    s_waitcnt lgkmcnt(0)
    s_barrier
    ds_read_b64 {vr(vH1,2)}, v{vT+14} offset:{L_RED1}
    s_waitcnt lgkmcnt(0)
    """)
    red2_bits345(vH1, vH1 + 1, vA0, vA1)
    a(f"v_cvt_pk_bf16_f32 v{vA0}, v{vH1}, v{vH1+1}")
    for p in range(8): a(f"v_readlane_b32 s{sO+p}, v{vA0}, {p}")
    for p in range(8):
        a(f"v_dot2c_f32_bf16 v{vT+12}, s{sO+p}, v{PW+2*p}")
        a(f"v_dot2c_f32_bf16 v{vT+13}, s{sO+p}, v{PW+2*p+1}")
    a(f"v_fmac_f32 v{vB0}, v{vT+12}, v{vT+8}")
    a(f"v_fmac_f32 v{vB2}, v{vT+13}, v{vT+8}")
    a(f"buffer_store_dwordx4 {vr(vB0,4)}, v{vT16}, {srd(WS_)}, s{sB} offen sc1")
    stamp()
    CC = 1024 // C2; PC = CC // 2; NL = PC // 2
    lpc = int(math.log2(PC))
    a(f"s_cmp_ge_u32 s2, {C2}")
    a(f"s_cbranch_scc1 L_fin")
    a(f"""
    v_lshrrev_b32 v{vA0}, {4+lpc}, v{vT16}
    v_lshlrev_b32 v{vA0}, 13, v{vA0}
    v_and_b32 v{vA1}, {(PC-1)*16}, v{vT16}
    v_add_u32 v{vA3}, v{vA0}, v{vA1}
    s_mul_i32 s{sA}, s2, {CC*8}
    s_add_u32 s{sA}, s{sA}, {WS_FP}
    """)
    so = [sA, sT1, sT2, sT3]
    for k in range(1, NL): a(f"s_add_u32 s{so[k]}, s{sA}, {k*(512//PC)*8192}")
    h2 = [f"buffer_load_dwordx4 {vr(vS+4*k,4)}, v{vA3}, {srd(WS_)}, s{so[k]} offen sc1" for k in range(NL)]
    for l in h2: a(l)
    a("s_waitcnt vmcnt(0)")
    tg = []
    for k in range(NL): tg += [vS + 4 * k + 1, vS + 4 * k + 3]
    poll_retry(h2, tg, vA0, sleep1)
    stamp()
    for k in range(1, NL):
        a(f"v_add_f32 v{vS}, v{vS}, v{vS+4*k}")
        a(f"v_add_f32 v{vS+2}, v{vS+2}, v{vS+4*k+2}")
    a(f"v_mov_b32 v{vS+1}, v{vS+2}")
    def red_low(v0, v1, frm):
        n = frm
        while n < 8:
            a(f"v_add_f32_dpp v{v0}, v{v0}, v{v0} row_ror:{n} row_mask:0xf bank_mask:0xf")
            a(f"v_add_f32_dpp v{v1}, v{v1}, v{v1} row_ror:{n} row_mask:0xf bank_mask:0xf")
            n *= 2
    red_low(vS, vS + 1, PC)
    red2_bits345(vS, vS + 1, vA0, vA1)
    a(f"""
    s_mov_b64 exec, 0xff
    ds_write_b64 v{vA2}, {vr(vS,2)} offset:{L_RED2}
    s_mov_b64 exec, -1
    """)
    arrive_last(C_R2, "L_fin")
    a(f"""
    ds_read_b64 {vr(vS,2)}, v{vT+14} offset:{L_RED2}
    s_waitcnt lgkmcnt(0)
    """)
    red2_bits345(vS, vS + 1, vA0, vA1)
    a(f"""
    v_cvt_pk_bf16_f32 v{vA0}, v{vS}, v{vS+1}
    v_lshlrev_b32 v{vA1}, 2, v{vL}
    s_mul_i32 s{sT0}, s2, {CC*2}
    s_mov_b64 exec, {(1<<PC)-1}
    buffer_store_dword v{vA0}, v{vA1}, {srd(OUT_)}, s{sT0} offen
    s_cmp_lg_u32 s2, 0
    s_cbranch_scc1 L_fin
    s_mov_b64 exec, 1
    buffer_store_dword v{vTAG}, off, {srd(WS_)}, 0 sc1
    L_fin:
    """)
    if stamps:
        a("s_mov_b64 exec, -1")
        ns = nst[0] + 1
        k = nst[0]
        a("s_waitcnt vmcnt(0)")
        a(f"s_memrealtime s[{sST+2*k}:{sST+2*k+1}]")
        a(f"s_lshl_b32 s{sT0}, s2, 3")
        a(f"s_add_u32 s{sT0}, s{sT0}, s{sWV}")
        a(f"s_mul_i32 s{sT0}, s{sT0}, {ns*8}")
        a(f"s_add_u32 s{sT0}, s{sT0}, {STAMP_OFF}")
        a("s_waitcnt lgkmcnt(0)")
        a("s_mov_b64 exec, 1")
        for j in range(ns):
            a(f"v_mov_b32 v{vA0}, s{sST+2*j}")
            a(f"v_mov_b32 v{vA1}, s{sST+2*j+1}")
            a(f"buffer_store_dwordx2 {vr(vA0,2)}, off, {srd(WS_)}, s{sT0} offset:{8*j}")
        print("stamps:", ns)
    a("L_end:")
    a("s_endpgm")
    lines = hazard.fix(a.lines)
    return wrap_single("\n".join(lines), 256, 512, lds, 256, header=HEADER)

import struct
def f2u(x): return struct.unpack("<I", struct.pack("<f", x))[0]

if __name__ == "__main__":
    out = sys.argv[1]
    kw = {}
    for s in sys.argv[2:]:
        k, v = s.split("=")
        try: v = int(v)
        except: pass
        kw[k] = v
    open(out, "w").write(gen(**kw))
```

```python
import sys, math, struct
from asmlib import *
import hazard
def f2u(x): return struct.unpack("<I", struct.pack("<f", x))[0]

HEADER = open("cdna_kernels/" + NAME + ".s.ref").read().split("; Override launch")[0]

WS_QG = 0x1000
WS_ML = 0x10000
WS_QP = 0x20000
WS_FG = 0x40000
WS_OP = 0x100000
WS_FP = 0x300000
WS_SIZE = 0x500000
STAMP_OFF = 128 << 20
C_Q, C_F, C_QS, C_ST, C_ML, C_R2, C_H = 0, 4, 8, 12, 16, 20, 24
L_Z = 64
L_H = 128
L_GP = 256
L_QS = L_GP + 3 * 2048
L_ST = L_QS + 2176
L_MLP = L_ST + 512
L_F = L_MLP + 512
L_RED1 = L_F + 256
L_RED2 = L_RED1 + 512
L_ORED = L_RED2 + 512
L_END = L_ORED + 8 * 4224

sW, sWV = 2, 3
K_, V_, WQ_, WO_, WG_, WU_, WD_, X_, GW_, WS_, OUT_ = 4, 8, 12, 16, 20, 24, 28, 32, 36, 40, 44
def srd(b): return f"s[{b}:{b+3}]"
sG, sI = 48, 49
sPA, sPB = 50, 51
sKV = 52
sT0, sT1, sT2, sT3 = 53, 54, 55, 56
sSELLO, sSELHI, sC = 57, 58, 59
sCAP = 60
sA, sB = 61, 62
sKS = 63
sM0 = 64
sO = 68
sST = 76

vL, vT4, vT16, vTAG, vKO, vVO, vWQO, vWFO = 0, 1, 2, 3, 4, 5, 6, 7
vA0, vA1, vA2, vA3 = 8, 9, 10, 11
vB0, vB1, vB2, vB3 = 12, 13, 14, 15
vT = 16
vQ = 32
vE = 40
vP = 48
vS = 64
vACC = 96
vRING = 128

def gen(WIN=3, C2=64, stamps=False, nt=True, lds=82440, sleep1=2, qa_at=16, fa_at=22, qb_at=30, ml_at=70, W0=4, STEP=1, WEND=None, sn="d"):
    a = Asm()
    NT = " nt" if nt else ""
    nst = [0]
    SN = set(str(sn).split("+"))
    def stamp(name="d"):
        if stamps and name in SN:
            k = nst[0]; nst[0] += 1
            a(f"s_memrealtime s[{sST+2*k}:{sST+2*k+1}]")
    def B(k): return vRING + 32 * k
    def vr(b, n): return f"v[{b}:{b+n-1}]"
    DPP = "row_mask:0xf bank_mask:0xf"

    def red_bits45(op, v, t):
        a(f"v_mov_b32 v{t}, v{v}")
        a(f"v_permlane16_swap_b32 v{v}, v{t}")
        a(f"v_{op}_f32 v{v}, v{v}, v{t}")
        a(f"v_mov_b32 v{t}, v{v}")
        a(f"v_permlane32_swap_b32 v{v}, v{t}")
        a(f"v_{op}_f32 v{v}, v{v}, v{t}")
    def red_bits345(op, v, t):
        a(f"v_{op}_f32_dpp v{v}, v{v}, v{v} row_ror:8 {DPP}")
        red_bits45(op, v, t)
    def red2_bits45(v0, v1, t0, t1):
        for sw in ("16", "32"):
            a(f"v_mov_b32 v{t0}, v{v0}")
            a(f"v_mov_b32 v{t1}, v{v1}")
            a(f"v_permlane{sw}_swap_b32 v{v0}, v{t0}")
            a(f"v_permlane{sw}_swap_b32 v{v1}, v{t1}")
            a(f"v_add_f32 v{v0}, v{v0}, v{t0}")
            a(f"v_add_f32 v{v1}, v{v1}, v{t1}")
    def red2_bits345(v0, v1, t0, t1):
        a(f"v_add_f32_dpp v{v0}, v{v0}, v{v0} row_ror:8 {DPP}")
        a(f"v_add_f32_dpp v{v1}, v{v1}, v{v1} row_ror:8 {DPP}")
        red2_bits45(v0, v1, t0, t1)
    def reduce_ml(vm, vl, vM, t):
        a(f"v_mov_b32 v{vM}, v{vm}")
        red_bits345("max", vM, t)
        a(f"v_sub_f32 v{t}, v{vm}, v{vM}")
        a(f"v_exp_f32 v{t}, v{t}")
        a(f"v_mul_f32 v{vl}, v{vl}, v{t}")
        red_bits345("add", vl, t)
    def arrive_last(cnt, skip):
        a(f"""
        s_waitcnt lgkmcnt(0)
        v_mov_b32 v{vA0}, {cnt}
        v_mov_b32 v{vA1}, 1
        s_mov_b64 exec, 1
        ds_add_rtn_u32 v{vA0}, v{vA0}, v{vA1}
        s_mov_b64 exec, -1
        s_waitcnt lgkmcnt(0)
        v_readfirstlane_b32 s{sT0}, v{vA0}
        s_cmp_lg_u32 s{sT0}, 7
        s_cbranch_scc1 {skip}
        """)
    def arrive(cnt):
        a(f"""
        s_waitcnt lgkmcnt(0)
        v_mov_b32 v{vA0}, {cnt}
        v_mov_b32 v{vA1}, 1
        s_mov_b64 exec, 1
        ds_add_u32 v{vA0}, v{vA1}
        s_mov_b64 exec, -1
        """)
    def wait_cnt(cnt, val):
        l = a.label("Lw"); d = a.label("Lwd")
        a(f"""
        v_mov_b32 v{vA0}, {cnt}
        s_mov_b32 s{sCAP}, 0
        {l}:
        ds_read_b32 v{vA1}, v{vA0}
        s_waitcnt lgkmcnt(0)
        v_readfirstlane_b32 s{sT0}, v{vA1}
        s_cmp_ge_u32 s{sT0}, {val}
        s_cbranch_scc1 {d}
        s_add_u32 s{sCAP}, s{sCAP}, 1
        s_cmp_gt_u32 s{sCAP}, 0x400000
        s_cbranch_scc1 {d}
        s_sleep 1
        s_branch {l}
        {d}:
        """)
    def poll_retry(loads, tagregs, tmp, sleep):
        lc = a.label("Lchk"); ld = a.label("Ldone")
        a(f"s_mov_b32 s{sCAP}, 0")
        a(f"{lc}:")
        a(f"v_xor_b32 v{tmp}, v{tagregs[0]}, v{vTAG}")
        for r in tagregs[1:]:
            a(f"v_xor_b32 v{tmp+1}, v{r}, v{vTAG}")
            a(f"v_or_b32 v{tmp}, v{tmp}, v{tmp+1}")
        a(f"v_cmp_ne_u32 vcc, 0, v{tmp}")
        a(f"s_and_b64 exec, exec, vcc")
        a(f"s_cbranch_scc0 {ld}")
        a(f"s_add_u32 s{sCAP}, s{sCAP}, 1")
        a(f"s_cmp_gt_u32 s{sCAP}, 0x40000")
        a(f"s_cbranch_scc1 {ld}")
        if sleep: a(f"s_sleep {sleep}")
        for l in loads: a(l)
        a("s_waitcnt vmcnt(0)")
        a(f"s_branch {lc}")
        a(f"{ld}:")
        a("s_mov_b64 exec, -1")
    def only_wave(wv, fn):
        sk = a.label("Low")
        a(f"s_cmp_lg_u32 s{sWV}, {wv}")
        a(f"s_cbranch_scc1 {sk}")
        fn()
        a(f"{sk}:")

    if stamps: a(f"s_memrealtime s[{sM0}:{sM0+1}]")
    a(f"""
    s_cmp_ge_u32 s2, 256
    s_cbranch_scc1 L_end
    s_load_dwordx16 s[76:91], s[0:1], 0
    s_load_dwordx8 s[92:99], s[0:1], 64
    s_load_dwordx2 s[{WS_}:{WS_+1}], s[0:1], 96
    v_lshrrev_b32 v{vA0}, 6, v0
    v_lshlrev_b32 v{vT4}, 2, v0
    v_lshlrev_b32 v{vT16}, 4, v0
    v_readfirstlane_b32 s{sWV}, v{vA0}
    v_and_b32 v{vL}, 63, v0
    s_lshr_b32 s{sG}, s2, 6
    s_and_b32 s{sI}, s2, 63
    s_cmp_lt_u32 s{sI}, 56
    s_cselect_b32 s{WG_+2}, {1024*7168}, 0
    s_cselect_b32 s{WU_+2}, {1024*7168}, 0
    s_cselect_b32 s{WD_+2}, {3584*2048}, 0
    s_mov_b32 s{WQ_+2}, {1024*8192}
    s_mov_b32 s{WQ_+3}, 0x20000
    s_mov_b32 s{X_+2}, 2048
    s_mov_b32 s{X_+3}, 0x20000
    s_mov_b32 s{GW_+2}, 2048
    s_mov_b32 s{GW_+3}, 0x20000
    s_mov_b32 s{WS_+2}, {WS_SIZE if not stamps else (256<<20)}
    s_mov_b32 s{WS_+3}, 0x20000
    s_mov_b32 s{WG_+3}, 0x20000
    s_mov_b32 s{WU_+3}, 0x20000
    v_lshrrev_b32 v{vA0}, 3, v{vL}
    v_and_b32 v{vA1}, 7, v{vL}
    v_lshlrev_b32 v{vA1}, 4, v{vA1}
    v_lshl_add_u32 v{vWQO}, v{vA0}, 15, v{vA1}
    v_mul_u32_u24 v{vWFO}, {4*7168}, v{vA0}
    v_add_u32 v{vWFO}, v{vWFO}, v{vA1}
    v_lshlrev_b32 v{vA2}, 3, v{vA0}
    s_lshl_b32 s{sT3}, s{sG}, 3
    s_add_u32 s{sT3}, s{sT3}, s{sWV}
    s_lshl_b32 s{sT0}, s{sI}, 7
    s_lshl_b32 s{sA}, s{sT3}, 18
    s_add_u32 s{sA}, s{sA}, s{sT0}
    s_mul_i32 s{sB}, s{sT3}, {32*7168}
    s_add_u32 s{sB}, s{sB}, s{sT0}
    s_lshl_b32 s{sT3}, s{sT3}, 6
    s_add_u32 s{sT0}, s{sA}, 8192
    s_add_u32 s{sT1}, s{sA}, 16384
    s_add_u32 s{sT2}, s{sA}, 24576
    s_waitcnt lgkmcnt(0)
    s_mov_b64 s[{WQ_}:{WQ_+1}], s[82:83]
    s_mov_b64 s[{X_}:{X_+1}], s[76:77]
    s_mov_b64 s[{GW_}:{GW_+1}], s[94:95]
    """)
    WQR = B(2); WGR = B(2) + 16; WUR = B(3)
    vXP = vB0
    g0 = [f"buffer_load_dwordx4 {vr(WQR+4*j,4)}, v{vWQO}, {srd(WQ_)}, s{[sA,sT0,sT1,sT2][j]} offen{NT}" for j in range(4)]
    g0x = [f"buffer_load_dwordx2 {vr(vXP,2)}, v{vA2}, {srd(X_)}, s{sT3} offen",
           f"buffer_load_dword v{vTAG}, off, {srd(WS_)}, 0 sc1",
           f"buffer_load_dword v{vB2}, v{vT4}, {srd(X_)}, 0 offen",
           f"buffer_load_dword v{vB3}, v{vT4}, {srd(GW_)}, 0 offen"]
    for l in g0[:3] + g0x + g0[3:]: a(l)
    a(f"""
    v_mov_b32 v{vA0}, 0
    v_lshlrev_b32 v{vA1}, 2, v{vL}
    s_cmp_lg_u32 s{sWV}, 0
    s_cbranch_scc1 L_noinit
    s_mov_b64 exec, 0xffff
    ds_write_b32 v{vA1}, v{vA0}
    s_mov_b64 exec, -1
    s_waitcnt lgkmcnt(0)
    L_noinit:
    s_mov_b64 s[{WG_}:{WG_+1}], s[88:89]
    s_mov_b64 s[{WU_}:{WU_+1}], s[90:91]
    s_barrier
    """)
    a(f"""
    s_mov_b64 s[{K_}:{K_+1}], s[78:79]
    s_mov_b64 s[{V_}:{V_+1}], s[80:81]
    s_mov_b64 s[{WO_}:{WO_+1}], s[84:85]
    s_mov_b64 s[{WD_}:{WD_+1}], s[92:93]
    s_mov_b64 s[{OUT_}:{OUT_+1}], s[96:97]
    s_mov_b32 s{K_+2}, 0x4000000
    s_mov_b32 s{K_+3}, 0x20000
    s_mov_b32 s{V_+2}, 0x4000000
    s_mov_b32 s{V_+3}, 0x20000
    s_mov_b32 s{WO_+2}, {4096*2048}
    s_mov_b32 s{WO_+3}, 0x20000
    s_mov_b32 s{WD_+3}, 0x20000
    s_mov_b32 s{OUT_+2}, 2048
    s_mov_b32 s{OUT_+3}, 0x20000
    s_mov_b32 s{sSELLO}, 0x05040100
    s_mov_b32 s{sSELHI}, 0x07060302
    s_mov_b32 s{sC}, {hex(f2u(128**-0.5 * math.log2(math.e)))}
    s_lshl_b32 s{sKV}, s2, 18
    s_lshl_b32 s{sT0}, s{sWV}, 13
    s_add_u32 s{sKV}, s{sKV}, s{sT0}
    v_and_b32 v{vA0}, 3, v{vL}
    v_lshlrev_b32 v{vA0}, 10, v{vA0}
    v_bfe_u32 v{vA1}, v{vL}, 2, 1
    v_lshl_add_u32 v{vA0}, v{vA1}, 8, v{vA0}
    v_bfe_u32 v{vA1}, v{vL}, 3, 1
    v_lshl_add_u32 v{vA0}, v{vA1}, 6, v{vA0}
    v_lshrrev_b32 v{vA1}, 4, v{vL}
    v_lshl_add_u32 v{vKO}, v{vA1}, 4, v{vA0}
    v_lshlrev_b32 v{vVO}, 4, v{vL}
    """)
    if stamps:
        for k in range(13): a(f"s_mov_b64 s[{sST+2*k}:{sST+2*k+1}], s[{sM0}:{sM0+1}]")
        nst[0] = 1
    for r in range(24): a(f"v_mov_b32 v{vS+r}, 0")
    a(f"v_mov_b32 v{vE+6}, 0")

    vQG = vB0
    qload = f"buffer_load_dwordx2 {vr(vQG,2)}, v{vE+7}, {srd(WS_)}, s{sA} offen sc1"
    qpre = [f"v_lshrrev_b32 v{vE+7}, 1, v{vT16}", f"s_lshl_b32 s{sA}, s{sG}, 12", f"s_add_u32 s{sA}, s{sA}, {WS_QG}"]
    vML = vB0
    mlload = f"buffer_load_dwordx4 {vr(vML,4)}, v{vT16}, {srd(WS_)}, s{sA} offen sc1"
    mlpre = [f"s_lshl_b32 s{sA}, s{sG}, 13", f"s_add_u32 s{sA}, s{sA}, {WS_ML}"]
    qaload = f"buffer_load_dwordx2 {vr(vE,2)}, v{vE+6}, {srd(WS_)}, s{sPA} offen sc1"
    def qa_issue():
        a(f"""
        v_lshrrev_b32 v{vE+6}, 4, v{vL}
        v_lshlrev_b32 v{vE+6}, 9, v{vE+6}
        v_and_b32 v{vE+5}, 15, v{vL}
        v_lshl_add_u32 v{vE+6}, v{vE+5}, 3, v{vE+6}
        s_lshl_b32 s{sPA}, s{sI}, 11
        s_lshl_b32 s{sT0}, s{sG}, 7
        s_add_u32 s{sPA}, s{sPA}, s{sT0}
        s_add_u32 s{sPA}, s{sPA}, {WS_QP}
        """)
        a(qaload)
    faload = f"buffer_load_dwordx4 {vr(vE,4)}, v{vE+6}, {srd(WS_)}, s{sPA} offen sc1"
    def fa_issue():
        a(f"""
        v_lshrrev_b32 v{vE+6}, 4, v{vL}
        v_lshlrev_b32 v{vE+6}, 10, v{vE+6}
        v_and_b32 v{vE+5}, 15, v{vL}
        v_lshl_add_u32 v{vE+6}, v{vE+5}, 4, v{vE+6}
        s_lshl_b32 s{sPA}, s{sI}, 12
        s_lshl_b32 s{sT0}, s{sG}, 8
        s_add_u32 s{sPA}, s{sPA}, s{sT0}
        s_add_u32 s{sPA}, s{sPA}, {WS_FG}
        """)
        a(faload)

    WOR = B(0); PW = B(1)
    WDR = vACC
    U = []
    for j in range(4): U.append((f"wq{j}", None, 1 if j != 2 else 1 + len(g0x), None))
    for nm, R, S_ in (("gate", WGR, WG_), ("up", WUR, WU_)):
        for j in range(4):
            U.append((f"{nm}{j}", [f"s_add_u32 s{sT3}, s{sB}, {j*7168}", f"buffer_load_dwordx4 {vr(R+4*j,4)}, v{vWFO}, {srd(S_)}, s{sT3} offen{NT}"], 1, None))
    for j in range(4):
        l = []
        if j == 0: l += [f"s_lshl_b32 s{sPB}, s{sI}, 2", f"s_add_u32 s{sPB}, s{sPB}, s{sG}", f"s_lshl_b32 s{sPB}, s{sPB}, 15"]
        for e in range(4 * j, 4 * j + 4):
            if e % 2 == 0: l += [f"s_add_u32 s{sT3}, s{sPB}, {e*2048}", f"buffer_load_dword v{WDR+e}, v{vT4}, {srd(WD_)}, s{sT3} offen{NT}"]
            else: l += [f"buffer_load_dword v{WDR+e}, v{vT4}, {srd(WD_)}, s{sT3} offen offset:2048{NT}"]
        U.append((f"wd{j}", l, 4, None))
    kpre = {(2, 0): "wq", (2, 1): "gate", (3, 0): "up"}
    for t in range(4):
        for j in range(8):
            u, k = j >> 2, j & 3
            l = [f"s_add_u32 s{sKS}, s{sKV}, {t*65536 + u*4096}"] if k == 0 else []
            l.append(f"buffer_load_dwordx4 {vr(B(t)+4*j,4)}, v{vKO}, {srd(K_)}, s{sKS} offen offset:{(k>>1)*512+(k&1)*128}{NT}")
            U.append((f"K{t}_{j}", l, 1, kpre.get((t, u))))
    for t in range(4):
        for j in range(8):
            u, k = j >> 2, j & 3
            l = [f"s_add_u32 s{sKS}, s{sKV}, {t*65536 + u*4096}"] if k == 0 else []
            l.append(f"buffer_load_dwordx4 {vr(B(t)+4*j,4)}, v{vVO}, {srd(V_)}, s{sKS} offen offset:{k*1024}{NT}")
            U.append((f"V{t}_{j}", l, 1, f"K{t}{'ab'[u]}"))
    for j in range(4):
        l = []
        if j == 0: l += [f"s_lshl_b32 s{sB}, s{sG}, 3", f"s_lshr_b32 s{sT0}, s{sI}, 3", f"s_add_u32 s{sB}, s{sB}, s{sT0}",
               f"s_lshl_b32 s{sB}, s{sB}, 7", f"s_and_b32 s{sT0}, s{sI}, 7", f"s_add_u32 s{sB}, s{sB}, s{sT0}", f"s_lshl_b32 s{sB}, s{sB}, 11"]
        for e in range(4 * j, 4 * j + 4):
            l += [f"s_add_u32 s{sT3}, s{sB}, {e*16384}", f"buffer_load_dword v{WOR+e}, v{vT4}, {srd(WO_)}, s{sT3} offen{NT}"]
        U.append((f"wo{j}", l, 4, "V0"))
    names = [u[0] for u in U]
    idx = {n: k for k, n in enumerate(names)}
    extra = {}
    extra.setdefault(qa_at, []).append(lambda: only_wave(0, qa_issue))
    extra.setdefault(fa_at, []).append(lambda: only_wave(1, fa_issue))
    extra.setdefault(qb_at, []).append(lambda: [a(x) for x in qpre + [qload]])
    extra.setdefault(ml_at, []).append(lambda: [a(x) for x in mlpre + [mlload]])

    vX = vT
    aq, ag, au = vS, vS + 8, vS + 16
    def gemv(W, acc):
        for j in range(4):
            for w in range(4):
                a(f"v_dot2c_f32_bf16 v{acc+2*w}, v{W+4*j+w}, v{vX+2*j}")
                a(f"v_dot2c_f32_bf16 v{acc+2*w+1}, v{W+4*j+w}, v{vX+2*j+1}")
    def swapred(acc):
        for k in range(4): a(f"v_permlane32_swap_b32 v{acc+k}, v{acc+k+4}")
        for k in range(4): a(f"v_add_f32 v{acc+k}, v{acc+k}, v{acc+k+4}")
        for k in range(2): a(f"v_permlane16_swap_b32 v{acc+k}, v{acc+k+2}")
        for k in range(2): a(f"v_add_f32 v{acc+k}, v{acc+k}, v{acc+k+2}")
        for k in range(2): a(f"v_add_f32_dpp v{acc+k}, v{acc+k}, v{acc+k} row_ror:8 {DPP}")
    vGA = vT + 8
    def sum8(base):
        for step in (1, 2, 4):
            for k in range(0, 8, 2 * step): a(f"v_add_f32 v{base+k}, v{base+k}, v{base+k+step}")
    def task_q():
        a(f"v_add_u32 v{vTAG}, 1, v{vTAG}")
        for h in range(2):
            a(f"v_and_b32 v{vX+4*h}, 0xffff, v{vXP+h}")
            a(f"v_lshlrev_b32 v{vX+4*h+1}, 16, v{vXP+h}")
            a(f"v_lshrrev_b32 v{vX+4*h+2}, 16, v{vXP+h}")
            a(f"v_and_b32 v{vX+4*h+3}, 0xffff0000, v{vXP+h}")
        gemv(WQR, aq)
        a(f"""
        v_and_b32 v{vA0}, 7, v{vL}
        v_lshlrev_b32 v{vA0}, 5, v{vA0}
        v_lshrrev_b32 v{vA1}, 4, v{vL}
        v_lshl_add_u32 v{vA0}, v{vA1}, 3, v{vA0}
        s_lshl_b32 s{sT0}, s{sWV}, 8
        v_add_u32 v{vGA}, s{sT0}, v{vA0}
        """)
        swapred(aq)
        skip = a.label("Lq")
        a(f"ds_write_b64 v{vGA}, {vr(aq,2)} offset:{L_GP}")
        arrive_last(C_Q, skip)
        a(f"v_lshlrev_b32 v{vA2}, 2, v{vL}")
        a(f"v_add_u32 v{vA0}, {L_GP}, v{vA2}")
        for k in range(4): a(f"ds_read2st64_b32 {vr(aq+2*k,2)}, v{vA0} offset0:{2*k} offset1:{2*k+1}")
        a(f"""
        v_lshlrev_b32 v{vA2}, 3, v{vL}
        s_lshl_b32 s{sT0}, s{sI}, 11
        s_lshl_b32 s{sT1}, s{sG}, 9
        s_add_u32 s{sT0}, s{sT0}, s{sT1}
        s_add_u32 s{sT0}, s{sT0}, {WS_QP}
        s_waitcnt lgkmcnt(0)
        """)
        sum8(aq)
        a(f"""
        v_mov_b32 v{aq+1}, v{vTAG}
        buffer_store_dwordx2 {vr(aq,2)}, v{vA2}, {srd(WS_)}, s{sT0} offen sc1
        {skip}:
        """)
        stamp()
    def task_gate():
        stamp("i")
        gemv(WGR, ag)
        a(f"""
        v_lshlrev_b32 v{vA0}, 16, v{vB2}
        v_and_b32 v{vA1}, 0xffff0000, v{vB2}
        v_lshlrev_b32 v{vA2}, 16, v{vB3}
        v_and_b32 v{vA3}, 0xffff0000, v{vB3}
        v_mul_f32 v{vA0}, v{vA0}, v{vA2}
        v_mul_f32 v{vA1}, v{vA1}, v{vA3}
        v_cvt_pk_bf16_f32 v{vA0}, v{vA0}, v{vA1}
        v_lshlrev_b32 v{vA1}, 16, v{vA0}
        v_and_b32 v{vA0}, 0xffff0000, v{vA0}
        v_add_f32 v{vA2}, v{vA0}, v{vA1}
        """)
        swapred(ag)
        for n in (1, 2, 4): a(f"v_add_f32_dpp v{vA2}, v{vA2}, v{vA2} row_ror:{n} {DPP}")
        red_bits345("add", vA2, vA3)
        a(f"""
        ds_write_b64 v{vGA}, {vr(ag,2)} offset:{L_GP+2048}
        s_lshl_b32 s{sT0}, s{sWV}, 2
        v_mov_b32 v{vA3}, s{sT0}
        s_mov_b64 exec, 1
        ds_write_b32 v{vA3}, v{vA2} offset:{L_Z}
        s_mov_b64 exec, -1
        """)
        stamp("i")
    def task_up():
        gemv(WUR, au)
        swapred(au)
        skip = a.label("Lf")
        a(f"ds_write_b64 v{vGA}, {vr(au,2)} offset:{L_GP+4096}")
        arrive_last(C_F, skip)
        a(f"v_lshlrev_b32 v{vA2}, 2, v{vL}")
        a(f"v_add_u32 v{vA0}, {L_GP+2048}, v{vA2}")
        for k in range(4): a(f"ds_read2st64_b32 {vr(ag+2*k,2)}, v{vA0} offset0:{2*k} offset1:{2*k+1}")
        for k in range(4): a(f"ds_read2st64_b32 {vr(au+2*k,2)}, v{vA0} offset0:{8+2*k} offset1:{8+2*k+1}")
        a(f"""
        v_mov_b32 v{vA1}, 0
        ds_read_b128 {vr(aq,4)}, v{vA1} offset:{L_Z}
        ds_read_b128 {vr(aq+4,4)}, v{vA1} offset:{L_Z+16}
        s_lshl_b32 s{sT0}, s{sI}, 12
        s_lshl_b32 s{sT1}, s{sG}, 10
        s_add_u32 s{sT0}, s{sT0}, s{sT1}
        s_add_u32 s{sT0}, s{sT0}, {WS_FG}
        s_waitcnt lgkmcnt(0)
        """)
        sum8(ag); sum8(au); sum8(aq)
        a(f"""
        v_mov_b32 v{ag+1}, v{vTAG}
        v_mov_b32 v{ag+2}, v{au}
        v_mov_b32 v{ag+3}, v{vTAG}
        buffer_store_dwordx4 {vr(ag,4)}, v{vVO}, {srd(WS_)}, s{sT0} offen sc1
        v_cvt_pk_bf16_f32 v{vA0}, v{aq}, v{aq}
        v_and_b32 v{vA0}, 0xffff0000, v{vA0}
        v_mul_f32 v{vA0}, {hex(f2u(-math.log2(math.e)))}, v{vA0}
        v_exp_f32 v{vA0}, v{vA0}
        v_add_f32 v{vA0}, 1.0, v{vA0}
        v_rcp_f32 v{vA0}, v{vA0}
        v_cvt_pk_bf16_f32 v{vA0}, v{vA0}, v{vA0}
        v_and_b32 v{vA0}, 0xffff0000, v{vA0}
        v_sub_f32 v{vA1}, 1.0, v{vA0}
        v_cvt_pk_bf16_f32 v{vA1}, v{vA1}, v{vA1}
        v_and_b32 v{vA1}, 0xffff0000, v{vA1}
        v_mov_b32 v{vA2}, 0
        s_mov_b64 exec, 1
        ds_write_b64 v{vA2}, {vr(vA0,2)} offset:{L_H+32}
        s_mov_b64 exec, -1
        """)
        arrive(C_H)
        a(f"{skip}:")
    def task_qa():
        def f():
            poll_retry([qaload], [vE + 1], vA0, 2)
            red_bits45("add", vE, vA0)
            a(f"""
            v_mov_b32_dpp v{vA1}, v{vE} quad_perm:[1,0,3,2] {DPP}
            v_cvt_pk_bf16_f32 v{vA0}, v{vE}, v{vA1}
            v_mov_b32 v{vA1}, v{vTAG}
            v_lshlrev_b32 v{vA2}, 2, v{vL}
            s_lshl_b32 s{sT0}, s{sI}, 8
            s_lshl_b32 s{sT1}, s{sG}, 6
            s_add_u32 s{sT0}, s{sT0}, s{sT1}
            s_add_u32 s{sT0}, s{sT0}, {WS_QG}
            s_mov_b64 exec, 0x5555
            buffer_store_dwordx2 {vr(vA0,2)}, v{vA2}, {srd(WS_)}, s{sT0} offen sc1
            s_mov_b64 exec, -1
            """)
            stamp()
        only_wave(0, f)
    def task_fa():
        def f():
            poll_retry([faload], [vE + 1, vE + 3], vA0, 2)
            red2_bits45(vE, vE + 2, vA0, vA1)
            a(f"""
            v_cvt_pk_bf16_f32 v{vA0}, v{vE}, v{vE+2}
            v_lshlrev_b32 v{vA1}, 16, v{vA0}
            v_and_b32 v{vA0}, 0xffff0000, v{vA0}
            v_max_f32 v{vA1}, 0, v{vA1}
            v_mul_f32 v{vA0}, v{vA0}, v{vA1}
            v_mov_b32_dpp v{vA1}, v{vA0} quad_perm:[1,0,3,2] {DPP}
            v_cvt_pk_bf16_f32 v{vA0}, v{vA0}, v{vA1}
            v_lshlrev_b32 v{vA2}, 1, v{vL}
            s_mov_b64 exec, 0x5555
            ds_write_b32 v{vA2}, v{vA0} offset:{L_H}
            s_mov_b64 exec, -1
            """)
            arrive(C_H)
        only_wave(1, f)
    vBP = vE + 2
    def task_bpart():
        wait_cnt(C_H, 2)
        a(f"v_mov_b32 v{vA2}, 0")
        a(f"ds_read_b128 {vr(vT,4)}, v{vA2} offset:{L_H}")
        a(f"ds_read_b128 {vr(vT+4,4)}, v{vA2} offset:{L_H+16}")
        a(f"ds_read_b64 {vr(vE+4,2)}, v{vA2} offset:{L_H+32}")
        a(f"v_mov_b32 v{vBP}, 0"); a(f"v_mov_b32 v{vBP+1}, 0")
        for p in range(8):
            a(f"v_perm_b32 v{WDR+16+2*p}, v{WDR+2*p+1}, v{WDR+2*p}, s{sSELLO}")
            a(f"v_perm_b32 v{WDR+16+2*p+1}, v{WDR+2*p+1}, v{WDR+2*p}, s{sSELHI}")
        a("s_waitcnt lgkmcnt(0)")
        for p in range(8):
            a(f"v_dot2c_f32_bf16 v{vBP}, v{WDR+16+2*p}, v{vT+p}")
            a(f"v_dot2c_f32_bf16 v{vBP+1}, v{WDR+16+2*p+1}, v{vT+p}")
        a(f"v_mul_f32 v{vBP}, v{vBP}, v{vE+5}")
        a(f"v_mul_f32 v{vBP+1}, v{vBP+1}, v{vE+5}")
    def task_qcheck():
        poll_retry([qload], [vQG + 1], vA0, 2)
        a(f"""
        s_mul_i32 s{sT0}, s{sWV}, 272
        v_lshl_add_u32 v{vA0}, v{vL}, 2, s{sT0}
        ds_write_b32 v{vA0}, v{vQG} offset:{L_QS}
        """)
        arrive(C_QS)
        stamp()
    def task_qwait():
        wait_cnt(C_QS, 8)
        a(f"""
        v_and_b32 v{vA0}, 7, v{vL}
        v_mul_u32_u24 v{vA0}, 272, v{vA0}
        v_bfe_u32 v{vA1}, v{vL}, 3, 1
        v_lshl_add_u32 v{vA0}, v{vA1}, 6, v{vA0}
        v_lshrrev_b32 v{vA1}, 4, v{vL}
        v_lshl_add_u32 v{vA0}, v{vA1}, 4, v{vA0}
        """)
        for s in range(2): a(f"ds_read_b128 {vr(vQ+4*s,4)}, v{vA0} offset:{L_QS+128*s}")
        a("s_waitcnt lgkmcnt(0)")
    def task_k(lst):
        for c0 in range(0, len(lst), 4):
            ch = lst[c0:c0 + 4]
            for sp in range(2):
                for n, (t, u) in enumerate(ch):
                    base = B(t) + 16 * u; dx = vS + 8 * t + 4 * u; dy = vT + 4 * n
                    a(f"v_mfma_f32_16x16x32_bf16 {vr(dx,4)}, {vr(base+4*sp,4)}, {vr(vQ+4*sp,4)}, {'0' if sp==0 else vr(dx,4)}")
                    a(f"v_mfma_f32_16x16x32_bf16 {vr(dy,4)}, {vr(base+8+4*sp,4)}, {vr(vQ+4*sp,4)}, {'0' if sp==0 else vr(dy,4)}")
            for n, (t, u) in enumerate(ch):
                dx = vS + 8 * t + 4 * u; dy = vT + 4 * n
                for r in range(4): a(f"v_permlane32_swap_b32 v{dx+r}, v{dy+r}")
                for r in range(4): a(f"v_add_f32_dpp v{dx+r}, v{dy+r}, v{dx+r} row_ror:8 {DPP}")
        for t, u in lst: consumed.add(f"K{t}{'ab'[u]}")
    vM = vE
    def sm_max():
        m = vM
        a(f"v_max3_f32 v{m}, v{vS}, v{vS+1}, v{vS+2}")
        a(f"v_max3_f32 v{vA2}, v{vS+3}, v{vS+4}, v{vS+5}")
        for k in range(6, 30, 4):
            a(f"v_max3_f32 v{m}, v{m}, v{vS+k}, v{vS+k+1}")
            a(f"v_max3_f32 v{vA2}, v{vA2}, v{vS+k+2}, v{vS+k+3}")
        a(f"v_max3_f32 v{m}, v{m}, v{vS+30}, v{vS+31}")
        a(f"v_max_f32 v{m}, v{m}, v{vA2}")
        red_bits45("max", m, vA2)
        a(f"v_mul_f32 v{m}, s{sC}, v{m}")
    def sm_exp(t):
        stamp("i")
        for k in range(8 * t, 8 * t + 8): a(f"v_fma_f32 v{vS+k}, v{vS+k}, s{sC}, -v{vM}")
        for k in range(8 * t, 8 * t + 8): a(f"v_exp_f32 v{vS+k}, v{vS+k}")
        for k in range(4 * t, 4 * t + 4): a(f"v_cvt_pk_bf16_f32 v{vP+k}, v{vS+2*k}, v{vS+2*k+1}")
        sum8(vS + 8 * t)
        stamp("i")
    def task_softmax():
        lsum = vA1
        a(f"v_add_f32 v{vS}, v{vS}, v{vS+8}")
        a(f"v_add_f32 v{vS+16}, v{vS+16}, v{vS+24}")
        a(f"v_add_f32 v{lsum}, v{vS}, v{vS+16}")
        a(f"v_mov_b32 v{vA0}, v{vM}")
        red_bits45("add", lsum, vA2)
        skip = a.label("Ls")
        a(f"""
        s_lshl_b32 s{sT0}, s{sWV}, 6
        v_lshl_add_u32 v{vA2}, v{vL}, 3, s{sT0}
        s_mov_b64 exec, 0xff
        ds_write_b64 v{vA2}, {vr(vA0,2)} offset:{L_ST}
        s_mov_b64 exec, -1
        """)
        arrive_last(C_ST, skip)
        a(f"""
        v_lshlrev_b32 v{vA2}, 3, v{vL}
        ds_read_b64 {vr(vT,2)}, v{vA2} offset:{L_ST}
        s_waitcnt lgkmcnt(0)
        """)
        reduce_ml(vT, vT + 1, vA0, vA3)
        a(f"""
        v_mov_b32 v{vA1}, v{vTAG}
        v_mov_b32 v{vA2}, v{vT+1}
        v_mov_b32 v{vA3}, v{vTAG}
        s_lshl_b32 s{sT0}, s2, 7
        s_add_u32 s{sT0}, s{sT0}, {WS_ML}
        s_mov_b64 exec, 0xff
        buffer_store_dwordx4 {vr(vA0,4)}, v{vVO}, {srd(WS_)}, s{sT0} offen sc1
        s_mov_b64 exec, -1
        {skip}:
        """)
        stamp()
    def task_vperm(t, uu):
        R = B(t)
        for w in range(4):
            a(f"v_perm_b32 v{vS+4*(2*w)+uu}, v{R+4*(2*uu+1)+w}, v{R+4*(2*uu)+w}, s{sSELLO}")
            a(f"v_perm_b32 v{vS+4*(2*w+1)+uu}, v{R+4*(2*uu+1)+w}, v{R+4*(2*uu)+w}, s{sSELHI}")
        if uu == 3:
            for i in range(8):
                c = "0" if t == 0 else vr(vACC + 4 * i, 4)
                a(f"v_mfma_f32_16x16x32_bf16 {vr(vACC+4*i,4)}, {vr(vS+4*i,4)}, {vr(vP+4*t,4)}, {c}")
            consumed.add(f"V{t}")
    def task_ml():
        poll_retry([mlload], [vML + 1, vML + 3], vA0, 2)
        reduce_ml(vML, vML + 2, vA0, vA3)
        skip = a.label("Lm")
        a(f"""
        v_mov_b32 v{vA1}, v{vML+2}
        s_lshl_b32 s{sT0}, s{sWV}, 6
        v_lshl_add_u32 v{vA2}, v{vL}, 3, s{sT0}
        s_mov_b64 exec, 0xff
        ds_write_b64 v{vA2}, {vr(vA0,2)} offset:{L_MLP}
        s_mov_b64 exec, -1
        """)
        arrive_last(C_ML, skip)
        a(f"""
        v_lshlrev_b32 v{vA2}, 3, v{vL}
        ds_read_b64 {vr(vT,2)}, v{vA2} offset:{L_MLP}
        ds_read_b32 v{vT+2}, v{vA2} offset:{L_ST}
        s_waitcnt lgkmcnt(0)
        """)
        reduce_ml(vT, vT + 1, vA0, vA3)
        a(f"""
        v_sub_f32 v{vA1}, v{vT+2}, v{vA0}
        v_exp_f32 v{vA1}, v{vA1}
        v_rcp_f32 v{vA2}, v{vT+1}
        v_mul_f32 v{vA1}, v{vA1}, v{vA2}
        v_and_b32 v{vA2}, 7, v{vL}
        v_lshlrev_b32 v{vA2}, 5, v{vA2}
        v_lshrrev_b32 v{vA3}, 3, v{vL}
        v_lshl_add_u32 v{vA2}, v{vA3}, 2, v{vA2}
        ds_write_b32 v{vA2}, v{vA1} offset:{L_F}
        {skip}:
        """)
        a(f"""
        v_and_b32 v{vA0}, 7, v{vL}
        v_mul_u32_u24 v{vA0}, 528, v{vA0}
        v_lshrrev_b32 v{vA1}, 4, v{vL}
        v_lshl_add_u32 v{vA0}, v{vA1}, 4, v{vA0}
        s_mul_i32 s{sT0}, s{sWV}, 4224
        v_add_u32 v{vQ}, s{sT0}, v{vA0}
        s_mul_i32 s{sT0}, s{sWV}, 528
        v_lshl_add_u32 v{vQ+1}, v{vL}, 3, s{sT0}
        s_lshl_b32 s{sT0}, s{sWV}, 5
        v_mov_b32 v{vQ+2}, s{sT0}
        v_lshrrev_b32 v{vA0}, 7, v{vT16}
        v_lshlrev_b32 v{vA0}, 13, v{vA0}
        v_and_b32 v{vA1}, 0x70, v{vT16}
        v_add_u32 v{vQ+3}, v{vA0}, v{vA1}
        s_lshl_b32 s{sT1}, s{sWV}, 6
        v_lshl_add_u32 v{vQ+4}, v{vL}, 3, s{sT1}
        v_lshlrev_b32 v{vQ+5}, 3, v{vL}
        v_lshrrev_b32 v{vA0}, {4+lpc}, v{vT16}
        v_lshlrev_b32 v{vA0}, 13, v{vA0}
        v_and_b32 v{vA1}, {(PC-1)*16}, v{vT16}
        v_add_u32 v{vQ+6}, v{vA0}, v{vA1}
        v_mov_b32 v{vB1}, v{vTAG}
        v_mov_b32 v{vB3}, v{vTAG}
        s_lshl_b32 s{sA}, s{sG}, 19
        s_lshl_b32 s{sT0}, s{sI}, 7
        s_add_u32 s{sA}, s{sA}, s{sT0}
        s_add_u32 s{sA}, s{sA}, {WS_OP}
        s_lshl_b32 s{sPA}, s2, 13
        s_add_u32 s{sPB}, s{sPA}, {WS_FP}
        s_add_u32 s{sPA}, s{sPA}, {WS_OP}
        """)
    CC = 1024 // C2; PC = CC // 2; NL = PC // 2
    lpc = int(math.log2(PC))
    def task_publish_o():
        stamp()
        a(f"""
        s_mov_b32 exec_lo, 0x00ff00ff
        s_mov_b32 exec_hi, 0x00ff00ff
        """)
        for i in range(8): a(f"ds_write_b128 v{vQ}, {vr(vACC+4*i,4)} offset:{L_ORED+64*i}")
        a(f"""
        s_mov_b64 exec, -1
        s_waitcnt lgkmcnt(0)
        s_barrier
        ds_read_b128 {vr(vT,4)}, v{vQ+2} offset:{L_F}
        ds_read_b128 {vr(vT+4,4)}, v{vQ+2} offset:{L_F+16}
        """)
        for w in range(8): a(f"ds_read_b64 {vr(vS+2*w,2)}, v{vQ+1} offset:{L_ORED+4224*w}")
        a("s_waitcnt lgkmcnt(7)")
        a(f"v_mul_f32 v{vB0}, v{vS}, v{vT}")
        a(f"v_mul_f32 v{vB2}, v{vS+1}, v{vT}")
        for w in range(1, 8):
            a(f"s_waitcnt lgkmcnt({7-w})")
            a(f"v_fmac_f32 v{vB0}, v{vS+2*w}, v{vT+w}")
            a(f"v_fmac_f32 v{vB2}, v{vS+2*w+1}, v{vT+w}")
        a(f"buffer_store_dwordx4 {vr(vB0,4)}, v{vT16}, {srd(WS_)}, s{sPA} offen sc1")
        stamp()

    consumed = set()
    def mark(fn, key):
        def f():
            fn(); consumed.add(key)
        return f
    C = []
    C.append((idx["wq3"], mark(task_q, "wq")))
    C.append((idx["gate3"], mark(task_gate, "gate")))
    C.append((idx["up3"], mark(task_up, "up")))
    C.append((qa_at, task_qa)); C.append((fa_at, task_fa)); C.append((qb_at, task_qcheck))
    C.append((qb_at + 2, task_qwait))
    for t in range(4):
        for u in range(2):
            C.append((max(qb_at + 2, idx[f"K{t}_{4*u+3}"]), lambda t=t, u=u: task_k([(t, u)])))
    kend = C[-1][0]
    C.append((kend, sm_max))
    for t in range(4): C.append((kend, lambda t=t: sm_exp(t)))
    C.append((kend, task_softmax))
    C.append((kend, task_bpart))
    for t in range(4):
        for uu in range(4):
            C.append((idx[f"V{t}_{2*uu+1}"], lambda t=t, uu=uu: task_vperm(t, uu)))
    C.append((ml_at, task_ml))
    C.sort(key=lambda c: c[0])
    C.append((idx["V3_7"], task_publish_o))
    assert qa_at > idx["up3"] - WIN and qb_at > idx["gate3"] + WIN and ml_at > kend and ml_at < idx["V3_7"]
    n = len(U)
    st = {"issued": 4, "c": 0}
    def run_chunk():
        C[st["c"]][1](); st["c"] += 1
    def issue_upto(lim, arrived):
        while st["issued"] < n and st["issued"] < lim:
            k = st["issued"]
            nm, lines, nv, pre = U[k]
            while pre is not None and pre not in consumed:
                if C[st["c"]][0] <= arrived: run_chunk()
                else:
                    print("WARNING: issue of", nm, "blocked at arrived", names[arrived]); return
            for fn in extra.get(k, []): fn()
            for x in lines: a(x)
            st["issued"] += 1
    issue_upto(W0, -1)
    stop_at = idx["V3_7"]
    arrived = STEP - 1
    while True:
        assert st["issued"] > arrived
        out = sum(u[2] for u in U[arrived + 1:st["issued"]])
        a(f"s_waitcnt vmcnt({min(out,63)})")
        if arrived < stop_at: issue_upto(arrived + 1 + WIN, arrived)
        ran = 0
        while st["c"] < len(C) and C[st["c"]][0] <= arrived and (ran < STEP or arrived >= stop_at - 1 or C[st["c"]][0] <= arrived - 6):
            run_chunk(); ran += 1
        if arrived >= stop_at: break
        arrived = min(arrived + STEP, stop_at)
    assert st["c"] == len(C)
    late = sum(u[2] for u in U[st["issued"]:])
    issue_upto(n, n - 1)

    vH1 = vS
    h1 = f"buffer_load_dwordx4 {vr(vH1,4)}, v{vQ+3}, {srd(WS_)}, s{sA} offen sc1"
    a(h1)
    a(f"v_mov_b32 v{vT+12}, 0"); a(f"v_mov_b32 v{vT+13}, 0")
    a(f"s_waitcnt vmcnt({2 if late == 0 else 1})")
    for p in range(8):
        a(f"v_perm_b32 v{PW+2*p}, v{WOR+2*p+1}, v{WOR+2*p}, s{sSELLO}")
        a(f"v_perm_b32 v{PW+2*p+1}, v{WOR+2*p+1}, v{WOR+2*p}, s{sSELHI}")
    a("s_waitcnt vmcnt(0)")
    stamp()
    poll_retry([h1], [vH1 + 1, vH1 + 3], vA0, sleep1)
    stamp()
    red2_bits345(vH1, vH1 + 2, vA0, vA1)
    a(f"""
    s_mov_b64 exec, 0xff
    ds_write2_b32 v{vQ+4}, v{vH1}, v{vH1+2} offset0:{L_RED1//4 if L_RED1//4 < 255 else 0} offset1:{L_RED1//4+1 if L_RED1//4 < 255 else 1}
    """.replace("ds_write2_b32", "; ds_write2_b32"))
    a(f"""
    v_mov_b32 v{vH1+1}, v{vH1+2}
    ds_write_b64 v{vQ+4}, {vr(vH1,2)} offset:{L_RED1}
    s_mov_b64 exec, -1
    s_waitcnt lgkmcnt(0)
    s_barrier
    ds_read_b64 {vr(vH1,2)}, v{vQ+5} offset:{L_RED1}
    s_waitcnt lgkmcnt(0)
    """)
    red2_bits345(vH1, vH1 + 1, vA0, vA1)
    a(f"v_cvt_pk_bf16_f32 v{vA0}, v{vH1}, v{vH1+1}")
    for p in range(8): a(f"v_readlane_b32 s{sO+p}, v{vA0}, {p}")
    for p in range(8):
        a(f"v_dot2c_f32_bf16 v{vT+12}, s{sO+p}, v{PW+2*p}")
        a(f"v_dot2c_f32_bf16 v{vT+13}, s{sO+p}, v{PW+2*p+1}")
    a(f"v_fma_f32 v{vB0}, v{vT+12}, v{vE+4}, v{vBP}")
    a(f"v_fma_f32 v{vB2}, v{vT+13}, v{vE+4}, v{vBP+1}")
    a(f"buffer_store_dwordx4 {vr(vB0,4)}, v{vT16}, {srd(WS_)}, s{sPB} offen sc1")
    stamp()
    a(f"s_cmp_ge_u32 s2, {C2}")
    a(f"s_cbranch_scc1 L_fin")
    a(f"s_mul_i32 s{sA}, s2, {CC*8}")
    a(f"s_add_u32 s{sA}, s{sA}, {WS_FP}")
    so = [sA, sT1, sT2, sT3]
    for k in range(1, NL): a(f"s_add_u32 s{so[k]}, s{sA}, {k*(512//PC)*8192}")
    h2 = [f"buffer_load_dwordx4 {vr(vS+4*k,4)}, v{vQ+6}, {srd(WS_)}, s{so[k]} offen sc1" for k in range(NL)]
    for l in h2: a(l)
    a("s_waitcnt vmcnt(0)")
    tg = []
    for k in range(NL): tg += [vS + 4 * k + 1, vS + 4 * k + 3]
    poll_retry(h2, tg, vA0, sleep1)
    stamp()
    for k in range(1, NL):
        a(f"v_add_f32 v{vS}, v{vS}, v{vS+4*k}")
        a(f"v_add_f32 v{vS+2}, v{vS+2}, v{vS+4*k+2}")
    a(f"v_mov_b32 v{vS+1}, v{vS+2}")
    nn = PC
    while nn < 8:
        a(f"v_add_f32_dpp v{vS}, v{vS}, v{vS} row_ror:{nn} {DPP}")
        a(f"v_add_f32_dpp v{vS+1}, v{vS+1}, v{vS+1} row_ror:{nn} {DPP}")
        nn *= 2
    red2_bits345(vS, vS + 1, vA0, vA1)
    a(f"""
    s_mov_b64 exec, 0xff
    ds_write_b64 v{vQ+4}, {vr(vS,2)} offset:{L_RED2}
    s_mov_b64 exec, -1
    """)
    arrive_last(C_R2, "L_fin")
    a(f"""
    ds_read_b64 {vr(vS,2)}, v{vQ+5} offset:{L_RED2}
    s_waitcnt lgkmcnt(0)
    """)
    red2_bits345(vS, vS + 1, vA0, vA1)
    a(f"""
    v_cvt_pk_bf16_f32 v{vA0}, v{vS}, v{vS+1}
    v_lshlrev_b32 v{vA1}, 2, v{vL}
    s_mul_i32 s{sT0}, s2, {CC*2}
    s_mov_b64 exec, {(1<<PC)-1}
    buffer_store_dword v{vA0}, v{vA1}, {srd(OUT_)}, s{sT0} offen
    s_cmp_lg_u32 s2, 0
    s_cbranch_scc1 L_fin
    s_mov_b64 exec, 1
    buffer_store_dword v{vTAG}, off, {srd(WS_)}, 0 sc1
    L_fin:
    """)
    if stamps:
        a("s_mov_b64 exec, -1")
        ns = nst[0] + 1
        k = nst[0]
        a("s_waitcnt vmcnt(0)")
        a(f"s_memrealtime s[{sST+2*k}:{sST+2*k+1}]")
        a(f"s_lshl_b32 s{sT0}, s2, 3")
        a(f"s_add_u32 s{sT0}, s{sT0}, s{sWV}")
        a(f"s_mul_i32 s{sT0}, s{sT0}, {ns*8}")
        a(f"s_add_u32 s{sT0}, s{sT0}, {STAMP_OFF}")
        a("s_waitcnt lgkmcnt(0)")
        a("s_mov_b64 exec, 1")
        for j in range(ns):
            a(f"v_mov_b32 v{vA0}, s{sST+2*j}")
            a(f"v_mov_b32 v{vA1}, s{sST+2*j+1}")
            a(f"buffer_store_dwordx2 {vr(vA0,2)}, off, {srd(WS_)}, s{sT0} offset:{8*j}")
        print("stamps:", ns)
    a("L_end:")
    a("s_endpgm")
    lines = hazard.fix([l for l in a.lines if not l.strip().startswith(";")])
    return wrap_single("\n".join(lines), 256, 512, lds, 256, header=HEADER)

if __name__ == "__main__":
    out = sys.argv[1]
    kw = {}
    for s in sys.argv[2:]:
        k, v = s.split("=")
        try: v = int(v)
        except: pass
        kw[k] = v
    open(out, "w").write(gen(**kw))
```

```python
import sys, math, struct
from asmlib import *
import hazard
def f2u(x): return struct.unpack("<I", struct.pack("<f", x))[0]

HEADER = open("cdna_kernels/" + NAME + ".s.ref").read().split("; Override launch")[0]

WS_QG = 0x1000
WS_ML = 0x10000
WS_QP = 0x20000
WS_FG = 0x40000
WS_OP = 0x100000
WS_FP = 0x300000
WS_SIZE = 0x500000
STAMP_OFF = 128 << 20
C_Q, C_F, C_QS, C_ST, C_ML, C_R2, C_H = 0, 4, 8, 12, 16, 20, 24
L_Z = 64
L_H = 128
L_GP = 256
L_QS = L_GP + 3 * 2048
L_ST = L_QS + 2176
L_MLP = L_ST + 512
L_F = L_MLP + 512
L_RED1 = L_F + 256
L_RED2 = L_RED1 + 512
L_ORED = L_RED2 + 512
L_END = L_ORED + 8 * 4224

sW, sWV = 2, 3
K_, V_, WQ_, WO_, WG_, WU_, WD_, X_, GW_, WS_, OUT_ = 4, 8, 12, 16, 20, 24, 28, 32, 36, 40, 44
def srd(b): return f"s[{b}:{b+3}]"
sG, sI = 48, 49
sPA, sPB = 50, 51
sKV = 52
sT0, sT1, sT2, sT3 = 53, 54, 55, 56
sSELLO, sSELHI, sC = 57, 58, 59
sCAP = 60
sA, sB = 61, 62
sKS = 63
sM0 = 64
sO = 68
sST = 76

vL, vT4, vT16, vTAG, vKO, vVO, vWQO, vWFO = 0, 1, 2, 3, 4, 5, 6, 7
vA0, vA1, vA2, vA3 = 8, 9, 10, 11
vB0, vB1, vB2, vB3 = 12, 13, 14, 15
vT = 16
vQ = 32
vE = 40
vP = 48
vS = 64
vACC = 96
vRING = 128

def gen(WIN=3, C2=64, stamps=False, nt=True, lds=82440, sleep1=2, qa_at=16, fa_at=22, qb_at=30, ml_at=70, W0=4, STEP=1, WEND=None, sn="d", dbg=0):
    a = Asm()
    NT = " nt" if nt else ""
    nst = [0]
    SN = set(str(sn).split("+"))
    def stamp(name="d"):
        if stamps and name in SN:
            k = nst[0]; nst[0] += 1
            a(f"s_memrealtime s[{sST+2*k}:{sST+2*k+1}]")
    def B(k): return vRING + 32 * k
    def vr(b, n): return f"v[{b}:{b+n-1}]"
    DPP = "row_mask:0xf bank_mask:0xf"

    def red_bits45(op, v, t):
        a(f"v_mov_b32 v{t}, v{v}")
        a(f"v_permlane16_swap_b32 v{v}, v{t}")
        a(f"v_{op}_f32 v{v}, v{v}, v{t}")
        a(f"v_mov_b32 v{t}, v{v}")
        a(f"v_permlane32_swap_b32 v{v}, v{t}")
        a(f"v_{op}_f32 v{v}, v{v}, v{t}")
    def red_bits345(op, v, t):
        a(f"v_{op}_f32_dpp v{v}, v{v}, v{v} row_ror:8 {DPP}")
        red_bits45(op, v, t)
    def red2_bits45(v0, v1, t0, t1):
        for sw in ("16", "32"):
            a(f"v_mov_b32 v{t0}, v{v0}")
            a(f"v_mov_b32 v{t1}, v{v1}")
            a(f"v_permlane{sw}_swap_b32 v{v0}, v{t0}")
            a(f"v_permlane{sw}_swap_b32 v{v1}, v{t1}")
            a(f"v_add_f32 v{v0}, v{v0}, v{t0}")
            a(f"v_add_f32 v{v1}, v{v1}, v{t1}")
    def red2_bits345(v0, v1, t0, t1):
        a(f"v_add_f32_dpp v{v0}, v{v0}, v{v0} row_ror:8 {DPP}")
        a(f"v_add_f32_dpp v{v1}, v{v1}, v{v1} row_ror:8 {DPP}")
        red2_bits45(v0, v1, t0, t1)
    def reduce_ml(vm, vl, vM, t):
        a(f"v_mov_b32 v{vM}, v{vm}")
        red_bits345("max", vM, t)
        a(f"v_sub_f32 v{t}, v{vm}, v{vM}")
        a(f"v_exp_f32 v{t}, v{t}")
        a(f"v_mul_f32 v{vl}, v{vl}, v{t}")
        red_bits345("add", vl, t)
    def arrive_last(cnt, skip):
        a(f"""
        s_waitcnt lgkmcnt(0)
        v_mov_b32 v{vA0}, {cnt}
        v_mov_b32 v{vA1}, 1
        s_mov_b64 exec, 1
        ds_add_rtn_u32 v{vA0}, v{vA0}, v{vA1}
        s_mov_b64 exec, -1
        s_waitcnt lgkmcnt(0)
        v_readfirstlane_b32 s{sT0}, v{vA0}
        s_cmp_lg_u32 s{sT0}, 7
        s_cbranch_scc1 {skip}
        """)
    def arrive(cnt):
        a(f"""
        s_waitcnt lgkmcnt(0)
        v_mov_b32 v{vA0}, {cnt}
        v_mov_b32 v{vA1}, 1
        s_mov_b64 exec, 1
        ds_add_u32 v{vA0}, v{vA1}
        s_mov_b64 exec, -1
        """)
    def wait_cnt(cnt, val):
        l = a.label("Lw"); d = a.label("Lwd")
        a(f"""
        v_mov_b32 v{vA0}, {cnt}
        s_mov_b32 s{sCAP}, 0
        {l}:
        ds_read_b32 v{vA1}, v{vA0}
        s_waitcnt lgkmcnt(0)
        v_readfirstlane_b32 s{sT0}, v{vA1}
        s_cmp_ge_u32 s{sT0}, {val}
        s_cbranch_scc1 {d}
        s_add_u32 s{sCAP}, s{sCAP}, 1
        s_cmp_gt_u32 s{sCAP}, 0x400000
        s_cbranch_scc1 {d}
        s_sleep 1
        s_branch {l}
        {d}:
        """)
    def poll_retry(loads, tagregs, tmp, sleep):
        lc = a.label("Lchk"); ld = a.label("Ldone")
        a(f"s_mov_b32 s{sCAP}, 0")
        a(f"{lc}:")
        a(f"v_xor_b32 v{tmp}, v{tagregs[0]}, v{vTAG}")
        for r in tagregs[1:]:
            a(f"v_xor_b32 v{tmp+1}, v{r}, v{vTAG}")
            a(f"v_or_b32 v{tmp}, v{tmp}, v{tmp+1}")
        a(f"v_cmp_ne_u32 vcc, 0, v{tmp}")
        a(f"s_and_b64 exec, exec, vcc")
        a(f"s_cbranch_scc0 {ld}")
        a(f"s_add_u32 s{sCAP}, s{sCAP}, 1")
        a(f"s_cmp_gt_u32 s{sCAP}, 0x40000")
        a(f"s_cbranch_scc1 {ld}")
        if sleep: a(f"s_sleep {sleep}")
        for l in loads: a(l)
        a("s_waitcnt vmcnt(0)")
        a(f"s_branch {lc}")
        a(f"{ld}:")
        a("s_mov_b64 exec, -1")
    def only_wave(wv, fn):
        sk = a.label("Low")
        a(f"s_cmp_lg_u32 s{sWV}, {wv}")
        a(f"s_cbranch_scc1 {sk}")
        fn()
        a(f"{sk}:")

    if stamps: a(f"s_memrealtime s[{sM0}:{sM0+1}]")
    a(f"""
    s_cmp_ge_u32 s2, 256
    s_cbranch_scc1 L_end
    s_load_dwordx16 s[76:91], s[0:1], 0
    s_load_dwordx8 s[92:99], s[0:1], 64
    s_load_dwordx2 s[{WS_}:{WS_+1}], s[0:1], 96
    v_lshrrev_b32 v{vA0}, 6, v0
    v_lshlrev_b32 v{vT4}, 2, v0
    v_lshlrev_b32 v{vT16}, 4, v0
    v_readfirstlane_b32 s{sWV}, v{vA0}
    v_and_b32 v{vL}, 63, v0
    s_lshr_b32 s{sG}, s2, 6
    s_and_b32 s{sI}, s2, 63
    s_cmp_lt_u32 s{sI}, 56
    s_cselect_b32 s{WG_+2}, {1024*7168}, 0
    s_cselect_b32 s{WU_+2}, {1024*7168}, 0
    s_cselect_b32 s{WD_+2}, {3584*2048}, 0
    s_mov_b32 s{WQ_+2}, {1024*8192}
    s_mov_b32 s{WQ_+3}, 0x20000
    s_mov_b32 s{X_+2}, 2048
    s_mov_b32 s{X_+3}, 0x20000
    s_mov_b32 s{GW_+2}, 2048
    s_mov_b32 s{GW_+3}, 0x20000
    s_mov_b32 s{WS_+2}, {WS_SIZE if not stamps else (256<<20)}
    s_mov_b32 s{WS_+3}, 0x20000
    s_mov_b32 s{WG_+3}, 0x20000
    s_mov_b32 s{WU_+3}, 0x20000
    v_lshrrev_b32 v{vA0}, 3, v{vL}
    v_and_b32 v{vA1}, 7, v{vL}
    v_lshlrev_b32 v{vA1}, 4, v{vA1}
    v_lshl_add_u32 v{vWQO}, v{vA0}, 15, v{vA1}
    v_mul_u32_u24 v{vWFO}, {4*7168}, v{vA0}
    v_add_u32 v{vWFO}, v{vWFO}, v{vA1}
    v_lshlrev_b32 v{vA2}, 3, v{vA0}
    s_lshl_b32 s{sT3}, s{sG}, 3
    s_add_u32 s{sT3}, s{sT3}, s{sWV}
    s_lshl_b32 s{sT0}, s{sI}, 7
    s_lshl_b32 s{sA}, s{sT3}, 18
    s_add_u32 s{sA}, s{sA}, s{sT0}
    s_mul_i32 s{sB}, s{sT3}, {32*7168}
    s_add_u32 s{sB}, s{sB}, s{sT0}
    s_lshl_b32 s{sT3}, s{sT3}, 6
    s_add_u32 s{sT0}, s{sA}, 8192
    s_add_u32 s{sT1}, s{sA}, 16384
    s_add_u32 s{sT2}, s{sA}, 24576
    s_waitcnt lgkmcnt(0)
    s_mov_b64 s[{WQ_}:{WQ_+1}], s[82:83]
    s_mov_b64 s[{X_}:{X_+1}], s[76:77]
    s_mov_b64 s[{GW_}:{GW_+1}], s[94:95]
    """)
    WQR = B(2); WGR = B(2) + 16; WUR = B(3)
    vXP = vB0
    g0 = [f"buffer_load_dwordx4 {vr(WQR+4*j,4)}, v{vWQO}, {srd(WQ_)}, s{[sA,sT0,sT1,sT2][j]} offen{NT}" for j in range(4)]
    g0x = [f"buffer_load_dwordx2 {vr(vXP,2)}, v{vA2}, {srd(X_)}, s{sT3} offen",
           f"buffer_load_dword v{vTAG}, off, {srd(WS_)}, 0 sc1",
           f"buffer_load_dword v{vB2}, v{vT4}, {srd(X_)}, 0 offen",
           f"buffer_load_dword v{vB3}, v{vT4}, {srd(GW_)}, 0 offen"]
    for l in g0[:3] + g0x + g0[3:]: a(l)
    a(f"""
    v_mov_b32 v{vA0}, 0
    v_lshlrev_b32 v{vA1}, 2, v{vL}
    s_cmp_lg_u32 s{sWV}, 0
    s_cbranch_scc1 L_noinit
    s_mov_b64 exec, 0xffff
    ds_write_b32 v{vA1}, v{vA0}
    s_mov_b64 exec, -1
    s_waitcnt lgkmcnt(0)
    L_noinit:
    s_mov_b64 s[{WG_}:{WG_+1}], s[88:89]
    s_mov_b64 s[{WU_}:{WU_+1}], s[90:91]
    s_barrier
    """)
    a(f"""
    s_mov_b64 s[{K_}:{K_+1}], s[78:79]
    s_mov_b64 s[{V_}:{V_+1}], s[80:81]
    s_mov_b64 s[{WO_}:{WO_+1}], s[84:85]
    s_mov_b64 s[{WD_}:{WD_+1}], s[92:93]
    s_mov_b64 s[{OUT_}:{OUT_+1}], s[96:97]
    s_mov_b64 s[66:67], s[98:99]
    s_mov_b32 s{K_+2}, 0x4000000
    s_mov_b32 s{K_+3}, 0x20000
    s_mov_b32 s{V_+2}, 0x4000000
    s_mov_b32 s{V_+3}, 0x20000
    s_mov_b32 s{WO_+2}, {4096*2048}
    s_mov_b32 s{WO_+3}, 0x20000
    s_mov_b32 s{WD_+3}, 0x20000
    s_mov_b32 s{OUT_+2}, 2048
    s_mov_b32 s{OUT_+3}, 0x20000
    s_mov_b32 s{sSELLO}, 0x05040100
    s_mov_b32 s{sSELHI}, 0x07060302
    s_mov_b32 s{sC}, {hex(f2u(128**-0.5 * math.log2(math.e)))}
    s_lshl_b32 s{sKV}, s2, 18
    s_lshl_b32 s{sT0}, s{sWV}, 13
    s_add_u32 s{sKV}, s{sKV}, s{sT0}
    v_and_b32 v{vA0}, 3, v{vL}
    v_lshlrev_b32 v{vA0}, 10, v{vA0}
    v_bfe_u32 v{vA1}, v{vL}, 2, 1
    v_lshl_add_u32 v{vA0}, v{vA1}, 8, v{vA0}
    v_bfe_u32 v{vA1}, v{vL}, 3, 1
    v_lshl_add_u32 v{vA0}, v{vA1}, 6, v{vA0}
    v_lshrrev_b32 v{vA1}, 4, v{vL}
    v_lshl_add_u32 v{vKO}, v{vA1}, 4, v{vA0}
    v_lshlrev_b32 v{vVO}, 4, v{vL}
    """)
    if stamps:
        for k in range(13): a(f"s_mov_b64 s[{sST+2*k}:{sST+2*k+1}], s[{sM0}:{sM0+1}]")
        nst[0] = 1
    for r in range(24): a(f"v_mov_b32 v{vS+r}, 0")
    a(f"v_mov_b32 v{vE+6}, 0")

    vQG = vB0
    qload = f"buffer_load_dwordx2 {vr(vQG,2)}, v{vE+7}, {srd(WS_)}, s{sA} offen sc1"
    qpre = [f"v_lshrrev_b32 v{vE+7}, 1, v{vT16}", f"s_lshl_b32 s{sA}, s{sG}, 12", f"s_add_u32 s{sA}, s{sA}, {WS_QG}"]
    vML = vB0
    mlload = f"buffer_load_dwordx4 {vr(vML,4)}, v{vT16}, {srd(WS_)}, s{sA} offen sc1"
    mlpre = [f"s_lshl_b32 s{sA}, s{sG}, 13", f"s_add_u32 s{sA}, s{sA}, {WS_ML}"]
    qaload = f"buffer_load_dwordx2 {vr(vE,2)}, v{vE+6}, {srd(WS_)}, s{sPA} offen sc1"
    def qa_issue():
        a(f"""
        v_lshrrev_b32 v{vE+6}, 4, v{vL}
        v_lshlrev_b32 v{vE+6}, 9, v{vE+6}
        v_and_b32 v{vE+5}, 15, v{vL}
        v_lshl_add_u32 v{vE+6}, v{vE+5}, 3, v{vE+6}
        s_lshl_b32 s{sPA}, s{sI}, 11
        s_lshl_b32 s{sT0}, s{sG}, 7
        s_add_u32 s{sPA}, s{sPA}, s{sT0}
        s_add_u32 s{sPA}, s{sPA}, {WS_QP}
        """)
        a(qaload)
    faload = f"buffer_load_dwordx4 {vr(vE,4)}, v{vE+6}, {srd(WS_)}, s{sPA} offen sc1"
    def fa_issue():
        a(f"""
        v_lshrrev_b32 v{vE+6}, 4, v{vL}
        v_lshlrev_b32 v{vE+6}, 10, v{vE+6}
        v_and_b32 v{vE+5}, 15, v{vL}
        v_lshl_add_u32 v{vE+6}, v{vE+5}, 4, v{vE+6}
        s_lshl_b32 s{sPA}, s{sI}, 12
        s_lshl_b32 s{sT0}, s{sG}, 8
        s_add_u32 s{sPA}, s{sPA}, s{sT0}
        s_add_u32 s{sPA}, s{sPA}, {WS_FG}
        """)
        a(faload)

    WOR = B(0); PW = B(1)
    WDR = vACC
    U = []
    for j in range(4): U.append((f"wq{j}", None, 1 if j != 2 else 1 + len(g0x), None))
    for nm, R, S_ in (("gate", WGR, WG_), ("up", WUR, WU_)):
        for j in range(4):
            U.append((f"{nm}{j}", [f"s_add_u32 s{sT3}, s{sB}, {j*7168}", f"buffer_load_dwordx4 {vr(R+4*j,4)}, v{vWFO}, {srd(S_)}, s{sT3} offen{NT}"], 1, None))
    for j in range(4):
        l = []
        if j == 0: l += [f"s_lshl_b32 s{sPB}, s{sI}, 2", f"s_add_u32 s{sPB}, s{sPB}, s{sG}", f"s_lshl_b32 s{sPB}, s{sPB}, 15"]
        for e in range(4 * j, 4 * j + 4):
            if e % 2 == 0: l += [f"s_add_u32 s{sT3}, s{sPB}, {e*2048}", f"buffer_load_dword v{WDR+e}, v{vT4}, {srd(WD_)}, s{sT3} offen{NT}"]
            else: l += [f"buffer_load_dword v{WDR+e}, v{vT4}, {srd(WD_)}, s{sT3} offen offset:2048{NT}"]
        U.append((f"wd{j}", l, 4, None))
    kpre = {(2, 0): "wq", (2, 1): "gate", (3, 0): "up"}
    for t in range(4):
        for j in range(8):
            u, k = j >> 2, j & 3
            l = [f"s_add_u32 s{sKS}, s{sKV}, {t*65536 + u*4096}"] if k == 0 else []
            l.append(f"buffer_load_dwordx4 {vr(B(t)+4*j,4)}, v{vKO}, {srd(K_)}, s{sKS} offen offset:{(k>>1)*512+(k&1)*128}{NT}")
            U.append((f"K{t}_{j}", l, 1, kpre.get((t, u))))
    for t in range(4):
        for j in range(8):
            u, k = j >> 2, j & 3
            l = [f"s_add_u32 s{sKS}, s{sKV}, {t*65536 + u*4096}"] if k == 0 else []
            l.append(f"buffer_load_dwordx4 {vr(B(t)+4*j,4)}, v{vVO}, {srd(V_)}, s{sKS} offen offset:{k*1024}{NT}")
            U.append((f"V{t}_{j}", l, 1, f"K{t}{'ab'[u]}"))
    for j in range(4):
        l = []
        if j == 0: l += [f"s_lshl_b32 s{sB}, s{sG}, 3", f"s_lshr_b32 s{sT0}, s{sI}, 3", f"s_add_u32 s{sB}, s{sB}, s{sT0}",
               f"s_lshl_b32 s{sB}, s{sB}, 7", f"s_and_b32 s{sT0}, s{sI}, 7", f"s_add_u32 s{sB}, s{sB}, s{sT0}", f"s_lshl_b32 s{sB}, s{sB}, 11"]
        for e in range(4 * j, 4 * j + 4):
            l += [f"s_add_u32 s{sT3}, s{sB}, {e*16384}", f"buffer_load_dword v{WOR+e}, v{vT4}, {srd(WO_)}, s{sT3} offen{NT}"]
        U.append((f"wo{j}", l, 4, "V0"))
    names = [u[0] for u in U]
    idx = {n: k for k, n in enumerate(names)}
    extra = {}
    extra.setdefault(qa_at, []).append(lambda: only_wave(0, qa_issue))
    extra.setdefault(fa_at, []).append(lambda: only_wave(1, fa_issue))
    extra.setdefault(qb_at, []).append(lambda: [a(x) for x in qpre + [qload]])
    extra.setdefault(ml_at, []).append(lambda: [a(x) for x in mlpre + [mlload]])

    vX = vT
    aq, ag, au = vS, vS + 8, vS + 16
    def gemv(W, acc):
        for j in range(4):
            for w in range(4):
                a(f"v_dot2c_f32_bf16 v{acc+2*w}, v{W+4*j+w}, v{vX+2*j}")
                a(f"v_dot2c_f32_bf16 v{acc+2*w+1}, v{W+4*j+w}, v{vX+2*j+1}")
    def swapred(acc):
        for k in range(4): a(f"v_permlane32_swap_b32 v{acc+k}, v{acc+k+4}")
        for k in range(4): a(f"v_add_f32 v{acc+k}, v{acc+k}, v{acc+k+4}")
        for k in range(2): a(f"v_permlane16_swap_b32 v{acc+k}, v{acc+k+2}")
        for k in range(2): a(f"v_add_f32 v{acc+k}, v{acc+k}, v{acc+k+2}")
        for k in range(2): a(f"v_add_f32_dpp v{acc+k}, v{acc+k}, v{acc+k} row_ror:8 {DPP}")
    vGA = vT + 8
    def sum8(base):
        for step in (1, 2, 4):
            for k in range(0, 8, 2 * step): a(f"v_add_f32 v{base+k}, v{base+k}, v{base+k+step}")
    def task_q():
        a(f"v_add_u32 v{vTAG}, 1, v{vTAG}")
        for h in range(2):
            a(f"v_and_b32 v{vX+4*h}, 0xffff, v{vXP+h}")
            a(f"v_lshlrev_b32 v{vX+4*h+1}, 16, v{vXP+h}")
            a(f"v_lshrrev_b32 v{vX+4*h+2}, 16, v{vXP+h}")
            a(f"v_and_b32 v{vX+4*h+3}, 0xffff0000, v{vXP+h}")
        gemv(WQR, aq)
        a(f"""
        v_and_b32 v{vA0}, 7, v{vL}
        v_lshlrev_b32 v{vA0}, 5, v{vA0}
        v_lshrrev_b32 v{vA1}, 4, v{vL}
        v_lshl_add_u32 v{vA0}, v{vA1}, 3, v{vA0}
        s_lshl_b32 s{sT0}, s{sWV}, 8
        v_add_u32 v{vGA}, s{sT0}, v{vA0}
        """)
        swapred(aq)
        skip = a.label("Lq")
        a(f"ds_write_b64 v{vGA}, {vr(aq,2)} offset:{L_GP}")
        arrive_last(C_Q, skip)
        a(f"v_lshlrev_b32 v{vA2}, 2, v{vL}")
        a(f"v_add_u32 v{vA0}, {L_GP}, v{vA2}")
        for k in range(4): a(f"ds_read2st64_b32 {vr(aq+2*k,2)}, v{vA0} offset0:{2*k} offset1:{2*k+1}")
        a(f"""
        v_lshlrev_b32 v{vA2}, 3, v{vL}
        s_lshl_b32 s{sT0}, s{sI}, 11
        s_lshl_b32 s{sT1}, s{sG}, 9
        s_add_u32 s{sT0}, s{sT0}, s{sT1}
        s_add_u32 s{sT0}, s{sT0}, {WS_QP}
        s_waitcnt lgkmcnt(0)
        """)
        sum8(aq)
        a(f"""
        v_mov_b32 v{aq+1}, v{vTAG}
        buffer_store_dwordx2 {vr(aq,2)}, v{vA2}, {srd(WS_)}, s{sT0} offen sc1
        {skip}:
        """)
        stamp()
    def task_gate():
        stamp("i")
        gemv(WGR, ag)
        a(f"""
        v_lshlrev_b32 v{vA0}, 16, v{vB2}
        v_and_b32 v{vA1}, 0xffff0000, v{vB2}
        v_lshlrev_b32 v{vA2}, 16, v{vB3}
        v_and_b32 v{vA3}, 0xffff0000, v{vB3}
        v_mul_f32 v{vA0}, v{vA0}, v{vA2}
        v_mul_f32 v{vA1}, v{vA1}, v{vA3}
        v_cvt_pk_bf16_f32 v{vA0}, v{vA0}, v{vA1}
        v_lshlrev_b32 v{vA1}, 16, v{vA0}
        v_and_b32 v{vA0}, 0xffff0000, v{vA0}
        v_add_f32 v{vA2}, v{vA0}, v{vA1}
        """)
        swapred(ag)
        for n in (1, 2, 4): a(f"v_add_f32_dpp v{vA2}, v{vA2}, v{vA2} row_ror:{n} {DPP}")
        red_bits345("add", vA2, vA3)
        a(f"""
        ds_write_b64 v{vGA}, {vr(ag,2)} offset:{L_GP+2048}
        s_lshl_b32 s{sT0}, s{sWV}, 2
        v_mov_b32 v{vA3}, s{sT0}
        s_mov_b64 exec, 1
        ds_write_b32 v{vA3}, v{vA2} offset:{L_Z}
        s_mov_b64 exec, -1
        """)
        stamp("i")
    def task_up():
        gemv(WUR, au)
        swapred(au)
        skip = a.label("Lf")
        a(f"ds_write_b64 v{vGA}, {vr(au,2)} offset:{L_GP+4096}")
        arrive_last(C_F, skip)
        a(f"v_lshlrev_b32 v{vA2}, 2, v{vL}")
        a(f"v_add_u32 v{vA0}, {L_GP+2048}, v{vA2}")
        for k in range(4): a(f"ds_read2st64_b32 {vr(ag+2*k,2)}, v{vA0} offset0:{2*k} offset1:{2*k+1}")
        for k in range(4): a(f"ds_read2st64_b32 {vr(au+2*k,2)}, v{vA0} offset0:{8+2*k} offset1:{8+2*k+1}")
        a(f"""
        v_mov_b32 v{vA1}, 0
        ds_read_b128 {vr(aq,4)}, v{vA1} offset:{L_Z}
        ds_read_b128 {vr(aq+4,4)}, v{vA1} offset:{L_Z+16}
        s_lshl_b32 s{sT0}, s{sI}, 12
        s_lshl_b32 s{sT1}, s{sG}, 10
        s_add_u32 s{sT0}, s{sT0}, s{sT1}
        s_add_u32 s{sT0}, s{sT0}, {WS_FG}
        s_waitcnt lgkmcnt(0)
        """)
        sum8(ag); sum8(au); sum8(aq)
        a(f"""
        v_mov_b32 v{ag+1}, v{vTAG}
        v_mov_b32 v{ag+2}, v{au}
        v_mov_b32 v{ag+3}, v{vTAG}
        buffer_store_dwordx4 {vr(ag,4)}, v{vVO}, {srd(WS_)}, s{sT0} offen sc1
        v_cvt_pk_bf16_f32 v{vA0}, v{aq}, v{aq}
        v_and_b32 v{vA0}, 0xffff0000, v{vA0}
        v_mul_f32 v{vA0}, {hex(f2u(-math.log2(math.e)))}, v{vA0}
        v_exp_f32 v{vA0}, v{vA0}
        v_add_f32 v{vA0}, 1.0, v{vA0}
        v_rcp_f32 v{vA0}, v{vA0}
        v_cvt_pk_bf16_f32 v{vA0}, v{vA0}, v{vA0}
        v_and_b32 v{vA0}, 0xffff0000, v{vA0}
        v_sub_f32 v{vA1}, 1.0, v{vA0}
        v_cvt_pk_bf16_f32 v{vA1}, v{vA1}, v{vA1}
        v_and_b32 v{vA1}, 0xffff0000, v{vA1}
        v_mov_b32 v{vA2}, 0
        s_mov_b64 exec, 1
        ds_write_b64 v{vA2}, {vr(vA0,2)} offset:{L_H+32}
        s_mov_b64 exec, -1
        """)
        arrive(C_H)
        a(f"{skip}:")
    def task_qa():
        def f():
            poll_retry([qaload], [vE + 1], vA0, 2)
            red_bits45("add", vE, vA0)
            a(f"""
            v_mov_b32_dpp v{vA1}, v{vE} quad_perm:[1,0,3,2] {DPP}
            v_cvt_pk_bf16_f32 v{vA0}, v{vE}, v{vA1}
            v_mov_b32 v{vA1}, v{vTAG}
            v_lshlrev_b32 v{vA2}, 2, v{vL}
            s_lshl_b32 s{sT0}, s{sI}, 8
            s_lshl_b32 s{sT1}, s{sG}, 6
            s_add_u32 s{sT0}, s{sT0}, s{sT1}
            s_add_u32 s{sT0}, s{sT0}, {WS_QG}
            s_mov_b64 exec, 0x5555
            buffer_store_dwordx2 {vr(vA0,2)}, v{vA2}, {srd(WS_)}, s{sT0} offen sc1
            s_mov_b64 exec, -1
            """)
            stamp()
        only_wave(0, f)
    def task_fa():
        def f():
            poll_retry([faload], [vE + 1, vE + 3], vA0, 2)
            red2_bits45(vE, vE + 2, vA0, vA1)
            a(f"""
            v_cvt_pk_bf16_f32 v{vA0}, v{vE}, v{vE+2}
            v_lshlrev_b32 v{vA1}, 16, v{vA0}
            v_and_b32 v{vA0}, 0xffff0000, v{vA0}
            v_max_f32 v{vA1}, 0, v{vA1}
            v_mul_f32 v{vA0}, v{vA0}, v{vA1}
            v_mov_b32_dpp v{vA1}, v{vA0} quad_perm:[1,0,3,2] {DPP}
            v_cvt_pk_bf16_f32 v{vA0}, v{vA0}, v{vA1}
            v_lshlrev_b32 v{vA2}, 1, v{vL}
            s_mov_b64 exec, 0x5555
            ds_write_b32 v{vA2}, v{vA0} offset:{L_H}
            s_mov_b64 exec, -1
            """)
            arrive(C_H)
        only_wave(1, f)
    vBP = vE + 2
    def task_bpart():
        wait_cnt(C_H, 2)
        a(f"v_mov_b32 v{vA2}, 0")
        a(f"ds_read_b128 {vr(vT,4)}, v{vA2} offset:{L_H}")
        a(f"ds_read_b128 {vr(vT+4,4)}, v{vA2} offset:{L_H+16}")
        a(f"ds_read_b64 {vr(vE+4,2)}, v{vA2} offset:{L_H+32}")
        a(f"v_mov_b32 v{vBP}, 0"); a(f"v_mov_b32 v{vBP+1}, 0")
        for p in range(8):
            a(f"v_perm_b32 v{WDR+16+2*p}, v{WDR+2*p+1}, v{WDR+2*p}, s{sSELLO}")
            a(f"v_perm_b32 v{WDR+16+2*p+1}, v{WDR+2*p+1}, v{WDR+2*p}, s{sSELHI}")
        a("s_waitcnt lgkmcnt(0)")
        for p in range(8):
            a(f"v_dot2c_f32_bf16 v{vBP}, v{WDR+16+2*p}, v{vT+p}")
            a(f"v_dot2c_f32_bf16 v{vBP+1}, v{WDR+16+2*p+1}, v{vT+p}")
        a(f"v_mul_f32 v{vBP}, v{vBP}, v{vE+5}")
        a(f"v_mul_f32 v{vBP+1}, v{vBP+1}, v{vE+5}")
    def task_qcheck():
        poll_retry([qload], [vQG + 1], vA0, 2)
        a(f"""
        s_mul_i32 s{sT0}, s{sWV}, 272
        v_lshl_add_u32 v{vA0}, v{vL}, 2, s{sT0}
        ds_write_b32 v{vA0}, v{vQG} offset:{L_QS}
        """)
        arrive(C_QS)
        stamp()
    def task_qwait():
        wait_cnt(C_QS, 8)
        a(f"""
        v_and_b32 v{vA0}, 7, v{vL}
        v_mul_u32_u24 v{vA0}, 272, v{vA0}
        v_bfe_u32 v{vA1}, v{vL}, 3, 1
        v_lshl_add_u32 v{vA0}, v{vA1}, 6, v{vA0}
        v_lshrrev_b32 v{vA1}, 4, v{vL}
        v_lshl_add_u32 v{vA0}, v{vA1}, 4, v{vA0}
        """)
        for s in range(2): a(f"ds_read_b128 {vr(vQ+4*s,4)}, v{vA0} offset:{L_QS+128*s}")
        a("s_waitcnt lgkmcnt(0)")
    def task_k(lst):
        for c0 in range(0, len(lst), 4):
            ch = lst[c0:c0 + 4]
            for sp in range(2):
                for n, (t, u) in enumerate(ch):
                    base = B(t) + 16 * u; dx = vS + 8 * t + 4 * u; dy = vT + 4 * n
                    a(f"v_mfma_f32_16x16x32_bf16 {vr(dx,4)}, {vr(base+4*sp,4)}, {vr(vQ+4*sp,4)}, {'0' if sp==0 else vr(dx,4)}")
                    a(f"v_mfma_f32_16x16x32_bf16 {vr(dy,4)}, {vr(base+8+4*sp,4)}, {vr(vQ+4*sp,4)}, {'0' if sp==0 else vr(dy,4)}")
            for n, (t, u) in enumerate(ch):
                dx = vS + 8 * t + 4 * u; dy = vT + 4 * n
                for r in range(4): a(f"v_permlane32_swap_b32 v{dx+r}, v{dy+r}")
                for r in range(4): a(f"v_add_f32_dpp v{dx+r}, v{dy+r}, v{dx+r} row_ror:8 {DPP}")
        for t, u in lst: consumed.add(f"K{t}{'ab'[u]}")
    vM = vE
    def sm_max():
        m = vM
        a(f"v_max3_f32 v{m}, v{vS}, v{vS+1}, v{vS+2}")
        a(f"v_max3_f32 v{vA2}, v{vS+3}, v{vS+4}, v{vS+5}")
        for k in range(6, 30, 4):
            a(f"v_max3_f32 v{m}, v{m}, v{vS+k}, v{vS+k+1}")
            a(f"v_max3_f32 v{vA2}, v{vA2}, v{vS+k+2}, v{vS+k+3}")
        a(f"v_max3_f32 v{m}, v{m}, v{vS+30}, v{vS+31}")
        a(f"v_max_f32 v{m}, v{m}, v{vA2}")
        red_bits45("max", m, vA2)
        a(f"v_mul_f32 v{m}, s{sC}, v{m}")
    def sm_exp(t):
        stamp("i")
        for k in range(8 * t, 8 * t + 8): a(f"v_fma_f32 v{vS+k}, v{vS+k}, s{sC}, -v{vM}")
        for k in range(8 * t, 8 * t + 8): a(f"v_exp_f32 v{vS+k}, v{vS+k}")
        for k in range(4 * t, 4 * t + 4): a(f"v_cvt_pk_bf16_f32 v{vP+k}, v{vS+2*k}, v{vS+2*k+1}")
        sum8(vS + 8 * t)
        stamp("i")
    def task_softmax():
        lsum = vA1
        a(f"v_add_f32 v{vS}, v{vS}, v{vS+8}")
        a(f"v_add_f32 v{vS+16}, v{vS+16}, v{vS+24}")
        a(f"v_add_f32 v{lsum}, v{vS}, v{vS+16}")
        a(f"v_mov_b32 v{vA0}, v{vM}")
        red_bits45("add", lsum, vA2)
        skip = a.label("Ls")
        a(f"""
        s_lshl_b32 s{sT0}, s{sWV}, 6
        v_lshl_add_u32 v{vA2}, v{vL}, 3, s{sT0}
        s_mov_b64 exec, 0xff
        ds_write_b64 v{vA2}, {vr(vA0,2)} offset:{L_ST}
        s_mov_b64 exec, -1
        """)
        arrive_last(C_ST, skip)
        a(f"""
        v_lshlrev_b32 v{vA2}, 3, v{vL}
        ds_read_b64 {vr(vT,2)}, v{vA2} offset:{L_ST}
        s_waitcnt lgkmcnt(0)
        """)
        reduce_ml(vT, vT + 1, vA0, vA3)
        a(f"""
        v_mov_b32 v{vA1}, v{vTAG}
        v_mov_b32 v{vA2}, v{vT+1}
        v_mov_b32 v{vA3}, v{vTAG}
        s_lshl_b32 s{sT0}, s2, 7
        s_add_u32 s{sT0}, s{sT0}, {WS_ML}
        s_mov_b64 exec, 0xff
        buffer_store_dwordx4 {vr(vA0,4)}, v{vVO}, {srd(WS_)}, s{sT0} offen sc1
        s_mov_b64 exec, -1
        {skip}:
        """)
        stamp()
    def task_vperm(t, uu):
        R = B(t)
        for w in range(4):
            a(f"v_perm_b32 v{vS+4*(2*w)+uu}, v{R+4*(2*uu+1)+w}, v{R+4*(2*uu)+w}, s{sSELLO}")
            a(f"v_perm_b32 v{vS+4*(2*w+1)+uu}, v{R+4*(2*uu+1)+w}, v{R+4*(2*uu)+w}, s{sSELHI}")
        if uu == 3:
            for i in range(8):
                c = "0" if t == 0 else vr(vACC + 4 * i, 4)
                a(f"v_mfma_f32_16x16x32_bf16 {vr(vACC+4*i,4)}, {vr(vS+4*i,4)}, {vr(vP+4*t,4)}, {c}")
            consumed.add(f"V{t}")
    def task_ml():
        poll_retry([mlload], [vML + 1, vML + 3], vA0, 2)
        reduce_ml(vML, vML + 2, vA0, vA3)
        skip = a.label("Lm")
        a(f"""
        v_mov_b32 v{vA1}, v{vML+2}
        s_lshl_b32 s{sT0}, s{sWV}, 6
        v_lshl_add_u32 v{vA2}, v{vL}, 3, s{sT0}
        s_mov_b64 exec, 0xff
        ds_write_b64 v{vA2}, {vr(vA0,2)} offset:{L_MLP}
        s_mov_b64 exec, -1
        """)
        arrive_last(C_ML, skip)
        a(f"""
        v_lshlrev_b32 v{vA2}, 3, v{vL}
        ds_read_b64 {vr(vT,2)}, v{vA2} offset:{L_MLP}
        ds_read_b32 v{vT+2}, v{vA2} offset:{L_ST}
        s_waitcnt lgkmcnt(0)
        """)
        reduce_ml(vT, vT + 1, vA0, vA3)
        a(f"""
        v_sub_f32 v{vA1}, v{vT+2}, v{vA0}
        v_exp_f32 v{vA1}, v{vA1}
        v_rcp_f32 v{vA2}, v{vT+1}
        v_mul_f32 v{vA1}, v{vA1}, v{vA2}
        v_and_b32 v{vA2}, 7, v{vL}
        v_lshlrev_b32 v{vA2}, 5, v{vA2}
        v_lshrrev_b32 v{vA3}, 3, v{vL}
        v_lshl_add_u32 v{vA2}, v{vA3}, 2, v{vA2}
        ds_write_b32 v{vA2}, v{vA1} offset:{L_F}
        {skip}:
        """)
        a(f"""
        v_and_b32 v{vA0}, 7, v{vL}
        v_mul_u32_u24 v{vA0}, 528, v{vA0}
        v_lshrrev_b32 v{vA1}, 4, v{vL}
        v_lshl_add_u32 v{vA0}, v{vA1}, 4, v{vA0}
        s_mul_i32 s{sT0}, s{sWV}, 4224
        v_add_u32 v{vQ}, s{sT0}, v{vA0}
        s_mul_i32 s{sT0}, s{sWV}, 528
        v_lshl_add_u32 v{vQ+1}, v{vL}, 3, s{sT0}
        s_lshl_b32 s{sT0}, s{sWV}, 5
        v_mov_b32 v{vQ+2}, s{sT0}
        v_lshrrev_b32 v{vA0}, 7, v{vT16}
        v_lshlrev_b32 v{vA0}, 13, v{vA0}
        v_and_b32 v{vA1}, 0x70, v{vT16}
        v_add_u32 v{vQ+3}, v{vA0}, v{vA1}
        s_lshl_b32 s{sT1}, s{sWV}, 6
        v_lshl_add_u32 v{vQ+4}, v{vL}, 3, s{sT1}
        v_lshlrev_b32 v{vQ+5}, 3, v{vL}
        v_lshrrev_b32 v{vA0}, {4+lpc}, v{vT16}
        v_lshlrev_b32 v{vA0}, 13, v{vA0}
        v_and_b32 v{vA1}, {(PC-1)*16}, v{vT16}
        v_add_u32 v{vQ+6}, v{vA0}, v{vA1}
        v_mov_b32 v{vB1}, v{vTAG}
        v_mov_b32 v{vB3}, v{vTAG}
        s_lshl_b32 s{sA}, s{sG}, 19
        s_lshl_b32 s{sT0}, s{sI}, 7
        s_add_u32 s{sA}, s{sA}, s{sT0}
        s_add_u32 s{sA}, s{sA}, {WS_OP}
        s_lshl_b32 s{sPA}, s2, 13
        s_add_u32 s{sPB}, s{sPA}, {WS_FP}
        s_add_u32 s{sPA}, s{sPA}, {WS_OP}
        """)
    CC = 1024 // C2; PC = CC // 2; NL = PC // 2
    lpc = int(math.log2(PC))
    def task_publish_o():
        stamp()
        a(f"""
        s_mov_b32 exec_lo, 0x00ff00ff
        s_mov_b32 exec_hi, 0x00ff00ff
        """)
        for i in range(8): a(f"ds_write_b128 v{vQ}, {vr(vACC+4*i,4)} offset:{L_ORED+64*i}")
        a(f"""
        s_mov_b64 exec, -1
        s_waitcnt lgkmcnt(0)
        s_barrier
        ds_read_b128 {vr(vT,4)}, v{vQ+2} offset:{L_F}
        ds_read_b128 {vr(vT+4,4)}, v{vQ+2} offset:{L_F+16}
        """)
        for w in range(8): a(f"ds_read_b64 {vr(vS+2*w,2)}, v{vQ+1} offset:{L_ORED+4224*w}")
        a("s_waitcnt lgkmcnt(7)")
        a(f"v_mul_f32 v{vB0}, v{vS}, v{vT}")
        a(f"v_mul_f32 v{vB2}, v{vS+1}, v{vT}")
        for w in range(1, 8):
            a(f"s_waitcnt lgkmcnt({7-w})")
            a(f"v_fmac_f32 v{vB0}, v{vS+2*w}, v{vT+w}")
            a(f"v_fmac_f32 v{vB2}, v{vS+2*w+1}, v{vT+w}")
        a(f"buffer_store_dwordx4 {vr(vB0,4)}, v{vT16}, {srd(WS_)}, s{sPA} offen sc1")
        stamp()

    consumed = set()
    def mark(fn, key):
        def f():
            fn(); consumed.add(key)
        return f
    C = []
    C.append((idx["wq3"], mark(task_q, "wq")))
    C.append((idx["gate3"], mark(task_gate, "gate")))
    C.append((idx["up3"], mark(task_up, "up")))
    C.append((qa_at, task_qa)); C.append((fa_at, task_fa)); C.append((qb_at, task_qcheck))
    C.append((qb_at + 2, task_qwait))
    for t in range(4):
        for u in range(2):
            C.append((max(qb_at + 2, idx[f"K{t}_{4*u+3}"]), lambda t=t, u=u: task_k([(t, u)])))
    kend = C[-1][0]
    C.append((kend, sm_max))
    for t in range(4): C.append((kend, lambda t=t: sm_exp(t)))
    C.append((kend, task_softmax))
    C.append((kend, task_bpart))
    for t in range(4):
        for uu in range(4):
            C.append((idx[f"V{t}_{2*uu+1}"], lambda t=t, uu=uu: task_vperm(t, uu)))
    C.append((ml_at, task_ml))
    C.sort(key=lambda c: c[0])
    C.append((idx["V3_7"], task_publish_o))
    assert qa_at > idx["up3"] - WIN and qb_at > idx["gate3"] + WIN and ml_at > kend and ml_at < idx["V3_7"]
    n = len(U)
    st = {"issued": 4, "c": 0}
    def run_chunk():
        C[st["c"]][1](); st["c"] += 1
    def issue_upto(lim, arrived):
        while st["issued"] < n and st["issued"] < lim:
            k = st["issued"]
            nm, lines, nv, pre = U[k]
            while pre is not None and pre not in consumed:
                if C[st["c"]][0] <= arrived: run_chunk()
                else:
                    print("WARNING: issue of", nm, "blocked at arrived", names[arrived]); return
            for fn in extra.get(k, []): fn()
            for x in lines: a(x)
            st["issued"] += 1
    issue_upto(W0, -1)
    stop_at = idx["V3_7"]
    arrived = STEP - 1
    while True:
        assert st["issued"] > arrived
        out = sum(u[2] for u in U[arrived + 1:st["issued"]])
        a(f"s_waitcnt vmcnt({min(out,63)})")
        if arrived < stop_at: issue_upto(arrived + 1 + WIN, arrived)
        ran = 0
        while st["c"] < len(C) and C[st["c"]][0] <= arrived and (ran < STEP or arrived >= stop_at - 1 or C[st["c"]][0] <= arrived - 6):
            run_chunk(); ran += 1
        if arrived >= stop_at: break
        arrived = min(arrived + STEP, stop_at)
    assert st["c"] == len(C)
    late = sum(u[2] for u in U[st["issued"]:])
    issue_upto(n, n - 1)

    vH1 = vS
    h1 = f"buffer_load_dwordx4 {vr(vH1,4)}, v{vQ+3}, {srd(WS_)}, s{sA} offen sc1"
    a(h1)
    a(f"v_mov_b32 v{vT+12}, 0"); a(f"v_mov_b32 v{vT+13}, 0")
    a(f"s_waitcnt vmcnt({2 if late == 0 else 1})")
    for p in range(8):
        a(f"v_perm_b32 v{PW+2*p}, v{WOR+2*p+1}, v{WOR+2*p}, s{sSELLO}")
        a(f"v_perm_b32 v{PW+2*p+1}, v{WOR+2*p+1}, v{WOR+2*p}, s{sSELHI}")
    a("s_waitcnt vmcnt(0)")
    stamp()
    poll_retry([h1], [vH1 + 1, vH1 + 3], vA0, sleep1)
    stamp()
    red2_bits345(vH1, vH1 + 2, vA0, vA1)
    a(f"""
    s_mov_b64 exec, 0xff
    ds_write2_b32 v{vQ+4}, v{vH1}, v{vH1+2} offset0:{L_RED1//4 if L_RED1//4 < 255 else 0} offset1:{L_RED1//4+1 if L_RED1//4 < 255 else 1}
    """.replace("ds_write2_b32", "; ds_write2_b32"))
    a(f"""
    v_mov_b32 v{vH1+1}, v{vH1+2}
    ds_write_b64 v{vQ+4}, {vr(vH1,2)} offset:{L_RED1}
    s_mov_b64 exec, -1
    s_waitcnt lgkmcnt(0)
    s_barrier
    ds_read_b64 {vr(vH1,2)}, v{vQ+5} offset:{L_RED1}
    s_waitcnt lgkmcnt(0)
    """)
    red2_bits345(vH1, vH1 + 1, vA0, vA1)
    a(f"v_cvt_pk_bf16_f32 v{vA0}, v{vH1}, v{vH1+1}")
    for p in range(8): a(f"v_readlane_b32 s{sO+p}, v{vA0}, {p}")
    for p in range(8):
        a(f"v_dot2c_f32_bf16 v{vT+12}, s{sO+p}, v{PW+2*p}")
        a(f"v_dot2c_f32_bf16 v{vT+13}, s{sO+p}, v{PW+2*p+1}")
    a(f"v_fma_f32 v{vB0}, v{vT+12}, v{vE+4}, v{vBP}")
    a(f"v_fma_f32 v{vB2}, v{vT+13}, v{vE+4}, v{vBP+1}")
    a(f"buffer_store_dwordx4 {vr(vB0,4)}, v{vT16}, {srd(WS_)}, s{sPB} offen sc1")
    stamp()
    a(f"s_cmp_ge_u32 s2, {C2}")
    a(f"s_cbranch_scc1 L_fin")
    a(f"s_mul_i32 s{sA}, s2, {CC*8}")
    a(f"s_add_u32 s{sA}, s{sA}, {WS_FP}")
    so = [sA, sT1, sT2, sT3]
    for k in range(1, NL): a(f"s_add_u32 s{so[k]}, s{sA}, {k*(512//PC)*8192}")
    h2 = [f"buffer_load_dwordx4 {vr(vS+4*k,4)}, v{vQ+6}, {srd(WS_)}, s{so[k]} offen sc1" for k in range(NL)]
    for l in h2: a(l)
    a("s_waitcnt vmcnt(0)")
    tg = []
    for k in range(NL): tg += [vS + 4 * k + 1, vS + 4 * k + 3]
    poll_retry(h2, tg, vA0, sleep1)
    stamp()
    for k in range(1, NL):
        a(f"v_add_f32 v{vS}, v{vS}, v{vS+4*k}")
        a(f"v_add_f32 v{vS+2}, v{vS+2}, v{vS+4*k+2}")
    a(f"v_mov_b32 v{vS+1}, v{vS+2}")
    nn = PC
    while nn < 8:
        a(f"v_add_f32_dpp v{vS}, v{vS}, v{vS} row_ror:{nn} {DPP}")
        a(f"v_add_f32_dpp v{vS+1}, v{vS+1}, v{vS+1} row_ror:{nn} {DPP}")
        nn *= 2
    red2_bits345(vS, vS + 1, vA0, vA1)
    a(f"""
    s_mov_b64 exec, 0xff
    ds_write_b64 v{vQ+4}, {vr(vS,2)} offset:{L_RED2}
    s_mov_b64 exec, -1
    """)
    arrive_last(C_R2, "L_fin")
    a(f"""
    ds_read_b64 {vr(vS,2)}, v{vQ+5} offset:{L_RED2}
    s_waitcnt lgkmcnt(0)
    """)
    red2_bits345(vS, vS + 1, vA0, vA1)
    a(f"""
    v_cvt_pk_bf16_f32 v{vA0}, v{vS}, v{vS+1}
    v_lshlrev_b32 v{vA1}, 2, v{vL}
    s_mul_i32 s{sT0}, s2, {CC*2}
    s_mov_b64 exec, {(1<<PC)-1}
    buffer_store_dword v{vA0}, v{vA1}, {srd(OUT_)}, s{sT0} offen
    s_cmp_lg_u32 s2, 0
    s_cbranch_scc1 L_fin
    s_mov_b64 exec, 1
    buffer_store_dword v{vTAG}, off, {srd(WS_)}, 0 sc1
    """)
    if dbg:
        k = nst[0]
        a("s_waitcnt vmcnt(0)")
        a(f"s_memrealtime s[{sST+2*k}:{sST+2*k+1}]")
        a("s_waitcnt lgkmcnt(0)")
        a(f"v_mov_b32 v{vA1}, 0")
        for j in range(1, k + 1):
            a(f"s_sub_u32 s{sT0}, s{sST+2*j}, s{sST}")
            a(f"v_mov_b32 v{vA0}, s{sT0}")
            a(f"global_store_dword v{vA1}, v{vA0}, s[66:67] offset:{4*(j-1)}")
    a("L_fin:")
    if stamps and not dbg:
        a("s_mov_b64 exec, -1")
        ns = nst[0] + 1
        k = nst[0]
        a("s_waitcnt vmcnt(0)")
        a(f"s_memrealtime s[{sST+2*k}:{sST+2*k+1}]")
        a(f"s_lshl_b32 s{sT0}, s2, 3")
        a(f"s_add_u32 s{sT0}, s{sT0}, s{sWV}")
        a(f"s_mul_i32 s{sT0}, s{sT0}, {ns*8}")
        a(f"s_add_u32 s{sT0}, s{sT0}, {STAMP_OFF}")
        a("s_waitcnt lgkmcnt(0)")
        a("s_mov_b64 exec, 1")
        for j in range(ns):
            a(f"v_mov_b32 v{vA0}, s{sST+2*j}")
            a(f"v_mov_b32 v{vA1}, s{sST+2*j+1}")
            a(f"buffer_store_dwordx2 {vr(vA0,2)}, off, {srd(WS_)}, s{sT0} offset:{8*j}")
        print("stamps:", ns)
    a("L_end:")
    a("s_endpgm")
    lines = hazard.fix([l for l in a.lines if not l.strip().startswith(";")])
    return wrap_single("\n".join(lines), 256, 512, lds, 256, header=HEADER)

if __name__ == "__main__":
    out = sys.argv[1]
    kw = {}
    for s in sys.argv[2:]:
        k, v = s.split("=")
        try: v = int(v)
        except: pass
        kw[k] = v
    open(out, "w").write(gen(**kw))
```

```python
import sys, math, struct
from asmlib import *
import hazard
def f2u(x): return struct.unpack("<I", struct.pack("<f", x))[0]

HEADER = open("cdna_kernels/" + NAME + ".s.ref").read().split("; Override launch")[0]

WS_QG = 0x80000
WS_ML = 0xc0000
WS_QP = 0x40000
WS_FG = 0x380000
WS_OP = 0x100000
WS_FP = 0x300000
WS_SIZE = 0x400000
QREP = 0x4000 + 0x1000*0
MREP = 0x8000
STAMP_OFF = 128 << 20
C_Q, C_F, C_QS, C_ST, C_R2, C_H, C_P1, C_P2, C_P3, L_CTL = 0, 4, 8, 12, 16, 20, 24, 28, 32, 36
L_H = 64
L_G = 192
L_GP = 256
L_QS = L_GP + 3 * 4096
L_ST = L_QS + 2176
L_F = L_ST + 512
L_RED1 = L_F + 256
L_RED2 = L_RED1 + 2048
L_ORED = L_RED2 + 512
L_END = L_ORED + 8 * 4224

sW, sWV = 2, 3
K_, V_, WQ_, WO_, WG_, WU_, WD_, X_, GW_, WS_, OUT_ = 4, 8, 12, 16, 20, 24, 28, 32, 36, 40, 44
def srd(b): return f"s[{b}:{b+3}]"
sG, sI = 48, 49
sPA, sPB = 50, 51
sKV = 52
sT0, sT1, sT2, sT3 = 53, 54, 55, 56
sSELLO, sSELHI, sC = 57, 58, 59
sCAP = 60
sA, sB = 61, 62
sKS = 63
sM0 = 64
sO = 68
sXV = 75
sRB, sLC = 68, 69
sPL = 74
sBOOST, sSLOW = 100, 101
sR8, sCB = 70, 71
sH1 = 70
sST = 76

vL, vT4, vT16, vTAG, vKO, vVO, vWQO, vWFO = 0, 1, 2, 3, 4, 5, 6, 7
vA0, vA1, vA2, vA3 = 8, 9, 10, 11
vB0, vB1, vB2, vB3 = 12, 13, 14, 15
vT = 16
vQ = 32
vE = 40
vP = 48
vS = 64
vACC = 96
vR = 128
NVGPR = 160

def gen(WIN=3, C2=64, stamps=False, nt=True, lds=82440, sleep1=2, W0=4, STEP=1, WEND=None, sn="d", dbg=0, wsw=999,
        notail=0, q_at=27, csleep=1, wo_early=0, p1_at=20, p2_at=66, rsleep=16, rep=1, xr=7, prew=1, early=1, ack1=0, ack2=1, asleep=4, nocomm=0, ex=3, touch=0, adelay=0, skip='', WMAX=0, dyn0=20, tb=0, slow=1, ctl=0, margin=40, gain=6, slowu=60, p3_at=34, rf=3, cpn=6, cps=12, lead=8, endb=999, TH=0, gsleep=4, wolate=0, oracle=0, pk=0, prer=0, prer0=0):
    a = Asm()
    NT = " nt" if nt else ""
    SN = set(str(sn).split("+"))
    slots = {}
    def stamp(k, name="d"):
        if stamps and name in SN:
            a(f"s_memrealtime s[{sST+2*k}:{sST+2*k+1}]")
    NS = 12
    LB = 12 if pk else 13
    if WMAX: wsw, WEND = dyn0 - WIN, WMAX
    def vr(b, n): return f"v[{b}:{b+n-1}]"
    DPP = "row_mask:0xf bank_mask:0xf"

    def red_bits45(op, v, t):
        a(f"v_mov_b32 v{t}, v{v}")
        a(f"v_permlane16_swap_b32 v{v}, v{t}")
        a(f"v_{op}_f32 v{v}, v{v}, v{t}")
        a(f"v_mov_b32 v{t}, v{v}")
        a(f"v_permlane32_swap_b32 v{v}, v{t}")
        a(f"v_{op}_f32 v{v}, v{v}, v{t}")
    def red_bits345(op, v, t):
        a(f"v_{op}_f32_dpp v{v}, v{v}, v{v} row_ror:8 {DPP}")
        red_bits45(op, v, t)
    def red2_bits45(v0, v1, t0, t1):
        for sw in ("16", "32"):
            a(f"v_mov_b32 v{t0}, v{v0}")
            a(f"v_mov_b32 v{t1}, v{v1}")
            a(f"v_permlane{sw}_swap_b32 v{v0}, v{t0}")
            a(f"v_permlane{sw}_swap_b32 v{v1}, v{t1}")
            a(f"v_add_f32 v{v0}, v{v0}, v{t0}")
            a(f"v_add_f32 v{v1}, v{v1}, v{t1}")
    def red2_bits345(v0, v1, t0, t1):
        a(f"v_add_f32_dpp v{v0}, v{v0}, v{v0} row_ror:8 {DPP}")
        a(f"v_add_f32_dpp v{v1}, v{v1}, v{v1} row_ror:8 {DPP}")
        red2_bits45(v0, v1, t0, t1)
    def reduce_ml(vm, vl, vM, t):
        a(f"v_mov_b32 v{vM}, v{vm}")
        red_bits345("max", vM, t)
        a(f"v_sub_f32 v{t}, v{vm}, v{vM}")
        a(f"v_exp_f32 v{t}, v{t}")
        a(f"v_mul_f32 v{vl}, v{vl}, v{t}")
        red_bits345("add", vl, t)
    def arrive_last(cnt, skip):
        a(f"""
        s_waitcnt lgkmcnt(0)
        v_mov_b32 v{vA0}, {cnt}
        v_mov_b32 v{vA1}, 1
        s_mov_b64 exec, 1
        ds_add_rtn_u32 v{vA0}, v{vA0}, v{vA1}
        s_mov_b64 exec, -1
        s_waitcnt lgkmcnt(0)
        v_readfirstlane_b32 s{sT0}, v{vA0}
        s_cmp_lg_u32 s{sT0}, 7
        s_cbranch_scc1 {skip}
        """)
    def arrive(cnt):
        a(f"""
        v_mov_b32 v{vA0}, {cnt}
        v_mov_b32 v{vA1}, 1
        s_waitcnt lgkmcnt(0)
        s_mov_b64 exec, 1
        ds_add_u32 v{vA0}, v{vA1}
        s_mov_b64 exec, -1
        """)
    def wait_cnt(cnt, val, sl=1):
        l = a.label("Lw"); d = a.label("Lwd")
        a(f"""
        v_mov_b32 v{vA0}, {cnt}
        s_mov_b32 s{sCAP}, 0
        {l}:
        ds_read_b32 v{vA1}, v{vA0}
        s_waitcnt lgkmcnt(0)
        v_readfirstlane_b32 s{sT0}, v{vA1}
        s_cmp_ge_u32 s{sT0}, {val}
        s_cbranch_scc1 {d}
        s_add_u32 s{sCAP}, s{sCAP}, 1
        s_cmp_gt_u32 s{sCAP}, 0x400000
        s_cbranch_scc1 {d}
        s_sleep {sl}
        s_branch {l}
        {d}:
        """)
    def poll(loads, tagregs, tmp, sleep, first_issued=False):
        lc = a.label("Lchk"); ld = a.label("Ldone")
        a(f"s_mov_b32 s{sCAP}, 0")
        if not first_issued:
            for l in loads: a(l)
            a("s_waitcnt vmcnt(0)")
        a(f"{lc}:")
        if len(tagregs) == 1:
            a(f"v_cmp_ne_u32 vcc, v{tagregs[0]}, v{vTAG}")
        else:
            a(f"v_xor_b32 v{tmp}, v{tagregs[0]}, v{vTAG}")
            for r in tagregs[1:]:
                a(f"v_xor_b32 v{tmp+1}, v{r}, v{vTAG}")
                a(f"v_or_b32 v{tmp}, v{tmp}, v{tmp+1}")
            a(f"v_cmp_ne_u32 vcc, 0, v{tmp}")
        a(f"s_and_b64 exec, exec, vcc")
        a(f"s_cbranch_scc0 {ld}")
        a(f"s_add_u32 s{sCAP}, s{sCAP}, 1")
        a(f"s_cmp_gt_u32 s{sCAP}, 0x40000")
        a(f"s_cbranch_scc1 {ld}")
        if sleep: a(f"s_sleep {sleep}")
        for l in loads: a(l)
        a("s_waitcnt vmcnt(0)")
        a(f"s_branch {lc}")
        a(f"{ld}:")
        a("s_mov_b64 exec, -1")
    def sum8(base):
        for step in (1, 2, 4):
            for k in range(0, 8, 2 * step): a(f"v_add_f32 v{base+k}, v{base+k}, v{base+k+step}")
    def init_stamps():
        if stamps:
            for k in range(NS): a(f"s_mov_b64 s[{sST+2*k}:{sST+2*k+1}], s[{sM0}:{sM0+1}]")

    if stamps: a(f"s_memrealtime s[{sM0}:{sM0+1}]")
    a(f"""
    s_cmp_ge_u32 s2, 256
    s_cbranch_scc1 L_end
    s_load_dwordx16 s[76:91], s[0:1], 0
    s_load_dwordx8 s[92:99], s[0:1], 64
    s_load_dwordx2 s[{WS_}:{WS_+1}], s[0:1], 96
    v_lshrrev_b32 v{vA0}, 6, v0
    v_lshlrev_b32 v{vT4}, 2, v0
    v_lshlrev_b32 v{vT16}, 4, v0
    v_readfirstlane_b32 s{sWV}, v{vA0}
    v_and_b32 v{vL}, 63, v0
    s_lshr_b32 s{sG}, s2, 6
    s_and_b32 s{sI}, s2, 63
    s_bfe_u32 s{sRB}, s2, 0x20003
    s_lshr_b32 s{sLC}, s2, 5
    s_and_b32 s{sT0}, s2, 7
    s_lshl_b32 s{sPL}, s{sLC}, 3
    s_or_b32 s{sPL}, s{sPL}, s{sT0}
    s_bfe_u32 s{sR8}, s2, 0x30003
    s_lshl_b32 s{sT1}, s{sG}, 1
    s_xor_b32 s{sT0}, s{sT0}, s{sT1}
    s_lshl_b32 s{sT0}, s{sT0}, 2
    s_or_b32 s{sCB}, s{sT0}, s{sG}
    s_and_b32 s{sLC}, s{sLC}, 1
    s_lshl_b32 s{sT0}, s{sCB}, 1
    s_or_b32 s{sLC}, s{sLC}, s{sT0}
    s_mov_b32 s{X_+2}, 2048
    s_mov_b32 s{X_+3}, 0x20000
    s_mov_b32 s{WS_+2}, {WS_SIZE if not stamps else (256<<20)}
    s_mov_b32 s{WS_+3}, 0x20000
    v_lshlrev_b32 v{vVO}, 4, v{vL}
    s_cmp_eq_u32 s{sWV}, 8
    s_cbranch_scc1 L_comm
    s_mov_b32 s{WQ_+2}, {1024*8192}
    s_mov_b32 s{WQ_+3}, 0x20000
    v_lshrrev_b32 v{vA0}, 4, v{vL}
    v_and_b32 v{vA1}, 15, v{vL}
    v_lshlrev_b32 v{vA1}, 4, v{vA1}
    v_lshl_add_u32 v{vWQO}, v{vA0}, 15, v{vA1}
    v_lshlrev_b32 v{vA2}, 3, v{vA0}
    s_lshl_b32 s{sT3}, s{sR8}, 3
    s_add_u32 s{sT3}, s{sT3}, s{sWV}
    s_lshl_b32 s{sT0}, s{sCB}, 8
    s_lshl_b32 s{sA}, s{sT3}, 17
    s_add_u32 s{sA}, s{sA}, s{sT0}
    s_mul_i32 s{sB}, s{sT3}, {16*7168}
    s_add_u32 s{sB}, s{sB}, s{sT0}
    s_lshl_b32 s{sT3}, s{sT3}, 5
    s_add_u32 s{sT0}, s{sA}, 8192
    s_add_u32 s{sT1}, s{sA}, 16384
    s_add_u32 s{sT2}, s{sA}, 24576
    s_waitcnt lgkmcnt(0)
    s_mov_b64 s[{WQ_}:{WQ_+1}], s[82:83]
    s_mov_b64 s[{X_}:{X_+1}], s[76:77]
    """)
    WQR = vR; WGR = vR + 16; WUR = vACC; WDR = vP
    vXP = vB0
    a(f"buffer_load_dwordx2 {vr(vXP,2)}, v{vA2}, {srd(X_)}, s{sT3} offen")
    for j in range(4): a(f"buffer_load_dwordx4 {vr(WQR+4*j,4)}, v{vWQO}, {srd(WQ_)}, s{[sA,sT0,sT1,sT2][j]} offen{NT}")
    a(f"""
    v_mul_u32_u24 v{vWFO}, {4*7168}, v{vA0}
    v_add_u32 v{vWFO}, v{vWFO}, v{vA1}
    s_cmp_lt_u32 s{sLC}, 56
    s_cselect_b32 s{WG_+2}, {1024*7168}, 0
    s_cselect_b32 s{WU_+2}, {1024*7168}, 0
    s_cselect_b32 s{WD_+2}, {3584*2048}, 0
    s_mov_b32 s{WG_+3}, 0x20000
    s_mov_b32 s{WU_+3}, 0x20000
    s_mov_b64 s[{WG_}:{WG_+1}], s[88:89]
    s_mov_b64 s[{WU_}:{WU_+1}], s[90:91]
    s_mov_b64 s[{K_}:{K_+1}], s[78:79]
    s_mov_b64 s[{V_}:{V_+1}], s[80:81]
    s_mov_b64 s[{WO_}:{WO_+1}], s[84:85]
    s_mov_b64 s[{WD_}:{WD_+1}], s[92:93]
    s_mov_b64 s[{OUT_}:{OUT_+1}], s[96:97]
    s_mov_b64 s[66:67], s[98:99]
    s_mov_b32 s{K_+2}, 0x4000000
    s_mov_b32 s{K_+3}, 0x20000
    s_mov_b32 s{V_+2}, 0x4000000
    s_mov_b32 s{V_+3}, 0x20000
    s_mov_b32 s{WO_+2}, {4096*2048}
    s_mov_b32 s{WO_+3}, 0x20000
    s_mov_b32 s{WD_+3}, 0x20000
    s_mov_b32 s{OUT_+2}, 2048
    s_mov_b32 s{OUT_+3}, 0x20000
    s_mov_b32 s{sSELLO}, 0x05040100
    s_mov_b32 s{sSELHI}, 0x07060302
    s_mov_b32 s{sC}, {hex(f2u(128**-0.5 * math.log2(math.e)))}
    s_lshl_b32 s{sKV}, s{sG}, 24
    s_lshl_b32 s{sT0}, s{sI}, 16
    s_add_u32 s{sKV}, s{sKV}, s{sT0}
    s_lshl_b32 s{sT0}, s{sWV}, 13
    s_add_u32 s{sKV}, s{sKV}, s{sT0}
    s_and_b32 s{sT0}, s{sWV}, {xr}
    s_lshl_b32 s{sT0}, s{sT0}, 10
    s_add_u32 s{sXV}, s{sKV}, s{sT0}
    s_and_b32 s{sT1}, s{sT0}, 4096
    s_add_u32 s{sKV}, s{sKV}, s{sT1}
    s_and_b32 s{sT0}, s{sT0}, 3072
    v_and_b32 v{vA0}, 3, v{vL}
    v_lshlrev_b32 v{vA0}, 10, v{vA0}
    v_xor_b32 v{vA0}, s{sT0}, v{vA0}
    v_bfe_u32 v{vA1}, v{vL}, 2, 1
    v_lshl_add_u32 v{vA0}, v{vA1}, 8, v{vA0}
    v_bfe_u32 v{vA1}, v{vL}, 3, 1
    v_lshl_add_u32 v{vA0}, v{vA1}, 6, v{vA0}
    v_lshrrev_b32 v{vA1}, 4, v{vL}
    v_lshl_add_u32 v{vKO}, v{vA1}, 4, v{vA0}
    """)
    vX = vT; vGA = vT + 8
    a(f"""
    v_and_b32 v{vA0}, 15, v{vL}
    v_lshlrev_b32 v{vA0}, 5, v{vA0}
    v_lshl_add_u32 v{vA0}, v{vA1}, 3, v{vA0}
    s_lshl_b32 s{sT0}, s{sWV}, 9
    v_add_u32 v{vGA}, s{sT0}, v{vA0}
    v_and_b32 v{vA0}, 15, v{vL}
    s_lshl_b32 s{sT0}, s{sWV}, 6
    v_lshl_add_u32 v{vA0}, v{vA0}, 2, s{sT0}
    v_lshl_add_u32 v{vT4}, v{vA1}, 15, v{vA0}
    v_lshl_add_u32 v{vWQO}, v{vA1}, 11, v{vA0}
    """)
    init_stamps()
    for r in range(24): a(f"v_mov_b32 v{vS+r}, 0")
    a(f"s_mov_b32 s{sBOOST}, 0")
    a(f"s_mov_b32 s{sSLOW}, 0")
    a(f"v_mov_b32 v{vE+6}, 0")
    if ctl:
        a(f"s_cmp_lt_u32 s{sLC}, 56")
        a(f"s_cselect_b32 s{sSLOW}, 0, {slowu}")
    if tb:
        a(f"s_and_b32 s{sT0}, s2, 7")
        a(f"s_cmp_eq_u32 s{sT0}, 0")
        a(f"s_cselect_b32 s{sBOOST}, {tb}, 0")
        a(f"s_cmp_eq_u32 s{sT0}, 2")
        a(f"s_cselect_b32 s{sSLOW}, {tb}, 0")
    a("s_barrier")

    U = []
    for j in range(4): U.append((f"wq{j}", None, 1, None))
    for nm, R, S_ in (("gate", WGR, WG_), ("up", WUR, WU_)):
        for j in range(4):
            U.append((f"{nm}{j}", [f"s_add_u32 s{sT3}, s{sB}, {j*7168}", f"buffer_load_dwordx4 {vr(R+4*j,4)}, v{vWFO}, {srd(S_)}, s{sT3} offen{NT}"], 1, None))
    for j in range(4):
        l = []
        if j == 0: l += [f"s_lshl_b32 s{sPB}, s{sLC}, 17", f"s_lshl_b32 s{sT0}, s{sRB}, 9", f"s_add_u32 s{sPB}, s{sPB}, s{sT0}",
                         f"s_lshr_b32 s{sT0}, s{sWV}, 1", f"s_and_b32 s{sT0}, s{sT0}, {ex}", f"s_lshl_b32 s{sT0}, s{sT0}, 13", f"s_add_u32 s{sPB}, s{sPB}, s{sT0}",
                         ]
        for e in range(4 * j, 4 * j + 4):
            if e % 2 == 0: l += [f"s_xor_b32 s{sT3}, s{sPB}, {e*2048}", f"buffer_load_dword v{WDR+e}, v{vT4}, {srd(WD_)}, s{sT3} offen{NT}"]
            else: l += [f"buffer_load_dword v{WDR+e}, v{vT4}, {srd(WD_)}, s{sT3} offen offset:2048{NT}"]
        U.append((f"wd{j}", l, 4, None))
    def KB(t): return vR if t % 2 == 0 else vACC
    for t in range(4):
        for j in range(8):
            u, k = j >> 2, j & 3
            l = [f"s_xor_b32 s{sKS}, s{sKV}, {t*(4<<20) + u*4096}"] if k == 0 else []
            l.append(f"buffer_load_dwordx4 {vr(KB(t)+4*j,4)}, v{vKO}, {srd(K_)}, s{sKS} offen offset:{(k>>1)*512+(k&1)*128}{NT}")
            pre = {(0, 0): f"wq{k}", (0, 1): f"gate{k}", (1, 0): f"up{k}", (1, 1): None}.get((t, u), f"K{t-2}{'ab'[u]}")
            U.append((f"K{t}_{j}", l, 1, pre))
    WOR = vQ
    WOR = vT; PW = vR
    def wounit(j):
        l = []
        if j == 0: l += [f"s_lshl_b32 s{sB}, s{sG}, 3", f"s_and_b32 s{sT0}, s2, 7", f"s_add_u32 s{sB}, s{sB}, s{sT0}",
               f"s_lshl_b32 s{sB}, s{sB}, 18", f"s_bfe_u32 s{sT0}, s2, 0x10005", f"s_lshl_b32 s{sT0}, s{sT0}, 13", f"s_add_u32 s{sB}, s{sB}, s{sT0}",
               f"s_lshl_b32 s{sT0}, s{sRB}, 9", f"s_add_u32 s{sB}, s{sB}, s{sT0}",
               f"s_lshr_b32 s{sT0}, s{sWV}, 1", f"s_and_b32 s{sT0}, s{sT0}, {ex}", f"s_lshl_b32 s{sT0}, s{sT0}, 16", f"s_add_u32 s{sB}, s{sB}, s{sT0}"]
        for e in range(4 * j, 4 * j + 4):
            l += [f"s_xor_b32 s{sT3}, s{sB}, {e*16384}", f"buffer_load_dword v{WOR+e}, v{vWQO}, {srd(WO_)}, s{sT3} offen{NT}"]
        U.append((f"wo{j}", l, 4, "softmax"))
    for t in range(4):
        if t == 2:
            for j in range(wo_early): wounit(j)
        for j in range(8):
            u, k = j >> 2, j & 3
            l = [f"s_xor_b32 s{sKS}, s{sXV}, {t*(4<<20) + j*1024}"]
            l.append(f"buffer_load_dwordx4 {vr(vR+4*j,4)}, v{vVO}, {srd(V_)}, s{sKS} offen{NT}")
            U.append((f"V{t}_{j}", l, 1, f"K2{'ab'[u]}" if t == 0 else f"V{t-1}p{j>>1}"))
    for j in range(wo_early, 4): wounit(j)
    names = [u[0] for u in U]
    idx = {n: k for k, n in enumerate(names)}

    aq, ag, au = vS, vS + 8, vS + 16
    def gemv_unit(W, acc, j):
        for w in range(4):
            a(f"v_dot2c_f32_bf16 v{acc+2*w}, v{W+4*j+w}, v{vX+2*j}")
            a(f"v_dot2c_f32_bf16 v{acc+2*w+1}, v{W+4*j+w}, v{vX+2*j+1}")
    def swapred(acc):
        for k in range(4): a(f"v_permlane32_swap_b32 v{acc+k}, v{acc+k+4}")
        for k in range(4): a(f"v_add_f32 v{acc+k}, v{acc+k}, v{acc+k+4}")
        for k in range(2): a(f"v_permlane16_swap_b32 v{acc+k}, v{acc+k+2}")
        for k in range(2): a(f"v_add_f32 v{acc+k}, v{acc+k}, v{acc+k+2}")
    def task_g(m, j):
        W, acc = [(WQR, aq), (WGR, ag), (WUR, au)][m]
        if m == 0 and j == 0:
            for h in range(2):
                a(f"v_and_b32 v{vX+4*h}, 0xffff, v{vXP+h}")
                a(f"v_lshlrev_b32 v{vX+4*h+1}, 16, v{vXP+h}")
                a(f"v_lshrrev_b32 v{vX+4*h+2}, 16, v{vXP+h}")
                a(f"v_and_b32 v{vX+4*h+3}, 0xffff0000, v{vXP+h}")
        gemv_unit(W, acc, j)
        consumed.add(["wq", "gate", "up"][m] + str(j))
        if j == 3:
            swapred(acc)
            a(f"ds_write_b64 v{vGA}, {vr(acc,2)} offset:{L_GP+4096*m}")
            if m != 1: arrive(C_Q if m == 0 else C_F)
            if m == 0: stamp(1)
    vBP = vE + 2
    def dot16(W, vO, acc):
        for p in range(8):
            a(f"v_dot2c_f32_bf16_dpp v{acc+2*(p&1)}, v{vO}, v{W+2*p} row_newbcast:{p} {DPP}")
            a(f"v_dot2c_f32_bf16_dpp v{acc+2*(p&1)+1}, v{vO}, v{W+2*p+1} row_newbcast:{p} {DPP}")
    def task_bpart():
        wait_cnt(C_H, 1)
        a(f"""
        v_lshrrev_b32 v{vA2}, 4, v{vL}
        v_lshlrev_b32 v{vA2}, 5, v{vA2}
        v_and_b32 v{vA3}, 7, v{vL}
        s_and_b32 s{sT0}, s{sWV}, {2*ex}
        v_xor_b32 v{vA3}, s{sT0}, v{vA3}
        v_lshl_add_u32 v{vA2}, v{vA3}, 2, v{vA2}
        v_mov_b32 v{vA3}, 0
        ds_read_b32 v{vA2}, v{vA2} offset:{L_H}
        ds_read_b64 {vr(vE+4,2)}, v{vA3} offset:{L_G}
        ds_read_b32 v{vTAG}, v{vA3} offset:{L_G+8}
        """)
        for k in range(4): a(f"v_mov_b32 v{vB0+k}, 0")
        for p in range(8):
            a(f"v_perm_b32 v{vT+2*p}, v{WDR+2*p+1}, v{WDR+2*p}, s{sSELLO}")
            a(f"v_perm_b32 v{vT+2*p+1}, v{WDR+2*p+1}, v{WDR+2*p}, s{sSELHI}")
        a("s_waitcnt lgkmcnt(0)")
        dot16(vT, vA2, vB0)
        a(f"v_add_f32 v{vBP}, v{vB0}, v{vB2}")
        a(f"v_add_f32 v{vBP+1}, v{vB1}, v{vB3}")
        a(f"v_mul_f32 v{vBP}, v{vBP}, v{vE+5}")
        a(f"v_mul_f32 v{vBP+1}, v{vBP+1}, v{vE+5}")
    def task_qwait():
        stamp(2)
        wait_cnt(C_QS, 1)
        a(f"""
        v_and_b32 v{vA0}, 7, v{vL}
        v_mul_u32_u24 v{vA0}, 272, v{vA0}
        v_bfe_u32 v{vA1}, v{vL}, 3, 1
        v_lshl_add_u32 v{vA0}, v{vA1}, 6, v{vA0}
        v_lshrrev_b32 v{vA1}, 4, v{vL}
        v_lshl_add_u32 v{vA0}, v{vA1}, 4, v{vA0}
        """)
        for s in range(2): a(f"ds_read_b128 {vr(vQ+4*s,4)}, v{vA0} offset:{L_QS+128*s}")
        a("s_waitcnt lgkmcnt(0)")
        stamp(3)
    def task_k(t, u):
        base = KB(t) + 16 * u; dx = vS + 8 * t + 4 * u; dy = vT
        for sp in range(2):
            a(f"v_mfma_f32_16x16x32_bf16 {vr(dx,4)}, {vr(base+4*sp,4)}, {vr(vQ+4*sp,4)}, {'0' if sp==0 else vr(dx,4)}")
            a(f"v_mfma_f32_16x16x32_bf16 {vr(dy,4)}, {vr(base+8+4*sp,4)}, {vr(vQ+4*sp,4)}, {'0' if sp==0 else vr(dy,4)}")
        for r in range(4): a(f"v_permlane32_swap_b32 v{dx+r}, v{dy+r}")
        for r in range(4): a(f"v_add_f32_dpp v{dx+r}, v{dy+r}, v{dx+r} row_ror:8 {DPP}")
        consumed.add(f"K{t}{'ab'[u]}")
    vM = vE
    def sm_max():
        m = vM
        a(f"v_max3_f32 v{m}, v{vS}, v{vS+1}, v{vS+2}")
        a(f"v_max3_f32 v{vA2}, v{vS+3}, v{vS+4}, v{vS+5}")
        for k in range(6, 30, 4):
            a(f"v_max3_f32 v{m}, v{m}, v{vS+k}, v{vS+k+1}")
            a(f"v_max3_f32 v{vA2}, v{vA2}, v{vS+k+2}, v{vS+k+3}")
        a(f"v_max3_f32 v{m}, v{m}, v{vS+30}, v{vS+31}")
        a(f"v_max_f32 v{m}, v{m}, v{vA2}")
        red_bits45("max", m, vA2)
        a(f"v_mul_f32 v{m}, s{sC}, v{m}")
    def sm_exp(t):
        for k in range(8 * t, 8 * t + 8): a(f"v_fma_f32 v{vS+k}, v{vS+k}, s{sC}, -v{vM}")
        for k in range(8 * t, 8 * t + 8): a(f"v_exp_f32 v{vS+k}, v{vS+k}")
        for k in range(4 * t, 4 * t + 4): a(f"v_cvt_pk_bf16_f32 v{vP+k}, v{vS+2*k}, v{vS+2*k+1}")
        sum8(vS + 8 * t)
    def sm_fin():
        a(f"v_add_f32 v{vS}, v{vS}, v{vS+8}")
        a(f"v_add_f32 v{vS+16}, v{vS+16}, v{vS+24}")
        a(f"v_add_f32 v{vM+1}, v{vS}, v{vS+16}")
        red_bits45("add", vM + 1, vA2)
        a(f"""
        s_lshl_b32 s{sT0}, s{sWV}, 6
        v_lshl_add_u32 v{vQ+4}, v{vL}, 3, s{sT0}
        s_mov_b64 exec, 0xff
        ds_write_b64 v{vQ+4}, {vr(vM,2)} offset:{L_ST}
        s_mov_b64 exec, -1
        """)
        arrive(C_ST)
        consumed.add("softmax")
        stamp(4)
    def task_vperm(t, uu):
        R = vR
        for w in range(4):
            a(f"v_perm_b32 v{vS+4*(2*w)+uu}, v{R+4*(2*uu+1)+w}, v{R+4*(2*uu)+w}, s{sSELLO}")
            a(f"v_perm_b32 v{vS+4*(2*w+1)+uu}, v{R+4*(2*uu+1)+w}, v{R+4*(2*uu)+w}, s{sSELHI}")
        consumed.add(f"V{t}p{uu}")
        if uu == 3:
            if t == 3 and early:
                for l in h1: a(l)
            for i in range(8):
                c = "0" if t == 0 else vr(vACC + 4 * i, 4)
                a(f"v_mfma_f32_16x16x32_bf16 {vr(vACC+4*i,4)}, {vr(vS+4*i,4)}, {vr(vP+4*t,4)}, {c}")
    def task_pre():
        a(f"""
        v_and_b32 v{vA0}, 7, v{vL}
        v_mul_u32_u24 v{vA0}, 528, v{vA0}
        v_lshrrev_b32 v{vA1}, 4, v{vL}
        v_lshl_add_u32 v{vA0}, v{vA1}, 4, v{vA0}
        s_mul_i32 s{sT0}, s{sWV}, 4224
        v_add_u32 v{vQ}, s{sT0}, v{vA0}
        s_mul_i32 s{sT0}, s{sWV}, 528
        v_lshl_add_u32 v{vQ+1}, v{vL}, 3, s{sT0}
        s_lshl_b32 s{sT0}, s{sWV}, 5
        v_mov_b32 v{vQ+2}, s{sT0}
        v_lshrrev_b32 v{vA0}, {LB-4}, v{vT16}
        v_lshlrev_b32 v{vA0}, {LB}, v{vA0}
        v_and_b32 v{vA2}, {(1<<(LB-4))-16}, v{vT16}
        v_add_u32 v{vQ+3}, v{vA0}, v{vA2}
        v_lshlrev_b32 v{vQ+5}, 3, v{vL}
        v_lshrrev_b32 v{vA0}, 7, v{vT16}
        v_lshlrev_b32 v{vA0}, 11, v{vA0}
        v_and_b32 v{vA2}, 0x70, v{vT16}
        v_add_u32 v{vQ+6}, v{vA0}, v{vA2}
        v_and_b32 v{vA0}, 31, v{vL}
        v_lshlrev_b32 v{vA0}, 3, v{vA0}
        v_lshrrev_b32 v{vA2}, 5, v{vL}
        v_lshl_add_u32 v{vA0}, v{vA2}, 2, v{vA0}
        s_lshl_b32 s{sT0}, s{sWV}, 8
        v_add_u32 v{vQ+7}, s{sT0}, v{vA0}
        """)
        if pk:
            a(f"""
            v_and_b32 v{vA0}, 15, v{vL}
            v_lshlrev_b32 v{vA0}, 4, v{vA0}
            v_lshl_add_u32 v{vA0}, v{vA1}, 2, v{vA0}
            v_add_u32 v{vQ+7}, s{sT0}, v{vA0}
            v_lshrrev_b32 v{vT4}, 1, v{vT16}
            """)
        a(f"""
        v_bfe_u32 v{vA0}, v{vL}, 3, 1
        v_lshlrev_b32 v{vA0}, 10, v{vA0}
        v_lshl_add_u32 v{vA0}, v{vA1}, 6, v{vA0}
        v_and_b32 v{vA3}, 7, v{vL}
        s_and_b32 s{sT1}, s{sWV}, {2*ex}
        v_xor_b32 v{vA3}, s{sT1}, v{vA3}
        v_lshl_add_u32 v{vKO}, v{vA3}, 3, v{vA0}
        v_and_b32 v{vA0}, 15, v{vL}
        v_lshlrev_b32 v{vA0}, 4, v{vA0}
        v_lshl_add_u32 v{vA0}, v{vA2}, 3, v{vA0}
        v_add_u32 v{vWFO}, s{sT0}, v{vA0}
        v_mov_b32 v{vB1}, v{vTAG}
        v_mov_b32 v{vB3}, v{vTAG}
        v_mov_b32 v{vE+1}, v{vTAG}
        s_lshl_b32 s{sA}, s{sG}, {LB+6}
        s_and_b32 s{sT0}, s2, 7
        s_lshl_b32 s{sT0}, s{sT0}, {LB-3}
        s_add_u32 s{sA}, s{sA}, s{sT0}
        s_bfe_u32 s{sT0}, s2, 0x10005
        s_lshl_b32 s{sT0}, s{sT0}, {LB-4}
        s_add_u32 s{sA}, s{sA}, s{sT0}
        s_add_u32 s{sH1}, s{sA}, {WS_OP}
        s_add_u32 s{sH1+1}, s{sA}, {WS_OP + 16*8192}
        s_add_u32 s{sH1+2}, s{sA}, {WS_OP + 32*8192}
        s_add_u32 s{sH1+3}, s{sA}, {WS_OP + 48*8192}
        s_lshl_b32 s{sT0}, s{sG}, 6
        s_add_u32 s66, s66, s{sT0}
        s_addc_u32 s67, s67, 0
        s_lshl_b32 s{sPA}, s2, {LB}
        s_add_u32 s{sPA}, s{sPA}, {WS_OP}
        s_lshl_b32 s{sPB}, s{sRB}, 6
        s_add_u32 s{sPB}, s{sPB}, s{sPL}
        s_lshl_b32 s{sPB}, s{sPB}, 11
        s_add_u32 s{sPB}, s{sPB}, {WS_FP}
        s_lshr_b32 s{sA}, s2, 4
        s_lshl_b32 s{sA}, s{sA}, 17
        s_and_b32 s{sT0}, s2, 15
        s_lshl_b32 s{sT0}, s{sT0}, 7
        s_add_u32 s{sA}, s{sA}, s{sT0}
        s_add_u32 s{sA}, s{sA}, {WS_FP}
        """)
    vH1 = vR + 16
    h1 = [f"buffer_load_dwordx4 {vr(vH1+4*k,4)}, v{vQ+3}, {srd(WS_)}, s{sH1+k} offen sc1" for k in range(2 if pk else 4)]
    vF = vP
    def task_publish_o():
        stamp(5)
        a(f"""
        s_mov_b32 exec_lo, 0x00ff00ff
        s_mov_b32 exec_hi, 0x00ff00ff
        """)
        for i in range(8): a(f"ds_write_b128 v{vQ}, {vr(vACC+4*i,4)} offset:{L_ORED+64*i}")
        if TH:
            a("s_mov_b64 exec, 1")
            a(f"global_load_dword v{vE+7}, v{vE+6}, s[66:67] offset:32 sc1")
        a(f"""
        s_mov_b64 exec, -1
        s_waitcnt lgkmcnt(0)
        s_barrier
        ds_read_b128 {vr(vF,4)}, v{vQ+2} offset:{L_F}
        ds_read_b128 {vr(vF+4,4)}, v{vQ+2} offset:{L_F+16}
        """)
        for w in range(8): a(f"ds_read_b64 {vr(vS+2*w,2)}, v{vQ+1} offset:{L_ORED+4224*w}")
        a("s_waitcnt lgkmcnt(7)")
        a(f"v_mul_f32 v{vB0}, v{vS}, v{vF}")
        a(f"v_mul_f32 v{vB2}, v{vS+1}, v{vF}")
        for w in range(1, 8):
            a(f"s_waitcnt lgkmcnt({7-w})")
            a(f"v_fmac_f32 v{vB0}, v{vS+2*w}, v{vF+w}")
            a(f"v_fmac_f32 v{vB2}, v{vS+2*w+1}, v{vF+w}")
        if pk:
            a(f"v_cvt_pk_bf16_f32 v{vB0}, v{vB0}, v{vB2}")
            a(f"buffer_store_dwordx2 {vr(vB0,2)}, v{vT4}, {srd(WS_)}, s{sPA} offen sc1")
        else:
            a(f"buffer_store_dwordx4 {vr(vB0,4)}, v{vT16}, {srd(WS_)}, s{sPA} offen sc1")
        if TH:
            a(f"""
            s_cmp_lg_u32 s{sWV}, 0
            s_cbranch_scc1 L_noadd
            s_mov_b32 s{sT1}, 1
            s_atomic_add s{sT1}, s[66:67], 32
            L_noadd:
            """)
        stamp(6)

    consumed = set()
    C = []
    for m, nm in enumerate(("wq", "gate", "up")):
        for j in range(4): C.append((idx[f"{nm}{j}"], lambda m=m, j=j: task_g(m, j)))
    C.append((p1_at, lambda: arrive(C_P1)))
    C.append((p2_at, lambda: arrive(C_P2)))
    if ctl: C.append((p3_at, lambda: arrive(C_P3)))
    C.append((q_at, task_qwait))
    for t in range(4):
        for u in range(2):
            C.append((max(q_at, idx[f"K{t}_{4*u+3}"]), lambda t=t, u=u: task_k(t, u)))
    C.append((idx["K3_1"], task_bpart))
    kend = idx["K3_7"]
    C.append((kend, sm_max))
    for t in range(4): C.append((kend, lambda t=t: sm_exp(t)))
    C.append((kend, sm_fin))
    for t in range(4):
        for uu in range(4):
            C.append((idx[f"V{t}_{2*uu+1}"], lambda t=t, uu=uu: task_vperm(t, uu)))
    C.append((idx["V2_0"], task_pre))
    C.sort(key=lambda c: c[0])
    C.append((idx["V3_7"], task_publish_o))
    n = len(U)
    stop_at = idx["V3_7"]
    st = {"issued": 4, "c": 0}
    def run_chunk():
        C[st["c"]][1](); st["c"] += 1
    def issue_upto(lim, arrived):
        while st["issued"] < n and st["issued"] < lim:
            k = st["issued"]
            nm, lines, nv, pre = U[k]
            if wolate and k > idx["V3_7"] and arrived < n - 1: return
            while pre is not None and pre not in consumed:
                if C[st["c"]][0] <= arrived: run_chunk()
                else:
                    print("WARNING: issue of", nm, "blocked at arrived", names[arrived]); return
            if WMAX and k >= dyn0 and arrived < n - 1 and k < endb:
                if k - WIN >= idx["V3_7"]: return
                lk = a.label("Li")
                a(f"s_cmp_gt_u32 s{sBOOST}, {k}")
                a(f"s_cbranch_scc1 {lk}")
                a(f"s_waitcnt vmcnt({sum(u[2] for u in U[k-WIN+1:k])})")
                if slow and k - WIN + 1 < idx["V3_7"]:
                    a(f"s_cmp_gt_u32 s{sSLOW}, {k}")
                    a(f"s_cbranch_scc0 {lk}")
                    a(f"s_waitcnt vmcnt({sum(u[2] for u in U[k-WIN+2:k])})")
                a(f"{lk}:")
            for x in lines: a(x)
            st["issued"] += 1
    issue_upto(W0, -1)
    arrived = STEP - 1
    while True:
        assert st["issued"] > arrived
        out = sum(u[2] for u in U[arrived + 1:st["issued"]])
        a(f"s_waitcnt vmcnt({min(out,63)})")
        if arrived % 8 == 7: stamp(arrived // 8 + 1, "u")
        EL = [3, 7, 11, 15, 19, 23, 27, 31, 47, idx["V3_7"]]
        if arrived in EL: stamp(EL.index(arrived) + 1, "e")
        if ctl and arrived > p1_at and arrived < stop_at - 4:
            if arrived % rf == 0: a(f"ds_read_b32 v{vE+7}, v{vE+6} offset:{L_CTL}")
            if arrived % rf == 1 and arrived - 1 > p1_at:
                a("s_waitcnt lgkmcnt(0)")
                a(f"v_readfirstlane_b32 s{sBOOST}, v{vE+7}")
        win = WIN if arrived < wsw else WEND
        if arrived < stop_at: issue_upto(arrived + 1 + win, arrived)
        ran = 0
        while st["c"] < len(C) and C[st["c"]][0] <= arrived and (ran < 2 * STEP or arrived >= stop_at - 1):
            run_chunk(); ran += 1
        if arrived >= stop_at: break
        arrived = min(arrived + STEP, stop_at)
    assert st["c"] == len(C)
    late = sum(u[2] for u in U[st["issued"]:])
    issue_upto(n, n - 1)

    if notail: a("s_branch L_fin")
    if not early:
        if ack1: a("s_waitcnt vmcnt(0)")
        if oracle:
            a(f"""
            L_or:
            s_memrealtime s[{sM0}:{sM0+1}]
            s_waitcnt lgkmcnt(0)
            s_sub_u32 s{sT2}, s{sM0}, s{sST}
            s_cmp_ge_u32 s{sT2}, {oracle}
            s_cbranch_scc1 L_ord
            s_sleep 2
            s_branch L_or
            L_ord:
            """)
        if TH:
            a(f"""
            s_mov_b32 s{sCAP}, 0
            s_mov_b64 exec, 1
            s_waitcnt vmcnt({late + 1})
            L_gate:
            v_readfirstlane_b32 s{sT2}, v{vE+7}
            s_cmp_ge_u32 s{sT2}, {TH}
            s_cbranch_scc1 L_gated
            s_add_u32 s{sCAP}, s{sCAP}, 1
            s_cmp_gt_u32 s{sCAP}, 0x40000
            s_cbranch_scc1 L_gated
            s_sleep {gsleep}
            global_load_dword v{vE+7}, v{vE+6}, s[66:67] offset:32 sc1
            s_waitcnt vmcnt(0)
            s_branch L_gate
            L_gated:
            s_mov_b64 exec, -1
            """)
        for l in h1: a(l)
        a(f"s_waitcnt vmcnt({len(h1) + 1 if late == 0 else len(h1)})")
    else:
        a(f"s_waitcnt vmcnt({1 if late == 0 else 0})")
    for p in range(8):
        a(f"v_perm_b32 v{PW+2*p}, v{WOR+2*p+1}, v{WOR+2*p}, s{sSELLO}")
        a(f"v_perm_b32 v{PW+2*p+1}, v{WOR+2*p+1}, v{WOR+2*p}, s{sSELHI}")
    for k in range(4): a(f"v_mov_b32 v{vS+8+k}, 0")
    if not early: a("s_waitcnt vmcnt(0)")
    stamp(7)
    tg = []
    for k in range(len(h1)): tg += [vH1 + 4 * k + 1, vH1 + 4 * k + 3]
    poll(h1, tg, vA0, sleep1, first_issued=True)
    stamp(8)
    if pk:
        for r in (0, 2, 4, 6):
            a(f"v_and_b32 v{vH1+r+1}, 0xffff0000, v{vH1+r}")
            a(f"v_lshlrev_b32 v{vH1+r}, 16, v{vH1+r}")
        for r in range(4): a(f"v_add_f32 v{vH1+r}, v{vH1+r}, v{vH1+r+4}")
        a(f"""
        v_permlane32_swap_b32 v{vH1}, v{vH1+2}
        v_permlane32_swap_b32 v{vH1+1}, v{vH1+3}
        v_add_f32 v{vH1}, v{vH1}, v{vH1+2}
        v_add_f32 v{vH1+1}, v{vH1+1}, v{vH1+3}
        v_permlane16_swap_b32 v{vH1}, v{vH1+1}
        v_add_f32 v{vH1}, v{vH1}, v{vH1+1}
        """)
    else:
        a(f"""
        v_add_f32 v{vH1}, v{vH1}, v{vH1+4}
        v_add_f32 v{vH1+2}, v{vH1+2}, v{vH1+6}
        v_add_f32 v{vH1+8}, v{vH1+8}, v{vH1+12}
        v_add_f32 v{vH1+10}, v{vH1+10}, v{vH1+14}
        v_add_f32 v{vH1}, v{vH1}, v{vH1+8}
        v_add_f32 v{vH1+2}, v{vH1+2}, v{vH1+10}
        v_permlane32_swap_b32 v{vH1}, v{vH1+2}
        v_add_f32 v{vH1}, v{vH1}, v{vH1+2}
        """)
    a(f"""
    ds_write_b32 v{vQ+7}, v{vH1} offset:{L_RED1}
    s_waitcnt lgkmcnt(0)
    s_barrier
    """)
    for k in range(4): a(f"ds_read_b64 {vr(vS+2*k,2)}, v{vKO} offset:{L_RED1+256*k}")
    a(f"""
    s_waitcnt lgkmcnt(2)
    v_add_f32 v{vS}, v{vS}, v{vS+2}
    v_add_f32 v{vS+1}, v{vS+1}, v{vS+3}
    s_waitcnt lgkmcnt(0)
    v_add_f32 v{vS+4}, v{vS+4}, v{vS+6}
    v_add_f32 v{vS+5}, v{vS+5}, v{vS+7}
    v_add_f32 v{vS}, v{vS}, v{vS+4}
    v_add_f32 v{vS+1}, v{vS+1}, v{vS+5}
    v_add_f32_dpp v{vS}, v{vS}, v{vS} row_ror:8 {DPP}
    v_add_f32_dpp v{vS+1}, v{vS+1}, v{vS+1} row_ror:8 {DPP}
    v_cvt_pk_bf16_f32 v{vA0}, v{vS}, v{vS+1}
    """)
    dot16(PW, vA0, vS + 8)
    a(f"""
    v_add_f32 v{vS+8}, v{vS+8}, v{vS+10}
    v_add_f32 v{vS+9}, v{vS+9}, v{vS+11}
    v_fma_f32 v{vE}, v{vS+8}, v{vE+4}, v{vBP}
    v_fma_f32 v{vA1}, v{vS+9}, v{vE+4}, v{vBP+1}
    v_permlane32_swap_b32 v{vE}, v{vA1}
    v_add_f32 v{vE}, v{vE}, v{vA1}
    v_mov_b32 v{vA1}, v{vE}
    v_permlane16_swap_b32 v{vE}, v{vA1}
    v_add_f32 v{vE}, v{vE}, v{vA1}
    s_mov_b32 exec_lo, 0xffff
    s_mov_b32 exec_hi, 0xffff
    buffer_store_dwordx2 {vr(vE,2)}, v{vWFO}, {srd(WS_)}, s{sPB} offen sc1
    s_mov_b64 exec, -1
    """)
    stamp(9)
    a(f"s_cmp_ge_u32 s2, 64")
    a(f"s_cbranch_scc1 L_fin")
    if ack2: a("s_waitcnt vmcnt(0)")
    h2 = [f"buffer_load_dwordx4 {vr(vS,4)}, v{vQ+6}, {srd(WS_)}, s{sA} offen sc1"]
    poll(h2, [vS + 1, vS + 3], vA0, sleep1)
    stamp(10)
    a(f"""
    v_permlane32_swap_b32 v{vS}, v{vS+2}
    v_add_f32 v{vS}, v{vS}, v{vS+2}
    v_add_f32_dpp v{vS}, v{vS}, v{vS} row_ror:8 {DPP}
    v_mov_b32 v{vA1}, v{vS}
    v_permlane16_swap_b32 v{vS}, v{vA1}
    v_add_f32 v{vS}, v{vS}, v{vA1}
    v_and_b32 v{vA0}, 7, v{vL}
    v_lshrrev_b32 v{vA2}, 5, v{vL}
    v_lshlrev_b32 v{vA2}, 2, v{vA2}
    v_lshl_add_u32 v{vA0}, v{vA0}, 3, v{vA2}
    s_lshl_b32 s{sT0}, s{sWV}, 6
    v_add_u32 v{vA0}, s{sT0}, v{vA0}
    ds_write_b32 v{vA0}, v{vS} offset:{L_RED2}
    s_waitcnt lgkmcnt(0)
    s_barrier
    s_cmp_lg_u32 s{sWV}, 0
    s_cbranch_scc1 L_fin
    ds_read_b64 {vr(vS,2)}, v{vQ+5} offset:{L_RED2}
    v_lshlrev_b32 v{vA2}, 2, v{vL}
    s_lshl_b32 s{sT0}, s2, 5
    s_waitcnt lgkmcnt(0)
    """)
    red2_bits345(vS, vS + 1, vA0, vA1)
    a(f"""
    v_cvt_pk_bf16_f32 v{vA0}, v{vS}, v{vS+1}
    s_mov_b64 exec, 0xff
    buffer_store_dword v{vA0}, v{vA2}, {srd(OUT_)}, s{sT0} offen
    s_cmp_lg_u32 s2, 0
    s_cbranch_scc1 L_fin
    s_mov_b64 exec, 1
    buffer_store_dword v{vTAG}, off, {srd(WS_)}, 0 sc1
    """)
    if dbg:
        a("s_waitcnt vmcnt(0)")
        a(f"s_memrealtime s[{sST+22}:{sST+23}]")
        a("s_waitcnt lgkmcnt(0)")
        a(f"v_mov_b32 v{vA1}, 0")
        for j in range(1, 12):
            a(f"s_sub_u32 s{sT0}, s{sST+2*j}, s{sST}")
            a(f"v_mov_b32 v{vA0}, s{sT0}")
            a(f"global_store_dword v{vA1}, v{vA0}, s[66:67] offset:{4*(j-1)}")
    a("L_fin:")
    if stamps and not dbg:
        a("s_mov_b64 exec, -1")
        a("s_waitcnt vmcnt(0)")
        a(f"s_memrealtime s[{sST+22}:{sST+23}]")
        a(f"s_mul_i32 s{sT0}, s2, 9")
        a(f"s_add_u32 s{sT0}, s{sT0}, s{sWV}")
        a(f"s_mul_i32 s{sT0}, s{sT0}, {NS*8}")
        a(f"s_add_u32 s{sT0}, s{sT0}, {STAMP_OFF}")
        a("s_waitcnt lgkmcnt(0)")
        a("s_mov_b64 exec, 1")
        for j in range(NS):
            a(f"v_mov_b32 v{vA0}, s{sST+2*j}")
            a(f"v_mov_b32 v{vA1}, s{sST+2*j+1}")
            a(f"buffer_store_dwordx2 {vr(vA0,2)}, off, {srd(WS_)}, s{sT0} offset:{8*j}")
    a("L_end:")
    a("s_endpgm")

    cX = vACC; cG = vACC + 8
    a(f"""
    L_comm:
    s_setprio 3
    v_mov_b32 v{vA0}, 0
    v_lshlrev_b32 v{vT4}, 2, v{vL}
    s_mov_b64 exec, 0xffff
    ds_write_b32 v{vT4}, v{vA0}
    s_mov_b64 exec, -1
    s_mov_b32 s{GW_+2}, 2048
    s_mov_b32 s{GW_+3}, 0x20000
    s_waitcnt lgkmcnt(0)
    s_barrier
    s_load_dword s{sC}, s[{WS_}:{WS_+1}], 0
    s_load_dword s{sSELLO}, s[94:95], 0
    s_mov_b64 s[{X_}:{X_+1}], s[76:77]
    s_mov_b64 s[{GW_}:{GW_+1}], s[94:95]
    s_mov_b64 s[66:67], s[98:99]
    """)
    a(f"s_lshl_b32 s8, s{sG}, 6")
    a("s_add_u32 s66, s66, s8")
    a("s_addc_u32 s67, s67, 0")
    def cp_time():
        if ctl >= 2: a("s_memrealtime s[4:5]")
    def checkpoint(k, unit, allwg):
        if ctl < 2 or str(k) not in str(cps): return
        sk = a.label("Lcp")
        if not allwg:
            a(f"s_cmp_ge_u32 s{sLC}, 56")
            a(f"s_cbranch_scc1 {sk}")
        a(f"""
        v_mov_b32 v{vA0}, 0
        s_waitcnt lgkmcnt(0)
        s_mov_b32 s6, s4
        s_mov_b32 s7, 0x10000
        s_atomic_add_x2 s[6:7], s[66:67], {8*k} glc
        s_mov_b64 exec, 1
        s_waitcnt lgkmcnt(0)
        s_lshr_b32 s7, s7, 16
        s_mul_i32 s4, s4, s7
        s_sub_u32 s4, s4, s6
        s_max_u32 s7, s7, 1
        v_cvt_f32_i32 v{vA1}, s4
        v_cvt_f32_u32 v{vA2}, s7
        v_rcp_f32 v{vA2}, v{vA2}
        v_mul_f32 v{vA1}, v{vA1}, v{vA2}
        v_subrev_f32 v{vA1}, {hex(f2u(margin))}, v{vA1}
        v_mul_f32 v{vA1}, {hex(f2u(1.0/gain))}, v{vA1}
        v_cmp_lt_f32 vcc, 1.0, v{vA1}
        v_add_f32 v{vA1}, {hex(f2u(unit + lead))}, v{vA1}
        v_cvt_u32_f32 v{vA1}, v{vA1}
        v_cndmask_b32 v{vA1}, 0, v{vA1}, vcc
        ds_write_b32 v{vA0}, v{vA1} offset:{L_CTL}
        s_mov_b64 exec, -1
        {sk}:
        """)
    if touch:
        a(f"""
        s_mul_i32 s4, s{sR8}, {128*7168}
        s_load_dword s8, s[88:89], s4
        s_load_dword s9, s[90:91], s4
        s_add_u32 s4, s4, {127*7168}
        s_load_dword s10, s[88:89], s4
        s_load_dword s11, s[90:91], s4
        s_min_u32 s4, s{sLC}, 55
        s_lshl_b32 s4, s4, 17
        s_load_dword s12, s[92:93], s4
        s_lshl_b32 s4, s{sG}, 24
        s_lshl_b32 s5, s{sI}, 16
        s_add_u32 s4, s4, s5
        s_load_dword s13, s[78:79], s4
        """)
    cL8 = vQ; cPA = vQ + 1; cPF = vQ + 2; cQW = vQ + 3; cGP = vQ + 4; cQR = vQ + 6
    a(f"""
    v_lshlrev_b32 v{cL8}, 3, v{vL}
    v_lshrrev_b32 v{vA0}, 3, v{vL}
    v_and_b32 v{vA1}, 7, v{vL}
    v_lshlrev_b32 v{cPA}, 10, v{vA0}
    v_lshl_add_u32 v{cPA}, v{vA1}, 4, v{cPA}
    v_mul_u32_u24 v{cQR}, {QREP}, v{vA0}
    v_lshl_add_u32 v{cQR}, v{vA1}, 3, v{cQR}
    v_lshrrev_b32 v{vA0}, 5, v{vL}
    v_and_b32 v{vA1}, 31, v{vL}
    v_lshlrev_b32 v{cPF}, 10, v{vA0}
    v_lshl_add_u32 v{cPF}, v{vA1}, 4, v{cPF}
    v_mul_u32_u24 v{vA0}, 272, v{vA0}
    v_lshl_add_u32 v{cQW}, v{vA1}, 3, v{vA0}
    v_add_u32 v{cGP}, {L_GP}, v{cL8}
    s_lshl_b32 s{sT1}, s{sCB}, 13
    s_add_u32 s{sT1}, s{sT1}, {WS_QP}
    s_lshl_b32 s{sT2}, s{sR8}, 10
    s_add_u32 s{sA}, s{sT1}, s{sT2}
    s_lshl_b32 s{sT2}, s{sR8}, 7
    s_add_u32 s{sPA}, s{sT1}, s{sT2}
    s_lshl_b32 s{sT1}, s{sCB}, 9
    s_lshl_b32 s{sT2}, s{sR8}, 6
    s_add_u32 s{sB}, s{sT1}, s{sT2}
    s_add_u32 s{sB}, s{sB}, {WS_QG}
    s_lshl_b32 s{sPB}, s{sG}, 12
    s_add_u32 s{sPB}, s{sPB}, {WS_QG}
    s_and_b32 s{sT1}, s{sI}, 7
    s_mul_i32 s{sT1}, s{sT1}, {QREP if rep else 0}
    s_add_u32 s{sPB}, s{sPB}, s{sT1}
    """)
    if prer0:
        a(f"""
        v_lshlrev_b32 v{vA2}, 6, v{vL}
        s_mov_b64 exec, 0xffff
        buffer_load_dword v{vS}, v{vA2}, {srd(WS_)}, s{sA} offen
        s_mov_b64 exec, 1
        buffer_load_dword v{vS+1}, v{vA2}, {srd(WS_)}, s{sB} offen
        s_lshl_b32 s{sT1}, s{sCB}, 14
        s_lshl_b32 s{sT2}, s{sR8}, 11
        s_add_u32 s{sT1}, s{sT1}, s{sT2}
        s_add_u32 s{sT1}, s{sT1}, {WS_FG}
        s_mov_b32 exec_lo, -1
        buffer_load_dword v{vS+2}, v{vA2}, {srd(WS_)}, s{sT1} offen
        s_lshl_b32 s{sT1}, s2, 7
        s_add_u32 s{sT1}, s{sT1}, {WS_ML}
        s_mov_b64 exec, 3
        buffer_load_dword v{vS+3}, v{vA2}, {srd(WS_)}, s{sT1} offen
        s_mov_b64 exec, -1
        """)
    a(f"""
    s_waitcnt lgkmcnt(0)
    s_add_u32 s{sC}, s{sC}, 1
    v_mov_b32 v{vTAG}, s{sC}
    """)
    init_stamps()
    if nocomm:
        arrive(C_QS); arrive(C_H)
        a("s_waitcnt vmcnt(0) lgkmcnt(0)")
        a("s_branch L_fin" if stamps and not dbg else "s_endpgm")
    def sum8x2(base):
        for step in (2, 4, 8):
            for k in range(0, 16, 2 * step):
                a(f"v_add_f32 v{base+k}, v{base+k}, v{base+k+step}")
                a(f"v_add_f32 v{base+k+1}, v{base+k+1}, v{base+k+step+1}")
    def gp_publish(m, base, so, off):
        for k in range(4): a(f"ds_read2st64_b64 {vr(base+4*k,4)}, v{cGP} offset0:{8*m+2*k} offset1:{8*m+2*k+1}")
        a("s_waitcnt lgkmcnt(0)")
        sum8x2(base)
        a(f"v_mov_b32 v{base+2}, v{base+1}")
        a(f"v_mov_b32 v{base+1}, v{vTAG}")
        a(f"v_mov_b32 v{base+3}, v{vTAG}")
        if not (("q" in skip and m == 0) or ("f" in skip and m > 0)): a(f"buffer_store_dwordx4 {vr(base,4)}, v{vVO}, {srd(WS_)}, s{so} offen offset:{off} sc1")
    wait_cnt(C_Q, 8, csleep)
    gp_publish(0, vT, sA, 0)
    stamp(1)
    qal = f"buffer_load_dwordx4 {vr(vE,4)}, v{cPA}, {srd(WS_)}, s{sPA} offen sc1"
    a("s_waitcnt vmcnt(0)")
    if adelay: a(f"s_sleep {adelay}")
    if 'q' not in skip: poll([qal], [vE + 1, vE + 3], vA0, asleep)
    red2_bits345(vE, vE + 2, vA0, vA1)
    a(f"""
    v_cvt_pk_bf16_f32 v{vE}, v{vE}, v{vE+2}
    s_mov_b64 exec, {-1 if rep else 0xff}
    """)
    if 'q' not in skip: a(f"buffer_store_dwordx2 {vr(vE,2)}, v{cQR}, {srd(WS_)}, s{sB} offen sc1")
    a("s_mov_b64 exec, -1")
    stamp(2)
    a(f"""
    buffer_load_dwordx4 {vr(cX,4)}, v{vVO}, {srd(X_)}, 0 offen
    buffer_load_dwordx4 {vr(cX+4,4)}, v{vVO}, {srd(X_)}, 0 offen offset:1024
    buffer_load_dwordx4 {vr(cG,4)}, v{vVO}, {srd(GW_)}, 0 offen
    buffer_load_dwordx4 {vr(cG+4,4)}, v{vVO}, {srd(GW_)}, 0 offen offset:1024
    s_lshl_b32 s{sKV}, s{sCB}, 14
    s_add_u32 s{sKV}, s{sKV}, {WS_FG}
    s_lshl_b32 s{sT2}, s{sR8}, 11
    s_add_u32 s{sA}, s{sKV}, s{sT2}
    s_and_b32 s{sT2}, s{sLC}, 1
    s_lshl_b32 s{sT2}, s{sT2}, 9
    s_add_u32 s{sKV}, s{sKV}, s{sT2}
    """)
    wait_cnt(C_F, 8, csleep)
    gp_publish(1, vT, sA, 0)
    gp_publish(2, vP, sA, 1024)
    a("s_waitcnt vmcnt(2)" if "f" not in skip else "s_waitcnt vmcnt(0)")
    a(f"v_mov_b32 v{vB0}, 0")
    for k in range(8):
        a(f"""
        v_lshlrev_b32 v{vA0}, 16, v{cX+k}
        v_and_b32 v{vA1}, 0xffff0000, v{cX+k}
        v_lshlrev_b32 v{vA2}, 16, v{cG+k}
        v_and_b32 v{vA3}, 0xffff0000, v{cG+k}
        v_mul_f32 v{vA0}, v{vA0}, v{vA2}
        v_mul_f32 v{vA1}, v{vA1}, v{vA3}
        v_cvt_pk_bf16_f32 v{vA0}, v{vA0}, v{vA1}
        v_lshlrev_b32 v{vA1}, 16, v{vA0}
        v_and_b32 v{vA0}, 0xffff0000, v{vA0}
        v_add_f32 v{vB0}, v{vB0}, v{vA0}
        v_add_f32 v{vB0}, v{vB0}, v{vA1}
        """)
    for nn_ in (1, 2, 4): a(f"v_add_f32_dpp v{vB0}, v{vB0}, v{vB0} row_ror:{nn_} {DPP}")
    red_bits345("add", vB0, vA3)
    a(f"""
    v_cvt_pk_bf16_f32 v{vA0}, v{vB0}, v{vB0}
    v_and_b32 v{vA0}, 0xffff0000, v{vA0}
    v_mul_f32 v{vA0}, {hex(f2u(-math.log2(math.e)))}, v{vA0}
    v_exp_f32 v{vA0}, v{vA0}
    v_add_f32 v{vA0}, 1.0, v{vA0}
    v_rcp_f32 v{vA0}, v{vA0}
    v_cvt_pk_bf16_f32 v{vA0}, v{vA0}, v{vA0}
    v_and_b32 v{vA0}, 0xffff0000, v{vA0}
    v_sub_f32 v{vA1}, 1.0, v{vA0}
    v_cvt_pk_bf16_f32 v{vA1}, v{vA1}, v{vA1}
    v_and_b32 v{vA1}, 0xffff0000, v{vA1}
    v_mov_b32 v{vA2}, 0
    s_mov_b64 exec, 1
    ds_write_b64 v{vA2}, {vr(vA0,2)} offset:{L_G}
    ds_write_b32 v{vA2}, v{vTAG} offset:{L_G+8}
    s_mov_b64 exec, -1
    """)
    wait_cnt(C_P1, cpn, 4)
    cp_time()
    ql = [f"buffer_load_dwordx4 {vr(vS+4*k,4)}, v{vVO}, {srd(WS_)}, s{sPB} offen offset:{1024*k} sc1" for k in range(4)]
    tg = []
    for k in range(4): tg += [vS + 4 * k + 1, vS + 4 * k + 3]
    if 'q' not in skip: poll(ql, tg, vA2, rsleep)
    for k in range(4): a(f"v_mov_b32 v{vS+4*k+1}, v{vS+4*k+2}")
    for k in range(4): a(f"ds_write_b64 v{cQW}, {vr(vS+4*k,2)} offset:{L_QS+544*k}")
    arrive(C_QS)
    stamp(3)
    checkpoint(0, p1_at + 4, False)
    for k in range(1, 4): a(f"s_add_u32 s{sT0+k}, s{sKV}, {4096*k}")
    fl = [f"buffer_load_dwordx4 {vr(vS+4*k,4)}, v{cPF}, {srd(WS_)}, s{sKV if k < 2 else sT0+k//2} offen offset:{2048*(k%2)} sc1" for k in range(8)]
    tg = []
    for k in range(8): tg += [vS + 4 * k + 1, vS + 4 * k + 3]
    if 'f' not in skip: poll(fl, tg, vA2, rsleep)
    for step in (4, 8, 16):
        for k in range(0, 32, 2 * step):
            a(f"v_add_f32 v{vS+k}, v{vS+k}, v{vS+k+step}")
            a(f"v_add_f32 v{vS+k+2}, v{vS+k+2}, v{vS+k+step+2}")
    a(f"""
    v_cvt_pk_bf16_f32 v{vA0}, v{vS}, v{vS+2}
    v_mov_b32 v{vA1}, v{vA0}
    v_permlane32_swap_b32 v{vA0}, v{vA1}
    v_lshlrev_b32 v{vA2}, 16, v{vA0}
    v_and_b32 v{vA0}, 0xffff0000, v{vA0}
    v_lshlrev_b32 v{vA3}, 16, v{vA1}
    v_and_b32 v{vA1}, 0xffff0000, v{vA1}
    v_max_f32 v{vA2}, 0, v{vA2}
    v_max_f32 v{vA0}, 0, v{vA0}
    v_mul_f32 v{vA2}, v{vA2}, v{vA3}
    v_mul_f32 v{vA0}, v{vA0}, v{vA1}
    v_cvt_pk_bf16_f32 v{vA0}, v{vA2}, v{vA0}
    s_mov_b64 exec, 0xffffffff
    ds_write_b32 v{vT4}, v{vA0} offset:{L_H}
    s_mov_b64 exec, -1
    """.replace("s_mov_b64 exec, 0xffffffff", "s_mov_b32 exec_hi, 0"))
    arrive(C_H)
    stamp(4)
    if prer:
        a(f"""
        v_lshlrev_b32 v{vA2}, 6, v{vL}
        s_lshl_b32 s{sT1}, s2, {LB}
        s_add_u32 s{sT1}, s{sT1}, {WS_OP}
        s_add_u32 s{sT2}, s{sT1}, 4096
        s_lshl_b32 s{sT3}, s{sRB}, 6
        s_add_u32 s{sT3}, s{sT3}, s{sPL}
        s_lshl_b32 s{sT3}, s{sT3}, 11
        s_add_u32 s{sT3}, s{sT3}, {WS_FP}
        buffer_load_dword v{vS}, v{vA2}, {srd(WS_)}, s{sT1} offen
        """)
        if not pk: a(f"buffer_load_dword v{vS+1}, v{vA2}, {srd(WS_)}, s{sT2} offen")
        a(f"""
        s_mov_b32 exec_hi, 0
        buffer_load_dword v{vS+2}, v{vA2}, {srd(WS_)}, s{sT3} offen
        s_mov_b64 exec, -1
        """)
    if prew:
        for k in range(4): a(f"v_subrev_u32 v{vS+k}, 1, v{vTAG}")
        a(f"""
        s_lshl_b32 s{sT1}, s2, 13
        s_add_u32 s{sT1}, s{sT1}, {WS_OP}
        s_add_u32 s{sT2}, s{sT1}, 4096
        s_lshl_b32 s{sT3}, s{sRB}, 6
        s_add_u32 s{sT3}, s{sT3}, s{sPL}
        s_lshl_b32 s{sT3}, s{sT3}, 11
        s_add_u32 s{sT3}, s{sT3}, {WS_FP}
        """)
        for k in range(8):
            a(f"buffer_store_dwordx4 {vr(vS,4)}, v{vVO}, {srd(WS_)}, s{sT1 if k < 4 else sT2} offen offset:{1024*(k%4)} sc1")
            if k % 2 == 1: a("s_waitcnt vmcnt(0)")
        for k in range(2): a(f"buffer_store_dwordx4 {vr(vS,4)}, v{vVO}, {srd(WS_)}, s{sT3} offen offset:{1024*k} sc1")
    if ctl:
        wait_cnt(C_P3, cpn, 4)
        cp_time()
        checkpoint(1, p3_at, False)
    if 'm' in skip: a('s_branch L_fin')
    a(f"""
    s_lshl_b32 s{sA}, s2, 7
    s_add_u32 s{sA}, s{sA}, {WS_ML}
    s_lshl_b32 s{sPA}, s{sG}, 13
    s_add_u32 s{sPA}, s{sPA}, {WS_ML}
    s_and_b32 s{sT1}, s{sI}, 7
    s_mul_i32 s{sT1}, s{sT1}, {MREP if rep else 0}
    s_add_u32 s{sPA}, s{sPA}, s{sT1}
    s_add_u32 s{sPB}, s{sPA}, 4096
    v_lshrrev_b32 v{vQ+5}, 3, v{vL}
    v_mul_u32_u24 v{vQ+5}, {MREP}, v{vQ+5}
    v_and_b32 v{vA3}, 7, v{vL}
    v_lshl_add_u32 v{vQ+5}, v{vA3}, 4, v{vQ+5}
    """)
    wait_cnt(C_ST, 8, 8)
    a(f"ds_read_b64 {vr(vT,2)}, v{cL8} offset:{L_ST}")
    a("s_waitcnt lgkmcnt(0)")
    reduce_ml(vT, vT + 1, vB0, vA3)
    a(f"""
    v_mov_b32 v{vB1}, v{vTAG}
    v_mov_b32 v{vB2}, v{vT+1}
    v_mov_b32 v{vB3}, v{vTAG}
    s_mov_b64 exec, {-1 if rep else 0xff}
    buffer_store_dwordx4 {vr(vB0,4)}, v{vQ+5}, {srd(WS_)}, s{sA} offen sc1
    s_mov_b64 exec, -1
    """)
    stamp(5)
    cp_time()
    checkpoint(2, kend + 3, False)
    ml = [f"buffer_load_dwordx4 {vr(vS+4*k,4)}, v{vVO}, {srd(WS_)}, s{sPA if k < 4 else sPB} offen offset:{1024*(k%4)} sc1" for k in range(8)]
    tg = []
    for k in range(8): tg += [vS + 4 * k + 1, vS + 4 * k + 3]
    wait_cnt(C_P2, cpn, 4)
    poll(ml, tg, vA0, rsleep)
    M = vE
    a(f"v_max3_f32 v{M}, v{vS}, v{vS+4}, v{vS+8}")
    a(f"v_max3_f32 v{M}, v{M}, v{vS+12}, v{vS+16}")
    a(f"v_max3_f32 v{M}, v{M}, v{vS+20}, v{vS+24}")
    a(f"v_max_f32 v{M}, v{M}, v{vS+28}")
    red_bits345("max", M, vA3)
    for k in range(8): a(f"v_sub_f32 v{vS+4*k}, v{vS+4*k}, v{M}")
    for k in range(8): a(f"v_exp_f32 v{vS+4*k}, v{vS+4*k}")
    a(f"v_mul_f32 v{M+1}, v{vS}, v{vS+2}")
    for k in range(1, 8): a(f"v_fmac_f32 v{M+1}, v{vS+4*k}, v{vS+4*k+2}")
    red_bits345("add", M + 1, vA3)
    a(f"""
    v_sub_f32 v{vA1}, v{vT}, v{M}
    v_exp_f32 v{vA1}, v{vA1}
    v_rcp_f32 v{vA2}, v{M+1}
    v_mul_f32 v{vA1}, v{vA1}, v{vA2}
    v_and_b32 v{vA2}, 7, v{vL}
    v_lshlrev_b32 v{vA2}, 5, v{vA2}
    v_lshrrev_b32 v{vA3}, 3, v{vL}
    v_lshl_add_u32 v{vA2}, v{vA3}, 2, v{vA2}
    ds_write_b32 v{vA2}, v{vA1} offset:{L_F}
    s_waitcnt lgkmcnt(0)
    """)
    if stamps and not dbg: a("s_branch L_fin")
    else: a("s_endpgm")
    lines = hazard.fix([l for l in a.lines if not l.strip().startswith(";")])
    return wrap_single("\n".join(lines), 256, 576, lds, NVGPR, header=HEADER)

if __name__ == "__main__":
    out = sys.argv[1]
    kw = {}
    for s in sys.argv[2:]:
        k, v = s.split("=")
        try: v = int(v)
        except: pass
        kw[k] = v
    open(out, "w").write(gen(**kw))
```

```python
import sys, math, struct
from asmlib import *
import hazard
def f2u(x): return struct.unpack("<I", struct.pack("<f", x))[0]

HEADER = open("cdna_kernels/" + NAME + ".s.ref").read().split("; Override launch")[0]

WS_QG = 0x80000
WS_ML = 0xc0000
WS_QP = 0x40000
WS_FG = 0x380000
WS_OP = 0x100000
WS_FP = 0x300000
WS_SIZE = 0x400000
QREP = 0x4000 + 0x1000*0
MREP = 0x8000
STAMP_OFF = 128 << 20
C_Q, C_F, C_QS, C_ST, C_R2, C_H, C_P1, C_P2, C_P3, L_CTL = 0, 4, 8, 12, 16, 20, 24, 28, 32, 36
L_H = 64
L_G = 192
L_GP = 256
L_QS = L_GP + 3 * 4096
L_ST = L_QS + 2176
L_F = L_ST + 512
L_RED1 = L_F + 256
L_RED2 = L_RED1 + 2048
L_ORED = L_RED2 + 512
L_END = L_ORED + 8 * 4224

sW, sWV = 2, 3
K_, V_, WQ_, WO_, WG_, WU_, WD_, X_, GW_, WS_, OUT_ = 4, 8, 12, 16, 20, 24, 28, 32, 36, 40, 44
def srd(b): return f"s[{b}:{b+3}]"
sG, sI = 48, 49
sPA, sPB = 50, 51
sKV = 52
sT0, sT1, sT2, sT3 = 53, 54, 55, 56
sSELLO, sSELHI, sC = 57, 58, 59
sCAP = 60
sA, sB = 61, 62
sKS = 63
sM0 = 64
sO = 68
sXV = 75
sRB, sLC = 68, 69
sPL = 74
sBOOST, sSLOW = 100, 101
sR8, sCB = 70, 71
sH1 = 70
sST = 76

vL, vT4, vT16, vTAG, vKO, vVO, vWQO, vWFO = 0, 1, 2, 3, 4, 5, 6, 7
vA0, vA1, vA2, vA3 = 8, 9, 10, 11
vB0, vB1, vB2, vB3 = 12, 13, 14, 15
vT = 16
vQ = 32
vE = 40
vP = 48
vS = 64
vACC = 96
vR = 128
NVGPR = 160

def gen(WIN=3, C2=64, stamps=False, nt=True, lds=82440, sleep1=2, W0=4, STEP=1, WEND=None, sn="d", dbg=0, wsw=999,
        notail=0, q_at=27, csleep=1, wo_early=0, p1_at=20, p2_at=66, rsleep=16, rep=1, xr=7, prew=1, early=1, ack1=0, ack2=1, asleep=4, nocomm=0, ex=3, touch=0, adelay=0, skip='', WMAX=0, dyn0=20, tb=0, slow=1, ctl=0, margin=40, gain=6, slowu=60, p3_at=34, rf=3, cpn=6, cps=12, lead=8, endb=999, TH=0, gsleep=4, wolate=0, oracle=0, pk=0, prer=0, prer0=0, fix=0, fixm=0):
    a = Asm()
    NT = " nt" if nt else ""
    SN = set(str(sn).split("+"))
    slots = {}
    def stamp(k, name="d"):
        if stamps and name in SN:
            a(f"s_memrealtime s[{sST+2*k}:{sST+2*k+1}]")
    NS = 12
    LB = 12 if pk else 13
    if WMAX: wsw, WEND = dyn0 - WIN, WMAX
    def vr(b, n): return f"v[{b}:{b+n-1}]"
    DPP = "row_mask:0xf bank_mask:0xf"

    def red_bits45(op, v, t):
        a(f"v_mov_b32 v{t}, v{v}")
        a(f"v_permlane16_swap_b32 v{v}, v{t}")
        a(f"v_{op}_f32 v{v}, v{v}, v{t}")
        a(f"v_mov_b32 v{t}, v{v}")
        a(f"v_permlane32_swap_b32 v{v}, v{t}")
        a(f"v_{op}_f32 v{v}, v{v}, v{t}")
    def red_bits345(op, v, t):
        a(f"v_{op}_f32_dpp v{v}, v{v}, v{v} row_ror:8 {DPP}")
        red_bits45(op, v, t)
    def red2_bits45(v0, v1, t0, t1):
        for sw in ("16", "32"):
            a(f"v_mov_b32 v{t0}, v{v0}")
            a(f"v_mov_b32 v{t1}, v{v1}")
            a(f"v_permlane{sw}_swap_b32 v{v0}, v{t0}")
            a(f"v_permlane{sw}_swap_b32 v{v1}, v{t1}")
            a(f"v_add_f32 v{v0}, v{v0}, v{t0}")
            a(f"v_add_f32 v{v1}, v{v1}, v{t1}")
    def red2_bits345(v0, v1, t0, t1):
        a(f"v_add_f32_dpp v{v0}, v{v0}, v{v0} row_ror:8 {DPP}")
        a(f"v_add_f32_dpp v{v1}, v{v1}, v{v1} row_ror:8 {DPP}")
        red2_bits45(v0, v1, t0, t1)
    def reduce_ml(vm, vl, vM, t):
        a(f"v_mov_b32 v{vM}, v{vm}")
        red_bits345("max", vM, t)
        a(f"v_sub_f32 v{t}, v{vm}, v{vM}")
        a(f"v_exp_f32 v{t}, v{t}")
        a(f"v_mul_f32 v{vl}, v{vl}, v{t}")
        red_bits345("add", vl, t)
    def arrive_last(cnt, skip):
        a(f"""
        s_waitcnt lgkmcnt(0)
        v_mov_b32 v{vA0}, {cnt}
        v_mov_b32 v{vA1}, 1
        s_mov_b64 exec, 1
        ds_add_rtn_u32 v{vA0}, v{vA0}, v{vA1}
        s_mov_b64 exec, -1
        s_waitcnt lgkmcnt(0)
        v_readfirstlane_b32 s{sT0}, v{vA0}
        s_cmp_lg_u32 s{sT0}, 7
        s_cbranch_scc1 {skip}
        """)
    def arrive(cnt):
        a(f"""
        v_mov_b32 v{vA0}, {cnt}
        v_mov_b32 v{vA1}, 1
        s_waitcnt lgkmcnt(0)
        s_mov_b64 exec, 1
        ds_add_u32 v{vA0}, v{vA1}
        s_mov_b64 exec, -1
        """)
    def wait_cnt(cnt, val, sl=1):
        l = a.label("Lw"); d = a.label("Lwd")
        a(f"""
        v_mov_b32 v{vA0}, {cnt}
        s_mov_b32 s{sCAP}, 0
        {l}:
        ds_read_b32 v{vA1}, v{vA0}
        s_waitcnt lgkmcnt(0)
        v_readfirstlane_b32 s{sT0}, v{vA1}
        s_cmp_ge_u32 s{sT0}, {val}
        s_cbranch_scc1 {d}
        s_add_u32 s{sCAP}, s{sCAP}, 1
        s_cmp_gt_u32 s{sCAP}, 0x400000
        s_cbranch_scc1 {d}
        s_sleep {sl}
        s_branch {l}
        {d}:
        """)
    def poll(loads, tagregs, tmp, sleep, first_issued=False):
        lc = a.label("Lchk"); ld = a.label("Ldone")
        a(f"s_mov_b32 s{sCAP}, 0")
        if not first_issued:
            for l in loads: a(l)
            a("s_waitcnt vmcnt(0)")
        a(f"{lc}:")
        if len(tagregs) == 1:
            a(f"v_cmp_ne_u32 vcc, v{tagregs[0]}, v{vTAG}")
        else:
            a(f"v_xor_b32 v{tmp}, v{tagregs[0]}, v{vTAG}")
            for r in tagregs[1:]:
                a(f"v_xor_b32 v{tmp+1}, v{r}, v{vTAG}")
                a(f"v_or_b32 v{tmp}, v{tmp}, v{tmp+1}")
            a(f"v_cmp_ne_u32 vcc, 0, v{tmp}")
        a(f"s_and_b64 exec, exec, vcc")
        a(f"s_cbranch_scc0 {ld}")
        a(f"s_add_u32 s{sCAP}, s{sCAP}, 1")
        a(f"s_cmp_gt_u32 s{sCAP}, 0x40000")
        a(f"s_cbranch_scc1 {ld}")
        if sleep: a(f"s_sleep {sleep}")
        for l in loads: a(l)
        a("s_waitcnt vmcnt(0)")
        a(f"s_branch {lc}")
        a(f"{ld}:")
        a("s_mov_b64 exec, -1")
    def sum8(base):
        for step in (1, 2, 4):
            for k in range(0, 8, 2 * step): a(f"v_add_f32 v{base+k}, v{base+k}, v{base+k+step}")
    def init_stamps():
        if stamps:
            for k in range(NS): a(f"s_mov_b64 s[{sST+2*k}:{sST+2*k+1}], s[{sM0}:{sM0+1}]")

    if stamps or fix or fixm: a(f"s_memrealtime s[{sM0}:{sM0+1}]")
    a(f"""
    s_cmp_ge_u32 s2, 256
    s_cbranch_scc1 L_end
    s_load_dwordx16 s[76:91], s[0:1], 0
    s_load_dwordx8 s[92:99], s[0:1], 64
    s_load_dwordx2 s[{WS_}:{WS_+1}], s[0:1], 96
    v_lshrrev_b32 v{vA0}, 6, v0
    v_lshlrev_b32 v{vT4}, 2, v0
    v_lshlrev_b32 v{vT16}, 4, v0
    v_readfirstlane_b32 s{sWV}, v{vA0}
    v_and_b32 v{vL}, 63, v0
    s_lshr_b32 s{sG}, s2, 6
    s_and_b32 s{sI}, s2, 63
    s_bfe_u32 s{sRB}, s2, 0x20003
    s_lshr_b32 s{sLC}, s2, 5
    s_and_b32 s{sT0}, s2, 7
    s_lshl_b32 s{sPL}, s{sLC}, 3
    s_or_b32 s{sPL}, s{sPL}, s{sT0}
    s_bfe_u32 s{sR8}, s2, 0x30003
    s_lshl_b32 s{sT1}, s{sG}, 1
    s_xor_b32 s{sT0}, s{sT0}, s{sT1}
    s_lshl_b32 s{sT0}, s{sT0}, 2
    s_or_b32 s{sCB}, s{sT0}, s{sG}
    s_and_b32 s{sLC}, s{sLC}, 1
    s_lshl_b32 s{sT0}, s{sCB}, 1
    s_or_b32 s{sLC}, s{sLC}, s{sT0}
    s_mov_b32 s{X_+2}, 2048
    s_mov_b32 s{X_+3}, 0x20000
    s_mov_b32 s{WS_+2}, {WS_SIZE if not stamps else (256<<20)}
    s_mov_b32 s{WS_+3}, 0x20000
    v_lshlrev_b32 v{vVO}, 4, v{vL}
    s_cmp_eq_u32 s{sWV}, 8
    s_cbranch_scc1 L_comm
    s_mov_b32 s{WQ_+2}, {1024*8192}
    s_mov_b32 s{WQ_+3}, 0x20000
    v_lshrrev_b32 v{vA0}, 4, v{vL}
    v_and_b32 v{vA1}, 15, v{vL}
    v_lshlrev_b32 v{vA1}, 4, v{vA1}
    v_lshl_add_u32 v{vWQO}, v{vA0}, 15, v{vA1}
    v_lshlrev_b32 v{vA2}, 3, v{vA0}
    s_lshl_b32 s{sT3}, s{sR8}, 3
    s_add_u32 s{sT3}, s{sT3}, s{sWV}
    s_lshl_b32 s{sT0}, s{sCB}, 8
    s_lshl_b32 s{sA}, s{sT3}, 17
    s_add_u32 s{sA}, s{sA}, s{sT0}
    s_mul_i32 s{sB}, s{sT3}, {16*7168}
    s_add_u32 s{sB}, s{sB}, s{sT0}
    s_lshl_b32 s{sT3}, s{sT3}, 5
    s_add_u32 s{sT0}, s{sA}, 8192
    s_add_u32 s{sT1}, s{sA}, 16384
    s_add_u32 s{sT2}, s{sA}, 24576
    s_waitcnt lgkmcnt(0)
    s_mov_b64 s[{WQ_}:{WQ_+1}], s[82:83]
    s_mov_b64 s[{X_}:{X_+1}], s[76:77]
    """)
    WQR = vR; WGR = vR + 16; WUR = vACC; WDR = vP
    vXP = vB0
    a(f"buffer_load_dwordx2 {vr(vXP,2)}, v{vA2}, {srd(X_)}, s{sT3} offen")
    for j in range(4): a(f"buffer_load_dwordx4 {vr(WQR+4*j,4)}, v{vWQO}, {srd(WQ_)}, s{[sA,sT0,sT1,sT2][j]} offen{NT}")
    a(f"""
    v_mul_u32_u24 v{vWFO}, {4*7168}, v{vA0}
    v_add_u32 v{vWFO}, v{vWFO}, v{vA1}
    s_cmp_lt_u32 s{sLC}, 56
    s_cselect_b32 s{WG_+2}, {1024*7168}, 0
    s_cselect_b32 s{WU_+2}, {1024*7168}, 0
    s_cselect_b32 s{WD_+2}, {3584*2048}, 0
    s_mov_b32 s{WG_+3}, 0x20000
    s_mov_b32 s{WU_+3}, 0x20000
    s_mov_b64 s[{WG_}:{WG_+1}], s[88:89]
    s_mov_b64 s[{WU_}:{WU_+1}], s[90:91]
    s_mov_b64 s[{K_}:{K_+1}], s[78:79]
    s_mov_b64 s[{V_}:{V_+1}], s[80:81]
    s_mov_b64 s[{WO_}:{WO_+1}], s[84:85]
    s_mov_b64 s[{WD_}:{WD_+1}], s[92:93]
    s_mov_b64 s[{OUT_}:{OUT_+1}], s[96:97]
    s_mov_b64 s[66:67], s[98:99]
    s_mov_b32 s{K_+2}, 0x4000000
    s_mov_b32 s{K_+3}, 0x20000
    s_mov_b32 s{V_+2}, 0x4000000
    s_mov_b32 s{V_+3}, 0x20000
    s_mov_b32 s{WO_+2}, {4096*2048}
    s_mov_b32 s{WO_+3}, 0x20000
    s_mov_b32 s{WD_+3}, 0x20000
    s_mov_b32 s{OUT_+2}, 2048
    s_mov_b32 s{OUT_+3}, 0x20000
    s_mov_b32 s{sSELLO}, 0x05040100
    s_mov_b32 s{sSELHI}, 0x07060302
    s_mov_b32 s{sC}, {hex(f2u(128**-0.5 * math.log2(math.e)))}
    s_lshl_b32 s{sKV}, s{sG}, 24
    s_lshl_b32 s{sT0}, s{sI}, 16
    s_add_u32 s{sKV}, s{sKV}, s{sT0}
    s_lshl_b32 s{sT0}, s{sWV}, 13
    s_add_u32 s{sKV}, s{sKV}, s{sT0}
    s_and_b32 s{sT0}, s{sWV}, {xr}
    s_lshl_b32 s{sT0}, s{sT0}, 10
    s_add_u32 s{sXV}, s{sKV}, s{sT0}
    s_and_b32 s{sT1}, s{sT0}, 4096
    s_add_u32 s{sKV}, s{sKV}, s{sT1}
    s_and_b32 s{sT0}, s{sT0}, 3072
    v_and_b32 v{vA0}, 3, v{vL}
    v_lshlrev_b32 v{vA0}, 10, v{vA0}
    v_xor_b32 v{vA0}, s{sT0}, v{vA0}
    v_bfe_u32 v{vA1}, v{vL}, 2, 1
    v_lshl_add_u32 v{vA0}, v{vA1}, 8, v{vA0}
    v_bfe_u32 v{vA1}, v{vL}, 3, 1
    v_lshl_add_u32 v{vA0}, v{vA1}, 6, v{vA0}
    v_lshrrev_b32 v{vA1}, 4, v{vL}
    v_lshl_add_u32 v{vKO}, v{vA1}, 4, v{vA0}
    """)
    vX = vT; vGA = vT + 8
    a(f"""
    v_and_b32 v{vA0}, 15, v{vL}
    v_lshlrev_b32 v{vA0}, 5, v{vA0}
    v_lshl_add_u32 v{vA0}, v{vA1}, 3, v{vA0}
    s_lshl_b32 s{sT0}, s{sWV}, 9
    v_add_u32 v{vGA}, s{sT0}, v{vA0}
    v_and_b32 v{vA0}, 15, v{vL}
    s_lshl_b32 s{sT0}, s{sWV}, 6
    v_lshl_add_u32 v{vA0}, v{vA0}, 2, s{sT0}
    v_lshl_add_u32 v{vT4}, v{vA1}, 15, v{vA0}
    v_lshl_add_u32 v{vWQO}, v{vA1}, 11, v{vA0}
    """)
    init_stamps()
    for r in range(24): a(f"v_mov_b32 v{vS+r}, 0")
    a(f"s_mov_b32 s{sBOOST}, 0")
    a(f"s_mov_b32 s{sSLOW}, 0")
    a(f"v_mov_b32 v{vE+6}, 0")
    if ctl:
        a(f"s_cmp_lt_u32 s{sLC}, 56")
        a(f"s_cselect_b32 s{sSLOW}, 0, {slowu}")
    if tb:
        a(f"s_and_b32 s{sT0}, s2, 7")
        a(f"s_cmp_eq_u32 s{sT0}, 0")
        a(f"s_cselect_b32 s{sBOOST}, {tb}, 0")
        a(f"s_cmp_eq_u32 s{sT0}, 2")
        a(f"s_cselect_b32 s{sSLOW}, {tb}, 0")
    a("s_barrier")

    U = []
    for j in range(4): U.append((f"wq{j}", None, 1, None))
    for nm, R, S_ in (("gate", WGR, WG_), ("up", WUR, WU_)):
        for j in range(4):
            U.append((f"{nm}{j}", [f"s_add_u32 s{sT3}, s{sB}, {j*7168}", f"buffer_load_dwordx4 {vr(R+4*j,4)}, v{vWFO}, {srd(S_)}, s{sT3} offen{NT}"], 1, None))
    for j in range(4):
        l = []
        if j == 0: l += [f"s_lshl_b32 s{sPB}, s{sLC}, 17", f"s_lshl_b32 s{sT0}, s{sRB}, 9", f"s_add_u32 s{sPB}, s{sPB}, s{sT0}",
                         f"s_lshr_b32 s{sT0}, s{sWV}, 1", f"s_and_b32 s{sT0}, s{sT0}, {ex}", f"s_lshl_b32 s{sT0}, s{sT0}, 13", f"s_add_u32 s{sPB}, s{sPB}, s{sT0}",
                         ]
        for e in range(4 * j, 4 * j + 4):
            if e % 2 == 0: l += [f"s_xor_b32 s{sT3}, s{sPB}, {e*2048}", f"buffer_load_dword v{WDR+e}, v{vT4}, {srd(WD_)}, s{sT3} offen{NT}"]
            else: l += [f"buffer_load_dword v{WDR+e}, v{vT4}, {srd(WD_)}, s{sT3} offen offset:2048{NT}"]
        U.append((f"wd{j}", l, 4, None))
    def KB(t): return vR if t % 2 == 0 else vACC
    for t in range(4):
        for j in range(8):
            u, k = j >> 2, j & 3
            l = [f"s_xor_b32 s{sKS}, s{sKV}, {t*(4<<20) + u*4096}"] if k == 0 else []
            l.append(f"buffer_load_dwordx4 {vr(KB(t)+4*j,4)}, v{vKO}, {srd(K_)}, s{sKS} offen offset:{(k>>1)*512+(k&1)*128}{NT}")
            pre = {(0, 0): f"wq{k}", (0, 1): f"gate{k}", (1, 0): f"up{k}", (1, 1): None}.get((t, u), f"K{t-2}{'ab'[u]}")
            U.append((f"K{t}_{j}", l, 1, pre))
    WOR = vQ
    WOR = vT; PW = vR
    def wounit(j):
        l = []
        if j == 0: l += [f"s_lshl_b32 s{sB}, s{sG}, 3", f"s_and_b32 s{sT0}, s2, 7", f"s_add_u32 s{sB}, s{sB}, s{sT0}",
               f"s_lshl_b32 s{sB}, s{sB}, 18", f"s_bfe_u32 s{sT0}, s2, 0x10005", f"s_lshl_b32 s{sT0}, s{sT0}, 13", f"s_add_u32 s{sB}, s{sB}, s{sT0}",
               f"s_lshl_b32 s{sT0}, s{sRB}, 9", f"s_add_u32 s{sB}, s{sB}, s{sT0}",
               f"s_lshr_b32 s{sT0}, s{sWV}, 1", f"s_and_b32 s{sT0}, s{sT0}, {ex}", f"s_lshl_b32 s{sT0}, s{sT0}, 16", f"s_add_u32 s{sB}, s{sB}, s{sT0}"]
        for e in range(4 * j, 4 * j + 4):
            l += [f"s_xor_b32 s{sT3}, s{sB}, {e*16384}", f"buffer_load_dword v{WOR+e}, v{vWQO}, {srd(WO_)}, s{sT3} offen{NT}"]
        U.append((f"wo{j}", l, 4, "softmax"))
    for t in range(4):
        if t == 2:
            for j in range(wo_early): wounit(j)
        for j in range(8):
            u, k = j >> 2, j & 3
            l = [f"s_xor_b32 s{sKS}, s{sXV}, {t*(4<<20) + j*1024}"]
            l.append(f"buffer_load_dwordx4 {vr(vR+4*j,4)}, v{vVO}, {srd(V_)}, s{sKS} offen{NT}")
            U.append((f"V{t}_{j}", l, 1, f"K2{'ab'[u]}" if t == 0 else f"V{t-1}p{j>>1}"))
    for j in range(wo_early, 4): wounit(j)
    names = [u[0] for u in U]
    idx = {n: k for k, n in enumerate(names)}

    aq, ag, au = vS, vS + 8, vS + 16
    def gemv_unit(W, acc, j):
        for w in range(4):
            a(f"v_dot2c_f32_bf16 v{acc+2*w}, v{W+4*j+w}, v{vX+2*j}")
            a(f"v_dot2c_f32_bf16 v{acc+2*w+1}, v{W+4*j+w}, v{vX+2*j+1}")
    def swapred(acc):
        for k in range(4): a(f"v_permlane32_swap_b32 v{acc+k}, v{acc+k+4}")
        for k in range(4): a(f"v_add_f32 v{acc+k}, v{acc+k}, v{acc+k+4}")
        for k in range(2): a(f"v_permlane16_swap_b32 v{acc+k}, v{acc+k+2}")
        for k in range(2): a(f"v_add_f32 v{acc+k}, v{acc+k}, v{acc+k+2}")
    def task_g(m, j):
        W, acc = [(WQR, aq), (WGR, ag), (WUR, au)][m]
        if m == 0 and j == 0:
            for h in range(2):
                a(f"v_and_b32 v{vX+4*h}, 0xffff, v{vXP+h}")
                a(f"v_lshlrev_b32 v{vX+4*h+1}, 16, v{vXP+h}")
                a(f"v_lshrrev_b32 v{vX+4*h+2}, 16, v{vXP+h}")
                a(f"v_and_b32 v{vX+4*h+3}, 0xffff0000, v{vXP+h}")
        gemv_unit(W, acc, j)
        consumed.add(["wq", "gate", "up"][m] + str(j))
        if j == 3:
            swapred(acc)
            a(f"ds_write_b64 v{vGA}, {vr(acc,2)} offset:{L_GP+4096*m}")
            if m != 1: arrive(C_Q if m == 0 else C_F)
            if m == 0: stamp(1)
    vBP = vE + 2
    def dot16(W, vO, acc):
        for p in range(8):
            a(f"v_dot2c_f32_bf16_dpp v{acc+2*(p&1)}, v{vO}, v{W+2*p} row_newbcast:{p} {DPP}")
            a(f"v_dot2c_f32_bf16_dpp v{acc+2*(p&1)+1}, v{vO}, v{W+2*p+1} row_newbcast:{p} {DPP}")
    def task_bpart():
        wait_cnt(C_H, 1)
        a(f"""
        v_lshrrev_b32 v{vA2}, 4, v{vL}
        v_lshlrev_b32 v{vA2}, 5, v{vA2}
        v_and_b32 v{vA3}, 7, v{vL}
        s_and_b32 s{sT0}, s{sWV}, {2*ex}
        v_xor_b32 v{vA3}, s{sT0}, v{vA3}
        v_lshl_add_u32 v{vA2}, v{vA3}, 2, v{vA2}
        v_mov_b32 v{vA3}, 0
        ds_read_b32 v{vA2}, v{vA2} offset:{L_H}
        ds_read_b64 {vr(vE+4,2)}, v{vA3} offset:{L_G}
        ds_read_b32 v{vTAG}, v{vA3} offset:{L_G+8}
        """)
        for k in range(4): a(f"v_mov_b32 v{vB0+k}, 0")
        for p in range(8):
            a(f"v_perm_b32 v{vT+2*p}, v{WDR+2*p+1}, v{WDR+2*p}, s{sSELLO}")
            a(f"v_perm_b32 v{vT+2*p+1}, v{WDR+2*p+1}, v{WDR+2*p}, s{sSELHI}")
        a("s_waitcnt lgkmcnt(0)")
        dot16(vT, vA2, vB0)
        a(f"v_add_f32 v{vBP}, v{vB0}, v{vB2}")
        a(f"v_add_f32 v{vBP+1}, v{vB1}, v{vB3}")
        a(f"v_mul_f32 v{vBP}, v{vBP}, v{vE+5}")
        a(f"v_mul_f32 v{vBP+1}, v{vBP+1}, v{vE+5}")
    def task_qwait():
        stamp(2)
        wait_cnt(C_QS, 1)
        a(f"""
        v_and_b32 v{vA0}, 7, v{vL}
        v_mul_u32_u24 v{vA0}, 272, v{vA0}
        v_bfe_u32 v{vA1}, v{vL}, 3, 1
        v_lshl_add_u32 v{vA0}, v{vA1}, 6, v{vA0}
        v_lshrrev_b32 v{vA1}, 4, v{vL}
        v_lshl_add_u32 v{vA0}, v{vA1}, 4, v{vA0}
        """)
        for s in range(2): a(f"ds_read_b128 {vr(vQ+4*s,4)}, v{vA0} offset:{L_QS+128*s}")
        a("s_waitcnt lgkmcnt(0)")
        stamp(3)
    def task_k(t, u):
        base = KB(t) + 16 * u; dx = vS + 8 * t + 4 * u; dy = vT
        for sp in range(2):
            a(f"v_mfma_f32_16x16x32_bf16 {vr(dx,4)}, {vr(base+4*sp,4)}, {vr(vQ+4*sp,4)}, {'0' if sp==0 else vr(dx,4)}")
            a(f"v_mfma_f32_16x16x32_bf16 {vr(dy,4)}, {vr(base+8+4*sp,4)}, {vr(vQ+4*sp,4)}, {'0' if sp==0 else vr(dy,4)}")
        for r in range(4): a(f"v_permlane32_swap_b32 v{dx+r}, v{dy+r}")
        for r in range(4): a(f"v_add_f32_dpp v{dx+r}, v{dy+r}, v{dx+r} row_ror:8 {DPP}")
        consumed.add(f"K{t}{'ab'[u]}")
    vM = vE
    def sm_max():
        m = vM
        a(f"v_max3_f32 v{m}, v{vS}, v{vS+1}, v{vS+2}")
        a(f"v_max3_f32 v{vA2}, v{vS+3}, v{vS+4}, v{vS+5}")
        for k in range(6, 30, 4):
            a(f"v_max3_f32 v{m}, v{m}, v{vS+k}, v{vS+k+1}")
            a(f"v_max3_f32 v{vA2}, v{vA2}, v{vS+k+2}, v{vS+k+3}")
        a(f"v_max3_f32 v{m}, v{m}, v{vS+30}, v{vS+31}")
        a(f"v_max_f32 v{m}, v{m}, v{vA2}")
        red_bits45("max", m, vA2)
        a(f"v_mul_f32 v{m}, s{sC}, v{m}")
    def sm_exp(t):
        for k in range(8 * t, 8 * t + 8): a(f"v_fma_f32 v{vS+k}, v{vS+k}, s{sC}, -v{vM}")
        for k in range(8 * t, 8 * t + 8): a(f"v_exp_f32 v{vS+k}, v{vS+k}")
        for k in range(4 * t, 4 * t + 4): a(f"v_cvt_pk_bf16_f32 v{vP+k}, v{vS+2*k}, v{vS+2*k+1}")
        sum8(vS + 8 * t)
    def sm_fin():
        a(f"v_add_f32 v{vS}, v{vS}, v{vS+8}")
        a(f"v_add_f32 v{vS+16}, v{vS+16}, v{vS+24}")
        a(f"v_add_f32 v{vM+1}, v{vS}, v{vS+16}")
        red_bits45("add", vM + 1, vA2)
        a(f"""
        s_lshl_b32 s{sT0}, s{sWV}, 6
        v_lshl_add_u32 v{vQ+4}, v{vL}, 3, s{sT0}
        s_mov_b64 exec, 0xff
        ds_write_b64 v{vQ+4}, {vr(vM,2)} offset:{L_ST}
        s_mov_b64 exec, -1
        """)
        arrive(C_ST)
        consumed.add("softmax")
        stamp(4)
    def task_vperm(t, uu):
        R = vR
        for w in range(4):
            a(f"v_perm_b32 v{vS+4*(2*w)+uu}, v{R+4*(2*uu+1)+w}, v{R+4*(2*uu)+w}, s{sSELLO}")
            a(f"v_perm_b32 v{vS+4*(2*w+1)+uu}, v{R+4*(2*uu+1)+w}, v{R+4*(2*uu)+w}, s{sSELHI}")
        consumed.add(f"V{t}p{uu}")
        if uu == 3:
            if t == 3 and early:
                for l in h1: a(l)
            for i in range(8):
                c = "0" if t == 0 else vr(vACC + 4 * i, 4)
                a(f"v_mfma_f32_16x16x32_bf16 {vr(vACC+4*i,4)}, {vr(vS+4*i,4)}, {vr(vP+4*t,4)}, {c}")
    def task_pre():
        a(f"""
        v_and_b32 v{vA0}, 7, v{vL}
        v_mul_u32_u24 v{vA0}, 528, v{vA0}
        v_lshrrev_b32 v{vA1}, 4, v{vL}
        v_lshl_add_u32 v{vA0}, v{vA1}, 4, v{vA0}
        s_mul_i32 s{sT0}, s{sWV}, 4224
        v_add_u32 v{vQ}, s{sT0}, v{vA0}
        s_mul_i32 s{sT0}, s{sWV}, 528
        v_lshl_add_u32 v{vQ+1}, v{vL}, 3, s{sT0}
        s_lshl_b32 s{sT0}, s{sWV}, 5
        v_mov_b32 v{vQ+2}, s{sT0}
        v_lshrrev_b32 v{vA0}, {LB-4}, v{vT16}
        v_lshlrev_b32 v{vA0}, {LB}, v{vA0}
        v_and_b32 v{vA2}, {(1<<(LB-4))-16}, v{vT16}
        v_add_u32 v{vQ+3}, v{vA0}, v{vA2}
        v_lshlrev_b32 v{vQ+5}, 3, v{vL}
        v_lshrrev_b32 v{vA0}, 7, v{vT16}
        v_lshlrev_b32 v{vA0}, 11, v{vA0}
        v_and_b32 v{vA2}, 0x70, v{vT16}
        v_add_u32 v{vQ+6}, v{vA0}, v{vA2}
        v_and_b32 v{vA0}, 31, v{vL}
        v_lshlrev_b32 v{vA0}, 3, v{vA0}
        v_lshrrev_b32 v{vA2}, 5, v{vL}
        v_lshl_add_u32 v{vA0}, v{vA2}, 2, v{vA0}
        s_lshl_b32 s{sT0}, s{sWV}, 8
        v_add_u32 v{vQ+7}, s{sT0}, v{vA0}
        """)
        if pk:
            a(f"""
            v_and_b32 v{vA0}, 15, v{vL}
            v_lshlrev_b32 v{vA0}, 4, v{vA0}
            v_lshl_add_u32 v{vA0}, v{vA1}, 2, v{vA0}
            v_add_u32 v{vQ+7}, s{sT0}, v{vA0}
            v_lshrrev_b32 v{vT4}, 1, v{vT16}
            """)
        a(f"""
        v_bfe_u32 v{vA0}, v{vL}, 3, 1
        v_lshlrev_b32 v{vA0}, 10, v{vA0}
        v_lshl_add_u32 v{vA0}, v{vA1}, 6, v{vA0}
        v_and_b32 v{vA3}, 7, v{vL}
        s_and_b32 s{sT1}, s{sWV}, {2*ex}
        v_xor_b32 v{vA3}, s{sT1}, v{vA3}
        v_lshl_add_u32 v{vKO}, v{vA3}, 3, v{vA0}
        v_and_b32 v{vA0}, 15, v{vL}
        v_lshlrev_b32 v{vA0}, 4, v{vA0}
        v_lshl_add_u32 v{vA0}, v{vA2}, 3, v{vA0}
        v_add_u32 v{vWFO}, s{sT0}, v{vA0}
        v_mov_b32 v{vB1}, v{vTAG}
        v_mov_b32 v{vB3}, v{vTAG}
        v_mov_b32 v{vE+1}, v{vTAG}
        s_lshl_b32 s{sA}, s{sG}, {LB+6}
        s_and_b32 s{sT0}, s2, 7
        s_lshl_b32 s{sT0}, s{sT0}, {LB-3}
        s_add_u32 s{sA}, s{sA}, s{sT0}
        s_bfe_u32 s{sT0}, s2, 0x10005
        s_lshl_b32 s{sT0}, s{sT0}, {LB-4}
        s_add_u32 s{sA}, s{sA}, s{sT0}
        s_add_u32 s{sH1}, s{sA}, {WS_OP}
        s_add_u32 s{sH1+1}, s{sA}, {WS_OP + 16*8192}
        s_add_u32 s{sH1+2}, s{sA}, {WS_OP + 32*8192}
        s_add_u32 s{sH1+3}, s{sA}, {WS_OP + 48*8192}
        s_lshl_b32 s{sT0}, s{sG}, 6
        s_add_u32 s66, s66, s{sT0}
        s_addc_u32 s67, s67, 0
        s_lshl_b32 s{sPA}, s2, {LB}
        s_add_u32 s{sPA}, s{sPA}, {WS_OP}
        s_lshl_b32 s{sPB}, s{sRB}, 6
        s_add_u32 s{sPB}, s{sPB}, s{sPL}
        s_lshl_b32 s{sPB}, s{sPB}, 11
        s_add_u32 s{sPB}, s{sPB}, {WS_FP}
        s_lshr_b32 s{sA}, s2, 4
        s_lshl_b32 s{sA}, s{sA}, 17
        s_and_b32 s{sT0}, s2, 15
        s_lshl_b32 s{sT0}, s{sT0}, 7
        s_add_u32 s{sA}, s{sA}, s{sT0}
        s_add_u32 s{sA}, s{sA}, {WS_FP}
        """)
    vH1 = vR + 16
    h1 = [f"buffer_load_dwordx4 {vr(vH1+4*k,4)}, v{vQ+3}, {srd(WS_)}, s{sH1+k} offen sc1" for k in range(2 if pk else 4)]
    vF = vP
    def task_publish_o():
        stamp(5)
        a(f"""
        s_mov_b32 exec_lo, 0x00ff00ff
        s_mov_b32 exec_hi, 0x00ff00ff
        """)
        for i in range(8): a(f"ds_write_b128 v{vQ}, {vr(vACC+4*i,4)} offset:{L_ORED+64*i}")
        if TH:
            a("s_mov_b64 exec, 1")
            a(f"global_load_dword v{vE+7}, v{vE+6}, s[66:67] offset:32 sc1")
        a(f"""
        s_mov_b64 exec, -1
        s_waitcnt lgkmcnt(0)
        s_barrier
        ds_read_b128 {vr(vF,4)}, v{vQ+2} offset:{L_F}
        ds_read_b128 {vr(vF+4,4)}, v{vQ+2} offset:{L_F+16}
        """)
        for w in range(8): a(f"ds_read_b64 {vr(vS+2*w,2)}, v{vQ+1} offset:{L_ORED+4224*w}")
        a("s_waitcnt lgkmcnt(7)")
        a(f"v_mul_f32 v{vB0}, v{vS}, v{vF}")
        a(f"v_mul_f32 v{vB2}, v{vS+1}, v{vF}")
        for w in range(1, 8):
            a(f"s_waitcnt lgkmcnt({7-w})")
            a(f"v_fmac_f32 v{vB0}, v{vS+2*w}, v{vF+w}")
            a(f"v_fmac_f32 v{vB2}, v{vS+2*w+1}, v{vF+w}")
        if pk:
            a(f"v_cvt_pk_bf16_f32 v{vB0}, v{vB0}, v{vB2}")
            a(f"buffer_store_dwordx2 {vr(vB0,2)}, v{vT4}, {srd(WS_)}, s{sPA} offen sc1")
        else:
            a(f"buffer_store_dwordx4 {vr(vB0,4)}, v{vT16}, {srd(WS_)}, s{sPA} offen sc1")
        if TH:
            a(f"""
            s_cmp_lg_u32 s{sWV}, 0
            s_cbranch_scc1 L_noadd
            s_mov_b32 s{sT1}, 1
            s_atomic_add s{sT1}, s[66:67], 32
            L_noadd:
            """)
        stamp(6)

    consumed = set()
    C = []
    for m, nm in enumerate(("wq", "gate", "up")):
        for j in range(4): C.append((idx[f"{nm}{j}"], lambda m=m, j=j: task_g(m, j)))
    C.append((p1_at, lambda: arrive(C_P1)))
    C.append((p2_at, lambda: arrive(C_P2)))
    if ctl: C.append((p3_at, lambda: arrive(C_P3)))
    C.append((q_at, task_qwait))
    for t in range(4):
        for u in range(2):
            C.append((max(q_at, idx[f"K{t}_{4*u+3}"]), lambda t=t, u=u: task_k(t, u)))
    C.append((idx["K3_1"], task_bpart))
    kend = idx["K3_7"]
    C.append((kend, sm_max))
    for t in range(4): C.append((kend, lambda t=t: sm_exp(t)))
    C.append((kend, sm_fin))
    for t in range(4):
        for uu in range(4):
            C.append((idx[f"V{t}_{2*uu+1}"], lambda t=t, uu=uu: task_vperm(t, uu)))
    C.append((idx["V2_0"], task_pre))
    C.sort(key=lambda c: c[0])
    C.append((idx["V3_7"], task_publish_o))
    n = len(U)
    stop_at = idx["V3_7"]
    st = {"issued": 4, "c": 0}
    def run_chunk():
        C[st["c"]][1](); st["c"] += 1
    def issue_upto(lim, arrived):
        while st["issued"] < n and st["issued"] < lim:
            k = st["issued"]
            nm, lines, nv, pre = U[k]
            if wolate and k > idx["V3_7"] and arrived < n - 1: return
            while pre is not None and pre not in consumed:
                if C[st["c"]][0] <= arrived: run_chunk()
                else:
                    print("WARNING: issue of", nm, "blocked at arrived", names[arrived]); return
            if WMAX and k >= dyn0 and arrived < n - 1 and k < endb:
                if k - WIN >= idx["V3_7"]: return
                lk = a.label("Li")
                a(f"s_cmp_gt_u32 s{sBOOST}, {k}")
                a(f"s_cbranch_scc1 {lk}")
                a(f"s_waitcnt vmcnt({sum(u[2] for u in U[k-WIN+1:k])})")
                if slow and k - WIN + 1 < idx["V3_7"]:
                    a(f"s_cmp_gt_u32 s{sSLOW}, {k}")
                    a(f"s_cbranch_scc0 {lk}")
                    a(f"s_waitcnt vmcnt({sum(u[2] for u in U[k-WIN+2:k])})")
                a(f"{lk}:")
            for x in lines: a(x)
            st["issued"] += 1
    issue_upto(W0, -1)
    arrived = STEP - 1
    while True:
        assert st["issued"] > arrived
        out = sum(u[2] for u in U[arrived + 1:st["issued"]])
        a(f"s_waitcnt vmcnt({min(out,63)})")
        if arrived % 8 == 7: stamp(arrived // 8 + 1, "u")
        EL = [3, 7, 11, 15, 19, 23, 27, 31, 47, idx["V3_7"]]
        if arrived in EL: stamp(EL.index(arrived) + 1, "e")
        if ctl and arrived > p1_at and arrived < stop_at - 4:
            if arrived % rf == 0: a(f"ds_read_b32 v{vE+7}, v{vE+6} offset:{L_CTL}")
            if arrived % rf == 1 and arrived - 1 > p1_at:
                a("s_waitcnt lgkmcnt(0)")
                a(f"v_readfirstlane_b32 s{sBOOST}, v{vE+7}")
        win = WIN if arrived < wsw else WEND
        if arrived < stop_at: issue_upto(arrived + 1 + win, arrived)
        ran = 0
        while st["c"] < len(C) and C[st["c"]][0] <= arrived and (ran < 2 * STEP or arrived >= stop_at - 1):
            run_chunk(); ran += 1
        if arrived >= stop_at: break
        arrived = min(arrived + STEP, stop_at)
    assert st["c"] == len(C)
    late = sum(u[2] for u in U[st["issued"]:])
    issue_upto(n, n - 1)

    if notail: a("s_branch L_fin")
    if not early:
        if ack1: a("s_waitcnt vmcnt(0)")
        if oracle:
            a(f"""
            L_or:
            s_memrealtime s[{sM0}:{sM0+1}]
            s_waitcnt lgkmcnt(0)
            s_sub_u32 s{sT2}, s{sM0}, s{sST}
            s_cmp_ge_u32 s{sT2}, {oracle}
            s_cbranch_scc1 L_ord
            s_sleep 2
            s_branch L_or
            L_ord:
            """)
        if TH:
            a(f"""
            s_mov_b32 s{sCAP}, 0
            s_mov_b64 exec, 1
            s_waitcnt vmcnt({late + 1})
            L_gate:
            v_readfirstlane_b32 s{sT2}, v{vE+7}
            s_cmp_ge_u32 s{sT2}, {TH}
            s_cbranch_scc1 L_gated
            s_add_u32 s{sCAP}, s{sCAP}, 1
            s_cmp_gt_u32 s{sCAP}, 0x40000
            s_cbranch_scc1 L_gated
            s_sleep {gsleep}
            global_load_dword v{vE+7}, v{vE+6}, s[66:67] offset:32 sc1
            s_waitcnt vmcnt(0)
            s_branch L_gate
            L_gated:
            s_mov_b64 exec, -1
            """)
        for l in h1: a(l)
        a(f"s_waitcnt vmcnt({len(h1) + 1 if late == 0 else len(h1)})")
    else:
        a(f"s_waitcnt vmcnt({1 if late == 0 else 0})")
    for p in range(8):
        a(f"v_perm_b32 v{PW+2*p}, v{WOR+2*p+1}, v{WOR+2*p}, s{sSELLO}")
        a(f"v_perm_b32 v{PW+2*p+1}, v{WOR+2*p+1}, v{WOR+2*p}, s{sSELHI}")
    for k in range(4): a(f"v_mov_b32 v{vS+8+k}, 0")
    if not early: a("s_waitcnt vmcnt(0)")
    stamp(7)
    tg = []
    for k in range(len(h1)): tg += [vH1 + 4 * k + 1, vH1 + 4 * k + 3]
    poll(h1, tg, vA0, sleep1, first_issued=True)
    stamp(8)
    if pk:
        for r in (0, 2, 4, 6):
            a(f"v_and_b32 v{vH1+r+1}, 0xffff0000, v{vH1+r}")
            a(f"v_lshlrev_b32 v{vH1+r}, 16, v{vH1+r}")
        for r in range(4): a(f"v_add_f32 v{vH1+r}, v{vH1+r}, v{vH1+r+4}")
        a(f"""
        v_permlane32_swap_b32 v{vH1}, v{vH1+2}
        v_permlane32_swap_b32 v{vH1+1}, v{vH1+3}
        v_add_f32 v{vH1}, v{vH1}, v{vH1+2}
        v_add_f32 v{vH1+1}, v{vH1+1}, v{vH1+3}
        v_permlane16_swap_b32 v{vH1}, v{vH1+1}
        v_add_f32 v{vH1}, v{vH1}, v{vH1+1}
        """)
    else:
        a(f"""
        v_add_f32 v{vH1}, v{vH1}, v{vH1+4}
        v_add_f32 v{vH1+2}, v{vH1+2}, v{vH1+6}
        v_add_f32 v{vH1+8}, v{vH1+8}, v{vH1+12}
        v_add_f32 v{vH1+10}, v{vH1+10}, v{vH1+14}
        v_add_f32 v{vH1}, v{vH1}, v{vH1+8}
        v_add_f32 v{vH1+2}, v{vH1+2}, v{vH1+10}
        v_permlane32_swap_b32 v{vH1}, v{vH1+2}
        v_add_f32 v{vH1}, v{vH1}, v{vH1+2}
        """)
    a(f"""
    ds_write_b32 v{vQ+7}, v{vH1} offset:{L_RED1}
    s_waitcnt lgkmcnt(0)
    s_barrier
    """)
    for k in range(4): a(f"ds_read_b64 {vr(vS+2*k,2)}, v{vKO} offset:{L_RED1+256*k}")
    a(f"""
    s_waitcnt lgkmcnt(2)
    v_add_f32 v{vS}, v{vS}, v{vS+2}
    v_add_f32 v{vS+1}, v{vS+1}, v{vS+3}
    s_waitcnt lgkmcnt(0)
    v_add_f32 v{vS+4}, v{vS+4}, v{vS+6}
    v_add_f32 v{vS+5}, v{vS+5}, v{vS+7}
    v_add_f32 v{vS}, v{vS}, v{vS+4}
    v_add_f32 v{vS+1}, v{vS+1}, v{vS+5}
    v_add_f32_dpp v{vS}, v{vS}, v{vS} row_ror:8 {DPP}
    v_add_f32_dpp v{vS+1}, v{vS+1}, v{vS+1} row_ror:8 {DPP}
    v_cvt_pk_bf16_f32 v{vA0}, v{vS}, v{vS+1}
    """)
    dot16(PW, vA0, vS + 8)
    a(f"""
    v_add_f32 v{vS+8}, v{vS+8}, v{vS+10}
    v_add_f32 v{vS+9}, v{vS+9}, v{vS+11}
    v_fma_f32 v{vE}, v{vS+8}, v{vE+4}, v{vBP}
    v_fma_f32 v{vA1}, v{vS+9}, v{vE+4}, v{vBP+1}
    v_permlane32_swap_b32 v{vE}, v{vA1}
    v_add_f32 v{vE}, v{vE}, v{vA1}
    v_mov_b32 v{vA1}, v{vE}
    v_permlane16_swap_b32 v{vE}, v{vA1}
    v_add_f32 v{vE}, v{vE}, v{vA1}
    s_mov_b32 exec_lo, 0xffff
    s_mov_b32 exec_hi, 0xffff
    buffer_store_dwordx2 {vr(vE,2)}, v{vWFO}, {srd(WS_)}, s{sPB} offen sc1
    s_mov_b64 exec, -1
    """)
    stamp(9)
    a(f"s_cmp_ge_u32 s2, 64")
    a(f"s_cbranch_scc1 L_fin")
    if ack2: a("s_waitcnt vmcnt(0)")
    h2 = [f"buffer_load_dwordx4 {vr(vS,4)}, v{vQ+6}, {srd(WS_)}, s{sA} offen sc1"]
    poll(h2, [vS + 1, vS + 3], vA0, sleep1)
    stamp(10)
    a(f"""
    v_permlane32_swap_b32 v{vS}, v{vS+2}
    v_add_f32 v{vS}, v{vS}, v{vS+2}
    v_add_f32_dpp v{vS}, v{vS}, v{vS} row_ror:8 {DPP}
    v_mov_b32 v{vA1}, v{vS}
    v_permlane16_swap_b32 v{vS}, v{vA1}
    v_add_f32 v{vS}, v{vS}, v{vA1}
    v_and_b32 v{vA0}, 7, v{vL}
    v_lshrrev_b32 v{vA2}, 5, v{vL}
    v_lshlrev_b32 v{vA2}, 2, v{vA2}
    v_lshl_add_u32 v{vA0}, v{vA0}, 3, v{vA2}
    s_lshl_b32 s{sT0}, s{sWV}, 6
    v_add_u32 v{vA0}, s{sT0}, v{vA0}
    ds_write_b32 v{vA0}, v{vS} offset:{L_RED2}
    s_waitcnt lgkmcnt(0)
    s_barrier
    s_cmp_lg_u32 s{sWV}, 0
    s_cbranch_scc1 L_fin
    ds_read_b64 {vr(vS,2)}, v{vQ+5} offset:{L_RED2}
    v_lshlrev_b32 v{vA2}, 2, v{vL}
    s_lshl_b32 s{sT0}, s2, 5
    s_waitcnt lgkmcnt(0)
    """)
    red2_bits345(vS, vS + 1, vA0, vA1)
    a(f"""
    v_cvt_pk_bf16_f32 v{vA0}, v{vS}, v{vS+1}
    s_mov_b64 exec, 0xff
    buffer_store_dword v{vA0}, v{vA2}, {srd(OUT_)}, s{sT0} offen
    s_cmp_lg_u32 s2, 0
    s_cbranch_scc1 L_fin
    s_mov_b64 exec, 1
    buffer_store_dword v{vTAG}, off, {srd(WS_)}, 0 sc1
    """)
    if fixm:
        a(f"""
        s_load_dword s6, s[66:67], 48 glc
        s_waitcnt lgkmcnt(0)
        s_not_b32 s6, s6
        L_fm:
        s_memrealtime s[4:5]
        s_waitcnt lgkmcnt(0)
        s_sub_u32 s4, s4, s6
        s_cmp_ge_u32 s4, {fixm}
        s_cbranch_scc1 L_fin
        s_sleep 1
        s_branch L_fm
        """)
    if dbg:
        a("s_waitcnt vmcnt(0)")
        a(f"s_memrealtime s[{sST+22}:{sST+23}]")
        a("s_waitcnt lgkmcnt(0)")
        a(f"v_mov_b32 v{vA1}, 0")
        for j in range(1, 12):
            a(f"s_sub_u32 s{sT0}, s{sST+2*j}, s{sST}")
            a(f"v_mov_b32 v{vA0}, s{sT0}")
            a(f"global_store_dword v{vA1}, v{vA0}, s[66:67] offset:{4*(j-1)}")
    a("L_fin:")
    if fix:
        a(f"""
        L_fx:
        s_memrealtime s[4:5]
        s_waitcnt lgkmcnt(0)
        s_sub_u32 s4, s4, s{sM0}
        s_cmp_ge_u32 s4, {fix}
        s_cbranch_scc1 L_fxd
        s_sleep 1
        s_branch L_fx
        L_fxd:
        """)
    if stamps and not dbg:
        a("s_mov_b64 exec, -1")
        a("s_waitcnt vmcnt(0)")
        a(f"s_memrealtime s[{sST+22}:{sST+23}]")
        a(f"s_mul_i32 s{sT0}, s2, 9")
        a(f"s_add_u32 s{sT0}, s{sT0}, s{sWV}")
        a(f"s_mul_i32 s{sT0}, s{sT0}, {NS*8}")
        a(f"s_add_u32 s{sT0}, s{sT0}, {STAMP_OFF}")
        a("s_waitcnt lgkmcnt(0)")
        a("s_mov_b64 exec, 1")
        for j in range(NS):
            a(f"v_mov_b32 v{vA0}, s{sST+2*j}")
            a(f"v_mov_b32 v{vA1}, s{sST+2*j+1}")
            a(f"buffer_store_dwordx2 {vr(vA0,2)}, off, {srd(WS_)}, s{sT0} offset:{8*j}")
    a("L_end:")
    a("s_endpgm")

    cX = vACC; cG = vACC + 8
    a(f"""
    L_comm:
    s_setprio 3
    v_mov_b32 v{vA0}, 0
    v_lshlrev_b32 v{vT4}, 2, v{vL}
    s_mov_b64 exec, 0xffff
    ds_write_b32 v{vT4}, v{vA0}
    s_mov_b64 exec, -1
    s_mov_b32 s{GW_+2}, 2048
    s_mov_b32 s{GW_+3}, 0x20000
    s_waitcnt lgkmcnt(0)
    s_barrier
    s_load_dword s{sC}, s[{WS_}:{WS_+1}], 0
    s_load_dword s{sSELLO}, s[94:95], 0
    s_mov_b64 s[{X_}:{X_+1}], s[76:77]
    s_mov_b64 s[{GW_}:{GW_+1}], s[94:95]
    s_mov_b64 s[66:67], s[98:99]
    """)
    if fixm:
        a(f"s_not_b32 s8, s{sM0}")
        a("s_atomic_umax s8, s[66:67], 48")
        a(f"s_mov_b32 s9, s{sM0}")
        a("s_atomic_umax s9, s[66:67], 52")
    a(f"s_lshl_b32 s8, s{sG}, 6")
    a("s_add_u32 s66, s66, s8")
    a("s_addc_u32 s67, s67, 0")
    def cp_time():
        if ctl >= 2: a("s_memrealtime s[4:5]")
    def checkpoint(k, unit, allwg):
        if ctl < 2 or str(k) not in str(cps): return
        sk = a.label("Lcp")
        if not allwg:
            a(f"s_cmp_ge_u32 s{sLC}, 56")
            a(f"s_cbranch_scc1 {sk}")
        a(f"""
        v_mov_b32 v{vA0}, 0
        s_waitcnt lgkmcnt(0)
        s_mov_b32 s6, s4
        s_mov_b32 s7, 0x10000
        s_atomic_add_x2 s[6:7], s[66:67], {8*k} glc
        s_mov_b64 exec, 1
        s_waitcnt lgkmcnt(0)
        s_lshr_b32 s7, s7, 16
        s_mul_i32 s4, s4, s7
        s_sub_u32 s4, s4, s6
        s_max_u32 s7, s7, 1
        v_cvt_f32_i32 v{vA1}, s4
        v_cvt_f32_u32 v{vA2}, s7
        v_rcp_f32 v{vA2}, v{vA2}
        v_mul_f32 v{vA1}, v{vA1}, v{vA2}
        v_subrev_f32 v{vA1}, {hex(f2u(margin))}, v{vA1}
        v_mul_f32 v{vA1}, {hex(f2u(1.0/gain))}, v{vA1}
        v_cmp_lt_f32 vcc, 1.0, v{vA1}
        v_add_f32 v{vA1}, {hex(f2u(unit + lead))}, v{vA1}
        v_cvt_u32_f32 v{vA1}, v{vA1}
        v_cndmask_b32 v{vA1}, 0, v{vA1}, vcc
        ds_write_b32 v{vA0}, v{vA1} offset:{L_CTL}
        s_mov_b64 exec, -1
        {sk}:
        """)
    if touch:
        a(f"""
        s_mul_i32 s4, s{sR8}, {128*7168}
        s_load_dword s8, s[88:89], s4
        s_load_dword s9, s[90:91], s4
        s_add_u32 s4, s4, {127*7168}
        s_load_dword s10, s[88:89], s4
        s_load_dword s11, s[90:91], s4
        s_min_u32 s4, s{sLC}, 55
        s_lshl_b32 s4, s4, 17
        s_load_dword s12, s[92:93], s4
        s_lshl_b32 s4, s{sG}, 24
        s_lshl_b32 s5, s{sI}, 16
        s_add_u32 s4, s4, s5
        s_load_dword s13, s[78:79], s4
        """)
    cL8 = vQ; cPA = vQ + 1; cPF = vQ + 2; cQW = vQ + 3; cGP = vQ + 4; cQR = vQ + 6
    a(f"""
    v_lshlrev_b32 v{cL8}, 3, v{vL}
    v_lshrrev_b32 v{vA0}, 3, v{vL}
    v_and_b32 v{vA1}, 7, v{vL}
    v_lshlrev_b32 v{cPA}, 10, v{vA0}
    v_lshl_add_u32 v{cPA}, v{vA1}, 4, v{cPA}
    v_mul_u32_u24 v{cQR}, {QREP}, v{vA0}
    v_lshl_add_u32 v{cQR}, v{vA1}, 3, v{cQR}
    v_lshrrev_b32 v{vA0}, 5, v{vL}
    v_and_b32 v{vA1}, 31, v{vL}
    v_lshlrev_b32 v{cPF}, 10, v{vA0}
    v_lshl_add_u32 v{cPF}, v{vA1}, 4, v{cPF}
    v_mul_u32_u24 v{vA0}, 272, v{vA0}
    v_lshl_add_u32 v{cQW}, v{vA1}, 3, v{vA0}
    v_add_u32 v{cGP}, {L_GP}, v{cL8}
    s_lshl_b32 s{sT1}, s{sCB}, 13
    s_add_u32 s{sT1}, s{sT1}, {WS_QP}
    s_lshl_b32 s{sT2}, s{sR8}, 10
    s_add_u32 s{sA}, s{sT1}, s{sT2}
    s_lshl_b32 s{sT2}, s{sR8}, 7
    s_add_u32 s{sPA}, s{sT1}, s{sT2}
    s_lshl_b32 s{sT1}, s{sCB}, 9
    s_lshl_b32 s{sT2}, s{sR8}, 6
    s_add_u32 s{sB}, s{sT1}, s{sT2}
    s_add_u32 s{sB}, s{sB}, {WS_QG}
    s_lshl_b32 s{sPB}, s{sG}, 12
    s_add_u32 s{sPB}, s{sPB}, {WS_QG}
    s_and_b32 s{sT1}, s{sI}, 7
    s_mul_i32 s{sT1}, s{sT1}, {QREP if rep else 0}
    s_add_u32 s{sPB}, s{sPB}, s{sT1}
    """)
    if prer0:
        a(f"""
        v_lshlrev_b32 v{vA2}, 6, v{vL}
        s_mov_b64 exec, 0xffff
        buffer_load_dword v{vS}, v{vA2}, {srd(WS_)}, s{sA} offen
        s_mov_b64 exec, 1
        buffer_load_dword v{vS+1}, v{vA2}, {srd(WS_)}, s{sB} offen
        s_lshl_b32 s{sT1}, s{sCB}, 14
        s_lshl_b32 s{sT2}, s{sR8}, 11
        s_add_u32 s{sT1}, s{sT1}, s{sT2}
        s_add_u32 s{sT1}, s{sT1}, {WS_FG}
        s_mov_b32 exec_lo, -1
        buffer_load_dword v{vS+2}, v{vA2}, {srd(WS_)}, s{sT1} offen
        s_lshl_b32 s{sT1}, s2, 7
        s_add_u32 s{sT1}, s{sT1}, {WS_ML}
        s_mov_b64 exec, 3
        buffer_load_dword v{vS+3}, v{vA2}, {srd(WS_)}, s{sT1} offen
        s_mov_b64 exec, -1
        """)
    a(f"""
    s_waitcnt lgkmcnt(0)
    s_add_u32 s{sC}, s{sC}, 1
    v_mov_b32 v{vTAG}, s{sC}
    """)
    init_stamps()
    if nocomm:
        arrive(C_QS); arrive(C_H)
        a("s_waitcnt vmcnt(0) lgkmcnt(0)")
        a("s_branch L_fin" if stamps and not dbg else "s_endpgm")
    def sum8x2(base):
        for step in (2, 4, 8):
            for k in range(0, 16, 2 * step):
                a(f"v_add_f32 v{base+k}, v{base+k}, v{base+k+step}")
                a(f"v_add_f32 v{base+k+1}, v{base+k+1}, v{base+k+step+1}")
    def gp_publish(m, base, so, off):
        for k in range(4): a(f"ds_read2st64_b64 {vr(base+4*k,4)}, v{cGP} offset0:{8*m+2*k} offset1:{8*m+2*k+1}")
        a("s_waitcnt lgkmcnt(0)")
        sum8x2(base)
        a(f"v_mov_b32 v{base+2}, v{base+1}")
        a(f"v_mov_b32 v{base+1}, v{vTAG}")
        a(f"v_mov_b32 v{base+3}, v{vTAG}")
        if not (("q" in skip and m == 0) or ("f" in skip and m > 0)): a(f"buffer_store_dwordx4 {vr(base,4)}, v{vVO}, {srd(WS_)}, s{so} offen offset:{off} sc1")
    wait_cnt(C_Q, 8, csleep)
    gp_publish(0, vT, sA, 0)
    stamp(1)
    qal = f"buffer_load_dwordx4 {vr(vE,4)}, v{cPA}, {srd(WS_)}, s{sPA} offen sc1"
    a("s_waitcnt vmcnt(0)")
    if adelay: a(f"s_sleep {adelay}")
    if 'q' not in skip: poll([qal], [vE + 1, vE + 3], vA0, asleep)
    red2_bits345(vE, vE + 2, vA0, vA1)
    a(f"""
    v_cvt_pk_bf16_f32 v{vE}, v{vE}, v{vE+2}
    s_mov_b64 exec, {-1 if rep else 0xff}
    """)
    if 'q' not in skip: a(f"buffer_store_dwordx2 {vr(vE,2)}, v{cQR}, {srd(WS_)}, s{sB} offen sc1")
    a("s_mov_b64 exec, -1")
    stamp(2)
    a(f"""
    buffer_load_dwordx4 {vr(cX,4)}, v{vVO}, {srd(X_)}, 0 offen
    buffer_load_dwordx4 {vr(cX+4,4)}, v{vVO}, {srd(X_)}, 0 offen offset:1024
    buffer_load_dwordx4 {vr(cG,4)}, v{vVO}, {srd(GW_)}, 0 offen
    buffer_load_dwordx4 {vr(cG+4,4)}, v{vVO}, {srd(GW_)}, 0 offen offset:1024
    s_lshl_b32 s{sKV}, s{sCB}, 14
    s_add_u32 s{sKV}, s{sKV}, {WS_FG}
    s_lshl_b32 s{sT2}, s{sR8}, 11
    s_add_u32 s{sA}, s{sKV}, s{sT2}
    s_and_b32 s{sT2}, s{sLC}, 1
    s_lshl_b32 s{sT2}, s{sT2}, 9
    s_add_u32 s{sKV}, s{sKV}, s{sT2}
    """)
    wait_cnt(C_F, 8, csleep)
    gp_publish(1, vT, sA, 0)
    gp_publish(2, vP, sA, 1024)
    a("s_waitcnt vmcnt(2)" if "f" not in skip else "s_waitcnt vmcnt(0)")
    a(f"v_mov_b32 v{vB0}, 0")
    for k in range(8):
        a(f"""
        v_lshlrev_b32 v{vA0}, 16, v{cX+k}
        v_and_b32 v{vA1}, 0xffff0000, v{cX+k}
        v_lshlrev_b32 v{vA2}, 16, v{cG+k}
        v_and_b32 v{vA3}, 0xffff0000, v{cG+k}
        v_mul_f32 v{vA0}, v{vA0}, v{vA2}
        v_mul_f32 v{vA1}, v{vA1}, v{vA3}
        v_cvt_pk_bf16_f32 v{vA0}, v{vA0}, v{vA1}
        v_lshlrev_b32 v{vA1}, 16, v{vA0}
        v_and_b32 v{vA0}, 0xffff0000, v{vA0}
        v_add_f32 v{vB0}, v{vB0}, v{vA0}
        v_add_f32 v{vB0}, v{vB0}, v{vA1}
        """)
    for nn_ in (1, 2, 4): a(f"v_add_f32_dpp v{vB0}, v{vB0}, v{vB0} row_ror:{nn_} {DPP}")
    red_bits345("add", vB0, vA3)
    a(f"""
    v_cvt_pk_bf16_f32 v{vA0}, v{vB0}, v{vB0}
    v_and_b32 v{vA0}, 0xffff0000, v{vA0}
    v_mul_f32 v{vA0}, {hex(f2u(-math.log2(math.e)))}, v{vA0}
    v_exp_f32 v{vA0}, v{vA0}
    v_add_f32 v{vA0}, 1.0, v{vA0}
    v_rcp_f32 v{vA0}, v{vA0}
    v_cvt_pk_bf16_f32 v{vA0}, v{vA0}, v{vA0}
    v_and_b32 v{vA0}, 0xffff0000, v{vA0}
    v_sub_f32 v{vA1}, 1.0, v{vA0}
    v_cvt_pk_bf16_f32 v{vA1}, v{vA1}, v{vA1}
    v_and_b32 v{vA1}, 0xffff0000, v{vA1}
    v_mov_b32 v{vA2}, 0
    s_mov_b64 exec, 1
    ds_write_b64 v{vA2}, {vr(vA0,2)} offset:{L_G}
    ds_write_b32 v{vA2}, v{vTAG} offset:{L_G+8}
    s_mov_b64 exec, -1
    """)
    wait_cnt(C_P1, cpn, 4)
    cp_time()
    ql = [f"buffer_load_dwordx4 {vr(vS+4*k,4)}, v{vVO}, {srd(WS_)}, s{sPB} offen offset:{1024*k} sc1" for k in range(4)]
    tg = []
    for k in range(4): tg += [vS + 4 * k + 1, vS + 4 * k + 3]
    if 'q' not in skip: poll(ql, tg, vA2, rsleep)
    for k in range(4): a(f"v_mov_b32 v{vS+4*k+1}, v{vS+4*k+2}")
    for k in range(4): a(f"ds_write_b64 v{cQW}, {vr(vS+4*k,2)} offset:{L_QS+544*k}")
    arrive(C_QS)
    stamp(3)
    checkpoint(0, p1_at + 4, False)
    for k in range(1, 4): a(f"s_add_u32 s{sT0+k}, s{sKV}, {4096*k}")
    fl = [f"buffer_load_dwordx4 {vr(vS+4*k,4)}, v{cPF}, {srd(WS_)}, s{sKV if k < 2 else sT0+k//2} offen offset:{2048*(k%2)} sc1" for k in range(8)]
    tg = []
    for k in range(8): tg += [vS + 4 * k + 1, vS + 4 * k + 3]
    if 'f' not in skip: poll(fl, tg, vA2, rsleep)
    for step in (4, 8, 16):
        for k in range(0, 32, 2 * step):
            a(f"v_add_f32 v{vS+k}, v{vS+k}, v{vS+k+step}")
            a(f"v_add_f32 v{vS+k+2}, v{vS+k+2}, v{vS+k+step+2}")
    a(f"""
    v_cvt_pk_bf16_f32 v{vA0}, v{vS}, v{vS+2}
    v_mov_b32 v{vA1}, v{vA0}
    v_permlane32_swap_b32 v{vA0}, v{vA1}
    v_lshlrev_b32 v{vA2}, 16, v{vA0}
    v_and_b32 v{vA0}, 0xffff0000, v{vA0}
    v_lshlrev_b32 v{vA3}, 16, v{vA1}
    v_and_b32 v{vA1}, 0xffff0000, v{vA1}
    v_max_f32 v{vA2}, 0, v{vA2}
    v_max_f32 v{vA0}, 0, v{vA0}
    v_mul_f32 v{vA2}, v{vA2}, v{vA3}
    v_mul_f32 v{vA0}, v{vA0}, v{vA1}
    v_cvt_pk_bf16_f32 v{vA0}, v{vA2}, v{vA0}
    s_mov_b64 exec, 0xffffffff
    ds_write_b32 v{vT4}, v{vA0} offset:{L_H}
    s_mov_b64 exec, -1
    """.replace("s_mov_b64 exec, 0xffffffff", "s_mov_b32 exec_hi, 0"))
    arrive(C_H)
    stamp(4)
    if prer:
        a(f"""
        v_lshlrev_b32 v{vA2}, 6, v{vL}
        s_lshl_b32 s{sT1}, s2, {LB}
        s_add_u32 s{sT1}, s{sT1}, {WS_OP}
        s_add_u32 s{sT2}, s{sT1}, 4096
        s_lshl_b32 s{sT3}, s{sRB}, 6
        s_add_u32 s{sT3}, s{sT3}, s{sPL}
        s_lshl_b32 s{sT3}, s{sT3}, 11
        s_add_u32 s{sT3}, s{sT3}, {WS_FP}
        buffer_load_dword v{vS}, v{vA2}, {srd(WS_)}, s{sT1} offen
        """)
        if not pk: a(f"buffer_load_dword v{vS+1}, v{vA2}, {srd(WS_)}, s{sT2} offen")
        a(f"""
        s_mov_b32 exec_hi, 0
        buffer_load_dword v{vS+2}, v{vA2}, {srd(WS_)}, s{sT3} offen
        s_mov_b64 exec, -1
        """)
    if prew:
        for k in range(4): a(f"v_subrev_u32 v{vS+k}, 1, v{vTAG}")
        a(f"""
        s_lshl_b32 s{sT1}, s2, 13
        s_add_u32 s{sT1}, s{sT1}, {WS_OP}
        s_add_u32 s{sT2}, s{sT1}, 4096
        s_lshl_b32 s{sT3}, s{sRB}, 6
        s_add_u32 s{sT3}, s{sT3}, s{sPL}
        s_lshl_b32 s{sT3}, s{sT3}, 11
        s_add_u32 s{sT3}, s{sT3}, {WS_FP}
        """)
        for k in range(8):
            a(f"buffer_store_dwordx4 {vr(vS,4)}, v{vVO}, {srd(WS_)}, s{sT1 if k < 4 else sT2} offen offset:{1024*(k%4)} sc1")
            if k % 2 == 1: a("s_waitcnt vmcnt(0)")
        for k in range(2): a(f"buffer_store_dwordx4 {vr(vS,4)}, v{vVO}, {srd(WS_)}, s{sT3} offen offset:{1024*k} sc1")
    if ctl:
        wait_cnt(C_P3, cpn, 4)
        cp_time()
        checkpoint(1, p3_at, False)
    if 'm' in skip: a('s_branch L_fin')
    a(f"""
    s_lshl_b32 s{sA}, s2, 7
    s_add_u32 s{sA}, s{sA}, {WS_ML}
    s_lshl_b32 s{sPA}, s{sG}, 13
    s_add_u32 s{sPA}, s{sPA}, {WS_ML}
    s_and_b32 s{sT1}, s{sI}, 7
    s_mul_i32 s{sT1}, s{sT1}, {MREP if rep else 0}
    s_add_u32 s{sPA}, s{sPA}, s{sT1}
    s_add_u32 s{sPB}, s{sPA}, 4096
    v_lshrrev_b32 v{vQ+5}, 3, v{vL}
    v_mul_u32_u24 v{vQ+5}, {MREP}, v{vQ+5}
    v_and_b32 v{vA3}, 7, v{vL}
    v_lshl_add_u32 v{vQ+5}, v{vA3}, 4, v{vQ+5}
    """)
    wait_cnt(C_ST, 8, 8)
    a(f"ds_read_b64 {vr(vT,2)}, v{cL8} offset:{L_ST}")
    a("s_waitcnt lgkmcnt(0)")
    reduce_ml(vT, vT + 1, vB0, vA3)
    a(f"""
    v_mov_b32 v{vB1}, v{vTAG}
    v_mov_b32 v{vB2}, v{vT+1}
    v_mov_b32 v{vB3}, v{vTAG}
    s_mov_b64 exec, {-1 if rep else 0xff}
    buffer_store_dwordx4 {vr(vB0,4)}, v{vQ+5}, {srd(WS_)}, s{sA} offen sc1
    s_mov_b64 exec, -1
    """)
    stamp(5)
    cp_time()
    checkpoint(2, kend + 3, False)
    ml = [f"buffer_load_dwordx4 {vr(vS+4*k,4)}, v{vVO}, {srd(WS_)}, s{sPA if k < 4 else sPB} offen offset:{1024*(k%4)} sc1" for k in range(8)]
    tg = []
    for k in range(8): tg += [vS + 4 * k + 1, vS + 4 * k + 3]
    wait_cnt(C_P2, cpn, 4)
    poll(ml, tg, vA0, rsleep)
    M = vE
    a(f"v_max3_f32 v{M}, v{vS}, v{vS+4}, v{vS+8}")
    a(f"v_max3_f32 v{M}, v{M}, v{vS+12}, v{vS+16}")
    a(f"v_max3_f32 v{M}, v{M}, v{vS+20}, v{vS+24}")
    a(f"v_max_f32 v{M}, v{M}, v{vS+28}")
    red_bits345("max", M, vA3)
    for k in range(8): a(f"v_sub_f32 v{vS+4*k}, v{vS+4*k}, v{M}")
    for k in range(8): a(f"v_exp_f32 v{vS+4*k}, v{vS+4*k}")
    a(f"v_mul_f32 v{M+1}, v{vS}, v{vS+2}")
    for k in range(1, 8): a(f"v_fmac_f32 v{M+1}, v{vS+4*k}, v{vS+4*k+2}")
    red_bits345("add", M + 1, vA3)
    a(f"""
    v_sub_f32 v{vA1}, v{vT}, v{M}
    v_exp_f32 v{vA1}, v{vA1}
    v_rcp_f32 v{vA2}, v{M+1}
    v_mul_f32 v{vA1}, v{vA1}, v{vA2}
    v_and_b32 v{vA2}, 7, v{vL}
    v_lshlrev_b32 v{vA2}, 5, v{vA2}
    v_lshrrev_b32 v{vA3}, 3, v{vL}
    v_lshl_add_u32 v{vA2}, v{vA3}, 2, v{vA2}
    ds_write_b32 v{vA2}, v{vA1} offset:{L_F}
    s_waitcnt lgkmcnt(0)
    """)
    if stamps and not dbg: a("s_branch L_fin")
    else: a("s_endpgm")
    lines = hazard.fix([l for l in a.lines if not l.strip().startswith(";")])
    return wrap_single("\n".join(lines), 256, 576, lds, NVGPR, header=HEADER)

if __name__ == "__main__":
    out = sys.argv[1]
    kw = {}
    for s in sys.argv[2:]:
        k, v = s.split("=")
        try: v = int(v)
        except: pass
        kw[k] = v
    open(out, "w").write(gen(**kw))
```

```python
import sys, math, struct
from asmlib import *
import hazard
def f2u(x): return struct.unpack("<I", struct.pack("<f", x))[0]

HEADER = open("cdna_kernels/" + NAME + ".s.ref").read().split("; Override launch")[0]

WS_QG = 0x80000
WS_ML = 0xc0000
WS_QP = 0x40000
WS_FG = 0x380000
WS_OP = 0x100000
WS_FP = 0x300000
WS_SIZE = 0x400000
WS_TS = WS_ML + 0x8000
QREP = 0x4000 + 0x1000*0
MREP = 0x8000
STAMP_OFF = 128 << 20
C_Q, C_F, C_QS, C_ST, C_R2, C_H, C_P1, C_P2, C_P3, L_CTL, L_LATE = 0, 4, 8, 12, 16, 20, 24, 28, 32, 36, 40
L_H = 64
L_G = 192
L_GP = 256
L_QS = L_GP + 3 * 4096
L_ST = L_QS + 2176
L_F = L_ST + 512
L_RED1 = L_F + 256
L_RED2 = L_RED1 + 2048
L_RED3 = L_RED2 + 512
L_ORED = L_RED3 + 1024
L_END = L_ORED + 8 * 4224

sW, sWV = 2, 3
K_, V_, WQ_, WO_, WG_, WU_, WD_, X_, GW_, WS_, OUT_ = 4, 8, 12, 16, 20, 24, 28, 32, 36, 40, 44
def srd(b): return f"s[{b}:{b+3}]"
sG, sI = 48, 49
sPA, sPB = 50, 51
sKV = 52
sT0, sT1, sT2, sT3 = 53, 54, 55, 56
sSELLO, sSELHI, sC = 57, 58, 59
sCAP = 60
sA, sB = 61, 62
sKS = 63
sM0 = 64
sO = 68
sXV = 75
sRB, sLC = 68, 69
sPL = 74
sBOOST, sSLOW = 100, 101
sR8, sCB = 70, 71
sH1 = 70
sST = 76

vL, vT4, vT16, vTAG, vKO, vVO, vWQO, vWFO = 0, 1, 2, 3, 4, 5, 6, 7
vA0, vA1, vA2, vA3 = 8, 9, 10, 11
vB0, vB1, vB2, vB3 = 12, 13, 14, 15
vT = 16
vQ = 32
vE = 40
vP = 48
vS = 64
vACC = 96
vR = 128
NVGPR = 164

def gen(WIN=3, C2=64, stamps=False, nt=True, lds=82440, sleep1=2, W0=4, STEP=1, WEND=None, sn="d", dbg=0, wsw=999,
        notail=0, q_at=27, csleep=1, wo_early=0, p1_at=20, p2_at=66, rsleep=16, rep=1, xr=7, prew=1, early=1, ack1=0, ack2=1, asleep=4, nocomm=0, ex=3, touch=0, adelay=0, skip='', WMAX=0, dyn0=20, tb=0, slow=1, ctl=0, margin=40, gain=6, slowu=60, p3_at=34, rf=3, cpn=6, cps=12, lead=8, endb=999, TH=0, gsleep=4, wolate=0, oracle=0, pk=0, prer=0, prer0=0, fix=0, fixm=0, W1=3, w1n=0, stf='sc1', loc=0, lse=0, nfail=8, LT=0, bk=0, full=0, prer1=0, sc=0, CA=140, CB=275, CK=6, gsh=2, k0=12, woall=0, h1d=0):
    a = Asm()
    NT = " nt" if nt else ""
    SN = set(str(sn).split("+"))
    slots = {}
    def stamp(k, name="d"):
        if stamps and name in SN:
            a(f"s_memrealtime s[{sST+2*k}:{sST+2*k+1}]")
    NS = 12
    LB = 12 if pk else 13
    if WMAX: wsw, WEND = dyn0 - WIN, WMAX
    def vr(b, n): return f"v[{b}:{b+n-1}]"
    DPP = "row_mask:0xf bank_mask:0xf"

    def red_bits45(op, v, t):
        a(f"v_mov_b32 v{t}, v{v}")
        a(f"v_permlane16_swap_b32 v{v}, v{t}")
        a(f"v_{op}_f32 v{v}, v{v}, v{t}")
        a(f"v_mov_b32 v{t}, v{v}")
        a(f"v_permlane32_swap_b32 v{v}, v{t}")
        a(f"v_{op}_f32 v{v}, v{v}, v{t}")
    def red_bits345(op, v, t):
        a(f"v_{op}_f32_dpp v{v}, v{v}, v{v} row_ror:8 {DPP}")
        red_bits45(op, v, t)
    def red2_bits45(v0, v1, t0, t1):
        for sw in ("16", "32"):
            a(f"v_mov_b32 v{t0}, v{v0}")
            a(f"v_mov_b32 v{t1}, v{v1}")
            a(f"v_permlane{sw}_swap_b32 v{v0}, v{t0}")
            a(f"v_permlane{sw}_swap_b32 v{v1}, v{t1}")
            a(f"v_add_f32 v{v0}, v{v0}, v{t0}")
            a(f"v_add_f32 v{v1}, v{v1}, v{t1}")
    def red2_bits345(v0, v1, t0, t1):
        a(f"v_add_f32_dpp v{v0}, v{v0}, v{v0} row_ror:8 {DPP}")
        a(f"v_add_f32_dpp v{v1}, v{v1}, v{v1} row_ror:8 {DPP}")
        red2_bits45(v0, v1, t0, t1)
    def reduce_ml(vm, vl, vM, t):
        a(f"v_mov_b32 v{vM}, v{vm}")
        red_bits345("max", vM, t)
        a(f"v_sub_f32 v{t}, v{vm}, v{vM}")
        a(f"v_exp_f32 v{t}, v{t}")
        a(f"v_mul_f32 v{vl}, v{vl}, v{t}")
        red_bits345("add", vl, t)
    def arrive_last(cnt, skip):
        a(f"""
        s_waitcnt lgkmcnt(0)
        v_mov_b32 v{vA0}, {cnt}
        v_mov_b32 v{vA1}, 1
        s_mov_b64 exec, 1
        ds_add_rtn_u32 v{vA0}, v{vA0}, v{vA1}
        s_mov_b64 exec, -1
        s_waitcnt lgkmcnt(0)
        v_readfirstlane_b32 s{sT0}, v{vA0}
        s_cmp_lg_u32 s{sT0}, 7
        s_cbranch_scc1 {skip}
        """)
    def arrive(cnt):
        a(f"""
        v_mov_b32 v{vA0}, {cnt}
        v_mov_b32 v{vA1}, 1
        s_waitcnt lgkmcnt(0)
        s_mov_b64 exec, 1
        ds_add_u32 v{vA0}, v{vA1}
        s_mov_b64 exec, -1
        """)
    def wait_cnt(cnt, val, sl=1):
        l = a.label("Lw"); d = a.label("Lwd")
        a(f"""
        v_mov_b32 v{vA0}, {cnt}
        s_mov_b32 s{sCAP}, 0
        {l}:
        ds_read_b32 v{vA1}, v{vA0}
        s_waitcnt lgkmcnt(0)
        v_readfirstlane_b32 s{sT0}, v{vA1}
        s_cmp_ge_u32 s{sT0}, {val}
        s_cbranch_scc1 {d}
        s_add_u32 s{sCAP}, s{sCAP}, 1
        s_cmp_gt_u32 s{sCAP}, 0x400000
        s_cbranch_scc1 {d}
        s_sleep {sl}
        s_branch {l}
        {d}:
        """)
    def poll(loads, tagregs, tmp, sleep, first_issued=False, wb=False):
        lc = a.label("Lchk"); ld = a.label("Ldone")
        a(f"s_mov_b32 s{sCAP}, 0")
        if not first_issued:
            for l in loads: a(l)
            a("s_waitcnt vmcnt(0)")
        a(f"{lc}:")
        if len(tagregs) == 1:
            a(f"v_cmp_ne_u32 vcc, v{tagregs[0]}, v{vTAG}")
        else:
            a(f"v_xor_b32 v{tmp}, v{tagregs[0]}, v{vTAG}")
            for r in tagregs[1:]:
                a(f"v_xor_b32 v{tmp+1}, v{r}, v{vTAG}")
                a(f"v_or_b32 v{tmp}, v{tmp}, v{tmp+1}")
            a(f"v_cmp_ne_u32 vcc, 0, v{tmp}")
        a(f"s_and_b64 exec, exec, vcc")
        a(f"s_cbranch_scc0 {ld}")
        a(f"s_add_u32 s{sCAP}, s{sCAP}, 1")
        a(f"s_cmp_gt_u32 s{sCAP}, 0x40000")
        a(f"s_cbranch_scc1 {ld}")
        if wb and loc:
            lw = a.label("Lnw")
            a(f"s_and_b32 s{sT0}, s{sCAP}, {nfail-1}")
            a(f"s_cbranch_scc1 {lw}")
            a("buffer_wbl2 sc1")
            a("s_waitcnt vmcnt(0)")
            a(f"s_mov_b32 s{sSLOW}, 1")
            a(f"{lw}:")
        if sleep: a(f"s_sleep {sleep}")
        for l in loads: a(l)
        a("s_waitcnt vmcnt(0)")
        a(f"s_branch {lc}")
        a(f"{ld}:")
        a("s_mov_b64 exec, -1")
    def sum8(base):
        for step in (1, 2, 4):
            for k in range(0, 8, 2 * step): a(f"v_add_f32 v{base+k}, v{base+k}, v{base+k+step}")
    def init_stamps():
        if stamps:
            for k in range(NS): a(f"s_mov_b64 s[{sST+2*k}:{sST+2*k+1}], s[{sM0}:{sM0+1}]")

    if stamps or fix or fixm or sc: a(f"s_memrealtime s[{sM0}:{sM0+1}]")
    a(f"""
    s_cmp_ge_u32 s2, 256
    s_cbranch_scc1 L_end
    s_load_dwordx16 s[76:91], s[0:1], 0
    s_load_dwordx8 s[92:99], s[0:1], 64
    s_load_dwordx2 s[{WS_}:{WS_+1}], s[0:1], 96
    v_lshrrev_b32 v{vA0}, 6, v0
    v_lshlrev_b32 v{vT4}, 2, v0
    v_lshlrev_b32 v{vT16}, 4, v0
    v_readfirstlane_b32 s{sWV}, v{vA0}
    v_and_b32 v{vL}, 63, v0
    s_lshr_b32 s{sG}, s2, 6
    s_and_b32 s{sI}, s2, 63
    s_bfe_u32 s{sRB}, s2, 0x20003
    s_lshr_b32 s{sLC}, s2, 5
    s_and_b32 s{sT0}, s2, 7
    s_lshl_b32 s{sPL}, s{sLC}, 3
    s_or_b32 s{sPL}, s{sPL}, s{sT0}
    s_bfe_u32 s{sR8}, s2, 0x30003
    s_lshl_b32 s{sT1}, s{sG}, 1
    s_xor_b32 s{sT0}, s{sT0}, s{sT1}
    s_lshl_b32 s{sT0}, s{sT0}, 2
    s_or_b32 s{sCB}, s{sT0}, s{sG}
    s_and_b32 s{sLC}, s{sLC}, 1
    s_lshl_b32 s{sT0}, s{sCB}, 1
    s_or_b32 s{sLC}, s{sLC}, s{sT0}
    s_mov_b32 s{X_+2}, 2048
    s_mov_b32 s{X_+3}, 0x20000
    s_mov_b32 s{WS_+2}, {WS_SIZE if not stamps else (256<<20)}
    s_mov_b32 s{WS_+3}, 0x20000
    v_lshlrev_b32 v{vVO}, 4, v{vL}
    s_cmp_eq_u32 s{sWV}, 8
    s_cbranch_scc1 L_comm
    s_mov_b32 s{WQ_+2}, {1024*8192}
    s_mov_b32 s{WQ_+3}, 0x20000
    v_lshrrev_b32 v{vA0}, 4, v{vL}
    v_and_b32 v{vA1}, 15, v{vL}
    v_lshlrev_b32 v{vA1}, 4, v{vA1}
    v_lshl_add_u32 v{vWQO}, v{vA0}, 15, v{vA1}
    v_lshlrev_b32 v{vA2}, 3, v{vA0}
    s_lshl_b32 s{sT3}, s{sR8}, 3
    s_add_u32 s{sT3}, s{sT3}, s{sWV}
    s_lshl_b32 s{sT0}, s{sCB}, 8
    s_lshl_b32 s{sA}, s{sT3}, 17
    s_add_u32 s{sA}, s{sA}, s{sT0}
    s_mul_i32 s{sB}, s{sT3}, {16*7168}
    s_add_u32 s{sB}, s{sB}, s{sT0}
    s_lshl_b32 s{sT3}, s{sT3}, 5
    s_add_u32 s{sT0}, s{sA}, 8192
    s_add_u32 s{sT1}, s{sA}, 16384
    s_add_u32 s{sT2}, s{sA}, 24576
    s_waitcnt lgkmcnt(0)
    s_mov_b64 s[{WQ_}:{WQ_+1}], s[82:83]
    s_mov_b64 s[{X_}:{X_+1}], s[76:77]
    """)
    WQR = vR; WGR = vR + 16; WUR = vACC; WDR = vP
    vXP = vB0
    a(f"buffer_load_dwordx2 {vr(vXP,2)}, v{vA2}, {srd(X_)}, s{sT3} offen")
    for j in range(min(W0, 4)): a(f"buffer_load_dwordx4 {vr(WQR+4*j,4)}, v{vWQO}, {srd(WQ_)}, s{[sA,sT0,sT1,sT2][j]} offen{NT}")
    a(f"v_mov_b32 v{vQ}, v{vWQO}")
    a(f"""
    v_mul_u32_u24 v{vWFO}, {4*7168}, v{vA0}
    v_add_u32 v{vWFO}, v{vWFO}, v{vA1}
    s_cmp_lt_u32 s{sLC}, 56
    s_cselect_b32 s{WG_+2}, {1024*7168}, 0
    s_cselect_b32 s{WU_+2}, {1024*7168}, 0
    s_cselect_b32 s{WD_+2}, {3584*2048}, 0
    s_mov_b32 s{WG_+3}, 0x20000
    s_mov_b32 s{WU_+3}, 0x20000
    s_mov_b64 s[{WG_}:{WG_+1}], s[88:89]
    s_mov_b64 s[{WU_}:{WU_+1}], s[90:91]
    s_mov_b64 s[{K_}:{K_+1}], s[78:79]
    s_mov_b64 s[{V_}:{V_+1}], s[80:81]
    s_mov_b64 s[{WO_}:{WO_+1}], s[84:85]
    s_mov_b64 s[{WD_}:{WD_+1}], s[92:93]
    s_mov_b64 s[{OUT_}:{OUT_+1}], s[96:97]
    s_mov_b64 s[66:67], s[98:99]
    s_mov_b32 s{K_+2}, 0x4000000
    s_mov_b32 s{K_+3}, 0x20000
    s_mov_b32 s{V_+2}, 0x4000000
    s_mov_b32 s{V_+3}, 0x20000
    s_mov_b32 s{WO_+2}, {4096*2048}
    s_mov_b32 s{WO_+3}, 0x20000
    s_mov_b32 s{WD_+3}, 0x20000
    s_mov_b32 s{OUT_+2}, 2048
    s_mov_b32 s{OUT_+3}, 0x20000
    s_mov_b32 s{sSELLO}, 0x05040100
    s_mov_b32 s{sSELHI}, 0x07060302
    s_mov_b32 s{sC}, {hex(f2u(128**-0.5 * math.log2(math.e)))}
    s_lshl_b32 s{sKV}, s{sG}, 24
    s_lshl_b32 s{sT0}, s{sI}, 16
    s_add_u32 s{sKV}, s{sKV}, s{sT0}
    s_lshl_b32 s{sT0}, s{sWV}, 13
    s_add_u32 s{sKV}, s{sKV}, s{sT0}
    s_and_b32 s{sT0}, s{sWV}, {xr}
    s_lshl_b32 s{sT0}, s{sT0}, 10
    s_add_u32 s{sXV}, s{sKV}, s{sT0}
    s_and_b32 s{sT1}, s{sT0}, 4096
    s_add_u32 s{sKV}, s{sKV}, s{sT1}
    s_and_b32 s{sT0}, s{sT0}, 3072
    v_and_b32 v{vA0}, 3, v{vL}
    v_lshlrev_b32 v{vA0}, 10, v{vA0}
    v_xor_b32 v{vA0}, s{sT0}, v{vA0}
    v_bfe_u32 v{vA1}, v{vL}, 2, 1
    v_lshl_add_u32 v{vA0}, v{vA1}, 8, v{vA0}
    v_bfe_u32 v{vA1}, v{vL}, 3, 1
    v_lshl_add_u32 v{vA0}, v{vA1}, 6, v{vA0}
    v_lshrrev_b32 v{vA1}, 4, v{vL}
    v_lshl_add_u32 v{vKO}, v{vA1}, 4, v{vA0}
    """)
    vX = vT; vGA = vT + 8
    a(f"""
    v_and_b32 v{vA0}, 15, v{vL}
    v_lshlrev_b32 v{vA0}, 5, v{vA0}
    v_lshl_add_u32 v{vA0}, v{vA1}, 3, v{vA0}
    s_lshl_b32 s{sT0}, s{sWV}, 9
    v_add_u32 v{vGA}, s{sT0}, v{vA0}
    v_and_b32 v{vA0}, 15, v{vL}
    s_and_b32 s{sT0}, s{sWV}, 3
    s_lshl_b32 s{sT0}, s{sT0}, 7
    v_lshl_add_u32 v{vA0}, v{vA0}, 3, s{sT0}
    v_lshl_add_u32 v{vT4}, v{vA1}, 14, v{vA0}
    v_lshrrev_b32 v{vA2}, 5, v{vL}
    v_lshl_add_u32 v{vA0}, v{vA2}, 11, v{vA0}
    v_and_b32 v{vA2}, 1, v{vA1}
    v_lshl_add_u32 v{vWQO}, v{vA2}, 17, v{vA0}
    """)
    init_stamps()
    for r in range(24): a(f"v_mov_b32 v{vS+r}, 0")
    a(f"s_mov_b32 s{sBOOST}, 0")
    a(f"s_mov_b32 s{sSLOW}, 0")
    a(f"v_mov_b32 v{vE+6}, 0")
    if ctl:
        a(f"s_cmp_lt_u32 s{sLC}, 56")
        a(f"s_cselect_b32 s{sSLOW}, 0, {slowu}")
    if tb:
        a(f"s_and_b32 s{sT0}, s2, 7")
        a(f"s_cmp_eq_u32 s{sT0}, 0")
        a(f"s_cselect_b32 s{sBOOST}, {tb}, 0")
        a(f"s_cmp_eq_u32 s{sT0}, 2")
        a(f"s_cselect_b32 s{sSLOW}, {tb}, 0")
    a("s_barrier")

    U = []
    for j in range(4): U.append((f"wq{j}", [f"s_add_u32 s{sT3}, s{sA}, {j*8192}", f"buffer_load_dwordx4 {vr(WQR+4*j,4)}, v{vQ}, {srd(WQ_)}, s{sT3} offen{NT}"], 1, None))
    for nm, R, S_ in (("gate", WGR, WG_), ("up", WUR, WU_)):
        for j in range(4):
            U.append((f"{nm}{j}", [f"s_add_u32 s{sT3}, s{sB}, {j*7168}", f"buffer_load_dwordx4 {vr(R+4*j,4)}, v{vWFO}, {srd(S_)}, s{sT3} offen{NT}"], 1, None))
    for j in range(4):
        l = []
        if j == 0: l += [f"s_lshl_b32 s{sPB}, s{sLC}, 17", f"s_lshl_b32 s{sT0}, s{sRB}, 9", f"s_add_u32 s{sPB}, s{sPB}, s{sT0}",
                         f"s_lshr_b32 s{sT0}, s{sWV}, 2", f"s_lshl_b32 s{sT0}, s{sT0}, 16", f"s_add_u32 s{sPB}, s{sPB}, s{sT0}",
                         f"s_and_b32 s{sT0}, s{sWV}, {ex}", f"s_lshl_b32 s{sT0}, s{sT0}, 12", f"s_add_u32 s{sPB}, s{sPB}, s{sT0}"]
        l += [f"s_xor_b32 s{sT3}, s{sPB}, {j*4096}", f"buffer_load_dwordx2 {vr(WDR+4*j,2)}, v{vT4}, {srd(WD_)}, s{sT3} offen{NT}",
              f"buffer_load_dwordx2 {vr(WDR+4*j+2,2)}, v{vT4}, {srd(WD_)}, s{sT3} offen offset:2048{NT}"]
        U.append((f"wd{j}", l, 2, None))
    def KB(t): return vR if t % 2 == 0 else vACC
    for t in range(4):
        for j in range(8):
            u, k = j >> 2, j & 3
            l = [f"s_xor_b32 s{sKS}, s{sKV}, {t*(4<<20) + u*4096}"] if k == 0 else []
            l.append(f"buffer_load_dwordx4 {vr(KB(t)+4*j,4)}, v{vKO}, {srd(K_)}, s{sKS} offen offset:{(k>>1)*512+(k&1)*128}{NT}")
            pre = {(0, 0): f"wq{k}", (0, 1): f"gate{k}", (1, 0): f"up{k}", (1, 1): None}.get((t, u), f"K{t-2}{'ab'[u]}")
            U.append((f"K{t}_{j}", l, 1, pre))
    WOR = vQ
    WOR = vT; PW = vR
    def wounit(j):
        l = []
        if j == 0: l += [f"s_lshl_b32 s{sB}, s{sG}, 3", f"s_and_b32 s{sT0}, s2, 7", f"s_add_u32 s{sB}, s{sB}, s{sT0}",
               f"s_lshl_b32 s{sB}, s{sB}, 18", f"s_bfe_u32 s{sT0}, s2, 0x10005", f"s_lshl_b32 s{sT0}, s{sT0}, 13", f"s_add_u32 s{sB}, s{sB}, s{sT0}",
               f"s_lshl_b32 s{sT0}, s{sRB}, 9", f"s_add_u32 s{sB}, s{sB}, s{sT0}",
               f"s_lshr_b32 s{sT0}, s{sWV}, 2", f"s_lshl_b32 s{sT0}, s{sT0}, 12", f"s_add_u32 s{sB}, s{sB}, s{sT0}",
               f"s_and_b32 s{sT0}, s{sWV}, {ex}", f"s_lshl_b32 s{sT0}, s{sT0}, 15", f"s_add_u32 s{sB}, s{sB}, s{sT0}"]
        for e in range(2 * j, 2 * j + 2):
            l += [f"s_xor_b32 s{sT3}, s{sB}, {e*16384}", f"buffer_load_dwordx2 {vr(WOR+2*e,2)}, v{vWQO}, {srd(WO_)}, s{sT3} offen{NT}"]
        U.append((f"wo{j}", l, 2, "softmax"))
    for t in range(4):
        if t == 2:
            for j in range(wo_early): wounit(j)
        for j in range(8):
            u, k = j >> 2, j & 3
            l = [f"s_xor_b32 s{sKS}, s{sXV}, {t*(4<<20) + j*1024}"]
            l.append(f"buffer_load_dwordx4 {vr(vR+4*j,4)}, v{vVO}, {srd(V_)}, s{sKS} offen{NT}")
            U.append((f"V{t}_{j}", l, 1, f"K2{'ab'[u]}" if t == 0 else f"V{t-1}p{j>>1}"))
    for j in range(wo_early, 4): wounit(j)
    names = [u[0] for u in U]
    idx = {n: k for k, n in enumerate(names)}

    aq, ag, au = vS, vS + 8, vS + 16
    def gemv_unit(W, acc, j):
        for w in range(4):
            a(f"v_dot2c_f32_bf16 v{acc+2*w}, v{W+4*j+w}, v{vX+2*j}")
            a(f"v_dot2c_f32_bf16 v{acc+2*w+1}, v{W+4*j+w}, v{vX+2*j+1}")
    def swapred(acc):
        for k in range(4): a(f"v_permlane32_swap_b32 v{acc+k}, v{acc+k+4}")
        for k in range(4): a(f"v_add_f32 v{acc+k}, v{acc+k}, v{acc+k+4}")
        for k in range(2): a(f"v_permlane16_swap_b32 v{acc+k}, v{acc+k+2}")
        for k in range(2): a(f"v_add_f32 v{acc+k}, v{acc+k}, v{acc+k+2}")
    def task_g(m, j):
        W, acc = [(WQR, aq), (WGR, ag), (WUR, au)][m]
        if m == 0 and j == 0:
            for h in range(2):
                a(f"v_and_b32 v{vX+4*h}, 0xffff, v{vXP+h}")
                a(f"v_lshlrev_b32 v{vX+4*h+1}, 16, v{vXP+h}")
                a(f"v_lshrrev_b32 v{vX+4*h+2}, 16, v{vXP+h}")
                a(f"v_and_b32 v{vX+4*h+3}, 0xffff0000, v{vXP+h}")
        gemv_unit(W, acc, j)
        consumed.add(["wq", "gate", "up"][m] + str(j))
        if j == 3:
            swapred(acc)
            a(f"ds_write_b64 v{vGA}, {vr(acc,2)} offset:{L_GP+4096*m}")
            if m != 1: arrive(C_Q if m == 0 else C_F)
            if m == 0: stamp(1)
    vBP = 160
    def wperm(dst, W):
        for p in range(4):
            for d in range(2):
                a(f"v_perm_b32 v{dst+4*p+2*d}, v{W+4*p+2+d}, v{W+4*p+d}, s{sSELLO}")
                a(f"v_perm_b32 v{dst+4*p+2*d+1}, v{W+4*p+2+d}, v{W+4*p+d}, s{sSELHI}")
    def dot16(W, vO, acc):
        for p in range(4):
            for c in range(4):
                a(f"v_dot2c_f32_bf16_dpp v{acc+c}, v{vO}, v{W+4*p+c} row_newbcast:{p} {DPP}")
    def piece_idx(dst, tmp):
        a(f"""
        v_and_b32 v{tmp}, 3, v{vL}
        s_and_b32 s{sT0}, s{sWV}, {ex}
        v_xor_b32 v{tmp}, s{sT0}, v{tmp}
        v_lshrrev_b32 v{dst}, 4, v{vL}
        v_lshl_add_u32 v{dst}, v{dst}, 2, v{tmp}
        s_lshr_b32 s{sT0}, s{sWV}, 2
        s_lshl_b32 s{sT0}, s{sT0}, 4
        v_add_u32 v{dst}, s{sT0}, v{dst}
        """)
    def task_bpart():
        wait_cnt(C_H, 1)
        piece_idx(vA2, vA3)
        a(f"""
        v_lshlrev_b32 v{vA2}, 2, v{vA2}
        ds_read_b32 v{vA2}, v{vA2} offset:{L_H}
        ds_read_b64 {vr(vE+2,2)}, v{vE+6} offset:{L_G}
        ds_read_b32 v{vTAG}, v{vE+6} offset:{L_G+8}
        """)
        for k in range(4): a(f"v_mov_b32 v{vBP+k}, 0")
        wperm(vT, WDR)
        a("s_waitcnt lgkmcnt(0)")
        dot16(vT, vA2, vBP)
        for k in range(4): a(f"v_mul_f32 v{vBP+k}, v{vBP+k}, v{vE+3}")
    def task_qwait():
        stamp(2)
        wait_cnt(C_QS, 1)
        a(f"""
        v_and_b32 v{vA0}, 7, v{vL}
        v_mul_u32_u24 v{vA0}, 272, v{vA0}
        v_bfe_u32 v{vA1}, v{vL}, 3, 1
        v_lshl_add_u32 v{vA0}, v{vA1}, 6, v{vA0}
        v_lshrrev_b32 v{vA1}, 4, v{vL}
        v_lshl_add_u32 v{vA0}, v{vA1}, 4, v{vA0}
        """)
        for s in range(2): a(f"ds_read_b128 {vr(vQ+4*s,4)}, v{vA0} offset:{L_QS+128*s}")
        a("s_waitcnt lgkmcnt(0)")
        stamp(3)
    def task_k(t, u):
        base = KB(t) + 16 * u; dx = vS + 8 * t + 4 * u; dy = vT
        for sp in range(2):
            a(f"v_mfma_f32_16x16x32_bf16 {vr(dx,4)}, {vr(base+4*sp,4)}, {vr(vQ+4*sp,4)}, {'0' if sp==0 else vr(dx,4)}")
            a(f"v_mfma_f32_16x16x32_bf16 {vr(dy,4)}, {vr(base+8+4*sp,4)}, {vr(vQ+4*sp,4)}, {'0' if sp==0 else vr(dy,4)}")
        for r in range(4): a(f"v_permlane32_swap_b32 v{dx+r}, v{dy+r}")
        for r in range(4): a(f"v_add_f32_dpp v{dx+r}, v{dy+r}, v{dx+r} row_ror:8 {DPP}")
        consumed.add(f"K{t}{'ab'[u]}")
    vM = vE
    def sm_max():
        m = vM
        a(f"v_max3_f32 v{m}, v{vS}, v{vS+1}, v{vS+2}")
        a(f"v_max3_f32 v{vA2}, v{vS+3}, v{vS+4}, v{vS+5}")
        for k in range(6, 30, 4):
            a(f"v_max3_f32 v{m}, v{m}, v{vS+k}, v{vS+k+1}")
            a(f"v_max3_f32 v{vA2}, v{vA2}, v{vS+k+2}, v{vS+k+3}")
        a(f"v_max3_f32 v{m}, v{m}, v{vS+30}, v{vS+31}")
        a(f"v_max_f32 v{m}, v{m}, v{vA2}")
        red_bits45("max", m, vA2)
        a(f"v_mul_f32 v{m}, s{sC}, v{m}")
    def sm_exp(t):
        for k in range(8 * t, 8 * t + 8): a(f"v_fma_f32 v{vS+k}, v{vS+k}, s{sC}, -v{vM}")
        for k in range(8 * t, 8 * t + 8): a(f"v_exp_f32 v{vS+k}, v{vS+k}")
        for k in range(4 * t, 4 * t + 4): a(f"v_cvt_pk_bf16_f32 v{vP+k}, v{vS+2*k}, v{vS+2*k+1}")
        sum8(vS + 8 * t)
    def sm_fin():
        a(f"v_add_f32 v{vS}, v{vS}, v{vS+8}")
        a(f"v_add_f32 v{vS+16}, v{vS+16}, v{vS+24}")
        a(f"v_add_f32 v{vM+1}, v{vS}, v{vS+16}")
        red_bits45("add", vM + 1, vA2)
        a(f"""
        s_lshl_b32 s{sT0}, s{sWV}, 6
        v_lshl_add_u32 v{vQ+4}, v{vL}, 3, s{sT0}
        s_mov_b64 exec, 0xff
        ds_write_b64 v{vQ+4}, {vr(vM,2)} offset:{L_ST}
        s_mov_b64 exec, -1
        """)
        arrive(C_ST)
        consumed.add("softmax")
        stamp(4)
    def task_vperm(t, uu):
        R = vR
        for w in range(4):
            a(f"v_perm_b32 v{vS+4*(2*w)+uu}, v{R+4*(2*uu+1)+w}, v{R+4*(2*uu)+w}, s{sSELLO}")
            a(f"v_perm_b32 v{vS+4*(2*w+1)+uu}, v{R+4*(2*uu+1)+w}, v{R+4*(2*uu)+w}, s{sSELHI}")
        consumed.add(f"V{t}p{uu}")
        if uu == 3:
            if t == 3 and early:
                for l in h1: a(l)
            for i in range(8):
                c = "0" if t == 0 else vr(vACC + 4 * i, 4)
                a(f"v_mfma_f32_16x16x32_bf16 {vr(vACC+4*i,4)}, {vr(vS+4*i,4)}, {vr(vP+4*t,4)}, {c}")
    def task_pre():
        a(f"""
        v_and_b32 v{vA0}, 7, v{vL}
        v_mul_u32_u24 v{vA0}, 528, v{vA0}
        v_lshrrev_b32 v{vA1}, 4, v{vL}
        v_lshl_add_u32 v{vA0}, v{vA1}, 4, v{vA0}
        s_mul_i32 s{sT0}, s{sWV}, 4224
        v_add_u32 v{vQ}, s{sT0}, v{vA0}
        s_mul_i32 s{sT0}, s{sWV}, 528
        v_lshl_add_u32 v{vQ+1}, v{vL}, 3, s{sT0}
        s_lshl_b32 s{sT0}, s{sWV}, 5
        v_mov_b32 v{vQ+2}, s{sT0}
        v_lshrrev_b32 v{vA0}, {LB-4}, v{vT16}
        v_lshlrev_b32 v{vA0}, {LB}, v{vA0}
        v_and_b32 v{vA2}, {(1<<(LB-4))-16}, v{vT16}
        v_add_u32 v{vQ+3}, v{vA0}, v{vA2}
        v_lshlrev_b32 v{vQ+5}, 3, v{vL}
        v_lshrrev_b32 v{vA0}, 7, v{vT16}
        v_lshlrev_b32 v{vA0}, 11, v{vA0}
        v_and_b32 v{vA2}, 0x70, v{vT16}
        v_add_u32 v{vQ+6}, v{vA0}, v{vA2}
        v_and_b32 v{vA0}, 31, v{vL}
        v_lshlrev_b32 v{vA0}, 3, v{vA0}
        v_lshrrev_b32 v{vA2}, 5, v{vL}
        v_lshl_add_u32 v{vA0}, v{vA2}, 2, v{vA0}
        s_lshl_b32 s{sT0}, s{sWV}, 8
        v_add_u32 v{vQ+7}, s{sT0}, v{vA0}
        """)
        if pk:
            a(f"""
            v_and_b32 v{vA0}, 15, v{vL}
            v_lshlrev_b32 v{vA0}, 4, v{vA0}
            v_lshl_add_u32 v{vA0}, v{vA1}, 2, v{vA0}
            v_add_u32 v{vQ+7}, s{sT0}, v{vA0}
            v_lshrrev_b32 v{vT4}, 1, v{vT16}
            """)
        a(f"""
        v_and_b32 v{vA0}, 15, v{vL}
        v_lshl_add_u32 v{vA0}, v{vA0}, 2, v{vA1}
        s_and_b32 s{sT0}, s{sWV}, 3
        s_lshl_b32 s{sT0}, s{sT0}, 9
        v_lshl_add_u32 v{vWFO}, v{vA0}, 3, s{sT0}
        s_lshr_b32 s{sT0}, s{sT0}, 1
        v_lshl_add_u32 v{vE+4}, v{vL}, 2, s{sT0}
        """)
        piece_idx(vA0, vA3)
        a(f"""
        v_bfe_u32 v{vA3}, v{vL}, 2, 2
        v_lshlrev_b32 v{vA3}, 9, v{vA3}
        v_lshl_add_u32 v{vKO}, v{vA0}, 3, v{vA3}
        v_mov_b32 v{vB1}, v{vTAG}
        v_mov_b32 v{vB3}, v{vTAG}
        v_mov_b32 v{vE+1}, v{vTAG}
        s_lshl_b32 s{sA}, s{sG}, {LB+6}
        s_and_b32 s{sT0}, s2, 7
        s_lshl_b32 s{sT0}, s{sT0}, {LB-3}
        s_add_u32 s{sA}, s{sA}, s{sT0}
        s_bfe_u32 s{sT0}, s2, 0x10005
        s_lshl_b32 s{sT0}, s{sT0}, {LB-4}
        s_add_u32 s{sA}, s{sA}, s{sT0}
        s_add_u32 s{sH1}, s{sA}, {WS_OP}
        s_add_u32 s{sH1+1}, s{sA}, {WS_OP + 16*8192}
        s_add_u32 s{sH1+2}, s{sA}, {WS_OP + 32*8192}
        s_add_u32 s{sH1+3}, s{sA}, {WS_OP + 48*8192}
        s_lshl_b32 s{sT0}, s{sG}, 6
        s_add_u32 s66, s66, s{sT0}
        s_addc_u32 s67, s67, 0
        s_lshl_b32 s{sPA}, s2, {LB}
        s_add_u32 s{sPA}, s{sPA}, {WS_OP}
        s_lshl_b32 s{sPB}, s{sRB}, 6
        s_add_u32 s{sPB}, s{sPB}, s{sPL}
        s_lshl_b32 s{sPB}, s{sPB}, 11
        s_add_u32 s{sPB}, s{sPB}, {WS_FP}
        s_lshr_b32 s{sA}, s2, 4
        s_lshl_b32 s{sA}, s{sA}, 17
        s_and_b32 s{sT0}, s2, 15
        s_lshl_b32 s{sT0}, s{sT0}, 7
        s_add_u32 s{sA}, s{sA}, s{sT0}
        s_add_u32 s{sA}, s{sA}, {WS_FP}
        """)
    vH1 = vR + 16
    h1 = [f"buffer_load_dwordx4 {vr(vH1+4*k,4)}, v{vQ+3}, {srd(WS_)}, s{sH1+k} offen sc1" for k in range(2 if pk else 4)]
    vF = vP
    def task_publish_o():
        stamp(5)
        if woall: issue_upto(st["issued"] + woall, n - 1)
        a(f"""
        s_mov_b32 exec_lo, 0x00ff00ff
        s_mov_b32 exec_hi, 0x00ff00ff
        """)
        for i in range(8): a(f"ds_write_b128 v{vQ}, {vr(vACC+4*i,4)} offset:{L_ORED+64*i}")
        if TH:
            a("s_mov_b64 exec, 1")
            a(f"global_load_dword v{vE+7}, v{vE+6}, s[66:67] offset:32 sc1")
        if LT: a(f"ds_read_b32 v{vE+7}, v{vE+6} offset:{L_LATE}")
        a(f"""
        s_mov_b64 exec, -1
        s_waitcnt lgkmcnt(0)
        """)
        if LT:
            a(f"v_readfirstlane_b32 s{sSLOW}, v{vE+7}")
            a(f"s_sub_u32 s{sSLOW}, s{sSLOW}, 1")
        a(f"""
        s_barrier
        ds_read_b128 {vr(vF,4)}, v{vQ+2} offset:{L_F}
        ds_read_b128 {vr(vF+4,4)}, v{vQ+2} offset:{L_F+16}
        """)
        for w in range(8): a(f"ds_read_b64 {vr(vS+2*w,2)}, v{vQ+1} offset:{L_ORED+4224*w}")
        if LT:
            a(f"s_cmp_ge_u32 s{sSLOW}, {LT}")
            a("s_cbranch_scc1 L_notlate")
            for l in h1: a(l)
            a("L_notlate:")
        a("s_waitcnt lgkmcnt(7)")
        a(f"v_mul_f32 v{vB0}, v{vS}, v{vF}")
        a(f"v_mul_f32 v{vB2}, v{vS+1}, v{vF}")
        for w in range(1, 8):
            a(f"s_waitcnt lgkmcnt({7-w})")
            a(f"v_fmac_f32 v{vB0}, v{vS+2*w}, v{vF+w}")
            a(f"v_fmac_f32 v{vB2}, v{vS+2*w+1}, v{vF+w}")
        if pk:
            a(f"v_cvt_pk_bf16_f32 v{vB0}, v{vB0}, v{vB2}")
            a(f"buffer_store_dwordx2 {vr(vB0,2)}, v{vT4}, {srd(WS_)}, s{sPA} offen sc1")
        else:
            a(f"buffer_store_dwordx4 {vr(vB0,4)}, v{vT16}, {srd(WS_)}, s{sPA} offen sc1")
        if TH:
            a(f"""
            s_cmp_lg_u32 s{sWV}, 0
            s_cbranch_scc1 L_noadd
            s_mov_b32 s{sT1}, 1
            s_atomic_add s{sT1}, s[66:67], 32
            L_noadd:
            """)
        stamp(6)

    consumed = set()
    C = []
    for m, nm in enumerate(("wq", "gate", "up")):
        for j in range(4): C.append((idx[f"{nm}{j}"], lambda m=m, j=j: task_g(m, j)))
    C.append((p1_at, lambda: arrive(C_P1)))
    C.append((p2_at, lambda: arrive(C_P2)))
    if ctl: C.append((p3_at, lambda: arrive(C_P3)))
    C.append((q_at, task_qwait))
    for t in range(4):
        for u in range(2):
            C.append((max(q_at, idx[f"K{t}_{4*u+3}"]), lambda t=t, u=u: task_k(t, u)))
    C.append((idx["K3_1"], task_bpart))
    kend = idx["K3_7"]
    C.append((kend, sm_max))
    for t in range(4): C.append((kend, lambda t=t: sm_exp(t)))
    C.append((kend, sm_fin))
    for t in range(4):
        for uu in range(4):
            C.append((idx[f"V{t}_{2*uu+1}"], lambda t=t, uu=uu: task_vperm(t, uu)))
    C.append((idx["V2_0"], task_pre))
    C.sort(key=lambda c: c[0])
    C.append((idx["V3_7"], task_publish_o))
    n = len(U)
    stop_at = idx["V3_7"]
    st = {"issued": min(W0, 4), "c": 0}
    def run_chunk():
        C[st["c"]][1](); st["c"] += 1
    def issue_upto(lim, arrived):
        while st["issued"] < n and st["issued"] < lim:
            k = st["issued"]
            nm, lines, nv, pre = U[k]
            if wolate and k > idx["V3_7"] + wolate - 1 and arrived < n - 1: return
            while pre is not None and pre not in consumed:
                if C[st["c"]][0] <= arrived: run_chunk()
                else:
                    print("WARNING: issue of", nm, "blocked at arrived", names[arrived]); return
            if WMAX and k >= dyn0 and arrived < n - 1 and k < endb:
                if k - WIN >= idx["V3_7"]: return
                lk = a.label("Li")
                a(f"s_cmp_gt_u32 s{sBOOST}, {k}")
                a(f"s_cbranch_scc1 {lk}")
                a(f"s_waitcnt vmcnt({sum(u[2] for u in U[k-WIN+1:k])})")
                if slow and k - WIN + 1 < idx["V3_7"]:
                    a(f"s_cmp_gt_u32 s{sSLOW}, {k}")
                    a(f"s_cbranch_scc0 {lk}")
                    a(f"s_waitcnt vmcnt({sum(u[2] for u in U[k-WIN+2:k])})")
                a(f"{lk}:")
            for x in lines: a(x)
            st["issued"] += 1
    issue_upto(W0, -1)
    arrived = STEP - 1
    while True:
        assert st["issued"] > arrived
        out = sum(u[2] for u in U[arrived + 1:st["issued"]])
        a(f"s_waitcnt vmcnt({min(out,63)})")
        if arrived % 8 == 7: stamp(arrived // 8 + 1, "u")
        EL = [3, 7, 11, 15, 19, 23, 27, 31, 47, idx["V3_7"]]
        if arrived in EL: stamp(EL.index(arrived) + 1, "e")
        if sc and arrived >= k0 and arrived < stop_at - 3:
            if (arrived - k0) % CK == 0: a("s_memrealtime s[36:37]")
            if (arrived - k0) % CK == 1:
                kk = st["issued"] - WIN - 1
                a(f"""
                s_waitcnt lgkmcnt(0)
                s_sub_u32 s36, s36, s{sM0}
                s_sub_i32 s36, s36, {CA + CB * kk // 10}
                s_ashr_i32 s36, s36, {gsh}
                s_add_i32 s{sBOOST}, s36, {st["issued"]}
                s_max_i32 s{sBOOST}, s{sBOOST}, 0
                """)
        if ctl and arrived > p1_at and arrived < stop_at - 4:
            if arrived % rf == 0: a(f"ds_read_b32 v{vE+7}, v{vE+6} offset:{L_CTL}")
            if arrived % rf == 1 and arrived - 1 > p1_at:
                a("s_waitcnt lgkmcnt(0)")
                a(f"v_readfirstlane_b32 s{sBOOST}, v{vE+7}")
        win = WIN if arrived < wsw else WEND
        if arrived < w1n: win = W1
        if arrived < stop_at: issue_upto(arrived + 1 + win, arrived)
        ran = 0
        while st["c"] < len(C) and C[st["c"]][0] <= arrived and (ran < 2 * STEP or arrived >= stop_at - 1):
            run_chunk(); ran += 1
        if arrived >= stop_at: break
        arrived = min(arrived + STEP, stop_at)
    assert st["c"] == len(C)
    late = sum(u[2] for u in U[st["issued"]:])
    issue_upto(n, n - 1)

    if notail: a("s_branch L_fin")
    if LT:
        a(f"""
        s_cmp_lt_u32 s{sSLOW}, {LT}
        s_cbranch_scc1 L_late2
        s_waitcnt vmcnt(0)
        """)
        if bk:
            a(f"""
            s_min_u32 s{sSLOW}, s{sSLOW}, 400
            L_bk:
            s_cmp_lt_u32 s{sSLOW}, {bk}
            s_cbranch_scc1 L_bkd
            s_sub_u32 s{sSLOW}, s{sSLOW}, 11
            s_sleep 4
            s_branch L_bk
            L_bkd:
            """)
        for l in h1: a(l)
        a("s_waitcnt vmcnt(0)")
        a("L_late2:")
        a(f"s_waitcnt vmcnt({late + 1})")
        stamp(7)
        tg = []
        for k in range(len(h1)): tg += [vH1 + 4 * k + 1, vH1 + 4 * k + 3]
        def between():
            pass
        poll(h1, tg, vA0, sleep1, first_issued=True)
    elif not early:
        if ack1 == 1: a("s_waitcnt vmcnt(0)")
        if h1d: a(f"s_sleep {h1d}")
        if ack1 == 2: a(f"s_waitcnt vmcnt({late})")
        if ack1 == 3: a(f"s_waitcnt vmcnt({late//2})")
        if oracle:
            a(f"""
            L_or:
            s_memrealtime s[{sM0}:{sM0+1}]
            s_waitcnt lgkmcnt(0)
            s_sub_u32 s{sT2}, s{sM0}, s{sST}
            s_cmp_ge_u32 s{sT2}, {oracle}
            s_cbranch_scc1 L_ord
            s_sleep 2
            s_branch L_or
            L_ord:
            """)
        if TH:
            a(f"""
            s_mov_b32 s{sCAP}, 0
            s_mov_b64 exec, 1
            s_waitcnt vmcnt({late + 1})
            L_gate:
            v_readfirstlane_b32 s{sT2}, v{vE+7}
            s_cmp_ge_u32 s{sT2}, {TH}
            s_cbranch_scc1 L_gated
            s_add_u32 s{sCAP}, s{sCAP}, 1
            s_cmp_gt_u32 s{sCAP}, 0x40000
            s_cbranch_scc1 L_gated
            s_sleep {gsleep}
            global_load_dword v{vE+7}, v{vE+6}, s[66:67] offset:32 sc1
            s_waitcnt vmcnt(0)
            s_branch L_gate
            L_gated:
            s_mov_b64 exec, -1
            """)
        for l in h1: a(l)
        a(f"s_waitcnt vmcnt({len(h1) + 1 if late == 0 else len(h1)})")
    else:
        a(f"s_waitcnt vmcnt({1 if late == 0 else 0})")
    def woperm():
        wperm(PW, WOR)
        for k in range(4): a(f"v_mov_b32 v{vS+8+k}, 0")
    if not LT:
        woperm()
        if not early: a("s_waitcnt vmcnt(0)")
        stamp(7)
        tg = []
        for k in range(len(h1)): tg += [vH1 + 4 * k + 1, vH1 + 4 * k + 3]
        poll(h1, tg, vA0, sleep1, first_issued=True)
    stamp(8)
    if pk:
        for r in (0, 2, 4, 6):
            a(f"v_and_b32 v{vH1+r+1}, 0xffff0000, v{vH1+r}")
            a(f"v_lshlrev_b32 v{vH1+r}, 16, v{vH1+r}")
        for r in range(4): a(f"v_add_f32 v{vH1+r}, v{vH1+r}, v{vH1+r+4}")
        a(f"""
        v_permlane32_swap_b32 v{vH1}, v{vH1+2}
        v_permlane32_swap_b32 v{vH1+1}, v{vH1+3}
        v_add_f32 v{vH1}, v{vH1}, v{vH1+2}
        v_add_f32 v{vH1+1}, v{vH1+1}, v{vH1+3}
        v_permlane16_swap_b32 v{vH1}, v{vH1+1}
        v_add_f32 v{vH1}, v{vH1}, v{vH1+1}
        """)
    else:
        a(f"""
        v_add_f32 v{vH1}, v{vH1}, v{vH1+4}
        v_add_f32 v{vH1+2}, v{vH1+2}, v{vH1+6}
        v_add_f32 v{vH1+8}, v{vH1+8}, v{vH1+12}
        v_add_f32 v{vH1+10}, v{vH1+10}, v{vH1+14}
        v_add_f32 v{vH1}, v{vH1}, v{vH1+8}
        v_add_f32 v{vH1+2}, v{vH1+2}, v{vH1+10}
        v_permlane32_swap_b32 v{vH1}, v{vH1+2}
        v_add_f32 v{vH1}, v{vH1}, v{vH1+2}
        """)
    a(f"""
    ds_write_b32 v{vQ+7}, v{vH1} offset:{L_RED1}
    """)
    a(f"""
    s_waitcnt lgkmcnt(0)
    s_barrier
    """)
    for k in range(2): a(f"ds_read_b64 {vr(vS+2*k,2)}, v{vKO} offset:{L_RED1+256*k}")
    if LT:
        a("s_waitcnt vmcnt(0)")
        woperm()
    a(f"""
    s_waitcnt lgkmcnt(0)
    v_add_f32 v{vS}, v{vS}, v{vS+2}
    v_add_f32 v{vS+1}, v{vS+1}, v{vS+3}
    v_add_f32_dpp v{vS}, v{vS}, v{vS} row_ror:4 {DPP}
    v_add_f32_dpp v{vS+1}, v{vS+1}, v{vS+1} row_ror:4 {DPP}
    v_add_f32_dpp v{vS}, v{vS}, v{vS} row_ror:8 {DPP}
    v_add_f32_dpp v{vS+1}, v{vS+1}, v{vS+1} row_ror:8 {DPP}
    v_cvt_pk_bf16_f32 v{vA0}, v{vS}, v{vS+1}
    """)
    dot16(PW, vA0, vS + 8)
    for k in range(4): a(f"v_fmac_f32 v{vBP+k}, v{vS+8+k}, v{vE+2}")
    a(f"""
    v_permlane32_swap_b32 v{vBP}, v{vBP+2}
    v_permlane32_swap_b32 v{vBP+1}, v{vBP+3}
    v_add_f32 v{vBP}, v{vBP}, v{vBP+2}
    v_add_f32 v{vBP+1}, v{vBP+1}, v{vBP+3}
    v_permlane16_swap_b32 v{vBP}, v{vBP+1}
    v_add_f32 v{vE}, v{vBP}, v{vBP+1}
    s_cmp_lt_u32 s{sWV}, 4
    s_cbranch_scc1 L_lo
    ds_write_b32 v{vE+4}, v{vE} offset:{L_RED3}
    s_waitcnt lgkmcnt(0)
    s_barrier
    s_branch L_st
    L_lo:
    s_barrier
    ds_read_b32 v{vA0}, v{vE+4} offset:{L_RED3}
    s_waitcnt lgkmcnt(0)
    v_add_f32 v{vE}, v{vE}, v{vA0}
    buffer_store_dwordx2 {vr(vE,2)}, v{vWFO}, {srd(WS_)}, s{sPB} offen sc1
    L_st:
    """)
    stamp(9)
    a(f"s_cmp_ge_u32 s2, 64")
    a(f"s_cbranch_scc1 L_fin")
    if ack2: a("s_waitcnt vmcnt(0)")
    h2 = [f"buffer_load_dwordx4 {vr(vS,4)}, v{vQ+6}, {srd(WS_)}, s{sA} offen sc1"]
    poll(h2, [vS + 1, vS + 3], vA0, sleep1)
    stamp(10)
    a(f"""
    v_permlane32_swap_b32 v{vS}, v{vS+2}
    v_add_f32 v{vS}, v{vS}, v{vS+2}
    v_add_f32_dpp v{vS}, v{vS}, v{vS} row_ror:8 {DPP}
    v_mov_b32 v{vA1}, v{vS}
    v_permlane16_swap_b32 v{vS}, v{vA1}
    v_add_f32 v{vS}, v{vS}, v{vA1}
    v_and_b32 v{vA0}, 7, v{vL}
    v_lshrrev_b32 v{vA2}, 5, v{vL}
    v_lshlrev_b32 v{vA2}, 2, v{vA2}
    v_lshl_add_u32 v{vA0}, v{vA0}, 3, v{vA2}
    s_lshl_b32 s{sT0}, s{sWV}, 6
    v_add_u32 v{vA0}, s{sT0}, v{vA0}
    ds_write_b32 v{vA0}, v{vS} offset:{L_RED2}
    s_waitcnt lgkmcnt(0)
    s_barrier
    s_cmp_lg_u32 s{sWV}, 0
    s_cbranch_scc1 L_fin
    ds_read_b64 {vr(vS,2)}, v{vQ+5} offset:{L_RED2}
    v_lshlrev_b32 v{vA2}, 2, v{vL}
    s_lshl_b32 s{sT0}, s2, 5
    s_waitcnt lgkmcnt(0)
    """)
    red2_bits345(vS, vS + 1, vA0, vA1)
    a(f"""
    v_cvt_pk_bf16_f32 v{vA0}, v{vS}, v{vS+1}
    s_mov_b64 exec, 0xff
    buffer_store_dword v{vA0}, v{vA2}, {srd(OUT_)}, s{sT0} offen
    s_cmp_lg_u32 s2, 0
    s_cbranch_scc1 L_fin
    s_mov_b64 exec, 1
    buffer_store_dword v{vTAG}, off, {srd(WS_)}, 0 sc1
    """)
    if fixm:
        a(f"""
        s_load_dword s6, s[66:67], 48 glc
        s_waitcnt lgkmcnt(0)
        s_not_b32 s6, s6
        L_fm:
        s_memrealtime s[4:5]
        s_waitcnt lgkmcnt(0)
        s_sub_u32 s4, s4, s6
        s_cmp_ge_u32 s4, {fixm}
        s_cbranch_scc1 L_fin
        s_sleep 1
        s_branch L_fm
        """)
    if dbg:
        a("s_waitcnt vmcnt(0)")
        a(f"s_memrealtime s[{sST+22}:{sST+23}]")
        a("s_waitcnt lgkmcnt(0)")
        a(f"v_mov_b32 v{vA1}, 0")
        for j in range(1, 12):
            a(f"s_sub_u32 s{sT0}, s{sST+2*j}, s{sST}")
            a(f"v_mov_b32 v{vA0}, s{sT0}")
            a(f"global_store_dword v{vA1}, v{vA0}, s[66:67] offset:{4*(j-1)}")
    a("L_fin:")
    if fix:
        a(f"""
        L_fx:
        s_memrealtime s[4:5]
        s_waitcnt lgkmcnt(0)
        s_sub_u32 s4, s4, s{sM0}
        s_cmp_ge_u32 s4, {fix}
        s_cbranch_scc1 L_fxd
        s_sleep 1
        s_branch L_fx
        L_fxd:
        """)
    if stamps and not dbg:
        a("s_mov_b64 exec, -1")
        a("s_waitcnt vmcnt(0)")
        a(f"s_memrealtime s[{sST+22}:{sST+23}]")
        a(f"s_mul_i32 s{sT0}, s2, 9")
        a(f"s_add_u32 s{sT0}, s{sT0}, s{sWV}")
        a(f"s_mul_i32 s{sT0}, s{sT0}, {NS*8}")
        a(f"s_add_u32 s{sT0}, s{sT0}, {STAMP_OFF}")
        a("s_waitcnt lgkmcnt(0)")
        a("s_mov_b64 exec, 1")
        for j in range(NS):
            a(f"v_mov_b32 v{vA0}, s{sST+2*j}")
            a(f"v_mov_b32 v{vA1}, s{sST+2*j+1}")
            a(f"buffer_store_dwordx2 {vr(vA0,2)}, off, {srd(WS_)}, s{sT0} offset:{8*j}")
    a("L_end:")
    a("s_endpgm")

    cX = vACC; cG = vACC + 8
    a(f"""
    L_comm:
    s_setprio 3
    s_mov_b32 s{sSLOW}, 0
    v_mov_b32 v{vA0}, 0
    v_lshlrev_b32 v{vT4}, 2, v{vL}
    s_mov_b64 exec, 0xffff
    ds_write_b32 v{vT4}, v{vA0}
    s_mov_b64 exec, -1
    s_mov_b32 s{GW_+2}, 2048
    s_mov_b32 s{GW_+3}, 0x20000
    s_waitcnt lgkmcnt(0)
    s_barrier
    s_load_dword s{sC}, s[{WS_}:{WS_+1}], 0
    s_load_dword s{sSELLO}, s[94:95], 0
    s_mov_b64 s[{X_}:{X_+1}], s[76:77]
    s_mov_b64 s[{GW_}:{GW_+1}], s[94:95]
    s_mov_b64 s[66:67], s[98:99]
    """)
    if fixm:
        a(f"s_not_b32 s8, s{sM0}")
        a("s_atomic_umax s8, s[66:67], 48")
        a(f"s_mov_b32 s9, s{sM0}")
        a("s_atomic_umax s9, s[66:67], 52")
    a(f"s_lshl_b32 s8, s{sG}, 6")
    a("s_add_u32 s66, s66, s8")
    a("s_addc_u32 s67, s67, 0")
    def cp_time():
        if ctl >= 2: a("s_memrealtime s[4:5]")
    def checkpoint(k, unit, allwg):
        if ctl < 2 or str(k) not in str(cps): return
        sk = a.label("Lcp")
        if not allwg:
            a(f"s_cmp_ge_u32 s{sLC}, 56")
            a(f"s_cbranch_scc1 {sk}")
        a(f"""
        v_mov_b32 v{vA0}, 0
        s_waitcnt lgkmcnt(0)
        s_mov_b32 s6, s4
        s_mov_b32 s7, 0x10000
        s_atomic_add_x2 s[6:7], s[66:67], {8*k} glc
        s_mov_b64 exec, 1
        s_waitcnt lgkmcnt(0)
        s_lshr_b32 s7, s7, 16
        s_mul_i32 s4, s4, s7
        s_sub_u32 s4, s4, s6
        s_max_u32 s7, s7, 1
        v_cvt_f32_i32 v{vA1}, s4
        v_cvt_f32_u32 v{vA2}, s7
        v_rcp_f32 v{vA2}, v{vA2}
        v_mul_f32 v{vA1}, v{vA1}, v{vA2}
        v_subrev_f32 v{vA1}, {hex(f2u(margin))}, v{vA1}
        v_mul_f32 v{vA1}, {hex(f2u(1.0/gain))}, v{vA1}
        v_cmp_lt_f32 vcc, 1.0, v{vA1}
        v_add_f32 v{vA1}, {hex(f2u(unit + lead))}, v{vA1}
        v_cvt_u32_f32 v{vA1}, v{vA1}
        v_cndmask_b32 v{vA1}, 0, v{vA1}, vcc
        ds_write_b32 v{vA0}, v{vA1} offset:{L_CTL}
        s_mov_b64 exec, -1
        {sk}:
        """)
    if touch:
        a(f"""
        s_mul_i32 s4, s{sR8}, {128*7168}
        s_load_dword s8, s[88:89], s4
        s_load_dword s9, s[90:91], s4
        s_add_u32 s4, s4, {127*7168}
        s_load_dword s10, s[88:89], s4
        s_load_dword s11, s[90:91], s4
        s_min_u32 s4, s{sLC}, 55
        s_lshl_b32 s4, s4, 17
        s_load_dword s12, s[92:93], s4
        s_lshl_b32 s4, s{sG}, 24
        s_lshl_b32 s5, s{sI}, 16
        s_add_u32 s4, s4, s5
        s_load_dword s13, s[78:79], s4
        """)
    cL8 = vQ; cPA = vQ + 1; cPF = vQ + 2; cQW = vQ + 3; cGP = vQ + 4; cQR = vQ + 6
    a(f"""
    v_lshlrev_b32 v{cL8}, 3, v{vL}
    v_lshrrev_b32 v{vA0}, 3, v{vL}
    v_and_b32 v{vA1}, 7, v{vL}
    v_lshlrev_b32 v{cPA}, 10, v{vA0}
    v_lshl_add_u32 v{cPA}, v{vA1}, 4, v{cPA}
    v_mul_u32_u24 v{cQR}, {64 if full else QREP}, v{vA0}
    v_lshl_add_u32 v{cQR}, v{vA1}, 3, v{cQR}
    v_lshrrev_b32 v{vA0}, 5, v{vL}
    v_and_b32 v{vA1}, 31, v{vL}
    v_lshlrev_b32 v{cPF}, 10, v{vA0}
    v_lshl_add_u32 v{cPF}, v{vA1}, 4, v{cPF}
    v_mul_u32_u24 v{vA0}, 272, v{vA0}
    v_lshl_add_u32 v{cQW}, v{vA1}, 3, v{vA0}
    v_add_u32 v{cGP}, {L_GP}, v{cL8}
    s_lshl_b32 s{sT1}, s{sCB}, 13
    s_add_u32 s{sT1}, s{sT1}, {WS_QP}
    s_lshl_b32 s{sT2}, s{sR8}, 10
    s_add_u32 s{sA}, s{sT1}, s{sT2}
    s_lshl_b32 s{sT2}, s{sR8}, 7
    s_add_u32 s{sPA}, s{sT1}, s{sT2}
    s_lshl_b32 s{sT1}, s{sCB}, {9+full}
    s_lshl_b32 s{sT2}, s{sR8}, {6+full}
    s_add_u32 s{sB}, s{sT1}, s{sT2}
    s_add_u32 s{sB}, s{sB}, {WS_QG}
    s_lshl_b32 s{sPB}, s{sG}, {12+full}
    s_add_u32 s{sPB}, s{sPB}, {WS_QG}
    s_and_b32 s{sT1}, s{sI}, 7
    s_mul_i32 s{sT1}, s{sT1}, {QREP if rep else 0}
    s_add_u32 s{sPB}, s{sPB}, s{sT1}
    """)
    if prer0:
        a(f"""
        v_lshlrev_b32 v{vA2}, 6, v{vL}
        s_mov_b64 exec, 0xffff
        buffer_load_dword v{vS}, v{vA2}, {srd(WS_)}, s{sA} offen
        s_mov_b64 exec, 1
        buffer_load_dword v{vS+1}, v{vA2}, {srd(WS_)}, s{sB} offen
        s_lshl_b32 s{sT1}, s{sCB}, 14
        s_lshl_b32 s{sT2}, s{sR8}, 11
        s_add_u32 s{sT1}, s{sT1}, s{sT2}
        s_add_u32 s{sT1}, s{sT1}, {WS_FG}
        s_mov_b32 exec_lo, -1
        buffer_load_dword v{vS+2}, v{vA2}, {srd(WS_)}, s{sT1} offen
        s_lshl_b32 s{sT1}, s2, 7
        s_add_u32 s{sT1}, s{sT1}, {WS_ML}
        s_mov_b64 exec, 3
        buffer_load_dword v{vS+3}, v{vA2}, {srd(WS_)}, s{sT1} offen
        s_mov_b64 exec, -1
        """)
    a(f"""
    s_waitcnt lgkmcnt(0)
    s_add_u32 s{sC}, s{sC}, 1
    v_mov_b32 v{vTAG}, s{sC}
    """)
    init_stamps()
    if nocomm:
        arrive(C_QS); arrive(C_H)
        a("s_waitcnt vmcnt(0) lgkmcnt(0)")
        a("s_branch L_fin" if stamps and not dbg else "s_endpgm")
    def sum8x2(base):
        for step in (2, 4, 8):
            for k in range(0, 16, 2 * step):
                a(f"v_add_f32 v{base+k}, v{base+k}, v{base+k+step}")
                a(f"v_add_f32 v{base+k+1}, v{base+k+1}, v{base+k+step+1}")
    def gp_publish(m, base, so, off):
        for k in range(4): a(f"ds_read2st64_b64 {vr(base+4*k,4)}, v{cGP} offset0:{8*m+2*k} offset1:{8*m+2*k+1}")
        a("s_waitcnt lgkmcnt(0)")
        sum8x2(base)
        a(f"v_mov_b32 v{base+2}, v{base+1}")
        a(f"v_mov_b32 v{base+1}, v{vTAG}")
        a(f"v_mov_b32 v{base+3}, v{vTAG}")
        if not (("q" in skip and m == 0) or ("f" in skip and m > 0)): a(f"buffer_store_dwordx4 {vr(base,4)}, v{vVO}, {srd(WS_)}, s{so} offen offset:{off}" + ("" if loc else " sc1"))
    if prer1:
        a("s_mov_b64 exec, 1")
        a(f"buffer_load_dword v{vS+3}, v{cL8}, {srd(WS_)}, s{sB} offen")
        a("s_mov_b64 exec, -1")
    wait_cnt(C_Q, 8, csleep)
    gp_publish(0, vT, sA, 0)
    stamp(1)
    qal = f"buffer_load_dwordx4 {vr(vE,4)}, v{cPA}, {srd(WS_)}, s{sPA} offen sc1"
    stamp(6, "a")
    a("s_waitcnt vmcnt(0)")
    stamp(7, "a")
    if adelay: a(f"s_sleep {adelay}")
    if 'q' not in skip: poll([qal], [vE + 1, vE + 3], vA0, asleep, wb=True)
    red2_bits345(vE, vE + 2, vA0, vA1)
    a(f"""
    v_cvt_pk_bf16_f32 v{vE}, v{vE}, v{vE+2}
    s_mov_b64 exec, {-1 if rep else (0xffff if full else 0xff)}
    """)
    if 'q' not in skip: a(f"buffer_store_dwordx2 {vr(vE,2)}, v{cQR}, {srd(WS_)}, s{sB} offen sc1")
    a("s_mov_b64 exec, -1")
    if "b" in SN:
        stamp(6, "b"); a("s_waitcnt vmcnt(0)"); stamp(7, "b")
    stamp(2)
    a(f"""
    buffer_load_dwordx4 {vr(cX,4)}, v{vVO}, {srd(X_)}, 0 offen
    buffer_load_dwordx4 {vr(cX+4,4)}, v{vVO}, {srd(X_)}, 0 offen offset:1024
    buffer_load_dwordx4 {vr(cG,4)}, v{vVO}, {srd(GW_)}, 0 offen
    buffer_load_dwordx4 {vr(cG+4,4)}, v{vVO}, {srd(GW_)}, 0 offen offset:1024
    s_lshl_b32 s{sKV}, s{sCB}, 14
    s_add_u32 s{sKV}, s{sKV}, {WS_FG}
    s_lshl_b32 s{sT2}, s{sR8}, 11
    s_add_u32 s{sA}, s{sKV}, s{sT2}
    s_and_b32 s{sT2}, s{sLC}, 1
    s_lshl_b32 s{sT2}, s{sT2}, 9
    s_add_u32 s{sKV}, s{sKV}, s{sT2}
    """)
    wait_cnt(C_F, 8, csleep)
    gp_publish(1, vT, sA, 0)
    gp_publish(2, vP, sA, 1024)
    if loc:
        a(f"""
        s_cmp_eq_u32 s{sSLOW}, 0
        s_cbranch_scc1 L_nwb
        s_waitcnt vmcnt(0)
        buffer_wbl2 sc1
        s_waitcnt vmcnt(0)
        L_nwb:
        """)
    if "a" in SN:
        stamp(8, "a"); a("s_waitcnt vmcnt(0)"); stamp(9, "a")
    a("s_waitcnt vmcnt(2)" if "f" not in skip else "s_waitcnt vmcnt(0)")
    a(f"v_mov_b32 v{vB0}, 0")
    for k in range(8):
        a(f"""
        v_lshlrev_b32 v{vA0}, 16, v{cX+k}
        v_and_b32 v{vA1}, 0xffff0000, v{cX+k}
        v_lshlrev_b32 v{vA2}, 16, v{cG+k}
        v_and_b32 v{vA3}, 0xffff0000, v{cG+k}
        v_mul_f32 v{vA0}, v{vA0}, v{vA2}
        v_mul_f32 v{vA1}, v{vA1}, v{vA3}
        v_cvt_pk_bf16_f32 v{vA0}, v{vA0}, v{vA1}
        v_lshlrev_b32 v{vA1}, 16, v{vA0}
        v_and_b32 v{vA0}, 0xffff0000, v{vA0}
        v_add_f32 v{vB0}, v{vB0}, v{vA0}
        v_add_f32 v{vB0}, v{vB0}, v{vA1}
        """)
    for nn_ in (1, 2, 4): a(f"v_add_f32_dpp v{vB0}, v{vB0}, v{vB0} row_ror:{nn_} {DPP}")
    red_bits345("add", vB0, vA3)
    a(f"""
    v_cvt_pk_bf16_f32 v{vA0}, v{vB0}, v{vB0}
    v_and_b32 v{vA0}, 0xffff0000, v{vA0}
    v_mul_f32 v{vA0}, {hex(f2u(-math.log2(math.e)))}, v{vA0}
    v_exp_f32 v{vA0}, v{vA0}
    v_add_f32 v{vA0}, 1.0, v{vA0}
    v_rcp_f32 v{vA0}, v{vA0}
    v_cvt_pk_bf16_f32 v{vA0}, v{vA0}, v{vA0}
    v_and_b32 v{vA0}, 0xffff0000, v{vA0}
    v_sub_f32 v{vA1}, 1.0, v{vA0}
    v_cvt_pk_bf16_f32 v{vA1}, v{vA1}, v{vA1}
    v_and_b32 v{vA1}, 0xffff0000, v{vA1}
    v_mov_b32 v{vA2}, 0
    s_mov_b64 exec, 1
    ds_write_b64 v{vA2}, {vr(vA0,2)} offset:{L_G}
    ds_write_b32 v{vA2}, v{vTAG} offset:{L_G+8}
    s_mov_b64 exec, -1
    """)
    wait_cnt(C_P1, cpn, 4)
    cp_time()
    ql = [f"buffer_load_dwordx4 {vr(vS+4*k,4)}, v{vVO}, {srd(WS_)}, s{sPB} offen offset:{1024*k} sc1" for k in range(4)]
    if full:
        a(f"v_lshrrev_b32 v{vQ+7}, 2, v{vL}")
        a(f"v_lshlrev_b32 v{vQ+7}, 6, v{vQ+7}")
        a(f"v_add_u32 v{vQ+7}, v{vQ+7}, v{vVO}")
        a(f"s_add_u32 s{sT1}, s{sPB}, 4096")
        ql = [f"buffer_load_dwordx4 {vr(vS+4*k,4)}, v{vQ+7}, {srd(WS_)}, s{sPB if k < 2 else sT1} offen offset:{2048*(k%2)} sc1" for k in range(4)]
    tg = []
    for k in range(4): tg += [vS + 4 * k + 1, vS + 4 * k + 3]
    if 'q' not in skip: poll(ql, tg, vA2, rsleep, wb=True)
    for k in range(4): a(f"v_mov_b32 v{vS+4*k+1}, v{vS+4*k+2}")
    for k in range(4): a(f"ds_write_b64 v{cQW}, {vr(vS+4*k,2)} offset:{L_QS+544*k}")
    arrive(C_QS)
    stamp(3)
    checkpoint(0, p1_at + 4, False)
    for k in range(1, 4): a(f"s_add_u32 s{sT0+k}, s{sKV}, {4096*k}")
    fl = [f"buffer_load_dwordx4 {vr(vS+4*k,4)}, v{cPF}, {srd(WS_)}, s{sKV if k < 2 else sT0+k//2} offen offset:{2048*(k%2)} sc1" for k in range(8)]
    tg = []
    for k in range(8): tg += [vS + 4 * k + 1, vS + 4 * k + 3]
    if 'f' not in skip: poll(fl, tg, vA2, rsleep, wb=True)
    for step in (4, 8, 16):
        for k in range(0, 32, 2 * step):
            a(f"v_add_f32 v{vS+k}, v{vS+k}, v{vS+k+step}")
            a(f"v_add_f32 v{vS+k+2}, v{vS+k+2}, v{vS+k+step+2}")
    a(f"""
    v_cvt_pk_bf16_f32 v{vA0}, v{vS}, v{vS+2}
    v_mov_b32 v{vA1}, v{vA0}
    v_permlane32_swap_b32 v{vA0}, v{vA1}
    v_lshlrev_b32 v{vA2}, 16, v{vA0}
    v_and_b32 v{vA0}, 0xffff0000, v{vA0}
    v_lshlrev_b32 v{vA3}, 16, v{vA1}
    v_and_b32 v{vA1}, 0xffff0000, v{vA1}
    v_max_f32 v{vA2}, 0, v{vA2}
    v_max_f32 v{vA0}, 0, v{vA0}
    v_mul_f32 v{vA2}, v{vA2}, v{vA3}
    v_mul_f32 v{vA0}, v{vA0}, v{vA1}
    v_cvt_pk_bf16_f32 v{vA0}, v{vA2}, v{vA0}
    s_mov_b64 exec, 0xffffffff
    ds_write_b32 v{vT4}, v{vA0} offset:{L_H}
    s_mov_b64 exec, -1
    """.replace("s_mov_b64 exec, 0xffffffff", "s_mov_b32 exec_hi, 0"))
    arrive(C_H)
    stamp(4)
    if prer:
        assert pk
        sh = 7 if prer & 4 else 6
        a(f"""
        v_lshlrev_b32 v{vA2}, {sh}, v{vL}
        s_lshl_b32 s{sT1}, s2, {LB}
        s_add_u32 s{sT1}, s{sT1}, {WS_OP}
        s_lshl_b32 s{sT3}, s{sRB}, 6
        s_add_u32 s{sT3}, s{sT3}, s{sPL}
        s_lshl_b32 s{sT3}, s{sT3}, 11
        s_add_u32 s{sT3}, s{sT3}, {WS_FP}
        """)
        if sh == 7: a("s_mov_b32 exec_hi, 0")
        if prer & 1: a(f"buffer_load_dword v{vS}, v{vA2}, {srd(WS_)}, s{sT1} offen")
        a("s_mov_b32 exec_hi, 0")
        if sh == 7: a("s_mov_b32 exec_lo, 0xffff")
        if prer & 2: a(f"buffer_load_dword v{vS+2}, v{vA2}, {srd(WS_)}, s{sT3} offen")
        a("s_mov_b64 exec, -1")
    if prew:
        for k in range(4): a(f"v_subrev_u32 v{vS+k}, 1, v{vTAG}")
        a(f"""
        s_lshl_b32 s{sT1}, s2, 13
        s_add_u32 s{sT1}, s{sT1}, {WS_OP}
        s_add_u32 s{sT2}, s{sT1}, 4096
        s_lshl_b32 s{sT3}, s{sRB}, 6
        s_add_u32 s{sT3}, s{sT3}, s{sPL}
        s_lshl_b32 s{sT3}, s{sT3}, 11
        s_add_u32 s{sT3}, s{sT3}, {WS_FP}
        """)
        for k in range(8):
            a(f"buffer_store_dwordx4 {vr(vS,4)}, v{vVO}, {srd(WS_)}, s{sT1 if k < 4 else sT2} offen offset:{1024*(k%4)} sc1")
            if k % 2 == 1: a("s_waitcnt vmcnt(0)")
        for k in range(2): a(f"buffer_store_dwordx4 {vr(vS,4)}, v{vVO}, {srd(WS_)}, s{sT3} offen offset:{1024*k} sc1")
    if ctl:
        wait_cnt(C_P3, cpn, 4)
        cp_time()
        checkpoint(1, p3_at, False)
    if 'm' in skip: a('s_branch L_fin')
    if lse:
        a(f"""
        s_lshl_b32 s{sA}, s2, {6+full}
        s_add_u32 s{sA}, s{sA}, {WS_ML}
        s_lshl_b32 s{sPA}, s{sG}, {12+full}
        s_add_u32 s{sPA}, s{sPA}, {WS_ML}
        s_add_u32 s{sT1}, s{sPA}, 4096
        v_lshrrev_b32 v{vQ+7}, 3, v{vL}
        v_lshlrev_b32 v{vQ+7}, 6, v{vQ+7}
        v_add_u32 v{vQ+7}, v{vQ+7}, v{cL8}
        """)
        if prer1:
            a("s_mov_b64 exec, 1")
            a(f"buffer_load_dword v{vS+3}, v{cL8}, {srd(WS_)}, s{sA} offen")
            a("s_mov_b64 exec, -1")
        wait_cnt(C_ST, 8, 4)
        if LT: a("s_memrealtime s[4:5]")
        a(f"ds_read_b64 {vr(vT,2)}, v{cL8} offset:{L_ST}")
        a("s_waitcnt lgkmcnt(0)")
        reduce_ml(vT, vT + 1, vB0, vA3)
        a(f"""
        v_log_f32 v{vB1}, v{vT+1}
        v_add_f32 v{vB0}, v{vB0}, v{vB1}
        v_mov_b32 v{vB1}, v{vTAG}
        v_mov_b32 v{vB2}, v{cL8}
        """)
        if LT and full:
            a(f"""
            v_writelane_b32 v{vB0}, s4, 8
            s_add_u32 s{sPB}, s{sPA}, 64
            v_lshlrev_b32 v{vQ+5}, 7, v{vL}
            """)
        elif LT:
            a(f"""
            s_mul_i32 s6, s2, 56
            s_sub_u32 s6, {WS_TS - WS_ML}, s6
            v_writelane_b32 v{vB0}, s4, 8
            v_writelane_b32 v{vB2}, s6, 8
            s_lshl_b32 s{sPB}, s{sG}, 9
            s_add_u32 s{sPB}, s{sPB}, {WS_TS}
            """)
        a(f"""
        s_mov_b64 exec, {0xffff if full else (0x1ff if LT else 0xff)}
        buffer_store_dwordx2 {vr(vB0,2)}, v{vB2}, {srd(WS_)}, s{sA} offen sc1
        s_mov_b64 exec, -1
        """)
        stamp(5)
        ml = [f"buffer_load_dwordx2 {vr(vS+2*k,2)}, v{cL8}, {srd(WS_)}, s{sPA} offen offset:{512*k} sc1" for k in range(8)]
        if "b" in SN:
            stamp(8, "b"); a("s_waitcnt vmcnt(0)"); stamp(9, "b")
        if full: ml = [f"buffer_load_dwordx2 {vr(vS+2*k,2)}, v{vQ+7}, {srd(WS_)}, s{sPA if k < 4 else sT1} offen offset:{1024*(k%4)} sc1" for k in range(8)]
        if LT: ml.append(f"buffer_load_dwordx2 {vr(vS+16,2)}, v{vQ+5 if full else cL8}, {srd(WS_)}, s{sPB} offen sc1")
        wait_cnt(C_P2, cpn, 4)
        poll(ml, [vS + 2 * k + 1 for k in range(len(ml))], vA0, rsleep, wb=True)
        if LT:
            a(f"v_subrev_u32 v{vS+16}, s4, v{vS+16}")
            a(f"v_cvt_f32_i32 v{vS+16}, v{vS+16}")
            for nn_ in (1, 2, 4): a(f"v_max_f32_dpp v{vS+16}, v{vS+16}, v{vS+16} row_ror:{nn_} {DPP}")
            red_bits345("max", vS + 16, vA3)
            a(f"""
            v_cvt_u32_f32 v{vS+16}, v{vS+16}
            v_add_u32 v{vS+16}, 1, v{vS+16}
            v_mov_b32 v{vA2}, 0
            s_mov_b64 exec, 1
            ds_write_b32 v{vA2}, v{vS+16} offset:{L_LATE}
            s_mov_b64 exec, -1
            """)
        M = vE
        a(f"v_max3_f32 v{M}, v{vS}, v{vS+2}, v{vS+4}")
        a(f"v_max3_f32 v{M}, v{M}, v{vS+6}, v{vS+8}")
        a(f"v_max3_f32 v{M}, v{M}, v{vS+10}, v{vS+12}")
        a(f"v_max_f32 v{M}, v{M}, v{vS+14}")
        red_bits345("max", M, vA3)
        for k in range(8): a(f"v_sub_f32 v{vS+2*k}, v{vS+2*k}, v{M}")
        for k in range(8): a(f"v_exp_f32 v{vS+2*k}, v{vS+2*k}")
        a(f"v_add_f32 v{M+1}, v{vS}, v{vS+2}")
        for k in range(2, 8): a(f"v_add_f32 v{M+1}, v{M+1}, v{vS+2*k}")
        red_bits345("add", M + 1, vA3)
        a(f"""
        v_sub_f32 v{vA1}, v{vT}, v{M}
        v_exp_f32 v{vA1}, v{vA1}
        v_rcp_f32 v{vA2}, v{M+1}
        v_mul_f32 v{vA1}, v{vA1}, v{vA2}
        v_and_b32 v{vA2}, 7, v{vL}
        v_lshlrev_b32 v{vA2}, 5, v{vA2}
        v_lshrrev_b32 v{vA3}, 3, v{vL}
        v_lshl_add_u32 v{vA2}, v{vA3}, 2, v{vA2}
        ds_write_b32 v{vA2}, v{vA1} offset:{L_F}
        s_waitcnt lgkmcnt(0)
        """)
    else:
        a(f"""
        s_lshl_b32 s{sA}, s2, 7
        s_add_u32 s{sA}, s{sA}, {WS_ML}
        s_lshl_b32 s{sPA}, s{sG}, 13
        s_add_u32 s{sPA}, s{sPA}, {WS_ML}
        s_and_b32 s{sT1}, s{sI}, 7
        s_mul_i32 s{sT1}, s{sT1}, {MREP if rep else 0}
        s_add_u32 s{sPA}, s{sPA}, s{sT1}
        s_add_u32 s{sPB}, s{sPA}, 4096
        v_lshrrev_b32 v{vQ+5}, 3, v{vL}
        v_mul_u32_u24 v{vQ+5}, {MREP}, v{vQ+5}
        v_and_b32 v{vA3}, 7, v{vL}
        v_lshl_add_u32 v{vQ+5}, v{vA3}, 4, v{vQ+5}
        """)
        wait_cnt(C_ST, 8, 8)
        a(f"ds_read_b64 {vr(vT,2)}, v{cL8} offset:{L_ST}")
        a("s_waitcnt lgkmcnt(0)")
        reduce_ml(vT, vT + 1, vB0, vA3)
        a(f"""
        v_mov_b32 v{vB1}, v{vTAG}
        v_mov_b32 v{vB2}, v{vT+1}
        v_mov_b32 v{vB3}, v{vTAG}
        s_mov_b64 exec, {-1 if rep else 0xff}
        buffer_store_dwordx4 {vr(vB0,4)}, v{vQ+5}, {srd(WS_)}, s{sA} offen sc1
        s_mov_b64 exec, -1
        """)
        stamp(5)
        cp_time()
        checkpoint(2, kend + 3, False)
        ml = [f"buffer_load_dwordx4 {vr(vS+4*k,4)}, v{vVO}, {srd(WS_)}, s{sPA if k < 4 else sPB} offen offset:{1024*(k%4)} sc1" for k in range(8)]
        tg = []
        for k in range(8): tg += [vS + 4 * k + 1, vS + 4 * k + 3]
        wait_cnt(C_P2, cpn, 4)
        poll(ml, tg, vA0, rsleep, wb=True)
        M = vE
        a(f"v_max3_f32 v{M}, v{vS}, v{vS+4}, v{vS+8}")
        a(f"v_max3_f32 v{M}, v{M}, v{vS+12}, v{vS+16}")
        a(f"v_max3_f32 v{M}, v{M}, v{vS+20}, v{vS+24}")
        a(f"v_max_f32 v{M}, v{M}, v{vS+28}")
        red_bits345("max", M, vA3)
        for k in range(8): a(f"v_sub_f32 v{vS+4*k}, v{vS+4*k}, v{M}")
        for k in range(8): a(f"v_exp_f32 v{vS+4*k}, v{vS+4*k}")
        a(f"v_mul_f32 v{M+1}, v{vS}, v{vS+2}")
        for k in range(1, 8): a(f"v_fmac_f32 v{M+1}, v{vS+4*k}, v{vS+4*k+2}")
        red_bits345("add", M + 1, vA3)
        a(f"""
        v_sub_f32 v{vA1}, v{vT}, v{M}
        v_exp_f32 v{vA1}, v{vA1}
        v_rcp_f32 v{vA2}, v{M+1}
        v_mul_f32 v{vA1}, v{vA1}, v{vA2}
        v_and_b32 v{vA2}, 7, v{vL}
        v_lshlrev_b32 v{vA2}, 5, v{vA2}
        v_lshrrev_b32 v{vA3}, 3, v{vL}
        v_lshl_add_u32 v{vA2}, v{vA3}, 2, v{vA2}
        ds_write_b32 v{vA2}, v{vA1} offset:{L_F}
        s_waitcnt lgkmcnt(0)
        """)
    if stamps and not dbg: a("s_branch L_fin")
    else: a("s_endpgm")
    ci = [k for k, l in enumerate(a.lines) if l.strip() == "L_comm:"][0]
    if "S" in skip: a.lines = a.lines[:ci] + [l for l in a.lines[ci:] if "buffer_store" not in l]
    if "L" in skip: a.lines = a.lines[:ci] + [l for l in a.lines[ci:] if not ("buffer_load" in l and "sc1" in l)]
    if "X" in skip: a.lines = a.lines[:ci] + [l for l in a.lines[ci:] if not ("buffer_load" in l and "sc1" not in l)]
    if "O" in skip: a.lines = [l for l in a.lines[:ci] if not ("buffer_store" in l and "sc1" in l)] + a.lines[ci:]
    ci = [k for k, l in enumerate(a.lines) if l.strip() == "L_comm:"][0]
    if stf != "sc1": a.lines = a.lines[:ci] + [l.replace(" sc1", " " + stf.replace("+", " ").replace("plain", "")) if "buffer_store" in l else l for l in a.lines[ci:]]
    if "S" in skip or "L" in skip: a.lines = a.lines[:ci] + [l.replace("0x40000", "0") if "s_cmp_gt" in l and "0x400000" not in l else l for l in a.lines[ci:]]
    lines = hazard.fix([l for l in a.lines if not l.strip().startswith(";")])
    return wrap_single("\n".join(lines), 256, 576, lds, NVGPR, header=HEADER)

if __name__ == "__main__":
    out = sys.argv[1]
    kw = {}
    for s in sys.argv[2:]:
        k, v = s.split("=")
        try: v = int(v)
        except: pass
        kw[k] = v
    open(out, "w").write(gen(**kw))
```

```python
import sys, math, struct
from asmlib import *
import hazard
def f2u(x): return struct.unpack("<I", struct.pack("<f", x))[0]
HEADER = open("cdna_kernels/" + NAME + ".s.ref").read().split("; Override launch")[0]

WS_QG = 0x10000
WS_ML = 0x8000
WS_QP = 0x40000
WS_FG = 0x80000
WS_OP = 0x100000
WS_FP = 0x200000
WS_SIZE = 0x280000
STAMP_OFF = 128 << 20
C_Q, C_F, C_QS, C_ST, C_H, C_P1, C_P2 = 0, 4, 8, 12, 16, 20, 24
L_H = 64
L_G = 192
L_GP = 256
L_QS = L_GP + 3 * 4096
L_ST = L_QS + 2176
L_F = L_ST + 512
L_RED1 = L_F + 256
L_RED2 = L_RED1 + 2048
L_RED3 = L_RED2 + 512
L_ORED = L_RED3 + 1024
L_END = L_ORED + 8 * 4224
sWV = 3
K_, V_, WQ_, WO_, WG_, WU_, WD_, X_, GW_, WS_, OUT_ = 4, 8, 12, 16, 20, 24, 28, 32, 36, 40, 44
def srd(b): return f"s[{b}:{b+3}]"
sG, sI, sPA, sPB, sKV = 48, 49, 50, 51, 52
sT0, sT1, sT2, sT3 = 53, 54, 55, 56
sSELLO, sSELHI, sC, sCAP, sA, sB, sKS = 57, 58, 59, 60, 61, 62, 63
sM0 = 64
sWD, sBOOST = 66, 67
sRB, sLC, sR8, sCB, sH1, sH1b, sPL, sXV = 68, 69, 70, 71, 72, 73, 74, 75
sST = 76
sCK = 36
sWB = 67
vL, vWDO, vT16, vTAG, vKO, vVO, vWOO, vWFO = 0, 1, 2, 3, 4, 5, 6, 7
vA0, vA1, vA2, vA3, vB0, vB1, vB2, vB3 = 8, 9, 10, 11, 12, 13, 14, 15
vT, vQ, vE, vP, vS, vACC, vR, vBP, vSP = 16, 32, 40, 48, 64, 96, 128, 160, 164
NVGPR = 168

def gen(WIN=3, WMAX=5, dyn0=10, stamps=0, sn="d", lds=82440, q_at=26, p1_at=19, p2_at=61, CA=140, CB=275, CK=6, gsh=2, k0=8,
        ca=2, cb=2, h1first=0, prer=2, fix=0, nfail=8, sleep1=2, csleep=1, asleep=4, rsleep=16, ackA=1, ack2=1, ex=3, cpn=6,
        notail=0, ncov=8, h1d=0, gt=0, CA2=None, lv=0, WLO=3, sp=0, ev=0):
    a = Asm()
    SN = set(str(sn).split("+"))
    NS = 12
    def stamp(k, name="d"):
        if stamps and name in SN: a(f"s_memrealtime s[{sST+2*k}:{sST+2*k+1}]")
    def vr(b, n): return f"v[{b}:{b+n-1}]"
    DPP = "row_mask:0xf bank_mask:0xf"
    def red_bits45(op, v, t):
        for sw in ("16", "32"):
            a(f"v_mov_b32 v{t}, v{v}")
            a(f"v_permlane{sw}_swap_b32 v{v}, v{t}")
            a(f"v_{op}_f32 v{v}, v{v}, v{t}")
    def red_bits345(op, v, t):
        a(f"v_{op}_f32_dpp v{v}, v{v}, v{v} row_ror:8 {DPP}")
        red_bits45(op, v, t)
    def red2_bits345(v0, v1, t0, t1):
        a(f"v_add_f32_dpp v{v0}, v{v0}, v{v0} row_ror:8 {DPP}")
        a(f"v_add_f32_dpp v{v1}, v{v1}, v{v1} row_ror:8 {DPP}")
        for sw in ("16", "32"):
            a(f"v_mov_b32 v{t0}, v{v0}")
            a(f"v_mov_b32 v{t1}, v{v1}")
            a(f"v_permlane{sw}_swap_b32 v{v0}, v{t0}")
            a(f"v_permlane{sw}_swap_b32 v{v1}, v{t1}")
            a(f"v_add_f32 v{v0}, v{v0}, v{t0}")
            a(f"v_add_f32 v{v1}, v{v1}, v{t1}")
    def tred4(v, dst):
        a(f"""
        v_permlane32_swap_b32 v{v}, v{v+2}
        v_permlane32_swap_b32 v{v+1}, v{v+3}
        v_add_f32 v{v}, v{v}, v{v+2}
        v_add_f32 v{v+1}, v{v+1}, v{v+3}
        v_permlane16_swap_b32 v{v}, v{v+1}
        v_add_f32 v{dst}, v{v}, v{v+1}
        """)
    def arrive(cnt):
        a(f"""
        v_mov_b32 v{vA0}, {cnt}
        v_mov_b32 v{vA1}, 1
        s_waitcnt lgkmcnt(0)
        s_mov_b64 exec, 1
        ds_add_u32 v{vA0}, v{vA1}
        s_mov_b64 exec, -1
        """)
    def wait_cnt(cnt, val, sl=1):
        l = a.label("Lw"); d = a.label("Lwd")
        a(f"""
        v_mov_b32 v{vA0}, {cnt}
        s_mov_b32 s{sCAP}, 0
        {l}:
        ds_read_b32 v{vA1}, v{vA0}
        s_waitcnt lgkmcnt(0)
        v_readfirstlane_b32 s{sT0}, v{vA1}
        s_cmp_ge_u32 s{sT0}, {val}
        s_cbranch_scc1 {d}
        s_add_u32 s{sCAP}, s{sCAP}, 1
        s_cmp_gt_u32 s{sCAP}, 0x400000
        s_cbranch_scc1 {d}
        s_sleep {sl}
        s_branch {l}
        {d}:
        """)
    def poll(loads, tagregs, tmp, sleep, first_issued=False, wb=False):
        lc = a.label("Lchk"); ld = a.label("Ldone")
        a(f"s_mov_b32 s{sCAP}, 0")
        if not first_issued:
            for l in loads: a(l)
            a("s_waitcnt vmcnt(0)")
        a(f"{lc}:")
        a(f"v_xor_b32 v{tmp}, v{tagregs[0]}, v{vTAG}")
        rest = list(tagregs[1:])
        for r in rest:
            a(f"v_xor_b32 v{tmp+1}, v{r}, v{vTAG}")
            a(f"v_or_b32 v{tmp}, v{tmp}, v{tmp+1}")
        a(f"v_cmp_ne_u32 vcc, 0, v{tmp}")
        a(f"s_and_b64 exec, exec, vcc")
        a(f"s_cbranch_scc0 {ld}")
        a(f"s_add_u32 s{sCAP}, s{sCAP}, 1")
        a(f"s_cmp_gt_u32 s{sCAP}, 0x40000")
        a(f"s_cbranch_scc1 {ld}")
        if wb:
            lw = a.label("Lnw")
            a(f"s_and_b32 s{sT0}, s{sCAP}, {nfail-1}")
            a(f"s_cbranch_scc1 {lw}")
            a("buffer_wbl2 sc1")
            a("s_waitcnt vmcnt(0)")
            a(f"s_mov_b32 s{sWB}, 1")
            a(f"{lw}:")
        if sleep: a(f"s_sleep {sleep}")
        for l in loads: a(l)
        a("s_waitcnt vmcnt(0)")
        a(f"s_branch {lc}")
        a(f"{ld}:")
        a("s_mov_b64 exec, -1")
    def sum8(base):
        for step in (1, 2, 4):
            for k in range(0, 8, 2 * step): a(f"v_add_f32 v{base+k}, v{base+k}, v{base+k+step}")
    def init_stamps():
        if stamps:
            for k in range(NS): a(f"s_mov_b64 s[{sST+2*k}:{sST+2*k+1}], s[{sM0}:{sM0+1}]")

    a(f"""
    s_cmp_ge_u32 s2, 256
    s_cbranch_scc1 L_end
    s_load_dwordx16 s[76:91], s[0:1], 0
    s_load_dwordx8 s[92:99], s[0:1], 64
    s_load_dwordx2 s[{WS_}:{WS_+1}], s[0:1], 96
    s_memrealtime s[{sM0}:{sM0+1}]
    v_lshrrev_b32 v{vA0}, 6, v0
    v_lshlrev_b32 v{vT16}, 4, v0
    v_readfirstlane_b32 s{sWV}, v{vA0}
    v_and_b32 v{vL}, 63, v0
    s_lshr_b32 s{sG}, s2, 6
    s_and_b32 s{sI}, s2, 63
    s_bfe_u32 s{sR8}, s2, 0x30003
    s_and_b32 s{sT0}, s2, 7
    s_lshl_b32 s{sT1}, s{sG}, 1
    s_xor_b32 s{sT0}, s{sT0}, s{sT1}
    s_lshl_b32 s{sT0}, s{sT0}, 2
    s_or_b32 s{sCB}, s{sT0}, s{sG}
    s_mov_b32 s{X_+2}, 2048
    s_mov_b32 s{X_+3}, 0x20000
    v_lshlrev_b32 v{vVO}, 4, v{vL}
    s_cmp_eq_u32 s{sWV}, 8
    s_cbranch_scc1 L_comm
    s_mov_b32 s{WQ_+2}, {1024*8192}
    s_mov_b32 s{WQ_+3}, 0x20000
    v_lshrrev_b32 v{vA0}, 4, v{vL}
    v_and_b32 v{vA1}, 15, v{vL}
    v_lshlrev_b32 v{vA1}, 4, v{vA1}
    v_lshl_add_u32 v{vA3}, v{vA0}, 15, v{vA1}
    v_lshlrev_b32 v{vA2}, 3, v{vA0}
    s_lshl_b32 s{sT3}, s{sR8}, 3
    s_add_u32 s{sT3}, s{sT3}, s{sWV}
    s_lshl_b32 s{sT0}, s{sCB}, 8
    s_lshl_b32 s{sA}, s{sT3}, 17
    s_add_u32 s{sA}, s{sA}, s{sT0}
    s_mul_i32 s{sB}, s{sT3}, {16*7168}
    s_add_u32 s{sB}, s{sB}, s{sT0}
    s_lshl_b32 s{sT3}, s{sT3}, 5
    s_add_u32 s{sT0}, s{sA}, 8192
    s_add_u32 s{sT1}, s{sA}, 16384
    s_add_u32 s{sT2}, s{sA}, 24576
    s_waitcnt lgkmcnt(0)
    s_mov_b64 s[{WQ_}:{WQ_+1}], s[82:83]
    s_mov_b64 s[{X_}:{X_+1}], s[76:77]
    """)
    R0, R1, A0, A1 = vR, vR + 16, vACC, vACC + 16
    WQR, WGR, WUR = R0, R1, A0
    vXP = vB0
    a(f"buffer_load_dwordx2 {vr(vXP,2)}, v{vA2}, {srd(X_)}, s{sT3} offen")
    for j in range(4): a(f"buffer_load_dwordx4 {vr(WQR+4*j,4)}, v{vA3}, {srd(WQ_)}, s{[sA,sT0,sT1,sT2][j]} offen nt")
    def roles():
        a(f"""
        s_and_b32 s{sRB}, s{sR8}, 3
        s_lshr_b32 s{sLC}, s{sR8}, 2
        s_lshl_b32 s{sT0}, s{sCB}, 1
        s_or_b32 s{sLC}, s{sLC}, s{sT0}
        s_lshr_b32 s{sPL}, s2, 5
        s_lshl_b32 s{sPL}, s{sPL}, 3
        s_and_b32 s{sT0}, s2, 7
        s_or_b32 s{sPL}, s{sPL}, s{sT0}
        s_mov_b32 s{WS_+2}, {WS_SIZE if not stamps else (256<<20)}
        s_mov_b32 s{WS_+3}, 0x20000
        """)
    vX = vT; vGA = vT + 8
    a(f"""
    v_mul_u32_u24 v{vWFO}, {4*7168}, v{vA0}
    v_add_u32 v{vWFO}, v{vWFO}, v{vA1}
    s_cmp_lt_u32 s{sCB}, 28
    s_cselect_b32 s{WG_+2}, {1024*7168}, 0
    s_cselect_b32 s{WU_+2}, {1024*7168}, 0
    s_cselect_b32 s{WD_+2}, {3584*2048}, 0
    s_mov_b32 s{WG_+3}, 0x20000
    s_mov_b32 s{WU_+3}, 0x20000
    s_mov_b64 s[{WG_}:{WG_+1}], s[88:89]
    s_mov_b64 s[{WU_}:{WU_+1}], s[90:91]
    s_mov_b64 s[{K_}:{K_+1}], s[78:79]
    s_mov_b64 s[{V_}:{V_+1}], s[80:81]
    s_mov_b64 s[{WO_}:{WO_+1}], s[84:85]
    s_mov_b64 s[{WD_}:{WD_+1}], s[92:93]
    s_mov_b64 s[{OUT_}:{OUT_+1}], s[96:97]
    s_mov_b32 s{K_+2}, 0x4000000
    s_mov_b32 s{K_+3}, 0x20000
    s_mov_b32 s{V_+2}, 0x4000000
    s_mov_b32 s{V_+3}, 0x20000
    s_mov_b32 s{WO_+2}, {4096*2048}
    s_mov_b32 s{WO_+3}, 0x20000
    s_mov_b32 s{WD_+3}, 0x20000
    s_mov_b32 s{OUT_+2}, 2048
    s_mov_b32 s{OUT_+3}, 0x20000
    s_mov_b32 s{sSELLO}, 0x05040100
    s_mov_b32 s{sSELHI}, 0x07060302
    s_mov_b32 s{sC}, {hex(f2u(128**-0.5 * math.log2(math.e)))}
    s_mov_b32 s{sBOOST}, {WIN if lv else 0}
    s_lshl_b32 s{sKV}, s{sG}, 24
    s_lshl_b32 s{sT0}, s{sI}, 16
    s_add_u32 s{sKV}, s{sKV}, s{sT0}
    s_lshl_b32 s{sT0}, s{sWV}, 13
    s_add_u32 s{sKV}, s{sKV}, s{sT0}
    s_lshl_b32 s{sT0}, s{sWV}, 10
    s_add_u32 s{sXV}, s{sKV}, s{sT0}
    s_and_b32 s{sT1}, s{sT0}, 4096
    s_add_u32 s{sKV}, s{sKV}, s{sT1}
    s_and_b32 s{sT0}, s{sT0}, 3072
    v_lshlrev_b32 v{vA2}, 1, v{vA1}
    v_lshl_add_u32 v{vA2}, v{vA0}, 3, v{vA2}
    s_lshl_b32 s{sT1}, s{sWV}, 9
    v_add_u32 v{vGA}, s{sT1}, v{vA2}
    v_and_b32 v{vA2}, 3, v{vL}
    v_lshlrev_b32 v{vA2}, 10, v{vA2}
    v_xor_b32 v{vA2}, s{sT0}, v{vA2}
    v_bfe_u32 v{vA3}, v{vL}, 2, 1
    v_lshl_add_u32 v{vA2}, v{vA3}, 8, v{vA2}
    v_bfe_u32 v{vA3}, v{vL}, 3, 1
    v_lshl_add_u32 v{vA2}, v{vA3}, 6, v{vA2}
    v_lshl_add_u32 v{vKO}, v{vA0}, 4, v{vA2}
    v_mov_b32 v{vE+6}, 0
    v_mov_b32 v{vE+7}, 0x40000000
    """)
    roles()
    init_stamps()
    for r in range(24): a(f"v_mov_b32 v{vS+r}, 0")
    a("s_barrier")

    U = []
    for j in range(4): U.append((f"wq{j}", None, 1, None))
    for nm, R, S_ in (("gate", WGR, WG_), ("up", WUR, WU_)):
        for j in range(4):
            U.append((f"{nm}{j}", [f"s_add_u32 s{sT3}, s{sB}, {j*7168}", f"buffer_load_dwordx4 {vr(R+4*j,4)}, v{vWFO}, {srd(S_)}, s{sT3} offen nt"], 1, None))
    WDQ = [vP, vP + 4, vP + 8, vSP]
    WOR = vT; PW = R0
    def wdunit(j, pre):
        if sp:
            U.append((f"wd{j}", [f"v_mov_b32_dpp v{vA2}, v{vE+5} row_newbcast:{j} {DPP}",
                      f"v_and_b32 v{vA3}, 0x7fff0000, v{vA2}", f"v_and_b32 v{vA2}, 0x7fff, v{vA2}",
                      f"v_cmp_ne_u32 vcc, 0, v{vA2}", f"v_cndmask_b32 v{vA2}, v{vE+7}, v{vWDO}, vcc",
                      f"v_cmp_ne_u32 vcc, 0, v{vA3}", f"v_cndmask_b32 v{vA3}, v{vE+7}, v{vWDO}, vcc",
                      f"s_xor_b32 s{sT3}, s{sWD}, {j*4096}", f"buffer_load_dwordx2 {vr(WDQ[j],2)}, v{vA2}, {srd(WD_)}, s{sT3} offen nt",
                      f"buffer_load_dwordx2 {vr(WDQ[j]+2,2)}, v{vA3}, {srd(WD_)}, s{sT3} offen offset:2048 nt"], 2, pre))
            return
        U.append((f"wd{j}", [f"s_xor_b32 s{sT3}, s{sWD}, {j*4096}", f"buffer_load_dwordx2 {vr(WDQ[j],2)}, v{vWDO}, {srd(WD_)}, s{sT3} offen nt",
                  f"buffer_load_dwordx2 {vr(WDQ[j]+2,2)}, v{vWDO}, {srd(WD_)}, s{sT3} offen offset:2048 nt"], 2, pre))
    KSL = [A1, vP, R0, R1, A0, A1, vP, A0]
    KPRE = [None, None, "wq", "gate", "up", "K0", "K1", "K4"]
    for g in range(8):
        t, u = g >> 1, g & 1
        for k in range(4):
            l = [f"s_xor_b32 s{sKS}, s{sKV}, {t*(4<<20) + u*4096}"] if k == 0 else []
            l.append(f"buffer_load_dwordx4 {vr(KSL[g]+4*k,4)}, v{vKO}, {srd(K_)}, s{sKS} offen offset:{(k>>1)*512+(k&1)*128} nt")
            U.append((f"K{g}_{k}", l, 1, KPRE[g]))
    nearly = 8 - ncov
    order = [3, 0, 1, 2]
    for t in range(4):
        if t == 3:
            for j in order[:min(nearly, 3)]: wdunit(j, "V1m")
        for j in range(8):
            if t == 3 and j == 4 and nearly == 4: wdunit(2, "V2m")
            U.append((f"V{t}_{j}", [f"s_xor_b32 s{sKS}, s{sXV}, {t*(4<<20) + j*1024}",
                      f"buffer_load_dwordx4 {vr(vR+4*j,4)}, v{vVO}, {srd(V_)}, s{sKS} offen nt"], 1, f"K{2+(j>>2)}" if t == 0 else f"V{t-1}p{j>>1}"))
    for j in order[nearly:]: wdunit(j, "V2m")
    for j in range(4):
        l = []
        for e in range(2 * j, 2 * j + 2):
            l += [f"s_xor_b32 s{sT3}, s{sB}, {e*16384}", f"buffer_load_dwordx2 {vr(WOR+2*e,2)}, v{vWOO}, {srd(WO_)}, s{sT3} offen nt"]
        U.append((f"wo{j}", l, 2, "pre"))
    names = [u[0] for u in U]
    idx = {n: k for k, n in enumerate(names)}

    consumed = set()
    def task_g(m, j):
        W, acc = [(WQR, vS), (WGR, vS + 8), (WUR, vS + 16)][m]
        if m == 0 and j == 0:
            for h in range(2):
                a(f"v_and_b32 v{vX+4*h}, 0xffff, v{vXP+h}")
                a(f"v_lshlrev_b32 v{vX+4*h+1}, 16, v{vXP+h}")
                a(f"v_lshrrev_b32 v{vX+4*h+2}, 16, v{vXP+h}")
                a(f"v_and_b32 v{vX+4*h+3}, 0xffff0000, v{vXP+h}")
        for w in range(4):
            a(f"v_dot2c_f32_bf16 v{acc+2*w}, v{W+4*j+w}, v{vX+2*j}")
            a(f"v_dot2c_f32_bf16 v{acc+2*w+1}, v{W+4*j+w}, v{vX+2*j+1}")
        if j == 3:
            consumed.add(["wq", "gate", "up"][m])
            for k in range(4): a(f"v_permlane32_swap_b32 v{acc+k}, v{acc+k+4}")
            for k in range(4): a(f"v_add_f32 v{acc+k}, v{acc+k}, v{acc+k+4}")
            for k in range(2): a(f"v_permlane16_swap_b32 v{acc+k}, v{acc+k+2}")
            for k in range(2): a(f"v_add_f32 v{acc+k}, v{acc+k}, v{acc+k+2}")
            a(f"ds_write_b64 v{vGA}, {vr(acc,2)} offset:{L_GP+4096*m}")
            if m != 1: arrive(C_Q if m == 0 else C_F)
            if m == 0: stamp(1)
    def wperm(dst, quads):
        for p in range(4):
            for d in range(2):
                a(f"v_perm_b32 v{dst+4*p+2*d}, v{quads[p]+2+d}, v{quads[p]+d}, s{sSELLO}")
                a(f"v_perm_b32 v{dst+4*p+2*d+1}, v{quads[p]+2+d}, v{quads[p]+d}, s{sSELHI}")
    def dot16(W, vO, acc):
        for p in range(4):
            for c in range(4): a(f"v_dot2c_f32_bf16_dpp v{acc+c}, v{vO}, v{W+4*p+c} row_newbcast:{p} {DPP}")
    def task_qwait():
        stamp(2)
        wait_cnt(C_QS, 1)
        a(f"""
        v_and_b32 v{vA0}, 7, v{vL}
        v_mul_u32_u24 v{vA0}, 272, v{vA0}
        v_bfe_u32 v{vA1}, v{vL}, 3, 1
        v_lshl_add_u32 v{vA0}, v{vA1}, 6, v{vA0}
        v_lshrrev_b32 v{vA1}, 4, v{vL}
        v_lshl_add_u32 v{vA0}, v{vA1}, 4, v{vA0}
        """)
        for s in range(2): a(f"ds_read_b128 {vr(vQ+4*s,4)}, v{vA0} offset:{L_QS+128*s}")
        if gt: a(f"ds_read_b32 v{vA1}, v{vE+6} offset:{L_G+12}")
        a("s_waitcnt lgkmcnt(0)")
        if gt:
            a(f"v_readfirstlane_b32 s{sM0}, v{vA1}")
            st["ca"] = CA2 if CA2 is not None else CA
        stamp(3)
    def task_k(g):
        base = KSL[g]; dx = vS + 4 * g; dy = vT
        for sp in range(2):
            a(f"v_mfma_f32_16x16x32_bf16 {vr(dx,4)}, {vr(base+4*sp,4)}, {vr(vQ+4*sp,4)}, {'0' if sp==0 else vr(dx,4)}")
            a(f"v_mfma_f32_16x16x32_bf16 {vr(dy,4)}, {vr(base+8+4*sp,4)}, {vr(vQ+4*sp,4)}, {'0' if sp==0 else vr(dy,4)}")
        for r in range(4): a(f"v_permlane32_swap_b32 v{dx+r}, v{dy+r}")
        for r in range(4): a(f"v_add_f32_dpp v{dx+r}, v{dy+r}, v{dx+r} row_ror:8 {DPP}")
        consumed.add(f"K{g}")
    vM = vE
    def sm_max():
        a(f"v_max3_f32 v{vM}, v{vS}, v{vS+1}, v{vS+2}")
        a(f"v_max3_f32 v{vA2}, v{vS+3}, v{vS+4}, v{vS+5}")
        for k in range(6, 30, 4):
            a(f"v_max3_f32 v{vM}, v{vM}, v{vS+k}, v{vS+k+1}")
            a(f"v_max3_f32 v{vA2}, v{vA2}, v{vS+k+2}, v{vS+k+3}")
        a(f"v_max3_f32 v{vM}, v{vM}, v{vS+30}, v{vS+31}")
        a(f"v_max_f32 v{vM}, v{vM}, v{vA2}")
        red_bits45("max", vM, vA2)
        a(f"v_mul_f32 v{vM}, s{sC}, v{vM}")
    def sm_exp(t):
        for k in range(8 * t, 8 * t + 8): a(f"v_fma_f32 v{vS+k}, v{vS+k}, s{sC}, -v{vM}")
        for k in range(8 * t, 8 * t + 8): a(f"v_exp_f32 v{vS+k}, v{vS+k}")
        for k in range(4 * t, 4 * t + 4): a(f"v_cvt_pk_bf16_f32 v{vP+k}, v{vS+2*k}, v{vS+2*k+1}")
        sum8(vS + 8 * t)
    def sm_fin():
        a(f"v_add_f32 v{vS}, v{vS}, v{vS+8}")
        a(f"v_add_f32 v{vS+16}, v{vS+16}, v{vS+24}")
        a(f"v_add_f32 v{vM+1}, v{vS}, v{vS+16}")
        red_bits45("add", vM + 1, vA2)
        a(f"""
        s_lshl_b32 s{sT0}, s{sWV}, 6
        v_lshl_add_u32 v{vA2}, v{vL}, 3, s{sT0}
        s_mov_b64 exec, 0xff
        ds_write_b64 v{vA2}, {vr(vM,2)} offset:{L_ST}
        s_mov_b64 exec, -1
        """)
        arrive(C_ST)
        stamp(4)
    def task_vperm(t, uu):
        for w in range(4):
            a(f"v_perm_b32 v{vS+4*(2*w)+uu}, v{vR+4*(2*uu+1)+w}, v{vR+4*(2*uu)+w}, s{sSELLO}")
            a(f"v_perm_b32 v{vS+4*(2*w+1)+uu}, v{vR+4*(2*uu+1)+w}, v{vR+4*(2*uu)+w}, s{sSELHI}")
        consumed.add(f"V{t}p{uu}")
        if uu == 3:
            for i in range(8):
                c = "0" if t == 0 else vr(vACC + 4 * i, 4)
                a(f"v_mfma_f32_16x16x32_bf16 {vr(vACC+4*i,4)}, {vr(vS+4*i,4)}, {vr(vP+4*t,4)}, {c}")
            consumed.add(f"V{t}m")
    aOW, aOR, aF, aH1, aR2W, aL8, aH2, aR1W = [vQ + k for k in range(8)]
    aR1R, aFP, aR3, vG, vHP = vKO, vWFO, vE + 4, vE + 2, vE + 5
    def task_pre1():
        a(f"""
        v_lshrrev_b32 v{vA1}, 4, v{vL}
        v_and_b32 v{vA2}, 7, v{vL}
        v_mul_u32_u24 v{vA0}, 528, v{vA2}
        v_lshl_add_u32 v{vA0}, v{vA1}, 4, v{vA0}
        s_mul_i32 s{sT0}, s{sWV}, 4224
        v_add_u32 v{aOW}, s{sT0}, v{vA0}
        s_mul_i32 s{sT0}, s{sWV}, 528
        v_lshl_add_u32 v{aOR}, v{vL}, 3, s{sT0}
        s_lshl_b32 s{sT0}, s{sWV}, 5
        v_mov_b32 v{aF}, s{sT0}
        v_lshrrev_b32 v{vA0}, 5, v{vL}
        v_lshlrev_b32 v{vA3}, 2, v{vA0}
        v_lshl_add_u32 v{vA3}, v{vA2}, 3, v{vA3}
        s_lshl_b32 s{sT0}, s{sWV}, 6
        v_add_u32 v{aR2W}, s{sT0}, v{vA3}
        v_lshlrev_b32 v{aL8}, 3, v{vL}
        v_and_b32 v{vA2}, 15, v{vL}
        s_and_b32 s{sT1}, s{sWV}, 3
        s_lshl_b32 s{sT0}, s{sT1}, 7
        v_lshl_add_u32 v{vA3}, v{vA2}, 3, s{sT0}
        v_lshl_add_u32 v{vWDO}, v{vA1}, 14, v{vA3}
        v_lshl_add_u32 v{vA3}, v{vA0}, 11, v{vA3}
        v_and_b32 v{vA0}, 1, v{vA1}
        v_lshl_add_u32 v{vWOO}, v{vA0}, 17, v{vA3}
        v_lshl_add_u32 v{vA0}, v{vA2}, 2, v{vA1}
        s_lshl_b32 s{sT0}, s{sT1}, 9
        v_lshl_add_u32 v{aFP}, v{vA0}, 3, s{sT0}
        s_lshl_b32 s{sT0}, s{sWV}, 8
        v_lshl_add_u32 v{aR1W}, v{vA0}, 2, s{sT0}
        s_lshl_b32 s{sT0}, s{sT1}, 8
        v_lshl_add_u32 v{aR3}, v{vL}, 2, s{sT0}
        v_lshrrev_b32 v{vA0}, 8, v{vT16}
        v_lshlrev_b32 v{vA0}, 12, v{vA0}
        v_and_b32 v{vA2}, 0xf0, v{vT16}
        v_add_u32 v{aH1}, v{vA0}, v{vA2}
        v_lshrrev_b32 v{vA0}, 7, v{vT16}
        v_lshlrev_b32 v{vA0}, 11, v{vA0}
        v_and_b32 v{vA2}, 0x70, v{vT16}
        v_add_u32 v{aH2}, v{vA0}, v{vA2}
        v_lshrrev_b32 v{vT16}, 1, v{vT16}
        """)
    def task_pre2():
        wait_cnt(C_H, 1)
        a(f"""
        v_and_b32 v{vA3}, 3, v{vL}
        s_and_b32 s{sT1}, s{sWV}, {ex}
        v_xor_b32 v{vA3}, s{sT1}, v{vA3}
        v_lshrrev_b32 v{vA2}, 4, v{vL}
        v_lshl_add_u32 v{vA2}, v{vA2}, 2, v{vA3}
        s_lshr_b32 s{sT2}, s{sWV}, 2
        s_lshl_b32 s{sT0}, s{sT2}, 4
        v_add_u32 v{vA2}, s{sT0}, v{vA2}
        v_bfe_u32 v{vA3}, v{vL}, 2, 2
        v_lshlrev_b32 v{vA3}, 9, v{vA3}
        v_lshl_add_u32 v{aR1R}, v{vA2}, 3, v{vA3}
        v_lshlrev_b32 v{vA2}, 2, v{vA2}
        ds_read_b32 v{vHP}, v{vA2} offset:{L_H}
        ds_read_b64 {vr(vG,2)}, v{vE+6} offset:{L_G}
        ds_read_b32 v{vTAG}, v{vE+6} offset:{L_G+8}
        s_lshl_b32 s{sWD}, s{sLC}, 17
        s_lshl_b32 s{sT0}, s{sT2}, 16
        s_add_u32 s{sWD}, s{sWD}, s{sT0}
        s_lshl_b32 s{sT0}, s{sT1}, 12
        s_add_u32 s{sWD}, s{sWD}, s{sT0}
        s_lshl_b32 s{sT0}, s{sRB}, 9
        s_add_u32 s{sWD}, s{sWD}, s{sT0}
        s_lshl_b32 s{sB}, s{sT1}, 15
        s_add_u32 s{sB}, s{sB}, s{sT0}
        s_lshl_b32 s{sT0}, s{sT2}, 12
        s_add_u32 s{sB}, s{sB}, s{sT0}
        s_lshr_b32 s{sT1}, s{sR8}, 2
        s_lshl_b32 s{sT0}, s{sT1}, 13
        s_add_u32 s{sB}, s{sB}, s{sT0}
        s_and_b32 s{sT2}, s2, 7
        s_lshl_b32 s{sT0}, s{sG}, 3
        s_add_u32 s{sT0}, s{sT0}, s{sT2}
        s_lshl_b32 s{sT0}, s{sT0}, 18
        s_add_u32 s{sB}, s{sB}, s{sT0}
        s_lshl_b32 s{sH1}, s{sG}, 18
        s_lshl_b32 s{sT0}, s{sT2}, 9
        s_add_u32 s{sH1}, s{sH1}, s{sT0}
        s_lshl_b32 s{sT0}, s{sT1}, 8
        s_add_u32 s{sH1}, s{sH1}, s{sT0}
        s_add_u32 s{sH1}, s{sH1}, {WS_OP}
        s_add_u32 s{sH1b}, s{sH1}, {32*4096}
        s_lshl_b32 s{sPA}, s2, 12
        s_add_u32 s{sPA}, s{sPA}, {WS_OP}
        s_lshl_b32 s{sPB}, s{sRB}, 6
        s_add_u32 s{sPB}, s{sPB}, s{sPL}
        s_lshl_b32 s{sPB}, s{sPB}, 11
        s_add_u32 s{sPB}, s{sPB}, {WS_FP}
        s_lshr_b32 s{sA}, s2, 4
        s_lshl_b32 s{sA}, s{sA}, 17
        s_and_b32 s{sT0}, s2, 15
        s_lshl_b32 s{sT0}, s{sT0}, 7
        s_add_u32 s{sA}, s{sA}, s{sT0}
        s_add_u32 s{sA}, s{sA}, {WS_FP}
        s_waitcnt lgkmcnt(0)
        v_mov_b32 v{vB1}, v{vTAG}
        v_mov_b32 v{vE+1}, v{vTAG}
        """)
        for k in range(4): a(f"v_mov_b32 v{vBP+k}, 0")
        consumed.add("pre")
    vH1 = R1; vF = R1 + 8
    h1 = [f"buffer_load_dwordx4 {vr(vH1+4*k,4)}, v{aH1}, {srd(WS_)}, s{sH1+k} offen sc1" for k in range(2)]

    C = []
    for m, nm in enumerate(("wq", "gate", "up")):
        for j in range(4): C.append((idx[f"{nm}{j}"], lambda m=m, j=j: task_g(m, j)))
    C.append((p1_at, lambda: arrive(C_P1)))
    C.append((p2_at, lambda: arrive(C_P2)))
    C.append((q_at, task_qwait))
    for g in range(8): C.append((max(q_at, idx[f"K{g}_3"]), lambda g=g: task_k(g)))
    kend = idx["K7_3"]
    C.append((kend, sm_max))
    for t in range(4): C.append((kend, lambda t=t: sm_exp(t)))
    C.append((kend, sm_fin))
    for t in range(4):
        for uu in range(4): C.append((idx[f"V{t}_{2*uu+1}"], lambda t=t, uu=uu: task_vperm(t, uu)))
    C.append((idx["V1_2"], task_pre1)); C.append((idx["V1_4"], task_pre2))
    C.sort(key=lambda c: c[0])
    n = len(U); stop_at = idx["V3_7"]
    st = {"issued": 4, "c": 0, "ca": CA}
    def run_chunk():
        C[st["c"]][1](); st["c"] += 1
    def issue_upto(lim, arrived, throttle=True):
        while st["issued"] < min(n, lim):
            k = st["issued"]
            nm, lines, nv, pre = U[k]
            if throttle and k - WIN >= stop_at: return
            while pre is not None and pre not in consumed:
                assert C[st["c"]][0] <= arrived, ("issue blocked", nm, names[arrived])
                run_chunk()
            if throttle and k >= dyn0 and lv:
                lk = a.label("Li")
                for w in range(WMAX - 1, WLO - 1, -1):
                    if w < WIN and k - w >= stop_at: break
                    a(f"s_cmp_gt_i32 s{sBOOST}, {w}")
                    a(f"s_cbranch_scc1 {lk}")
                    a(f"s_waitcnt vmcnt({sum(u[2] for u in U[k-w+1:k])})")
                a(f"{lk}:")
            elif throttle and k >= dyn0:
                lk = a.label("Li")
                a(f"s_cmp_gt_u32 s{sBOOST}, {k}")
                a(f"s_cbranch_scc1 {lk}")
                a(f"s_waitcnt vmcnt({sum(u[2] for u in U[k-WIN+1:k])})")
                a(f"{lk}:")
            for x in lines: a(x)
            st["issued"] += 1
    for arrived in range(stop_at + 1):
        assert st["issued"] > arrived
        a(f"s_waitcnt vmcnt({sum(u[2] for u in U[arrived + 1:st['issued']])})")
        if arrived % 8 == 7: stamp(arrived // 8 + 1, "u")
        if arrived >= k0 and arrived < stop_at - 3:
            if (arrived - k0) % CK == 0: a(f"s_memrealtime s[{sCK}:{sCK+1}]")
            if (arrived - k0) % CK == 1:
                kk = st["issued"] - WIN - 1
                if lv:
                    a(f"""
                    s_waitcnt lgkmcnt(0)
                    s_sub_u32 s{sCK}, s{sCK}, s{sM0}
                    s_sub_i32 s{sCK}, s{sCK}, {st["ca"] + CB * kk // 10}
                    s_ashr_i32 s{sCK}, s{sCK}, {lv}
                    s_add_i32 s{sBOOST}, s{sCK}, {WIN + 1}
                    """)
                else: a(f"""
                s_waitcnt lgkmcnt(0)
                s_sub_u32 s{sCK}, s{sCK}, s{sM0}
                s_sub_i32 s{sCK}, s{sCK}, {st["ca"] + CB * kk // 10}
                s_ashr_i32 s{sCK}, s{sCK}, {gsh}
                s_add_i32 s{sBOOST}, s{sCK}, {st["issued"]}
                s_max_i32 s{sBOOST}, s{sBOOST}, 0
                """)
        if arrived < stop_at: issue_upto(arrived + 1 + (WIN if arrived < dyn0 - WIN else WMAX), arrived)
        ran = 0
        while st["c"] < len(C) and C[st["c"]][0] <= arrived and (ran < 2 or arrived >= stop_at - 1):
            run_chunk(); ran += 1
    assert st["c"] == len(C)

    stamp(5)
    issue_upto(st["issued"] + ca, n, False)
    a("s_mov_b32 exec_lo, 0x00ff00ff")
    a("s_mov_b32 exec_hi, 0x00ff00ff")
    for i in range(8): a(f"ds_write_b128 v{aOW}, {vr(vACC+4*i,4)} offset:{L_ORED+64*i}")
    a(f"""
    s_mov_b64 exec, -1
    s_waitcnt lgkmcnt(0)
    s_barrier
    ds_read_b128 {vr(vF,4)}, v{aF} offset:{L_F}
    ds_read_b128 {vr(vF+4,4)}, v{aF} offset:{L_F+16}
    """)
    for w in range(8): a(f"ds_read_b64 {vr(vS+2*w,2)}, v{aOR} offset:{L_ORED+4224*w}")
    a("s_waitcnt lgkmcnt(7)")
    a(f"v_mul_f32 v{vB0}, v{vS}, v{vF}")
    a(f"v_mul_f32 v{vB2}, v{vS+1}, v{vF}")
    for w in range(1, 8):
        a(f"s_waitcnt lgkmcnt({7-w})")
        a(f"v_fmac_f32 v{vB0}, v{vS+2*w}, v{vF+w}")
        a(f"v_fmac_f32 v{vB2}, v{vS+2*w+1}, v{vF+w}")
    a(f"v_cvt_pk_bf16_f32 v{vB0}, v{vB0}, v{vB2}")
    a(f"buffer_store_dwordx2 {vr(vB0,2)}, v{vT16}, {srd(WS_)}, s{sPA} offen sc1")
    stamp(6)
    k_s = st["issued"]
    issue_upto(st["issued"] + cb, n, False)
    if notail: a("s_branch L_fin")
    def outstanding_after(k): return sum(u[2] for u in U[k:st["issued"]])
    wait_to = min(st["issued"], k_s + h1d)
    a(f"s_waitcnt vmcnt({outstanding_after(wait_to)})")
    if h1first:
        for l in h1: a(l)
    k_h = st["issued"]
    issue_upto(n, n, False)
    if not h1first:
        for l in h1: a(l)
    nh = len(h1)
    lastwd = max(idx[f"wd{j}"] for j in range(4))
    w = outstanding_after(lastwd + 1) + (nh if (not h1first or lastwd + 1 <= k_h) else 0)
    a(f"s_waitcnt vmcnt({w})")
    wperm(vS + 16, WDQ)
    dot16(vS + 16, vHP, vBP)
    for k in range(4): a(f"v_mov_b32 v{vS+8+k}, 0")
    for k in range(4): a(f"v_mul_f32 v{vBP+k}, v{vBP+k}, v{vG+1}")
    a(f"s_waitcnt vmcnt({0 if h1first else nh})")
    wperm(PW, [WOR + 4 * p for p in range(4)])
    a("s_waitcnt vmcnt(0)")
    stamp(7)
    poll(h1, [vH1 + 1, vH1 + 3, vH1 + 5, vH1 + 7], vA0, sleep1, first_issued=True)
    stamp(8)
    for r in (0, 2, 4, 6):
        a(f"v_and_b32 v{vH1+r+1}, 0xffff0000, v{vH1+r}")
        a(f"v_lshlrev_b32 v{vH1+r}, 16, v{vH1+r}")
    for r in range(4): a(f"v_add_f32 v{vH1+r}, v{vH1+r}, v{vH1+r+4}")
    tred4(vH1, vH1)
    a(f"""
    ds_write_b32 v{aR1W}, v{vH1} offset:{L_RED1}
    s_waitcnt lgkmcnt(0)
    s_barrier
    ds_read_b64 {vr(vS,2)}, v{aR1R} offset:{L_RED1}
    ds_read_b64 {vr(vS+2,2)}, v{aR1R} offset:{L_RED1+256}
    s_waitcnt lgkmcnt(0)
    v_add_f32 v{vS}, v{vS}, v{vS+2}
    v_add_f32 v{vS+1}, v{vS+1}, v{vS+3}
    v_add_f32_dpp v{vS}, v{vS}, v{vS} row_ror:4 {DPP}
    v_add_f32_dpp v{vS+1}, v{vS+1}, v{vS+1} row_ror:4 {DPP}
    v_add_f32_dpp v{vS}, v{vS}, v{vS} row_ror:8 {DPP}
    v_add_f32_dpp v{vS+1}, v{vS+1}, v{vS+1} row_ror:8 {DPP}
    v_cvt_pk_bf16_f32 v{vA0}, v{vS}, v{vS+1}
    """)
    dot16(PW, vA0, vS + 8)
    for k in range(4): a(f"v_fmac_f32 v{vBP+k}, v{vS+8+k}, v{vG}")
    tred4(vBP, vE)
    a(f"""
    s_cmp_lt_u32 s{sWV}, 4
    s_cbranch_scc1 L_lo
    ds_write_b32 v{aR3}, v{vE} offset:{L_RED3}
    s_waitcnt lgkmcnt(0)
    s_barrier
    s_branch L_st
    L_lo:
    s_barrier
    ds_read_b32 v{vA0}, v{aR3} offset:{L_RED3}
    s_waitcnt lgkmcnt(0)
    v_add_f32 v{vE}, v{vE}, v{vA0}
    buffer_store_dwordx2 {vr(vE,2)}, v{aFP}, {srd(WS_)}, s{sPB} offen sc1
    L_st:
    """)
    stamp(9)
    a("s_cmp_ge_u32 s2, 64")
    a("s_cbranch_scc1 L_fin")
    if ack2: a("s_waitcnt vmcnt(0)")
    poll([f"buffer_load_dwordx4 {vr(vS,4)}, v{aH2}, {srd(WS_)}, s{sA} offen sc1"], [vS + 1, vS + 3], vA0, sleep1)
    stamp(10)
    a(f"""
    v_permlane32_swap_b32 v{vS}, v{vS+2}
    v_add_f32 v{vS}, v{vS}, v{vS+2}
    v_add_f32_dpp v{vS}, v{vS}, v{vS} row_ror:8 {DPP}
    v_mov_b32 v{vA1}, v{vS}
    v_permlane16_swap_b32 v{vS}, v{vA1}
    v_add_f32 v{vS}, v{vS}, v{vA1}
    ds_write_b32 v{aR2W}, v{vS} offset:{L_RED2}
    s_waitcnt lgkmcnt(0)
    s_barrier
    s_cmp_lg_u32 s{sWV}, 0
    s_cbranch_scc1 L_fin
    ds_read_b64 {vr(vS,2)}, v{aL8} offset:{L_RED2}
    v_lshlrev_b32 v{vA2}, 2, v{vL}
    s_lshl_b32 s{sT0}, s2, 5
    s_waitcnt lgkmcnt(0)
    """)
    red2_bits345(vS, vS + 1, vA0, vA1)
    a(f"""
    v_cvt_pk_bf16_f32 v{vA0}, v{vS}, v{vS+1}
    s_mov_b64 exec, 0xff
    buffer_store_dword v{vA0}, v{vA2}, {srd(OUT_)}, s{sT0} offen
    s_cmp_lg_u32 s2, 0
    s_cbranch_scc1 L_fin
    s_mov_b64 exec, 1
    buffer_store_dword v{vTAG}, off, {srd(WS_)}, 0 sc1
    L_fin:
    """)
    if fix:
        a(f"""
        L_fx:
        s_memrealtime s[4:5]
        s_waitcnt lgkmcnt(0)
        s_sub_u32 s4, s4, s{sM0}
        s_cmp_ge_u32 s4, {fix}
        s_cbranch_scc1 L_fxd
        s_sleep 1
        s_branch L_fx
        L_fxd:
        """)
    if stamps:
        a("s_mov_b64 exec, -1")
        a("s_waitcnt vmcnt(0)")
        a(f"s_memrealtime s[{sST+22}:{sST+23}]")
        a(f"s_mul_i32 s{sT0}, s2, 9")
        a(f"s_add_u32 s{sT0}, s{sT0}, s{sWV}")
        a(f"s_mul_i32 s{sT0}, s{sT0}, {NS*8}")
        a(f"s_add_u32 s{sT0}, s{sT0}, {STAMP_OFF}")
        a("s_waitcnt lgkmcnt(0)")
        a("s_mov_b64 exec, 1")
        for j in range(NS):
            a(f"v_mov_b32 v{vA0}, s{sST+2*j}")
            a(f"v_mov_b32 v{vA1}, s{sST+2*j+1}")
            a(f"buffer_store_dwordx2 {vr(vA0,2)}, off, {srd(WS_)}, s{sT0} offset:{8*j}")
    a("L_end:")
    a("s_endpgm")

    cX = vACC; cG = vACC + 8
    cL4, cL8, cPA, cPF, cQW, cGP = vWDO, vQ, vQ + 1, vQ + 2, vQ + 3, vQ + 4
    a(f"""
    L_comm:
    s_setprio 3
    s_mov_b32 s{sWB}, 0
    v_mov_b32 v{vA0}, 0
    v_lshlrev_b32 v{cL4}, 2, v{vL}
    s_mov_b64 exec, 0xffff
    ds_write_b32 v{cL4}, v{vA0}
    s_mov_b64 exec, -1
    s_mov_b32 s{GW_+2}, 2048
    s_mov_b32 s{GW_+3}, 0x20000
    s_waitcnt lgkmcnt(0)
    s_barrier
    s_mov_b64 s[{X_}:{X_+1}], s[76:77]
    s_mov_b64 s[{GW_}:{GW_+1}], s[94:95]
    """)
    if not ev: a(f"s_load_dword s{sC}, s[{WS_}:{WS_+1}], 0")
    roles()
    if ev: a(f"buffer_load_dword v{vTAG}, off, {srd(WS_)}, 0 sc1")
    a(f"""
    v_lshlrev_b32 v{cL8}, 3, v{vL}
    v_lshrrev_b32 v{vA0}, 3, v{vL}
    v_and_b32 v{vA1}, 7, v{vL}
    v_lshlrev_b32 v{cPA}, 10, v{vA0}
    v_lshl_add_u32 v{cPA}, v{vA1}, 4, v{cPA}
    v_lshrrev_b32 v{vA0}, 5, v{vL}
    v_and_b32 v{vA1}, 31, v{vL}
    v_lshlrev_b32 v{cPF}, 10, v{vA0}
    v_lshl_add_u32 v{cPF}, v{vA1}, 4, v{cPF}
    v_mul_u32_u24 v{vA0}, 272, v{vA0}
    v_lshl_add_u32 v{cQW}, v{vA1}, 3, v{vA0}
    v_add_u32 v{cGP}, {L_GP}, v{cL8}
    s_lshl_b32 s{sT1}, s{sCB}, 13
    s_add_u32 s{sT1}, s{sT1}, {WS_QP}
    s_lshl_b32 s{sT2}, s{sR8}, 10
    s_add_u32 s{sA}, s{sT1}, s{sT2}
    s_lshl_b32 s{sT2}, s{sR8}, 7
    s_add_u32 s{sPA}, s{sT1}, s{sT2}
    s_lshl_b32 s{sT1}, s{sCB}, {9+gt}
    s_lshl_b32 s{sT2}, s{sR8}, {6+gt}
    s_add_u32 s{sB}, s{sT1}, s{sT2}
    s_add_u32 s{sB}, s{sB}, {WS_QG}
    s_lshl_b32 s{sPB}, s{sG}, {12+gt}
    s_add_u32 s{sPB}, s{sPB}, {WS_QG}
    """)
    if ev:
        a("s_waitcnt vmcnt(0)")
        a(f"v_add_u32 v{vTAG}, 1, v{vTAG}")
    else:
        a("s_waitcnt lgkmcnt(0)")
        a(f"s_add_u32 s{sC}, s{sC}, 1")
        a(f"v_mov_b32 v{vTAG}, s{sC}")
    init_stamps()
    def gp_publish(m, base, so, off):
        for k in range(4): a(f"ds_read2st64_b64 {vr(base+4*k,4)}, v{cGP} offset0:{8*m+2*k} offset1:{8*m+2*k+1}")
        a("s_waitcnt lgkmcnt(0)")
        for step in (2, 4, 8):
            for k in range(0, 16, 2 * step):
                a(f"v_add_f32 v{base+k}, v{base+k}, v{base+k+step}")
                a(f"v_add_f32 v{base+k+1}, v{base+k+1}, v{base+k+step+1}")
        a(f"v_mov_b32 v{base+2}, v{base+1}")
        a(f"v_mov_b32 v{base+1}, v{vTAG}")
        a(f"v_mov_b32 v{base+3}, v{vTAG}")
        a(f"buffer_store_dwordx4 {vr(base,4)}, v{vVO}, {srd(WS_)}, s{so} offen offset:{off}")
    wait_cnt(C_Q, 8, csleep)
    gp_publish(0, vT, sA, 0)
    stamp(1)
    if ackA: a("s_waitcnt vmcnt(0)")
    poll([f"buffer_load_dwordx4 {vr(vE,4)}, v{cPA}, {srd(WS_)}, s{sPA} offen sc1"], [vE + 1, vE + 3], vA0, asleep, wb=True)
    red2_bits345(vE, vE + 2, vA0, vA1)
    a(f"""
    v_cvt_pk_bf16_f32 v{vE}, v{vE}, v{vE+2}
    s_mov_b64 exec, 0xff00
    v_mov_b32 v{vE}, s{sM0}
    s_mov_b64 exec, {0xffff if gt else 0xff}
    buffer_store_dwordx2 {vr(vE,2)}, v{cL8}, {srd(WS_)}, s{sB} offen sc1
    s_mov_b64 exec, -1
    """)
    stamp(2)
    a(f"""
    buffer_load_dwordx4 {vr(cX,4)}, v{vVO}, {srd(X_)}, 0 offen
    buffer_load_dwordx4 {vr(cX+4,4)}, v{vVO}, {srd(X_)}, 0 offen offset:1024
    buffer_load_dwordx4 {vr(cG,4)}, v{vVO}, {srd(GW_)}, 0 offen
    buffer_load_dwordx4 {vr(cG+4,4)}, v{vVO}, {srd(GW_)}, 0 offen offset:1024
    s_lshl_b32 s{sKV}, s{sCB}, 14
    s_add_u32 s{sKV}, s{sKV}, {WS_FG}
    s_lshl_b32 s{sT2}, s{sR8}, 11
    s_add_u32 s{sA}, s{sKV}, s{sT2}
    s_and_b32 s{sT2}, s{sLC}, 1
    s_lshl_b32 s{sT2}, s{sT2}, 9
    s_add_u32 s{sKV}, s{sKV}, s{sT2}
    """)
    wait_cnt(C_F, 8, csleep)
    gp_publish(1, vT, sA, 0)
    gp_publish(2, vP, sA, 1024)
    a(f"""
    s_cmp_eq_u32 s{sWB}, 0
    s_cbranch_scc1 L_nwb
    s_waitcnt vmcnt(0)
    buffer_wbl2 sc1
    s_waitcnt vmcnt(0)
    L_nwb:
    s_waitcnt vmcnt(2)
    v_mov_b32 v{vB0}, 0
    """)
    for k in range(8):
        a(f"""
        v_lshlrev_b32 v{vA0}, 16, v{cX+k}
        v_and_b32 v{vA1}, 0xffff0000, v{cX+k}
        v_lshlrev_b32 v{vA2}, 16, v{cG+k}
        v_and_b32 v{vA3}, 0xffff0000, v{cG+k}
        v_mul_f32 v{vA0}, v{vA0}, v{vA2}
        v_mul_f32 v{vA1}, v{vA1}, v{vA3}
        v_cvt_pk_bf16_f32 v{vA0}, v{vA0}, v{vA1}
        v_lshlrev_b32 v{vA1}, 16, v{vA0}
        v_and_b32 v{vA0}, 0xffff0000, v{vA0}
        v_add_f32 v{vB0}, v{vB0}, v{vA0}
        v_add_f32 v{vB0}, v{vB0}, v{vA1}
        """)
    for nn_ in (1, 2, 4): a(f"v_add_f32_dpp v{vB0}, v{vB0}, v{vB0} row_ror:{nn_} {DPP}")
    red_bits345("add", vB0, vA3)
    a(f"""
    v_cvt_pk_bf16_f32 v{vA0}, v{vB0}, v{vB0}
    v_and_b32 v{vA0}, 0xffff0000, v{vA0}
    v_mul_f32 v{vA0}, {hex(f2u(-math.log2(math.e)))}, v{vA0}
    v_exp_f32 v{vA0}, v{vA0}
    v_add_f32 v{vA0}, 1.0, v{vA0}
    v_rcp_f32 v{vA0}, v{vA0}
    v_cvt_pk_bf16_f32 v{vA0}, v{vA0}, v{vA0}
    v_and_b32 v{vA0}, 0xffff0000, v{vA0}
    v_sub_f32 v{vA1}, 1.0, v{vA0}
    v_cvt_pk_bf16_f32 v{vA1}, v{vA1}, v{vA1}
    v_and_b32 v{vA1}, 0xffff0000, v{vA1}
    v_mov_b32 v{vA2}, 0
    s_mov_b64 exec, 1
    ds_write_b64 v{vA2}, {vr(vA0,2)} offset:{L_G}
    ds_write_b32 v{vA2}, v{vTAG} offset:{L_G+8}
    s_mov_b64 exec, -1
    """)
    wait_cnt(C_P1, cpn, 4)
    ql = [f"buffer_load_dwordx4 {vr(vS+4*k,4)}, v{vVO}, {srd(WS_)}, s{sPB} offen offset:{1024*k} sc1" for k in range(4)]
    if gt:
        a(f"""
        v_lshrrev_b32 v{vQ+5}, 2, v{vL}
        v_lshlrev_b32 v{vQ+5}, 6, v{vQ+5}
        v_add_u32 v{vQ+5}, v{vQ+5}, v{vVO}
        v_lshlrev_b32 v{vQ+6}, 7, v{vL}
        s_add_u32 s{sT1}, s{sPB}, 4096
        """)
        ql = [f"buffer_load_dwordx4 {vr(vS+4*k,4)}, v{vQ+5}, {srd(WS_)}, s{sPB if k < 2 else sT1} offen offset:{2048*(k%2)} sc1" for k in range(4)]
        ql.append(f"buffer_load_dwordx2 {vr(vS+16,2)}, v{vQ+6}, {srd(WS_)}, s{sPB} offen offset:64 sc1")
    poll(ql, [vS + 2 * k + 1 for k in range(8 + gt)], vA2, rsleep, wb=True)
    if gt:
        a(f"v_subrev_u32 v{vS+16}, s{sM0}, v{vS+16}")
        a(f"v_cvt_f32_i32 v{vS+16}, v{vS+16}")
        for nn_ in (1, 2, 4): a(f"v_min_f32_dpp v{vS+16}, v{vS+16}, v{vS+16} row_ror:{nn_} {DPP}")
        red_bits345("min", vS + 16, vA3)
        a(f"""
        v_cvt_i32_f32 v{vS+16}, v{vS+16}
        v_add_u32 v{vS+16}, s{sM0}, v{vS+16}
        v_mov_b32 v{vA2}, 0
        s_mov_b64 exec, 1
        ds_write_b32 v{vA2}, v{vS+16} offset:{L_G+12}
        s_mov_b64 exec, -1
        """)
    for k in range(4): a(f"v_mov_b32 v{vS+4*k+1}, v{vS+4*k+2}")
    for k in range(4): a(f"ds_write_b64 v{cQW}, {vr(vS+4*k,2)} offset:{L_QS+544*k}")
    arrive(C_QS)
    stamp(3)
    for k in range(1, 4): a(f"s_add_u32 s{sT0+k}, s{sKV}, {4096*k}")
    fl = [f"buffer_load_dwordx4 {vr(vS+4*k,4)}, v{cPF}, {srd(WS_)}, s{sKV if k < 2 else sT0+k//2} offen offset:{2048*(k%2)} sc1" for k in range(8)]
    poll(fl, [vS + 2 * k + 1 for k in range(16)], vA2, rsleep, wb=True)
    for step in (4, 8, 16):
        for k in range(0, 32, 2 * step):
            a(f"v_add_f32 v{vS+k}, v{vS+k}, v{vS+k+step}")
            a(f"v_add_f32 v{vS+k+2}, v{vS+k+2}, v{vS+k+step+2}")
    a(f"""
    v_cvt_pk_bf16_f32 v{vA0}, v{vS}, v{vS+2}
    v_mov_b32 v{vA1}, v{vA0}
    v_permlane32_swap_b32 v{vA0}, v{vA1}
    v_lshlrev_b32 v{vA2}, 16, v{vA0}
    v_and_b32 v{vA0}, 0xffff0000, v{vA0}
    v_lshlrev_b32 v{vA3}, 16, v{vA1}
    v_and_b32 v{vA1}, 0xffff0000, v{vA1}
    v_max_f32 v{vA2}, 0, v{vA2}
    v_max_f32 v{vA0}, 0, v{vA0}
    v_mul_f32 v{vA2}, v{vA2}, v{vA3}
    v_mul_f32 v{vA0}, v{vA0}, v{vA1}
    v_cvt_pk_bf16_f32 v{vA0}, v{vA2}, v{vA0}
    s_mov_b32 exec_hi, 0
    ds_write_b32 v{cL4}, v{vA0} offset:{L_H}
    s_mov_b64 exec, -1
    """)
    arrive(C_H)
    stamp(4)
    if prer:
        a(f"""
        v_lshlrev_b32 v{vA2}, 7, v{vL}
        s_lshl_b32 s{sT1}, s2, 12
        s_add_u32 s{sT1}, s{sT1}, {WS_OP}
        s_lshl_b32 s{sT3}, s{sRB}, 6
        s_add_u32 s{sT3}, s{sT3}, s{sPL}
        s_lshl_b32 s{sT3}, s{sT3}, 11
        s_add_u32 s{sT3}, s{sT3}, {WS_FP}
        s_mov_b32 exec_hi, 0
        """)
        if prer & 1: a(f"buffer_load_dword v{vS}, v{vA2}, {srd(WS_)}, s{sT1} offen")
        a("s_mov_b32 exec_lo, 0xffff")
        if prer & 2: a(f"buffer_load_dword v{vS+2}, v{vA2}, {srd(WS_)}, s{sT3} offen")
        a("s_mov_b64 exec, -1")
    a(f"""
    s_lshl_b32 s{sA}, s2, 6
    s_add_u32 s{sA}, s{sA}, {WS_ML}
    s_lshl_b32 s{sPA}, s{sG}, 12
    s_add_u32 s{sPA}, s{sPA}, {WS_ML}
    """)
    wait_cnt(C_ST, 8, 4)
    a(f"ds_read_b64 {vr(vT,2)}, v{cL8} offset:{L_ST}")
    a("s_waitcnt lgkmcnt(0)")
    a(f"v_mov_b32 v{vB0}, v{vT}")
    red_bits345("max", vB0, vA3)
    a(f"v_sub_f32 v{vA3}, v{vT}, v{vB0}")
    a(f"v_exp_f32 v{vA3}, v{vA3}")
    a(f"v_mul_f32 v{vT+1}, v{vT+1}, v{vA3}")
    red_bits345("add", vT + 1, vA3)
    a(f"""
    v_log_f32 v{vB1}, v{vT+1}
    v_add_f32 v{vB0}, v{vB0}, v{vB1}
    v_mov_b32 v{vB1}, v{vTAG}
    s_mov_b64 exec, 0xff
    buffer_store_dwordx2 {vr(vB0,2)}, v{cL8}, {srd(WS_)}, s{sA} offen sc1
    s_mov_b64 exec, -1
    """)
    stamp(5)
    ml = [f"buffer_load_dwordx2 {vr(vS+2*k,2)}, v{cL8}, {srd(WS_)}, s{sPA} offen offset:{512*k} sc1" for k in range(8)]
    wait_cnt(C_P2, cpn, 4)
    poll(ml, [vS + 2 * k + 1 for k in range(8)], vA0, rsleep, wb=True)
    M = vE
    a(f"v_max3_f32 v{M}, v{vS}, v{vS+2}, v{vS+4}")
    a(f"v_max3_f32 v{M}, v{M}, v{vS+6}, v{vS+8}")
    a(f"v_max3_f32 v{M}, v{M}, v{vS+10}, v{vS+12}")
    a(f"v_max_f32 v{M}, v{M}, v{vS+14}")
    red_bits345("max", M, vA3)
    for k in range(8): a(f"v_sub_f32 v{vS+2*k}, v{vS+2*k}, v{M}")
    for k in range(8): a(f"v_exp_f32 v{vS+2*k}, v{vS+2*k}")
    a(f"v_add_f32 v{M+1}, v{vS}, v{vS+2}")
    for k in range(2, 8): a(f"v_add_f32 v{M+1}, v{M+1}, v{vS+2*k}")
    red_bits345("add", M + 1, vA3)
    a(f"""
    v_sub_f32 v{vA1}, v{vT}, v{M}
    v_exp_f32 v{vA1}, v{vA1}
    v_rcp_f32 v{vA2}, v{M+1}
    v_mul_f32 v{vA1}, v{vA1}, v{vA2}
    v_and_b32 v{vA2}, 7, v{vL}
    v_lshlrev_b32 v{vA2}, 5, v{vA2}
    v_lshrrev_b32 v{vA3}, 3, v{vL}
    v_lshl_add_u32 v{vA2}, v{vA3}, 2, v{vA2}
    ds_write_b32 v{vA2}, v{vA1} offset:{L_F}
    s_waitcnt lgkmcnt(0)
    """)
    a("s_branch L_fin" if stamps else "s_endpgm")
    lines = hazard.fix([l for l in a.lines if not l.strip().startswith(";")])
    return wrap_single("\n".join(lines), 256, 576, lds, NVGPR, header=HEADER)

if __name__ == "__main__":
    kw = {}
    for s in sys.argv[2:]:
        k, v = s.split("=")
        try: v = int(v)
        except: pass
        kw[k] = v
    open(sys.argv[1], "w").write(gen(**kw))
```

```python
import sys, math, struct
from asmlib import *
import hazard
def f2u(x): return struct.unpack("<I", struct.pack("<f", x))[0]
HEADER = open("cdna_kernels/" + NAME + ".s.ref").read().split("; Override launch")[0]

WS_QG = 0x10000
WS_ML = 0x8000
WS_QP = 0x40000
WS_FG = 0x80000
WS_OP = 0x100000
WS_FP = 0x200000
WS_SIZE = 0x280000
STAMP_OFF = 128 << 20
C_Q, C_F, C_QS, C_ST, C_H, C_P1, C_P2 = 0, 4, 8, 12, 16, 20, 24
L_H = 64
L_G = 192
L_GP = 256
L_QS = L_GP + 3 * 4096
L_ST = L_QS + 2176
L_F = L_ST + 512
L_RED1 = L_F + 256
L_RED2 = L_RED1 + 2048
L_RED3 = L_RED2 + 512
L_ORED = L_RED3 + 1024
L_END = L_ORED + 8 * 4224
sWV = 3
K_, V_, WQ_, WO_, WG_, WU_, WD_, X_, GW_, WS_, OUT_ = 4, 8, 12, 16, 20, 24, 28, 32, 36, 40, 44
def srd(b): return f"s[{b}:{b+3}]"
sG, sI, sPA, sPB, sKV = 48, 49, 50, 51, 52
sT0, sT1, sT2, sT3 = 53, 54, 55, 56
sSELLO, sSELHI, sC, sCAP, sA, sB, sKS = 57, 58, 59, 60, 61, 62, 63
sM0 = 64
sWD, sBOOST = 66, 67
sRB, sLC, sR8, sCB, sH1, sH1b, sPL, sXV = 68, 69, 70, 71, 72, 73, 74, 75
sST = 76
sCK = 36
sWB = 67
vL, vWDO, vT16, vTAG, vKO, vVO, vWOO, vWFO = 0, 1, 2, 3, 4, 5, 6, 7
vA0, vA1, vA2, vA3, vB0, vB1, vB2, vB3 = 8, 9, 10, 11, 12, 13, 14, 15
vT, vQ, vE, vP, vS, vACC, vR, vBP, vSP = 16, 32, 40, 48, 64, 96, 128, 160, 164
NVGPR = 168

def gen(WIN=3, WMAX=5, dyn0=10, stamps=0, sn="d", lds=82440, q_at=26, p1_at=19, p2_at=61, CA=140, CB=275, CK=6, gsh=2, k0=8,
        ca=2, cb=2, h1first=0, prer=2, fix=0, nfail=8, sleep1=2, csleep=1, asleep=4, rsleep=16, ackA=1, ack2=1, ex=3, cpn=6,
        notail=0, ncov=8, h1d=0, gt=0, CA2=None, lv=0, WLO=3, sp=0, ev=0, gx=0, ix=0, tw=0, t0=3, t1=9, qw=0, touch=0, outf='', midwb=0, endwb=0, prs=0, W0=4, W1=3, fast=0, loc=1, xp=0, cpos=0, cm=0, wofirst=0, hs=0, ipf=0, xl=0, ep=0, fx=0, po=0, merge=0):
    a = Asm()
    SN = set(str(sn).split("+"))
    NS = 12
    def stamp(k, name="d"):
        if stamps and name in SN: a(f"s_memrealtime s[{sST+2*k}:{sST+2*k+1}]")
    def vr(b, n): return f"v[{b}:{b+n-1}]"
    DPP = "row_mask:0xf bank_mask:0xf"
    def red_bits45(op, v, t):
        for sw in ("16", "32"):
            a(f"v_mov_b32 v{t}, v{v}")
            a(f"v_permlane{sw}_swap_b32 v{v}, v{t}")
            a(f"v_{op}_f32 v{v}, v{v}, v{t}")
    def red_bits345(op, v, t):
        a(f"v_{op}_f32_dpp v{v}, v{v}, v{v} row_ror:8 {DPP}")
        red_bits45(op, v, t)
    def red2_bits345(v0, v1, t0, t1):
        a(f"v_add_f32_dpp v{v0}, v{v0}, v{v0} row_ror:8 {DPP}")
        a(f"v_add_f32_dpp v{v1}, v{v1}, v{v1} row_ror:8 {DPP}")
        for sw in ("16", "32"):
            a(f"v_mov_b32 v{t0}, v{v0}")
            a(f"v_mov_b32 v{t1}, v{v1}")
            a(f"v_permlane{sw}_swap_b32 v{v0}, v{t0}")
            a(f"v_permlane{sw}_swap_b32 v{v1}, v{t1}")
            a(f"v_add_f32 v{v0}, v{v0}, v{t0}")
            a(f"v_add_f32 v{v1}, v{v1}, v{t1}")
    def tred4(v, dst):
        a(f"""
        v_permlane32_swap_b32 v{v}, v{v+2}
        v_permlane32_swap_b32 v{v+1}, v{v+3}
        v_add_f32 v{v}, v{v}, v{v+2}
        v_add_f32 v{v+1}, v{v+1}, v{v+3}
        v_permlane16_swap_b32 v{v}, v{v+1}
        v_add_f32 v{dst}, v{v}, v{v+1}
        """)
    def arrive(cnt):
        a(f"""
        v_mov_b32 v{vA0}, {cnt}
        v_mov_b32 v{vA1}, 1
        s_waitcnt lgkmcnt(0)
        s_mov_b64 exec, 1
        ds_add_u32 v{vA0}, v{vA1}
        s_mov_b64 exec, -1
        """)
    def wait_cnt(cnt, val, sl=1):
        l = a.label("Lw"); d = a.label("Lwd")
        a(f"""
        v_mov_b32 v{vA0}, {cnt}
        s_mov_b32 s{sCAP}, 0
        {l}:
        ds_read_b32 v{vA1}, v{vA0}
        s_waitcnt lgkmcnt(0)
        v_readfirstlane_b32 s{sT0}, v{vA1}
        s_cmp_ge_u32 s{sT0}, {val}
        s_cbranch_scc1 {d}
        s_add_u32 s{sCAP}, s{sCAP}, 1
        s_cmp_gt_u32 s{sCAP}, 0x400000
        s_cbranch_scc1 {d}
        s_sleep {sl}
        s_branch {l}
        {d}:
        """)
    def poll(loads, tagregs, tmp, sleep, first_issued=False, wb=False):
        lc = a.label("Lchk"); ld = a.label("Ldone")
        a(f"s_mov_b32 s{sCAP}, 0")
        if not first_issued:
            for l in loads: a(l)
            a("s_waitcnt vmcnt(0)")
        a(f"{lc}:")
        a(f"v_xor_b32 v{tmp}, v{tagregs[0]}, v{vTAG}")
        rest = list(tagregs[1:])
        for r in rest:
            a(f"v_xor_b32 v{tmp+1}, v{r}, v{vTAG}")
            a(f"v_or_b32 v{tmp}, v{tmp}, v{tmp+1}")
        a(f"v_cmp_ne_u32 vcc, 0, v{tmp}")
        a(f"s_and_b64 exec, exec, vcc")
        a(f"s_cbranch_scc0 {ld}")
        a(f"s_add_u32 s{sCAP}, s{sCAP}, 1")
        a(f"s_cmp_gt_u32 s{sCAP}, 0x40000")
        a(f"s_cbranch_scc1 {ld}")
        if wb and loc:
            lw = a.label("Lnw")
            a(f"s_and_b32 s{sT0}, s{sCAP}, {nfail-1}")
            a(f"s_cbranch_scc1 {lw}")
            a("buffer_wbl2 sc1")
            a("s_waitcnt vmcnt(0)")
            a(f"s_mov_b32 s{sWB}, 1")
            a(f"{lw}:")
        if sleep: a(f"s_sleep {sleep}")
        for l in loads: a(l)
        a("s_waitcnt vmcnt(0)")
        a(f"s_branch {lc}")
        a(f"{ld}:")
        a("s_mov_b64 exec, -1")
    def sum8(base):
        for step in (1, 2, 4):
            for k in range(0, 8, 2 * step): a(f"v_add_f32 v{base+k}, v{base+k}, v{base+k+step}")
    def init_stamps():
        if stamps:
            for k in range(NS): a(f"s_mov_b64 s[{sST+2*k}:{sST+2*k+1}], s[{sM0}:{sM0+1}]")

    a(f"""
    s_cmp_ge_u32 s2, 256
    s_cbranch_scc1 L_end
    s_load_dwordx16 s[76:91], s[0:1], 0
    """)
    if ipf:
        a(f"""
        s_getpc_b64 s[4:5]
        L_pc0:
        s_mov_b32 s8, L_code_end-L_pc0-4
        v_lshlrev_b32 v{vA2}, {7 if ipf == 1 else 6}, v0
        v_cmp_gt_u32 vcc, CODE_BYTES, v{vA2}
        s_and_saveexec_b64 s[6:7], vcc
        s_cbranch_execz L_nipf
        global_load_dword v{vSP}, v{vA2}, s[4:5]
        L_nipf:
        s_mov_b64 exec, s[6:7]
        """)
    a(f"""
    """)
    late_s = f"""
    s_load_dwordx8 s[92:99], s[0:1], 64
    s_load_dwordx2 s[{WS_}:{WS_+1}], s[0:1], 96
    s_memrealtime s[{sM0}:{sM0+1}]
    """
    if not fast: a(late_s)
    a(f"""
    v_lshrrev_b32 v{vA0}, 6, v0
    v_lshlrev_b32 v{vT16}, 4, v0
    v_readfirstlane_b32 s{sWV}, v{vA0}
    v_and_b32 v{vL}, 63, v0
    s_lshr_b32 s{sG}, s2, 6
    s_and_b32 s{sI}, s2, 63
    s_bfe_u32 s{sR8}, s2, 0x30003
    s_and_b32 s{sT0}, s2, 7
    s_lshl_b32 s{sT1}, s{sG}, 1
    s_xor_b32 s{sT0}, s{sT0}, s{sT1}
    s_lshl_b32 s{sT0}, s{sT0}, 2
    s_or_b32 s{sCB}, s{sT0}, s{sG}
    s_mov_b32 s{X_+2}, 2048
    s_mov_b32 s{X_+3}, 0x20000
    v_lshlrev_b32 v{vVO}, 4, v{vL}
    s_cmp_eq_u32 s{sWV}, 8
    s_cbranch_scc1 L_comm
    s_mov_b32 s{WQ_+2}, {1024*8192}
    s_mov_b32 s{WQ_+3}, 0x20000
    v_lshrrev_b32 v{vA0}, 4, v{vL}
    v_and_b32 v{vA1}, 15, v{vL}
    v_lshlrev_b32 v{vA1}, 4, v{vA1}
    v_lshl_add_u32 v{vA3}, v{vA0}, 15, v{vA1}
    v_lshlrev_b32 v{vA2}, 3, v{vA0}
    s_lshl_b32 s{sT3}, s{sR8}, 3
    s_add_u32 s{sT3}, s{sT3}, s{sWV}
    s_lshl_b32 s{sT0}, s{sCB}, 8
    s_lshl_b32 s{sA}, s{sT3}, 17
    s_add_u32 s{sA}, s{sA}, s{sT0}
    s_mul_i32 s{sB}, s{sT3}, {16*7168}
    s_add_u32 s{sB}, s{sB}, s{sT0}
    s_lshl_b32 s{sT3}, s{sT3}, 5
    s_add_u32 s{sT0}, s{sA}, 8192
    s_add_u32 s{sT1}, s{sA}, 16384
    s_add_u32 s{sT2}, s{sA}, 24576
    s_waitcnt lgkmcnt(0)
    s_mov_b64 s[{WQ_}:{WQ_+1}], s[82:83]
    s_mov_b64 s[{X_}:{X_+1}], s[76:77]
    """)
    R0, R1, A0, A1 = vR, vR + 16, vACC, vACC + 16
    WQR, WGR, WUR = R0, R1, A0
    vXP = vB0
    xld = f"buffer_load_dwordx2 {vr(vXP,2)}, v{vA2}, {srd(X_)}, s{sT3} offen"
    if not xl: a(xld)
    for j in range(4): a(f"buffer_load_dwordx4 {vr(WQR+4*j,4)}, v{vA3}, {srd(WQ_)}, s{[sA,sT0,sT1,sT2][j]} offen nt")
    if xl: a(xld)
    if fast: a(late_s)
    def roles():
        a(f"""
        s_and_b32 s{sRB}, s{sR8}, 3
        s_lshr_b32 s{sLC}, s{sR8}, 2
        s_lshl_b32 s{sT0}, s{sCB}, 1
        s_or_b32 s{sLC}, s{sLC}, s{sT0}
        s_lshr_b32 s{sPL}, s2, 5
        s_lshl_b32 s{sPL}, s{sPL}, 3
        s_and_b32 s{sT0}, s2, 7
        s_or_b32 s{sPL}, s{sPL}, s{sT0}
        s_mov_b32 s{WS_+2}, {WS_SIZE if not stamps else (256<<20)}
        s_mov_b32 s{WS_+3}, 0x20000
        """)
    vX = vT; vGA = vT + 8
    a(f"""
    v_mul_u32_u24 v{vWFO}, {4*7168}, v{vA0}
    v_add_u32 v{vWFO}, v{vWFO}, v{vA1}
    s_cmp_lt_u32 s{sCB}, 28
    s_cselect_b32 s{WG_+2}, {1024*7168}, 0
    s_cselect_b32 s{WU_+2}, {1024*7168}, 0
    s_cselect_b32 s{WD_+2}, {3584*2048}, 0
    s_mov_b32 s{WG_+3}, 0x20000
    s_mov_b32 s{WU_+3}, 0x20000
    s_mov_b64 s[{WG_}:{WG_+1}], s[88:89]
    s_mov_b64 s[{WU_}:{WU_+1}], s[90:91]
    s_mov_b64 s[{K_}:{K_+1}], s[78:79]
    s_mov_b64 s[{V_}:{V_+1}], s[80:81]
    s_mov_b64 s[{WO_}:{WO_+1}], s[84:85]
    s_mov_b32 s{K_+2}, 0x4000000
    s_mov_b32 s{K_+3}, 0x20000
    s_mov_b32 s{V_+2}, 0x4000000
    s_mov_b32 s{V_+3}, 0x20000
    s_mov_b32 s{WO_+2}, {4096*2048}
    s_mov_b32 s{WO_+3}, 0x20000
    s_mov_b32 s{WD_+3}, 0x20000
    s_mov_b32 s{OUT_+2}, 2048
    s_mov_b32 s{OUT_+3}, 0x20000
    s_mov_b32 s{sSELLO}, 0x05040100
    s_mov_b32 s{sSELHI}, 0x07060302
    s_mov_b32 s{sC}, {hex(f2u(128**-0.5 * math.log2(math.e)))}
    s_mov_b32 s{sBOOST}, {WIN if lv else 0}
    s_mul_i32 s{sKV}, s{sG}, {(1<<24) + (gx<<22)}
    """)
    if ix == 0:
        a(f"s_lshl_b32 s{sT0}, s{sI}, 16")
        a(f"s_add_u32 s{sKV}, s{sKV}, s{sT0}")
    else:
        pos = {1: [17, 18, 19, 16, 20, 21], 2: [16, 17, 19, 18, 20, 21]}[ix]
        for b in range(6):
            a(f"s_bfe_u32 s{sT0}, s2, {0x10000 + b}")
            a(f"s_lshl_b32 s{sT0}, s{sT0}, {pos[b]}")
            a(f"s_add_u32 s{sKV}, s{sKV}, s{sT0}")
    a(f"""
    s_lshl_b32 s{sT0}, s{sWV}, 13
    s_add_u32 s{sKV}, s{sKV}, s{sT0}
    s_lshl_b32 s{sT0}, s{sWV}, 10
    s_add_u32 s{sXV}, s{sKV}, s{sT0}
    s_and_b32 s{sT1}, s{sT0}, 4096
    s_add_u32 s{sKV}, s{sKV}, s{sT1}
    s_and_b32 s{sT0}, s{sT0}, 3072
    v_lshlrev_b32 v{vA2}, 1, v{vA1}
    v_lshl_add_u32 v{vA2}, v{vA0}, 3, v{vA2}
    s_lshl_b32 s{sT1}, s{sWV}, 9
    v_add_u32 v{vGA}, s{sT1}, v{vA2}
    v_and_b32 v{vA2}, 3, v{vL}
    v_lshlrev_b32 v{vA2}, 10, v{vA2}
    v_xor_b32 v{vA2}, s{sT0}, v{vA2}
    v_bfe_u32 v{vA3}, v{vL}, 2, 1
    v_lshl_add_u32 v{vA2}, v{vA3}, 8, v{vA2}
    v_bfe_u32 v{vA3}, v{vL}, 3, 1
    v_lshl_add_u32 v{vA2}, v{vA3}, 6, v{vA2}
    v_lshl_add_u32 v{vKO}, v{vA0}, 4, v{vA2}
    v_mov_b32 v{vE+6}, 0
    v_mov_b32 v{vE+7}, 0x40000000
    """)
    roles()
    a(f"""
    s_waitcnt lgkmcnt(0)
    s_mov_b64 s[{WD_}:{WD_+1}], s[92:93]
    s_mov_b64 s[{OUT_}:{OUT_+1}], s[96:97]
    """)
    init_stamps()
    for r in range(24): a(f"v_mov_b32 v{vS+r}, 0")
    a("s_barrier")

    U = []
    for j in range(4): U.append((f"wq{j}", None, 2 if (xl and j == 3) else 1, None))
    for nm, R, S_ in (("gate", WGR, WG_), ("up", WUR, WU_)):
        for j in range(4):
            U.append((f"{nm}{j}", [f"s_add_u32 s{sT3}, s{sB}, {j*7168}", f"buffer_load_dwordx4 {vr(R+4*j,4)}, v{vWFO}, {srd(S_)}, s{sT3} offen nt"], 1, None))
    WDQ = [vP, vP + 4, vP + 8, vSP]
    WOR = vT; PW = R0
    def wdunit(j, pre):
        if sp:
            U.append((f"wd{j}", [f"v_mov_b32_dpp v{vA2}, v{vE+5} row_newbcast:{j} {DPP}",
                      f"v_and_b32 v{vA3}, 0x7fff0000, v{vA2}", f"v_and_b32 v{vA2}, 0x7fff, v{vA2}",
                      f"v_cmp_ne_u32 vcc, 0, v{vA2}", f"v_cndmask_b32 v{vA2}, v{vE+7}, v{vWDO}, vcc",
                      f"v_cmp_ne_u32 vcc, 0, v{vA3}", f"v_cndmask_b32 v{vA3}, v{vE+7}, v{vWDO}, vcc",
                      f"s_xor_b32 s{sT3}, s{sWD}, {j*4096}", f"buffer_load_dwordx2 {vr(WDQ[j],2)}, v{vA2}, {srd(WD_)}, s{sT3} offen nt",
                      f"buffer_load_dwordx2 {vr(WDQ[j]+2,2)}, v{vA3}, {srd(WD_)}, s{sT3} offen offset:2048 nt"], 2, pre))
            return
        U.append((f"wd{j}", [f"s_xor_b32 s{sT3}, s{sWD}, {j*4096}", f"buffer_load_dwordx2 {vr(WDQ[j],2)}, v{vWDO}, {srd(WD_)}, s{sT3} offen nt",
                  f"buffer_load_dwordx2 {vr(WDQ[j]+2,2)}, v{vWDO}, {srd(WD_)}, s{sT3} offen offset:2048 nt"], 2, pre))
    KSL = [A1, vP, R0, R1, A0, A1, vP, A0]
    KPRE = [None, None, "wq", "gate", "up", "K0", "K1", "K4"]
    for g in range(8):
        t, u = g >> 1, g & 1
        for k in range(4):
            l = [f"s_xor_b32 s{sKS}, s{sKV}, {t*(4<<20) + u*4096}"] if k == 0 else []
            l.append(f"buffer_load_dwordx4 {vr(KSL[g]+4*k,4)}, v{vKO}, {srd(K_)}, s{sKS} offen offset:{(k>>1)*512+(k&1)*128} nt")
            U.append((f"K{g}_{k}", l, 1, KPRE[g]))
    nearly = 8 - ncov
    order = [3, 0, 1, 2]
    for t in range(4):
        if t == 3:
            for j in order[:min(nearly, 3)]: wdunit(j, "V1m")
        for j in range(8):
            if t == 3 and j == 4 and nearly == 4: wdunit(2, "V2m")
            U.append((f"V{t}_{j}", [f"s_xor_b32 s{sKS}, s{sXV}, {t*(4<<20) + j*1024}",
                      f"buffer_load_dwordx4 {vr(vR+4*j,4)}, v{vVO}, {srd(V_)}, s{sKS} offen nt"], 1, f"K{2+(j>>2)}" if t == 0 else f"V{t-1}p{j>>1}"))
    for j in order[nearly:]: wdunit(j, "V2m")
    for j in range(4):
        l = []
        for e in range(2 * j, 2 * j + 2):
            l += [f"s_xor_b32 s{sT3}, s{sB}, {e*16384}", f"buffer_load_dwordx2 {vr(WOR+2*e,2)}, v{vWOO}, {srd(WO_)}, s{sT3} offen nt"]
        U.append((f"wo{j}", l, 2, "pre"))
    if merge:
        k0_ = [u[0] for u in U].index("wd3")
        w = U[k0_:k0_ + 4]
        U[k0_:k0_ + 4] = [("wd0", w[0][1] + w[1][1], 4, w[1][3]), ("wd2", w[2][1] + w[3][1], 4, w[3][3])]
    names = [u[0] for u in U]
    idx = {n: k for k, n in enumerate(names)}

    consumed = set()
    def task_g(m, j):
        W, acc = [(WQR, vS), (WGR, vS + 8), (WUR, vS + 16)][m]
        if m == 0 and j == 0:
            for h in range(2):
                a(f"v_and_b32 v{vX+4*h}, 0xffff, v{vXP+h}")
                a(f"v_lshlrev_b32 v{vX+4*h+1}, 16, v{vXP+h}")
                a(f"v_lshrrev_b32 v{vX+4*h+2}, 16, v{vXP+h}")
                a(f"v_and_b32 v{vX+4*h+3}, 0xffff0000, v{vXP+h}")
        for w in range(4):
            a(f"v_dot2c_f32_bf16 v{acc+2*w}, v{W+4*j+w}, v{vX+2*j}")
            a(f"v_dot2c_f32_bf16 v{acc+2*w+1}, v{W+4*j+w}, v{vX+2*j+1}")
        if j == 3:
            consumed.add(["wq", "gate", "up"][m])
            for k in range(4): a(f"v_permlane32_swap_b32 v{acc+k}, v{acc+k+4}")
            for k in range(4): a(f"v_add_f32 v{acc+k}, v{acc+k}, v{acc+k+4}")
            for k in range(2): a(f"v_permlane16_swap_b32 v{acc+k}, v{acc+k+2}")
            for k in range(2): a(f"v_add_f32 v{acc+k}, v{acc+k}, v{acc+k+2}")
            a(f"ds_write_b64 v{vGA}, {vr(acc,2)} offset:{L_GP+4096*m}")
            if m != 1: arrive(C_Q if m == 0 else C_F)
            if m == 0: stamp(1)
    def wperm(dst, quads):
        for p in range(4):
            for d in range(2):
                a(f"v_perm_b32 v{dst+4*p+2*d}, v{quads[p]+2+d}, v{quads[p]+d}, s{sSELLO}")
                a(f"v_perm_b32 v{dst+4*p+2*d+1}, v{quads[p]+2+d}, v{quads[p]+d}, s{sSELHI}")
    def dot16(W, vO, acc):
        for p in range(4):
            for c in range(4): a(f"v_dot2c_f32_bf16_dpp v{acc+c}, v{vO}, v{W+4*p+c} row_newbcast:{p} {DPP}")
    def task_qwait():
        stamp(2)
        wait_cnt(C_QS, 1)
        a(f"""
        v_and_b32 v{vA0}, 7, v{vL}
        v_mul_u32_u24 v{vA0}, 272, v{vA0}
        v_bfe_u32 v{vA1}, v{vL}, 3, 1
        v_lshl_add_u32 v{vA0}, v{vA1}, 6, v{vA0}
        v_lshrrev_b32 v{vA1}, 4, v{vL}
        v_lshl_add_u32 v{vA0}, v{vA1}, 4, v{vA0}
        """)
        for s in range(2): a(f"ds_read_b128 {vr(vQ+4*s,4)}, v{vA0} offset:{L_QS+128*s}")
        if gt: a(f"ds_read_b32 v{vA1}, v{vE+6} offset:{L_G+12}")
        a("s_waitcnt lgkmcnt(0)")
        if gt:
            a(f"v_readfirstlane_b32 s{sM0}, v{vA1}")
            st["ca"] = CA2 if CA2 is not None else CA
        stamp(3)
    def task_k(g):
        base = KSL[g]; dx = vS + 4 * g; dy = vT
        for sp in range(2):
            a(f"v_mfma_f32_16x16x32_bf16 {vr(dx,4)}, {vr(base+4*sp,4)}, {vr(vQ+4*sp,4)}, {'0' if sp==0 else vr(dx,4)}")
            a(f"v_mfma_f32_16x16x32_bf16 {vr(dy,4)}, {vr(base+8+4*sp,4)}, {vr(vQ+4*sp,4)}, {'0' if sp==0 else vr(dy,4)}")
        for r in range(4): a(f"v_permlane32_swap_b32 v{dx+r}, v{dy+r}")
        for r in range(4): a(f"v_add_f32_dpp v{dx+r}, v{dy+r}, v{dx+r} row_ror:8 {DPP}")
        consumed.add(f"K{g}")
    vM = vE
    def sm_max():
        a(f"v_max3_f32 v{vM}, v{vS}, v{vS+1}, v{vS+2}")
        a(f"v_max3_f32 v{vA2}, v{vS+3}, v{vS+4}, v{vS+5}")
        for k in range(6, 30, 4):
            a(f"v_max3_f32 v{vM}, v{vM}, v{vS+k}, v{vS+k+1}")
            a(f"v_max3_f32 v{vA2}, v{vA2}, v{vS+k+2}, v{vS+k+3}")
        a(f"v_max3_f32 v{vM}, v{vM}, v{vS+30}, v{vS+31}")
        a(f"v_max_f32 v{vM}, v{vM}, v{vA2}")
        red_bits45("max", vM, vA2)
        a(f"v_mul_f32 v{vM}, s{sC}, v{vM}")
    def sm_exp(t):
        for k in range(8 * t, 8 * t + 8): a(f"v_fma_f32 v{vS+k}, v{vS+k}, s{sC}, -v{vM}")
        for k in range(8 * t, 8 * t + 8): a(f"v_exp_f32 v{vS+k}, v{vS+k}")
        for k in range(4 * t, 4 * t + 4): a(f"v_cvt_pk_bf16_f32 v{vP+k}, v{vS+2*k}, v{vS+2*k+1}")
        sum8(vS + 8 * t)
    def sm_fin():
        a(f"v_add_f32 v{vS}, v{vS}, v{vS+8}")
        a(f"v_add_f32 v{vS+16}, v{vS+16}, v{vS+24}")
        a(f"v_add_f32 v{vM+1}, v{vS}, v{vS+16}")
        red_bits45("add", vM + 1, vA2)
        a(f"""
        s_lshl_b32 s{sT0}, s{sWV}, 6
        v_lshl_add_u32 v{vA2}, v{vL}, 3, s{sT0}
        s_mov_b64 exec, 0xff
        ds_write_b64 v{vA2}, {vr(vM,2)} offset:{L_ST}
        s_mov_b64 exec, -1
        """)
        arrive(C_ST)
        stamp(4)
    def task_vperm(t, uu):
        for w in range(4):
            a(f"v_perm_b32 v{vS+4*(2*w)+uu}, v{vR+4*(2*uu+1)+w}, v{vR+4*(2*uu)+w}, s{sSELLO}")
            a(f"v_perm_b32 v{vS+4*(2*w+1)+uu}, v{vR+4*(2*uu+1)+w}, v{vR+4*(2*uu)+w}, s{sSELHI}")
        consumed.add(f"V{t}p{uu}")
        if uu == 3:
            for i in range(8):
                c = "0" if t == 0 else vr(vACC + 4 * i, 4)
                a(f"v_mfma_f32_16x16x32_bf16 {vr(vACC+4*i,4)}, {vr(vS+4*i,4)}, {vr(vP+4*t,4)}, {c}")
            consumed.add(f"V{t}m")
    aOW, aOR, aF, aH1, aR2W, aL8, aH2, aR1W = [vQ + k for k in range(8)]
    aR1R, aFP, aR3, vG, vHP = vKO, vWFO, vE + 4, vE + 2, vE + 5
    def task_pre1():
        a(f"""
        v_lshrrev_b32 v{vA1}, 4, v{vL}
        v_and_b32 v{vA2}, 7, v{vL}
        v_mul_u32_u24 v{vA0}, 528, v{vA2}
        v_lshl_add_u32 v{vA0}, v{vA1}, 4, v{vA0}
        s_mul_i32 s{sT0}, s{sWV}, 4224
        v_add_u32 v{aOW}, s{sT0}, v{vA0}
        s_mul_i32 s{sT0}, s{sWV}, 528
        v_lshl_add_u32 v{aOR}, v{vL}, 3, s{sT0}
        s_lshl_b32 s{sT0}, s{sWV}, 5
        v_mov_b32 v{aF}, s{sT0}
        v_lshrrev_b32 v{vA0}, 5, v{vL}
        v_lshlrev_b32 v{vA3}, 2, v{vA0}
        v_lshl_add_u32 v{vA3}, v{vA2}, 3, v{vA3}
        s_lshl_b32 s{sT0}, s{sWV}, 6
        v_add_u32 v{aR2W}, s{sT0}, v{vA3}
        v_lshlrev_b32 v{aL8}, 3, v{vL}
        v_and_b32 v{vA2}, 15, v{vL}
        s_and_b32 s{sT1}, s{sWV}, 3
        s_lshl_b32 s{sT0}, s{sT1}, 7
        v_lshl_add_u32 v{vA3}, v{vA2}, 3, s{sT0}
        v_lshl_add_u32 v{vWDO}, v{vA1}, 14, v{vA3}
        v_lshl_add_u32 v{vA3}, v{vA0}, 11, v{vA3}
        v_and_b32 v{vA0}, 1, v{vA1}
        v_lshl_add_u32 v{vWOO}, v{vA0}, 17, v{vA3}
        v_lshl_add_u32 v{vA0}, v{vA2}, 2, v{vA1}
        s_lshl_b32 s{sT0}, s{sT1}, 9
        v_lshl_add_u32 v{aFP}, v{vA0}, 3, s{sT0}
        s_lshl_b32 s{sT0}, s{sWV}, 8
        v_lshl_add_u32 v{aR1W}, v{vA0}, 2, s{sT0}
        s_lshl_b32 s{sT0}, s{sT1}, 8
        v_lshl_add_u32 v{aR3}, v{vL}, 2, s{sT0}
        v_lshrrev_b32 v{vA0}, 8, v{vT16}
        v_lshlrev_b32 v{vA0}, 12, v{vA0}
        v_and_b32 v{vA2}, 0xf0, v{vT16}
        v_add_u32 v{aH1}, v{vA0}, v{vA2}
        v_lshrrev_b32 v{vA0}, 7, v{vT16}
        v_lshlrev_b32 v{vA0}, 11, v{vA0}
        v_and_b32 v{vA2}, 0x70, v{vT16}
        v_add_u32 v{aH2}, v{vA0}, v{vA2}
        v_lshrrev_b32 v{vT16}, 1, v{vT16}
        """)
    def task_pre2():
        wait_cnt(C_H, 1)
        a(f"""
        v_and_b32 v{vA3}, 3, v{vL}
        s_and_b32 s{sT1}, s{sWV}, {ex}
        v_xor_b32 v{vA3}, s{sT1}, v{vA3}
        v_lshrrev_b32 v{vA2}, 4, v{vL}
        v_lshl_add_u32 v{vA2}, v{vA2}, 2, v{vA3}
        s_lshr_b32 s{sT2}, s{sWV}, 2
        s_lshl_b32 s{sT0}, s{sT2}, 4
        v_add_u32 v{vA2}, s{sT0}, v{vA2}
        v_bfe_u32 v{vA3}, v{vL}, 2, 2
        v_lshlrev_b32 v{vA3}, 9, v{vA3}
        v_lshl_add_u32 v{aR1R}, v{vA2}, 3, v{vA3}
        v_lshlrev_b32 v{vA2}, 2, v{vA2}
        ds_read_b32 v{vHP}, v{vA2} offset:{L_H}
        ds_read_b64 {vr(vG,2)}, v{vE+6} offset:{L_G}
        ds_read_b32 v{vTAG}, v{vE+6} offset:{L_G+8}
        s_lshl_b32 s{sWD}, s{sLC}, 17
        s_lshl_b32 s{sT0}, s{sT2}, 16
        s_add_u32 s{sWD}, s{sWD}, s{sT0}
        s_lshl_b32 s{sT0}, s{sT1}, 12
        s_add_u32 s{sWD}, s{sWD}, s{sT0}
        s_lshl_b32 s{sT0}, s{sRB}, 9
        s_add_u32 s{sWD}, s{sWD}, s{sT0}
        s_lshl_b32 s{sB}, s{sT1}, 15
        s_add_u32 s{sB}, s{sB}, s{sT0}
        s_lshl_b32 s{sT0}, s{sT2}, 12
        s_add_u32 s{sB}, s{sB}, s{sT0}
        s_lshr_b32 s{sT1}, s{sR8}, 2
        s_lshl_b32 s{sT0}, s{sT1}, 13
        s_add_u32 s{sB}, s{sB}, s{sT0}
        s_and_b32 s{sT2}, s2, 7
        s_lshl_b32 s{sT0}, s{sG}, 3
        s_add_u32 s{sT0}, s{sT0}, s{sT2}
        s_lshl_b32 s{sT0}, s{sT0}, 18
        s_add_u32 s{sB}, s{sB}, s{sT0}
        s_lshl_b32 s{sH1}, s{sG}, 18
        s_lshl_b32 s{sT0}, s{sT2}, 9
        s_add_u32 s{sH1}, s{sH1}, s{sT0}
        s_lshl_b32 s{sT0}, s{sT1}, 8
        s_add_u32 s{sH1}, s{sH1}, s{sT0}
        s_add_u32 s{sH1}, s{sH1}, {WS_OP}
        s_add_u32 s{sH1b}, s{sH1}, {32*4096}
        s_lshl_b32 s{sPA}, s2, 12
        s_add_u32 s{sPA}, s{sPA}, {WS_OP}
        s_lshl_b32 s{sPB}, s{sRB}, 6
        s_add_u32 s{sPB}, s{sPB}, s{sPL}
        s_lshl_b32 s{sPB}, s{sPB}, 11
        s_add_u32 s{sPB}, s{sPB}, {WS_FP}
        s_lshl_b32 s{sI}, s{sT2}, 3
        s_or_b32 s{sI}, s{sI}, s{sR8}
        s_mov_b32 s{sI}, s{sI if fx else 2}
        s_lshr_b32 s{sA}, s{sI}, 4
        s_lshl_b32 s{sA}, s{sA}, 17
        s_and_b32 s{sT0}, s{sI}, 15
        s_lshl_b32 s{sT0}, s{sT0}, 7
        s_add_u32 s{sA}, s{sA}, s{sT0}
        s_add_u32 s{sA}, s{sA}, {WS_FP}
        s_waitcnt lgkmcnt(0)
        v_mov_b32 v{vB1}, v{vTAG}
        v_mov_b32 v{vE+1}, v{vTAG}
        """)
        for k in range(4): a(f"v_mov_b32 v{vBP+k}, 0")
        if po:
            a(f"""
            s_cmp_ge_u32 s2, 64
            s_cbranch_scc1 L_npo
            s_cmp_lg_u32 s{sWV}, 0
            s_cbranch_scc1 L_npo
            s_lshl_b32 s{sT0}, s{sI}, 5
            buffer_load_dword v{vE}, off, {srd(OUT_)}, s{sT0}
            L_npo:
            """)
        consumed.add("pre")
    vH1 = R1; vF = R1 + 8
    h1 = [f"buffer_load_dwordx4 {vr(vH1+4*k,4)}, v{aH1}, {srd(WS_)}, s{sH1+k} offen sc1" for k in range(2)]
    if xp & 4: h1 = []

    C = []
    for m, nm in enumerate(("wq", "gate", "up")):
        if m == 0 and xl: C.append((3, lambda: [task_g(0, j) for j in range(4)]))
        else:
            for j in range(4): C.append((idx[f"{nm}{j}"], lambda m=m, j=j: task_g(m, j)))
    C.append((p1_at, lambda: arrive(C_P1)))
    C.append((p2_at, lambda: arrive(C_P2)))
    C.append((q_at, task_qwait))
    for g in range(8): C.append((max(q_at, idx[f"K{g}_3"]), lambda g=g: task_k(g)))
    kend = idx["K7_3"]
    C.append((kend, sm_max))
    for t in range(4): C.append((kend, lambda t=t: sm_exp(t)))
    C.append((kend, sm_fin))
    for t in range(4):
        for uu in range(4): C.append((idx[f"V{t}_{2*uu+1}"], lambda t=t, uu=uu: task_vperm(t, uu)))
    C.append((idx["V1_2"], task_pre1)); C.append((idx["V1_4"], task_pre2))
    C.sort(key=lambda c: c[0])
    n = len(U); stop_at = idx["V3_7"]
    st = {"issued": 4, "c": 0, "ca": CA}
    def run_chunk():
        C[st["c"]][1](); st["c"] += 1
    def issue_upto(lim, arrived, throttle=True):
        while st["issued"] < min(n, lim):
            k = st["issued"]
            nm, lines, nv, pre = U[k]
            if throttle and k - WIN >= stop_at: return
            while pre is not None and pre not in consumed:
                assert C[st["c"]][0] <= arrived, ("issue blocked", nm, names[arrived])
                run_chunk()
            if throttle and k >= dyn0 and lv:
                lk = a.label("Li")
                wlo = WLO
                if tw and idx["V0_0"] + t0 <= k <= idx["V0_0"] + t1: wlo = tw
                if qw and q_at + WMAX - 1 <= k <= q_at + WMAX + 3: wlo = qw
                for w in range(WMAX - 1, wlo - 1, -1):
                    if w < WIN and k - w >= stop_at: break
                    a(f"s_cmp_gt_i32 s{sBOOST}, {w}")
                    a(f"s_cbranch_scc1 {lk}")
                    a(f"s_waitcnt vmcnt({sum(u[2] for u in U[k-w+1:k])})")
                a(f"{lk}:")
            elif throttle and k >= dyn0:
                lk = a.label("Li")
                a(f"s_cmp_gt_u32 s{sBOOST}, {k}")
                a(f"s_cbranch_scc1 {lk}")
                a(f"s_waitcnt vmcnt({sum(u[2] for u in U[k-WIN+1:k])})")
                a(f"{lk}:")
            for x in lines: a(x)
            st["issued"] += 1
    issue_upto(W0, -1)
    for arrived in range(stop_at + 1):
        assert st["issued"] > arrived
        a(f"s_waitcnt vmcnt({sum(u[2] for u in U[arrived + 1:st['issued']])})")
        if arrived % 8 == 7: stamp(arrived // 8 + 1, "u")
        if arrived >= k0 and arrived < stop_at - 3:
            if (arrived - k0) % CK == 0: a(f"s_memrealtime s[{sCK}:{sCK+1}]")
            if (arrived - k0) % CK == 1:
                kk = st["issued"] - WIN - 1
                if lv:
                    a(f"""
                    s_waitcnt lgkmcnt(0)
                    s_sub_u32 s{sCK}, s{sCK}, s{sM0}
                    s_sub_i32 s{sCK}, s{sCK}, {st["ca"] + CB * kk // 10}
                    s_ashr_i32 s{sCK}, s{sCK}, {lv}
                    s_add_i32 s{sBOOST}, s{sCK}, {WIN + 1}
                    """)
                else: a(f"""
                s_waitcnt lgkmcnt(0)
                s_sub_u32 s{sCK}, s{sCK}, s{sM0}
                s_sub_i32 s{sCK}, s{sCK}, {st["ca"] + CB * kk // 10}
                s_ashr_i32 s{sCK}, s{sCK}, {gsh}
                s_add_i32 s{sBOOST}, s{sCK}, {st["issued"]}
                s_max_i32 s{sBOOST}, s{sBOOST}, 0
                """)
        if arrived < stop_at: issue_upto(arrived + 1 + (W1 if arrived < dyn0 - W1 else WMAX), arrived)
        ran = 0
        while st["c"] < len(C) and C[st["c"]][0] <= arrived and (ran < 2 or arrived >= stop_at - 1):
            run_chunk(); ran += 1
    assert st["c"] == len(C)

    stamp(5)
    if not cpos: issue_upto(st["issued"] + ca, n, False)
    a("s_mov_b32 exec_lo, 0x00ff00ff")
    a("s_mov_b32 exec_hi, 0x00ff00ff")
    for i in range(8): a(f"ds_write_b128 v{aOW}, {vr(vACC+4*i,4)} offset:{L_ORED+64*i}")
    a("s_mov_b64 exec, -1")
    if cpos: issue_upto(st["issued"] + ca, n, False)
    a(f"""
    s_waitcnt lgkmcnt(0)
    s_barrier
    ds_read_b128 {vr(vF,4)}, v{aF} offset:{L_F}
    ds_read_b128 {vr(vF+4,4)}, v{aF} offset:{L_F+16}
    """)
    for w in range(8): a(f"ds_read_b64 {vr(vS+2*w,2)}, v{aOR} offset:{L_ORED+4224*w}")
    a("s_waitcnt lgkmcnt(7)")
    a(f"v_mul_f32 v{vB0}, v{vS}, v{vF}")
    a(f"v_mul_f32 v{vB2}, v{vS+1}, v{vF}")
    for w in range(1, 8):
        a(f"s_waitcnt lgkmcnt({7-w})")
        a(f"v_fmac_f32 v{vB0}, v{vS+2*w}, v{vF+w}")
        a(f"v_fmac_f32 v{vB2}, v{vS+2*w+1}, v{vF+w}")
    a(f"v_cvt_pk_bf16_f32 v{vB0}, v{vB0}, v{vB2}")
    a(f"buffer_store_dwordx2 {vr(vB0,2)}, v{vT16}, {srd(WS_)}, s{sPA} offen" + ("" if xp & 1 else " sc1"))
    stamp(6)
    k_s = st["issued"]
    issue_upto(st["issued"] + cb, n, False)
    if notail: a("s_branch L_fin")
    def outstanding_after(k): return sum(u[2] for u in U[k:st["issued"]])
    wait_to = min(st["issued"], k_s + h1d)
    a(f"s_waitcnt vmcnt({outstanding_after(wait_to)})")
    if hs: a(f"s_sleep {hs}")
    if h1first:
        for l in h1: a(l)
    k_h = st["issued"]
    issue_upto(n, n, False)
    if not h1first:
        for l in h1: a(l)
    nh = len(h1)
    lastwd = max(idx.get(f"wd{j}", 0) for j in range(4))
    w = outstanding_after(lastwd + 1) + (nh if (not h1first or lastwd + 1 <= k_h) else 0)
    a(f"s_waitcnt vmcnt({w})")
    wperm(vS + 16, WDQ)
    dot16(vS + 16, vHP, vBP)
    for k in range(4): a(f"v_mov_b32 v{vS+8+k}, 0")
    for k in range(4): a(f"v_mul_f32 v{vBP+k}, v{vBP+k}, v{vG+1}")
    a(f"s_waitcnt vmcnt({0 if h1first else nh})")
    wperm(PW, [WOR + 4 * p for p in range(4)])
    a("s_waitcnt vmcnt(0)")
    stamp(7)
    if not xp: poll(h1, [vH1 + 1, vH1 + 3, vH1 + 5, vH1 + 7], vA0, sleep1, first_issued=True)
    stamp(8)
    for r in (0, 2, 4, 6):
        a(f"v_and_b32 v{vH1+r+1}, 0xffff0000, v{vH1+r}")
        a(f"v_lshlrev_b32 v{vH1+r}, 16, v{vH1+r}")
    for r in range(4): a(f"v_add_f32 v{vH1+r}, v{vH1+r}, v{vH1+r+4}")
    tred4(vH1, vH1)
    a(f"""
    ds_write_b32 v{aR1W}, v{vH1} offset:{L_RED1}
    s_waitcnt lgkmcnt(0)
    s_barrier
    ds_read_b64 {vr(vS,2)}, v{aR1R} offset:{L_RED1}
    ds_read_b64 {vr(vS+2,2)}, v{aR1R} offset:{L_RED1+256}
    s_waitcnt lgkmcnt(0)
    v_add_f32 v{vS}, v{vS}, v{vS+2}
    v_add_f32 v{vS+1}, v{vS+1}, v{vS+3}
    v_add_f32_dpp v{vS}, v{vS}, v{vS} row_ror:4 {DPP}
    v_add_f32_dpp v{vS+1}, v{vS+1}, v{vS+1} row_ror:4 {DPP}
    v_add_f32_dpp v{vS}, v{vS}, v{vS} row_ror:8 {DPP}
    v_add_f32_dpp v{vS+1}, v{vS+1}, v{vS+1} row_ror:8 {DPP}
    v_cvt_pk_bf16_f32 v{vA0}, v{vS}, v{vS+1}
    """)
    dot16(PW, vA0, vS + 8)
    for k in range(4): a(f"v_fmac_f32 v{vBP+k}, v{vS+8+k}, v{vG}")
    tred4(vBP, vE)
    a(f"""
    s_cmp_lt_u32 s{sWV}, 4
    s_cbranch_scc1 L_lo
    ds_write_b32 v{aR3}, v{vE} offset:{L_RED3}
    s_waitcnt lgkmcnt(0)
    s_barrier
    s_branch L_st
    L_lo:
    s_barrier
    ds_read_b32 v{vA0}, v{aR3} offset:{L_RED3}
    s_waitcnt lgkmcnt(0)
    v_add_f32 v{vE}, v{vE}, v{vA0}
    buffer_store_dwordx2 {vr(vE,2)}, v{aFP}, {srd(WS_)}, s{sPB} offen sc1
    L_st:
    """)
    stamp(9)
    a("s_cmp_ge_u32 s2, 64")
    a("s_cbranch_scc1 L_fin")
    if ack2: a("s_waitcnt vmcnt(0)")
    poll([f"buffer_load_dwordx4 {vr(vS,4)}, v{aH2}, {srd(WS_)}, s{sA} offen sc1"], [vS + 1, vS + 3], vA0, sleep1)
    stamp(10)
    a(f"""
    v_permlane32_swap_b32 v{vS}, v{vS+2}
    v_add_f32 v{vS}, v{vS}, v{vS+2}
    v_add_f32_dpp v{vS}, v{vS}, v{vS} row_ror:8 {DPP}
    v_mov_b32 v{vA1}, v{vS}
    v_permlane16_swap_b32 v{vS}, v{vA1}
    v_add_f32 v{vS}, v{vS}, v{vA1}
    ds_write_b32 v{aR2W}, v{vS} offset:{L_RED2}
    s_waitcnt lgkmcnt(0)
    s_barrier
    s_cmp_lg_u32 s{sWV}, 0
    s_cbranch_scc1 L_fin
    ds_read_b64 {vr(vS,2)}, v{aL8} offset:{L_RED2}
    v_lshlrev_b32 v{vA2}, 2, v{vL}
    s_lshl_b32 s{sT0}, s{sI}, 5
    s_waitcnt lgkmcnt(0)
    """)
    red2_bits345(vS, vS + 1, vA0, vA1)
    a(f"""
    v_cvt_pk_bf16_f32 v{vA0}, v{vS}, v{vS+1}
    s_mov_b64 exec, 0xff
    buffer_store_dword v{vA0}, v{vA2}, {srd(OUT_)}, s{sT0} offen {outf.replace('+',' ')}
    s_cmp_lg_u32 s2, 0
    s_cbranch_scc1 L_fin
    s_mov_b64 exec, 1
    buffer_store_dword v{vTAG}, off, {srd(WS_)}, 0 {'' if ep else 'sc1'}
    L_fin:
    """)
    if fix:
        a(f"""
        L_fx:
        s_memrealtime s[4:5]
        s_waitcnt lgkmcnt(0)
        s_sub_u32 s4, s4, s{sM0}
        s_cmp_ge_u32 s4, {fix}
        s_cbranch_scc1 L_fxd
        s_sleep 1
        s_branch L_fx
        L_fxd:
        """)
    if stamps:
        a("s_mov_b64 exec, -1")
        a("s_waitcnt vmcnt(0)")
        a(f"s_memrealtime s[{sST+22}:{sST+23}]")
        a(f"s_mul_i32 s{sT0}, s2, 9")
        a(f"s_add_u32 s{sT0}, s{sT0}, s{sWV}")
        a(f"s_mul_i32 s{sT0}, s{sT0}, {NS*8}")
        a(f"s_add_u32 s{sT0}, s{sT0}, {STAMP_OFF}")
        a("s_waitcnt lgkmcnt(0)")
        a("s_mov_b64 exec, 1")
        for j in range(NS):
            a(f"v_mov_b32 v{vA0}, s{sST+2*j}")
            a(f"v_mov_b32 v{vA1}, s{sST+2*j+1}")
            a(f"buffer_store_dwordx2 {vr(vA0,2)}, off, {srd(WS_)}, s{sT0} offset:{8*j}")
    a("L_end:")
    a("s_endpgm")

    cX = vACC; cG = vACC + 8
    cL4, cL8, cPA, cPF, cQW, cGP = vWDO, vQ, vQ + 1, vQ + 2, vQ + 3, vQ + 4
    a(f"""
    L_comm:
    """)
    if fast: a(late_s)
    a(f"""
    s_setprio 3
    s_mov_b32 s{sWB}, 0
    v_mov_b32 v{vA0}, 0
    v_lshlrev_b32 v{cL4}, 2, v{vL}
    s_mov_b64 exec, 0xffff
    ds_write_b32 v{cL4}, v{vA0}
    s_mov_b64 exec, -1
    s_mov_b32 s{GW_+2}, 2048
    s_mov_b32 s{GW_+3}, 0x20000
    s_waitcnt lgkmcnt(0)
    s_barrier
    s_mov_b64 s[{X_}:{X_+1}], s[76:77]
    s_mov_b64 s[{GW_}:{GW_+1}], s[94:95]
    """)
    if not ev: a(f"s_load_dword s{sC}, s[{WS_}:{WS_+1}], 0")
    roles()
    def touch_kv(ptr, tiles):
        for n_, t in enumerate(tiles):
            a(f"s_xor_b32 s25, s24, {t*(4<<20)}")
            a(f"s_load_dword s{26+n_}, s[{ptr}:{ptr+1}], s25")
    if touch:
        assert ix == 0
        a(f"""
        s_mov_b64 s[4:5], s[78:79]
        s_mov_b64 s[6:7], s[80:81]
        s_mov_b64 s[8:9], s[84:85]
        s_mov_b64 s[10:11], s[92:93]
        s_mul_i32 s24, s{sG}, {(1<<24) + (gx<<22)}
        s_lshl_b32 s25, s{sI}, 16
        s_add_u32 s24, s24, s25
        """)
        if touch & 1:
            a(f"""
            s_mul_i32 s25, s{sR8}, {128*7168}
            s_load_dword s20, s[88:89], s25
            s_load_dword s21, s[90:91], s25
            s_add_u32 s25, s25, {127*7168}
            s_load_dword s22, s[88:89], s25
            s_load_dword s23, s[90:91], s25
            """)
            touch_kv(4, [0])
    def preread():
        if not prer: return
        a(f"""
        v_lshlrev_b32 v{vA2}, 7, v{vL}
        s_lshl_b32 s{sT1}, s2, 12
        s_add_u32 s{sT1}, s{sT1}, {WS_OP}
        s_lshl_b32 s{sT3}, s{sRB}, 6
        s_add_u32 s{sT3}, s{sT3}, s{sPL}
        s_lshl_b32 s{sT3}, s{sT3}, 11
        s_add_u32 s{sT3}, s{sT3}, {WS_FP}
        s_mov_b32 exec_hi, 0
        """)
        if prer & 1: a(f"buffer_load_dword v{vR}, v{vA2}, {srd(WS_)}, s{sT1} offen")
        a("s_mov_b32 exec_lo, 0xffff")
        if prer & 2: a(f"buffer_load_dword v{vR+2}, v{vA2}, {srd(WS_)}, s{sT3} offen")
        a("s_mov_b64 exec, -1")
    if ev: a(f"buffer_load_dword v{vTAG}, off, {srd(WS_)}, 0 sc1")
    if prs == 1: preread()
    a(f"""
    v_lshlrev_b32 v{cL8}, 3, v{vL}
    v_lshrrev_b32 v{vA0}, 3, v{vL}
    v_and_b32 v{vA1}, 7, v{vL}
    v_lshlrev_b32 v{cPA}, 10, v{vA0}
    v_lshl_add_u32 v{cPA}, v{vA1}, 4, v{cPA}
    v_lshrrev_b32 v{vA0}, 5, v{vL}
    v_and_b32 v{vA1}, 31, v{vL}
    v_lshlrev_b32 v{cPF}, 10, v{vA0}
    v_lshl_add_u32 v{cPF}, v{vA1}, 4, v{cPF}
    v_mul_u32_u24 v{vA0}, 272, v{vA0}
    v_lshl_add_u32 v{cQW}, v{vA1}, 3, v{vA0}
    v_add_u32 v{cGP}, {L_GP}, v{cL8}
    s_lshl_b32 s{sT1}, s{sCB}, 13
    s_add_u32 s{sT1}, s{sT1}, {WS_QP}
    s_lshl_b32 s{sT2}, s{sR8}, 10
    s_add_u32 s{sA}, s{sT1}, s{sT2}
    s_lshl_b32 s{sT2}, s{sR8}, 7
    s_add_u32 s{sPA}, s{sT1}, s{sT2}
    s_lshl_b32 s{sT1}, s{sCB}, {9+gt}
    s_lshl_b32 s{sT2}, s{sR8}, {6+gt}
    s_add_u32 s{sB}, s{sT1}, s{sT2}
    s_add_u32 s{sB}, s{sB}, {WS_QG}
    s_lshl_b32 s{sPB}, s{sG}, {12+gt}
    s_add_u32 s{sPB}, s{sPB}, {WS_QG}
    """)
    if ev:
        a(f"s_waitcnt vmcnt({bin(prer).count('1') if prs == 1 else 0})")
        a(f"v_add_u32 v{vTAG}, 1, v{vTAG}")
    else:
        a("s_waitcnt lgkmcnt(0)")
        a(f"s_add_u32 s{sC}, s{sC}, 1")
        a(f"v_mov_b32 v{vTAG}, s{sC}")
    init_stamps()
    def gp_publish(m, base, so, off):
        for k in range(4): a(f"ds_read2st64_b64 {vr(base+4*k,4)}, v{cGP} offset0:{8*m+2*k} offset1:{8*m+2*k+1}")
        a("s_waitcnt lgkmcnt(0)")
        for step in (2, 4, 8):
            for k in range(0, 16, 2 * step):
                a(f"v_add_f32 v{base+k}, v{base+k}, v{base+k+step}")
                a(f"v_add_f32 v{base+k+1}, v{base+k+1}, v{base+k+step+1}")
        a(f"v_mov_b32 v{base+2}, v{base+1}")
        a(f"v_mov_b32 v{base+1}, v{vTAG}")
        a(f"v_mov_b32 v{base+3}, v{vTAG}")
        a(f"buffer_store_dwordx4 {vr(base,4)}, v{vVO}, {srd(WS_)}, s{so} offen offset:{off}" + ("" if loc else " sc1"))
    wait_cnt(C_Q, 8, csleep)
    gp_publish(0, vT, sA, 0)
    stamp(1)
    if ackA: a("s_waitcnt vmcnt(0)")
    poll([f"buffer_load_dwordx4 {vr(vE,4)}, v{cPA}, {srd(WS_)}, s{sPA} offen sc1"], [vE + 1, vE + 3], vA0, asleep, wb=True)
    red2_bits345(vE, vE + 2, vA0, vA1)
    a(f"""
    v_cvt_pk_bf16_f32 v{vE}, v{vE}, v{vE+2}
    s_mov_b64 exec, 0xff00
    v_mov_b32 v{vE}, s{sM0}
    s_mov_b64 exec, {0xffff if gt else 0xff}
    buffer_store_dwordx2 {vr(vE,2)}, v{cL8}, {srd(WS_)}, s{sB} offen sc1
    s_mov_b64 exec, -1
    """)
    stamp(2)
    a(f"""
    buffer_load_dwordx4 {vr(cX,4)}, v{vVO}, {srd(X_)}, 0 offen
    buffer_load_dwordx4 {vr(cX+4,4)}, v{vVO}, {srd(X_)}, 0 offen offset:1024
    buffer_load_dwordx4 {vr(cG,4)}, v{vVO}, {srd(GW_)}, 0 offen
    buffer_load_dwordx4 {vr(cG+4,4)}, v{vVO}, {srd(GW_)}, 0 offen offset:1024
    s_lshl_b32 s{sKV}, s{sCB}, 14
    s_add_u32 s{sKV}, s{sKV}, {WS_FG}
    s_lshl_b32 s{sT2}, s{sR8}, 11
    s_add_u32 s{sA}, s{sKV}, s{sT2}
    s_and_b32 s{sT2}, s{sLC}, 1
    s_lshl_b32 s{sT2}, s{sT2}, 9
    s_add_u32 s{sKV}, s{sKV}, s{sT2}
    """)
    if touch & 2: touch_kv(4, [1, 2])
    wait_cnt(C_F, 8, csleep)
    gp_publish(1, vT, sA, 0)
    gp_publish(2, vP, sA, 1024)
    if loc: a(f"""
    s_cmp_eq_u32 s{sWB}, 0
    s_cbranch_scc1 L_nwb
    s_waitcnt vmcnt(0)
    buffer_wbl2 sc1
    s_waitcnt vmcnt(0)
    L_nwb:
    """)
    a(f"""
    s_waitcnt vmcnt(2)
    v_mov_b32 v{vB0}, 0
    """)
    for k in range(8):
        a(f"""
        v_lshlrev_b32 v{vA0}, 16, v{cX+k}
        v_and_b32 v{vA1}, 0xffff0000, v{cX+k}
        v_lshlrev_b32 v{vA2}, 16, v{cG+k}
        v_and_b32 v{vA3}, 0xffff0000, v{cG+k}
        v_mul_f32 v{vA0}, v{vA0}, v{vA2}
        v_mul_f32 v{vA1}, v{vA1}, v{vA3}
        v_cvt_pk_bf16_f32 v{vA0}, v{vA0}, v{vA1}
        v_lshlrev_b32 v{vA1}, 16, v{vA0}
        v_and_b32 v{vA0}, 0xffff0000, v{vA0}
        v_add_f32 v{vB0}, v{vB0}, v{vA0}
        v_add_f32 v{vB0}, v{vB0}, v{vA1}
        """)
    for nn_ in (1, 2, 4): a(f"v_add_f32_dpp v{vB0}, v{vB0}, v{vB0} row_ror:{nn_} {DPP}")
    red_bits345("add", vB0, vA3)
    a(f"""
    v_cvt_pk_bf16_f32 v{vA0}, v{vB0}, v{vB0}
    v_and_b32 v{vA0}, 0xffff0000, v{vA0}
    v_mul_f32 v{vA0}, {hex(f2u(-math.log2(math.e)))}, v{vA0}
    v_exp_f32 v{vA0}, v{vA0}
    v_add_f32 v{vA0}, 1.0, v{vA0}
    v_rcp_f32 v{vA0}, v{vA0}
    v_cvt_pk_bf16_f32 v{vA0}, v{vA0}, v{vA0}
    v_and_b32 v{vA0}, 0xffff0000, v{vA0}
    v_sub_f32 v{vA1}, 1.0, v{vA0}
    v_cvt_pk_bf16_f32 v{vA1}, v{vA1}, v{vA1}
    v_and_b32 v{vA1}, 0xffff0000, v{vA1}
    v_mov_b32 v{vA2}, 0
    s_mov_b64 exec, 1
    ds_write_b64 v{vA2}, {vr(vA0,2)} offset:{L_G}
    ds_write_b32 v{vA2}, v{vTAG} offset:{L_G+8}
    s_mov_b64 exec, -1
    """)
    wait_cnt(C_P1, cpn, 4)
    ql = [f"buffer_load_dwordx4 {vr(vS+4*k,4)}, v{vVO}, {srd(WS_)}, s{sPB} offen offset:{1024*k} sc1" for k in range(4)]
    if gt:
        a(f"""
        v_lshrrev_b32 v{vQ+5}, 2, v{vL}
        v_lshlrev_b32 v{vQ+5}, 6, v{vQ+5}
        v_add_u32 v{vQ+5}, v{vQ+5}, v{vVO}
        v_lshlrev_b32 v{vQ+6}, 7, v{vL}
        s_add_u32 s{sT1}, s{sPB}, 4096
        """)
        ql = [f"buffer_load_dwordx4 {vr(vS+4*k,4)}, v{vQ+5}, {srd(WS_)}, s{sPB if k < 2 else sT1} offen offset:{2048*(k%2)} sc1" for k in range(4)]
        ql.append(f"buffer_load_dwordx2 {vr(vS+16,2)}, v{vQ+6}, {srd(WS_)}, s{sPB} offen offset:64 sc1")
    poll(ql, [vS + 2 * k + 1 for k in range(8 + gt)], vA2, rsleep, wb=True)
    if gt:
        a(f"v_subrev_u32 v{vS+16}, s{sM0}, v{vS+16}")
        a(f"v_cvt_f32_i32 v{vS+16}, v{vS+16}")
        for nn_ in (1, 2, 4): a(f"v_min_f32_dpp v{vS+16}, v{vS+16}, v{vS+16} row_ror:{nn_} {DPP}")
        red_bits345("min", vS + 16, vA3)
        a(f"""
        v_cvt_i32_f32 v{vS+16}, v{vS+16}
        v_add_u32 v{vS+16}, s{sM0}, v{vS+16}
        v_mov_b32 v{vA2}, 0
        s_mov_b64 exec, 1
        ds_write_b32 v{vA2}, v{vS+16} offset:{L_G+12}
        s_mov_b64 exec, -1
        """)
    for k in range(4): a(f"v_mov_b32 v{vS+4*k+1}, v{vS+4*k+2}")
    for k in range(4): a(f"ds_write_b64 v{cQW}, {vr(vS+4*k,2)} offset:{L_QS+544*k}")
    arrive(C_QS)
    stamp(3)
    for k in range(1, 4): a(f"s_add_u32 s{sT0+k}, s{sKV}, {4096*k}")
    fl = [f"buffer_load_dwordx4 {vr(vS+4*k,4)}, v{cPF}, {srd(WS_)}, s{sKV if k < 2 else sT0+k//2} offen offset:{2048*(k%2)} sc1" for k in range(8)]
    poll(fl, [vS + 2 * k + 1 for k in range(16)], vA2, rsleep, wb=True)
    for step in (4, 8, 16):
        for k in range(0, 32, 2 * step):
            a(f"v_add_f32 v{vS+k}, v{vS+k}, v{vS+k+step}")
            a(f"v_add_f32 v{vS+k+2}, v{vS+k+2}, v{vS+k+step+2}")
    a(f"""
    v_cvt_pk_bf16_f32 v{vA0}, v{vS}, v{vS+2}
    v_mov_b32 v{vA1}, v{vA0}
    v_permlane32_swap_b32 v{vA0}, v{vA1}
    v_lshlrev_b32 v{vA2}, 16, v{vA0}
    v_and_b32 v{vA0}, 0xffff0000, v{vA0}
    v_lshlrev_b32 v{vA3}, 16, v{vA1}
    v_and_b32 v{vA1}, 0xffff0000, v{vA1}
    v_max_f32 v{vA2}, 0, v{vA2}
    v_max_f32 v{vA0}, 0, v{vA0}
    v_mul_f32 v{vA2}, v{vA2}, v{vA3}
    v_mul_f32 v{vA0}, v{vA0}, v{vA1}
    v_cvt_pk_bf16_f32 v{vA0}, v{vA2}, v{vA0}
    s_mov_b32 exec_hi, 0
    ds_write_b32 v{cL4}, v{vA0} offset:{L_H}
    s_mov_b64 exec, -1
    """)
    arrive(C_H)
    stamp(4)
    if prs == 0: preread()
    a(f"""
    s_lshl_b32 s{sA}, s2, 6
    s_add_u32 s{sA}, s{sA}, {WS_ML}
    s_lshl_b32 s{sPA}, s{sG}, 12
    s_add_u32 s{sPA}, s{sPA}, {WS_ML}
    """)
    if touch & 2:
        touch_kv(4, [3]); a("s_waitcnt lgkmcnt(0)"); touch_kv(6, [0, 1])
    wait_cnt(C_ST, 8, 4)
    a(f"ds_read_b64 {vr(vT,2)}, v{cL8} offset:{L_ST}")
    a("s_waitcnt lgkmcnt(0)")
    a(f"v_mov_b32 v{vB0}, v{vT}")
    red_bits345("max", vB0, vA3)
    a(f"v_sub_f32 v{vA3}, v{vT}, v{vB0}")
    a(f"v_exp_f32 v{vA3}, v{vA3}")
    a(f"v_mul_f32 v{vT+1}, v{vT+1}, v{vA3}")
    red_bits345("add", vT + 1, vA3)
    a(f"""
    v_log_f32 v{vB1}, v{vT+1}
    v_add_f32 v{vB0}, v{vB0}, v{vB1}
    v_mov_b32 v{vB1}, v{vTAG}
    s_mov_b64 exec, 0xff
    buffer_store_dwordx2 {vr(vB0,2)}, v{cL8}, {srd(WS_)}, s{sA} offen sc1
    s_mov_b64 exec, -1
    """)
    stamp(5)
    if prs == 2: preread()
    if midwb:
        a(f"s_cmp_ge_u32 s2, {midwb}")
        a("s_cbranch_scc1 L_nmw")
        a("buffer_wbl2 sc1")
        a("L_nmw:")
    ml = [f"buffer_load_dwordx2 {vr(vS+2*k,2)}, v{cL8}, {srd(WS_)}, s{sPA} offen offset:{512*k} sc1" for k in range(8)]
    if touch & 2:
        touch_kv(6, [2, 3])
        a(f"""
        s_min_u32 s25, s{sLC}, 55
        s_lshl_b32 s25, s25, 17
        s_load_dword s20, s[10:11], s25
        s_lshl_b32 s25, s{sG}, 21
        s_load_dword s21, s[8:9], s25
        """)
    wait_cnt(C_P2, cpn, 4)
    poll(ml, [vS + 2 * k + 1 for k in range(8)], vA0, rsleep, wb=True)
    M = vE
    a(f"v_max3_f32 v{M}, v{vS}, v{vS+2}, v{vS+4}")
    a(f"v_max3_f32 v{M}, v{M}, v{vS+6}, v{vS+8}")
    a(f"v_max3_f32 v{M}, v{M}, v{vS+10}, v{vS+12}")
    a(f"v_max_f32 v{M}, v{M}, v{vS+14}")
    red_bits345("max", M, vA3)
    for k in range(8): a(f"v_sub_f32 v{vS+2*k}, v{vS+2*k}, v{M}")
    for k in range(8): a(f"v_exp_f32 v{vS+2*k}, v{vS+2*k}")
    a(f"v_add_f32 v{M+1}, v{vS}, v{vS+2}")
    for k in range(2, 8): a(f"v_add_f32 v{M+1}, v{M+1}, v{vS+2*k}")
    red_bits345("add", M + 1, vA3)
    a(f"""
    v_sub_f32 v{vA1}, v{vT}, v{M}
    v_exp_f32 v{vA1}, v{vA1}
    v_rcp_f32 v{vA2}, v{M+1}
    v_mul_f32 v{vA1}, v{vA1}, v{vA2}
    v_and_b32 v{vA2}, 7, v{vL}
    v_lshlrev_b32 v{vA2}, 5, v{vA2}
    v_lshrrev_b32 v{vA3}, 3, v{vL}
    v_lshl_add_u32 v{vA2}, v{vA3}, 2, v{vA2}
    ds_write_b32 v{vA2}, v{vA1} offset:{L_F}
    s_waitcnt lgkmcnt(0)
    """)
    if endwb:
        a("s_cmp_lt_u32 s2, 248")
        a("s_cbranch_scc1 L_cend")
        for _ in range(endwb): a("s_barrier")
        a("buffer_wbl2 sc1")
        for _ in range(3 - endwb): a("s_barrier")
        a("L_cend:")
    a("s_branch L_fin" if stamps else "s_endpgm")
    lines = hazard.fix([l for l in a.lines if not l.strip().startswith(";")])
    body = "\n".join(lines)
    if ipf: body = body.replace("CODE_BYTES", "s8") + "\nL_code_end:"
    return wrap_single(body, 256, 576, lds, NVGPR, header=HEADER)

if __name__ == "__main__":
    kw = {}
    for s in sys.argv[2:]:
        k, v = s.split("=")
        try: v = int(v)
        except: pass
        kw[k] = v
    open(sys.argv[1], "w").write(gen(**kw))
```

```python
import sys, math, struct
from asmlib import *
import hazard
def f2u(x): return struct.unpack("<I", struct.pack("<f", x))[0]
HEADER = open("cdna_kernels/" + NAME + ".s.ref").read().split("; Override launch")[0]

HEADER += """;
;   hand-offs       : 8-byte {data, tag} granules in d_ws, tag = epoch word + 1 (the epoch is advanced at the end).
"""

WS_QG = 0x10000
WS_ML = 0x8000
WS_QP = 0x40000
WS_FG = 0x80000
WS_OP = 0x100000
WS_FP = 0x200000
WS_SIZE = 0x280000
STAMP_OFF = 128 << 20
C_Q, C_F, C_QS, C_ST, C_H, C_P1, C_P2 = 0, 4, 8, 12, 16, 20, 24
L_H = 64
L_G = 192
L_GP = 256
L_QS = L_GP + 3 * 4096
L_ST = L_QS + 2176
L_F = L_ST + 512
L_RED1 = L_F + 256
L_RED2 = L_RED1 + 2048
L_RED3 = L_RED2 + 512
L_ORED = L_RED3 + 1024
L_END = L_ORED + 8 * 4224
sWV = 3
K_, V_, WQ_, WO_, WG_, WU_, WD_, X_, GW_, WS_, OUT_ = 4, 8, 12, 16, 20, 24, 28, 32, 36, 40, 44
def srd(b): return f"s[{b}:{b+3}]"
sG, sI, sPA, sPB, sKV = 48, 49, 50, 51, 52
sT0, sT1, sT2, sT3 = 53, 54, 55, 56
sSELLO, sSELHI, sC, sCAP, sA, sB, sKS = 57, 58, 59, 60, 61, 62, 63
sM0 = 64
sWD, sBOOST = 66, 67
sRB, sLC, sR8, sCB, sH1, sH1b, sPL, sXV = 68, 69, 70, 71, 72, 73, 74, 75
sST = 76
sCK = 36
sWB = 67
vL, vWDO, vT16, vTAG, vKO, vVO, vWOO, vWFO = 0, 1, 2, 3, 4, 5, 6, 7
vA0, vA1, vA2, vA3, vB0, vB1, vB2, vB3 = 8, 9, 10, 11, 12, 13, 14, 15
vT, vQ, vE, vP, vS, vACC, vR, vBP, vSP = 16, 32, 40, 48, 64, 96, 128, 160, 164
NVGPR = 168

def gen(WIN=3, WMAX=5, dyn0=10, stamps=0, sn="d", lds=82440, q_at=26, p1_at=19, p2_at=61, CA=140, CB=275, CK=6, gsh=2, k0=8,
        ca=2, cb=2, h1first=0, prer=2, fix=0, nfail=8, sleep1=2, csleep=1, asleep=4, rsleep=16, ackA=1, ack2=1, ex=3, cpn=6,
        notail=0, ncov=8, h1d=0, gt=0, CA2=None, lv=0, WLO=3, sp=0, ev=0, gx=0, ix=0, tw=0, t0=3, t1=9, qw=0, touch=0, outf='', midwb=0, endwb=0, prs=0, W0=4, W1=3, fast=0, loc=1, xp=0, cpos=0, cm=0, wofirst=0, hs=0, rj=0, dg='', ipf=0, xl=0, ep=0, fx=0, po=0, merge=0):
    a = Asm()
    SN = set(str(sn).split("+"))
    NS = 12
    def stamp(k, name="d"):
        if stamps and name in SN: a(f"s_memrealtime s[{sST+2*k}:{sST+2*k+1}]")
    def vr(b, n): return f"v[{b}:{b+n-1}]"
    DPP = "row_mask:0xf bank_mask:0xf"
    def red_bits45(op, v, t):
        for sw in ("16", "32"):
            a(f"v_mov_b32 v{t}, v{v}")
            a(f"v_permlane{sw}_swap_b32 v{v}, v{t}")
            a(f"v_{op}_f32 v{v}, v{v}, v{t}")
    def red_bits345(op, v, t):
        a(f"v_{op}_f32_dpp v{v}, v{v}, v{v} row_ror:8 {DPP}")
        red_bits45(op, v, t)
    def red2_bits345(v0, v1, t0, t1):
        a(f"v_add_f32_dpp v{v0}, v{v0}, v{v0} row_ror:8 {DPP}")
        a(f"v_add_f32_dpp v{v1}, v{v1}, v{v1} row_ror:8 {DPP}")
        for sw in ("16", "32"):
            a(f"v_mov_b32 v{t0}, v{v0}")
            a(f"v_mov_b32 v{t1}, v{v1}")
            a(f"v_permlane{sw}_swap_b32 v{v0}, v{t0}")
            a(f"v_permlane{sw}_swap_b32 v{v1}, v{t1}")
            a(f"v_add_f32 v{v0}, v{v0}, v{t0}")
            a(f"v_add_f32 v{v1}, v{v1}, v{t1}")
    def tred4(v, dst):
        a(f"""
        v_permlane32_swap_b32 v{v}, v{v+2}
        v_permlane32_swap_b32 v{v+1}, v{v+3}
        v_add_f32 v{v}, v{v}, v{v+2}
        v_add_f32 v{v+1}, v{v+1}, v{v+3}
        v_permlane16_swap_b32 v{v}, v{v+1}
        v_add_f32 v{dst}, v{v}, v{v+1}
        """)
    def arrive(cnt):
        a(f"""
        v_mov_b32 v{vA0}, {cnt}
        v_mov_b32 v{vA1}, 1
        s_waitcnt lgkmcnt(0)
        s_mov_b64 exec, 1
        ds_add_u32 v{vA0}, v{vA1}
        s_mov_b64 exec, -1
        """)
    def wait_cnt(cnt, val, sl=1):
        l = a.label("Lw"); d = a.label("Lwd")
        a(f"""
        v_mov_b32 v{vA0}, {cnt}
        s_mov_b32 s{sCAP}, 0
        {l}:
        ds_read_b32 v{vA1}, v{vA0}
        s_waitcnt lgkmcnt(0)
        v_readfirstlane_b32 s{sT0}, v{vA1}
        s_cmp_ge_u32 s{sT0}, {val}
        s_cbranch_scc1 {d}
        s_add_u32 s{sCAP}, s{sCAP}, 1
        s_cmp_gt_u32 s{sCAP}, 0x400000
        s_cbranch_scc1 {d}
        s_sleep {sl}
        s_branch {l}
        {d}:
        """)
    def poll(loads, tagregs, tmp, sleep, first_issued=False, wb=False):
        lc = a.label("Lchk"); ld = a.label("Ldone")
        a(f"s_mov_b32 s{sCAP}, 0")
        if not first_issued:
            for l in loads: a(l)
            a("s_waitcnt vmcnt(0)")
        a(f"{lc}:")
        a(f"v_xor_b32 v{tmp}, v{tagregs[0]}, v{vTAG}")
        rest = list(tagregs[1:])
        for r in rest:
            a(f"v_xor_b32 v{tmp+1}, v{r}, v{vTAG}")
            a(f"v_or_b32 v{tmp}, v{tmp}, v{tmp+1}")
        a(f"v_cmp_ne_u32 vcc, 0, v{tmp}")
        a(f"s_and_b64 exec, exec, vcc")
        a(f"s_cbranch_scc0 {ld}")
        a(f"s_add_u32 s{sCAP}, s{sCAP}, 1")
        a(f"s_cmp_gt_u32 s{sCAP}, 0x40000")
        a(f"s_cbranch_scc1 {ld}")
        if wb and loc:
            lw = a.label("Lnw")
            a(f"s_and_b32 s{sT0}, s{sCAP}, {nfail-1}")
            a(f"s_cbranch_scc1 {lw}")
            a("buffer_wbl2 sc1")
            a("s_waitcnt vmcnt(0)")
            a(f"s_mov_b32 s{sWB}, 1")
            a(f"{lw}:")
        if sleep: a(f"s_sleep {sleep}")
        for l in loads: a(l)
        a("s_waitcnt vmcnt(0)")
        a(f"s_branch {lc}")
        a(f"{ld}:")
        a("s_mov_b64 exec, -1")
    def sum8(base):
        for step in (1, 2, 4):
            for k in range(0, 8, 2 * step): a(f"v_add_f32 v{base+k}, v{base+k}, v{base+k+step}")
    def init_stamps():
        if stamps:
            for k in range(NS): a(f"s_mov_b64 s[{sST+2*k}:{sST+2*k+1}], s[{sM0}:{sM0+1}]")

    a(f"""
    s_cmp_ge_u32 s2, 256
    s_cbranch_scc1 L_end
    s_load_dwordx16 s[76:91], s[0:1], 0
    """)
    if ipf:
        a(f"""
        s_getpc_b64 s[4:5]
        L_pc0:
        s_mov_b32 s8, L_code_end-L_pc0-4
        v_lshlrev_b32 v{vA2}, {7 if ipf == 1 else 6}, v0
        v_cmp_gt_u32 vcc, CODE_BYTES, v{vA2}
        s_and_saveexec_b64 s[6:7], vcc
        s_cbranch_execz L_nipf
        global_load_dword v{vSP}, v{vA2}, s[4:5]
        L_nipf:
        s_mov_b64 exec, s[6:7]
        """)
    a(f"""
    """)
    late_s = f"""
    s_load_dwordx8 s[92:99], s[0:1], 64
    s_load_dwordx2 s[{WS_}:{WS_+1}], s[0:1], 96
    s_memrealtime s[{sM0}:{sM0+1}]
    """
    if not fast: a(late_s)
    a(f"""
    v_lshrrev_b32 v{vA0}, 6, v0
    v_lshlrev_b32 v{vT16}, 4, v0
    v_readfirstlane_b32 s{sWV}, v{vA0}
    v_and_b32 v{vL}, 63, v0
    s_lshr_b32 s{sG}, s2, 6
    s_and_b32 s{sI}, s2, 63
    s_bfe_u32 s{sR8}, s2, 0x30003
    s_and_b32 s{sT0}, s2, 7
    s_lshl_b32 s{sT1}, s{sG}, 1
    s_xor_b32 s{sT0}, s{sT0}, s{sT1}
    s_lshl_b32 s{sT0}, s{sT0}, 2
    s_or_b32 s{sCB}, s{sT0}, s{sG}
    s_mov_b32 s{X_+2}, 2048
    s_mov_b32 s{X_+3}, 0x20000
    v_lshlrev_b32 v{vVO}, 4, v{vL}
    s_cmp_eq_u32 s{sWV}, 8
    s_cbranch_scc1 L_comm
    s_mov_b32 s{WQ_+2}, {1024*8192}
    s_mov_b32 s{WQ_+3}, 0x20000
    v_lshrrev_b32 v{vA0}, 4, v{vL}
    v_and_b32 v{vA1}, 15, v{vL}
    v_lshlrev_b32 v{vA1}, 4, v{vA1}
    v_lshl_add_u32 v{vA3}, v{vA0}, {13 if rj else 15}, v{vA1}
    v_lshlrev_b32 v{vA2}, 3, v{vA0}
    s_lshl_b32 s{sT3}, s{sR8}, 3
    s_add_u32 s{sT3}, s{sT3}, s{sWV}
    s_lshl_b32 s{sT0}, s{sCB}, 8
    s_lshl_b32 s{sA}, s{sT3}, 17
    s_add_u32 s{sA}, s{sA}, s{sT0}
    s_mul_i32 s{sB}, s{sT3}, {16*7168}
    s_add_u32 s{sB}, s{sB}, s{sT0}
    s_lshl_b32 s{sT3}, s{sT3}, 5
    s_add_u32 s{sT0}, s{sA}, {8192*(4 if rj else 1)}
    s_add_u32 s{sT1}, s{sA}, {16384*(4 if rj else 1)}
    s_add_u32 s{sT2}, s{sA}, {24576*(4 if rj else 1)}
    s_waitcnt lgkmcnt(0)
    s_mov_b64 s[{WQ_}:{WQ_+1}], s[82:83]
    s_mov_b64 s[{X_}:{X_+1}], s[76:77]
    """)
    R0, R1, A0, A1 = vR, vR + 16, vACC, vACC + 16
    WQR, WGR, WUR = R0, R1, A0
    vXP = vB0
    xld = f"buffer_load_dwordx2 {vr(vXP,2)}, v{vA2}, {srd(X_)}, s{sT3} offen"
    if rj: xl = 0
    if not xl and not rj: a(xld)
    for j in range(4): a(f"buffer_load_dwordx4 {vr(WQR+4*j,4)}, v{vA3}, {srd(WQ_)}, s{[sA,sT0,sT1,sT2][j]} offen nt")
    if xl: a(xld)
    if rj and not fast: a(f"s_load_dwordx8 s[32:39], s[76:77], s{sT3}")
    if fast: a(late_s)
    def roles():
        a(f"""
        s_and_b32 s{sRB}, s{sR8}, 3
        s_lshr_b32 s{sLC}, s{sR8}, 2
        s_lshl_b32 s{sT0}, s{sCB}, 1
        s_or_b32 s{sLC}, s{sLC}, s{sT0}
        s_lshr_b32 s{sPL}, s2, 5
        s_lshl_b32 s{sPL}, s{sPL}, 3
        s_and_b32 s{sT0}, s2, 7
        s_or_b32 s{sPL}, s{sPL}, s{sT0}
        s_mov_b32 s{WS_+2}, {WS_SIZE if not stamps else (256<<20)}
        s_mov_b32 s{WS_+3}, 0x20000
        """)
    vX = vT; vGA = vT + 8
    a(f"""
    v_mul_u32_u24 v{vWFO}, {(1 if rj else 4)*7168}, v{vA0}
    v_mul_u32_u24 v{vB2}, 0x202, v{vA0}
    v_add_u32 v{vB2}, 0x0c0c0100, v{vB2}
    v_alignbit_b32 v{vB3}, v{vB2}, v{vB2}, 16
    v_add_u32 v{vWFO}, v{vWFO}, v{vA1}
    s_cmp_lt_u32 s{sCB}, 28
    s_cselect_b32 s{WG_+2}, {1024*7168}, 0
    s_cselect_b32 s{WU_+2}, {1024*7168}, 0
    s_cselect_b32 s{WD_+2}, {3584*2048}, 0
    s_mov_b32 s{WG_+3}, 0x20000
    s_mov_b32 s{WU_+3}, 0x20000
    s_mov_b64 s[{WG_}:{WG_+1}], s[88:89]
    s_mov_b64 s[{WU_}:{WU_+1}], s[90:91]
    s_mov_b64 s[{K_}:{K_+1}], s[78:79]
    s_mov_b64 s[{V_}:{V_+1}], s[80:81]
    s_mov_b64 s[{WO_}:{WO_+1}], s[84:85]
    s_mov_b32 s{K_+2}, 0x4000000
    s_mov_b32 s{K_+3}, 0x20000
    s_mov_b32 s{V_+2}, 0x4000000
    s_mov_b32 s{V_+3}, 0x20000
    s_mov_b32 s{WO_+2}, {4096*2048}
    s_mov_b32 s{WO_+3}, 0x20000
    s_mov_b32 s{WD_+3}, 0x20000
    s_mov_b32 s{OUT_+2}, 2048
    s_mov_b32 s{OUT_+3}, 0x20000
    s_mov_b32 s{sSELLO}, 0x05040100
    s_mov_b32 s{sSELHI}, 0x07060302
    s_mov_b32 s{sC}, {hex(f2u(128**-0.5 * math.log2(math.e)))}
    s_mov_b32 s{sBOOST}, {WIN if lv else 0}
    s_mul_i32 s{sKV}, s{sG}, {(1<<24) + (gx<<22)}
    """)
    if ix == 0:
        a(f"s_lshl_b32 s{sT0}, s{sI}, 16")
        a(f"s_add_u32 s{sKV}, s{sKV}, s{sT0}")
    else:
        pos = {1: [17, 18, 19, 16, 20, 21], 2: [16, 17, 19, 18, 20, 21]}[ix]
        for b in range(6):
            a(f"s_bfe_u32 s{sT0}, s2, {0x10000 + b}")
            a(f"s_lshl_b32 s{sT0}, s{sT0}, {pos[b]}")
            a(f"s_add_u32 s{sKV}, s{sKV}, s{sT0}")
    a(f"""
    s_lshl_b32 s{sT0}, s{sWV}, 13
    s_add_u32 s{sKV}, s{sKV}, s{sT0}
    s_lshl_b32 s{sT0}, s{sWV}, 10
    s_add_u32 s{sXV}, s{sKV}, s{sT0}
    s_and_b32 s{sT1}, s{sT0}, 4096
    s_add_u32 s{sKV}, s{sKV}, s{sT1}
    s_and_b32 s{sT0}, s{sT0}, 3072
    v_lshlrev_b32 v{vA2}, 1, v{vA1}
    v_lshl_add_u32 v{vA2}, v{vA0}, 3, v{vA2}
    s_lshl_b32 s{sT1}, s{sWV}, 9
    v_add_u32 v{vGA}, s{sT1}, v{vA2}
    v_and_b32 v{vA2}, 3, v{vL}
    v_lshlrev_b32 v{vA2}, 10, v{vA2}
    v_xor_b32 v{vA2}, s{sT0}, v{vA2}
    v_bfe_u32 v{vA3}, v{vL}, 2, 1
    v_lshl_add_u32 v{vA2}, v{vA3}, 8, v{vA2}
    v_bfe_u32 v{vA3}, v{vL}, 3, 1
    v_lshl_add_u32 v{vA2}, v{vA3}, 6, v{vA2}
    v_lshl_add_u32 v{vKO}, v{vA0}, 4, v{vA2}
    v_mov_b32 v{vE+6}, 0
    v_mov_b32 v{vE+7}, 0x40000000
    """)
    roles()
    if fast: a("s_waitcnt lgkmcnt(0)")
    a(f"""
    s_mov_b64 s[{WD_}:{WD_+1}], s[92:93]
    s_mov_b64 s[{OUT_}:{OUT_+1}], s[96:97]
    """)
    init_stamps()
    for r in range(24): a(f"v_mov_b32 v{vS+r}, 0")
    a("s_barrier")

    U = []
    for j in range(4): U.append((f"wq{j}", None, 2 if (xl and j == 3) else 1, None))
    for nm, R, S_ in (("gate", WGR, WG_), ("up", WUR, WU_)):
        for j in range(4):
            U.append((f"{nm}{j}", [f"s_add_u32 s{sT3}, s{sB}, {j*7168*(4 if rj else 1)}", f"buffer_load_dwordx4 {vr(R+4*j,4)}, v{vWFO}, {srd(S_)}, s{sT3} offen nt"], 1, None))
    WDQ = [vP, vP + 4, vP + 8, vSP]
    WOR = vT; PW = R0
    def wdunit(j, pre):
        if sp:
            U.append((f"wd{j}", [f"v_mov_b32_dpp v{vA2}, v{vE+5} row_newbcast:{j} {DPP}",
                      f"v_and_b32 v{vA3}, 0x7fff0000, v{vA2}", f"v_and_b32 v{vA2}, 0x7fff, v{vA2}",
                      f"v_cmp_ne_u32 vcc, 0, v{vA2}", f"v_cndmask_b32 v{vA2}, v{vE+7}, v{vWDO}, vcc",
                      f"v_cmp_ne_u32 vcc, 0, v{vA3}", f"v_cndmask_b32 v{vA3}, v{vE+7}, v{vWDO}, vcc",
                      f"s_xor_b32 s{sT3}, s{sWD}, {j*4096}", f"buffer_load_dwordx2 {vr(WDQ[j],2)}, v{vA2}, {srd(WD_)}, s{sT3} offen nt",
                      f"buffer_load_dwordx2 {vr(WDQ[j]+2,2)}, v{vA3}, {srd(WD_)}, s{sT3} offen offset:2048 nt"], 2, pre))
            return
        U.append((f"wd{j}", [f"s_xor_b32 s{sT3}, s{sWD}, {j*4096}", f"buffer_load_dwordx2 {vr(WDQ[j],2)}, v{vWDO}, {srd(WD_)}, s{sT3} offen nt",
                  f"buffer_load_dwordx2 {vr(WDQ[j]+2,2)}, v{vWDO}, {srd(WD_)}, s{sT3} offen offset:2048 nt"], 2, pre))
    KSL = [A1, vP, R0, R1, A0, A1, vP, A0]
    KPRE = [None, None, "wq", "gate", "up", "K0", "K1", "K4"]
    for g in range(8):
        t, u = g >> 1, g & 1
        for k in range(4):
            l = [f"s_xor_b32 s{sKS}, s{sKV}, {t*(4<<20) + u*4096}"] if k == 0 else []
            l.append(f"buffer_load_dwordx4 {vr(KSL[g]+4*k,4)}, v{vKO}, {srd(K_)}, s{sKS} offen offset:{(k>>1)*512+(k&1)*128} nt")
            U.append((f"K{g}_{k}", l, 1, KPRE[g]))
    nearly = 8 - ncov
    order = [3, 0, 1, 2]
    for t in range(4):
        if t == 3:
            for j in order[:min(nearly, 3)]: wdunit(j, "V1m")
        for j in range(8):
            if t == 3 and j == 4 and nearly == 4: wdunit(2, "V2m")
            U.append((f"V{t}_{j}", [f"s_xor_b32 s{sKS}, s{sXV}, {t*(4<<20) + j*1024}",
                      f"buffer_load_dwordx4 {vr(vR+4*j,4)}, v{vVO}, {srd(V_)}, s{sKS} offen nt"], 1, f"K{2+(j>>2)}" if t == 0 else f"V{t-1}p{j>>1}"))
    for j in order[nearly:]: wdunit(j, "V2m")
    for j in range(4):
        l = []
        for e in range(2 * j, 2 * j + 2):
            l += [f"s_xor_b32 s{sT3}, s{sB}, {e*16384}", f"buffer_load_dwordx2 {vr(WOR+2*e,2)}, v{vWOO}, {srd(WO_)}, s{sT3} offen nt"]
        U.append((f"wo{j}", l, 2, "pre"))
    if merge:
        k0_ = [u[0] for u in U].index("wd3")
        w = U[k0_:k0_ + 4]
        U[k0_:k0_ + 4] = [("wd0", w[0][1] + w[1][1], 4, w[1][3]), ("wd2", w[2][1] + w[3][1], 4, w[3][3])]
    names = [u[0] for u in U]
    idx = {n: k for k, n in enumerate(names)}

    consumed = set()
    def task_g(m, j):
        W, acc = [(WQR, vS), (WGR, vS + 8), (WUR, vS + 16)][m]
        if m == 0 and j == 0 and rj:
            a("s_waitcnt lgkmcnt(0)")
            for jj in range(4):
                a(f"v_mov_b32 v{vA0}, s{32+2*jj}")
                a(f"v_perm_b32 v{vX+2*jj}, s{33+2*jj}, v{vA0}, v{vB2}")
                a(f"v_perm_b32 v{vX+2*jj+1}, s{33+2*jj}, v{vA0}, v{vB3}")
        elif m == 0 and j == 0:
            for h in range(2):
                a(f"v_and_b32 v{vX+4*h}, 0xffff, v{vXP+h}")
                a(f"v_lshlrev_b32 v{vX+4*h+1}, 16, v{vXP+h}")
                a(f"v_lshrrev_b32 v{vX+4*h+2}, 16, v{vXP+h}")
                a(f"v_and_b32 v{vX+4*h+3}, 0xffff0000, v{vXP+h}")
        if "g" in dg:
            if j == 3: consumed.add(["wq", "gate", "up"][m])
            return
        for w in range(4):
            a(f"v_dot2c_f32_bf16 v{acc+2*w}, v{W+4*j+w}, v{vX+2*j}")
            a(f"v_dot2c_f32_bf16 v{acc+2*w+1}, v{W+4*j+w}, v{vX+2*j+1}")
        if j == 3:
            consumed.add(["wq", "gate", "up"][m])
            for k in range(4): a(f"v_permlane32_swap_b32 v{acc+k}, v{acc+k+4}")
            for k in range(4): a(f"v_add_f32 v{acc+k}, v{acc+k}, v{acc+k+4}")
            for k in range(2): a(f"v_permlane16_swap_b32 v{acc+k}, v{acc+k+2}")
            for k in range(2): a(f"v_add_f32 v{acc+k}, v{acc+k}, v{acc+k+2}")
            a(f"ds_write_b64 v{vGA}, {vr(acc,2)} offset:{L_GP+4096*m}")
            if m != 1: arrive(C_Q if m == 0 else C_F)
            if m == 0: stamp(1)
    def wperm(dst, quads):
        for p in range(4):
            for d in range(2):
                a(f"v_perm_b32 v{dst+4*p+2*d}, v{quads[p]+2+d}, v{quads[p]+d}, s{sSELLO}")
                a(f"v_perm_b32 v{dst+4*p+2*d+1}, v{quads[p]+2+d}, v{quads[p]+d}, s{sSELHI}")
    def dot16(W, vO, acc):
        for p in range(4):
            for c in range(4): a(f"v_dot2c_f32_bf16_dpp v{acc+c}, v{vO}, v{W+4*p+c} row_newbcast:{p} {DPP}")
    def task_qwait():
        stamp(2)
        wait_cnt(C_QS, 1)
        a(f"""
        v_and_b32 v{vA0}, 7, v{vL}
        v_mul_u32_u24 v{vA0}, 272, v{vA0}
        v_bfe_u32 v{vA1}, v{vL}, 3, 1
        v_lshl_add_u32 v{vA0}, v{vA1}, 6, v{vA0}
        v_lshrrev_b32 v{vA1}, 4, v{vL}
        v_lshl_add_u32 v{vA0}, v{vA1}, 4, v{vA0}
        """)
        for s in range(2): a(f"ds_read_b128 {vr(vQ+4*s,4)}, v{vA0} offset:{L_QS+128*s}")
        if gt: a(f"ds_read_b32 v{vA1}, v{vE+6} offset:{L_G+12}")
        a("s_waitcnt lgkmcnt(0)")
        if gt:
            a(f"v_readfirstlane_b32 s{sM0}, v{vA1}")
            st["ca"] = CA2 if CA2 is not None else CA
        stamp(3)
    def task_k(g):
        base = KSL[g]; dx = vS + 4 * g; dy = vT
        for sp in range(2):
            a(f"v_mfma_f32_16x16x32_bf16 {vr(dx,4)}, {vr(base+4*sp,4)}, {vr(vQ+4*sp,4)}, {'0' if sp==0 else vr(dx,4)}")
            a(f"v_mfma_f32_16x16x32_bf16 {vr(dy,4)}, {vr(base+8+4*sp,4)}, {vr(vQ+4*sp,4)}, {'0' if sp==0 else vr(dy,4)}")
        for r in range(4): a(f"v_permlane32_swap_b32 v{dx+r}, v{dy+r}")
        for r in range(4): a(f"v_add_f32_dpp v{dx+r}, v{dy+r}, v{dx+r} row_ror:8 {DPP}")
        consumed.add(f"K{g}")
    vM = vE
    def sm_max():
        a(f"v_max3_f32 v{vM}, v{vS}, v{vS+1}, v{vS+2}")
        a(f"v_max3_f32 v{vA2}, v{vS+3}, v{vS+4}, v{vS+5}")
        for k in range(6, 30, 4):
            a(f"v_max3_f32 v{vM}, v{vM}, v{vS+k}, v{vS+k+1}")
            a(f"v_max3_f32 v{vA2}, v{vA2}, v{vS+k+2}, v{vS+k+3}")
        a(f"v_max3_f32 v{vM}, v{vM}, v{vS+30}, v{vS+31}")
        a(f"v_max_f32 v{vM}, v{vM}, v{vA2}")
        red_bits45("max", vM, vA2)
        a(f"v_mul_f32 v{vM}, s{sC}, v{vM}")
    def sm_exp(t):
        for k in range(8 * t, 8 * t + 8): a(f"v_fma_f32 v{vS+k}, v{vS+k}, s{sC}, -v{vM}")
        for k in range(8 * t, 8 * t + 8): a(f"v_exp_f32 v{vS+k}, v{vS+k}")
        for k in range(4 * t, 4 * t + 4): a(f"v_cvt_pk_bf16_f32 v{vP+k}, v{vS+2*k}, v{vS+2*k+1}")
        sum8(vS + 8 * t)
    def sm_fin():
        a(f"v_add_f32 v{vS}, v{vS}, v{vS+8}")
        a(f"v_add_f32 v{vS+16}, v{vS+16}, v{vS+24}")
        a(f"v_add_f32 v{vM+1}, v{vS}, v{vS+16}")
        red_bits45("add", vM + 1, vA2)
        a(f"""
        s_lshl_b32 s{sT0}, s{sWV}, 6
        v_lshl_add_u32 v{vA2}, v{vL}, 3, s{sT0}
        s_mov_b64 exec, 0xff
        ds_write_b64 v{vA2}, {vr(vM,2)} offset:{L_ST}
        s_mov_b64 exec, -1
        """)
        arrive(C_ST)
        stamp(4)
    def task_vperm(t, uu):
        for w in range(4):
            a(f"v_perm_b32 v{vS+4*(2*w)+uu}, v{vR+4*(2*uu+1)+w}, v{vR+4*(2*uu)+w}, s{sSELLO}")
            a(f"v_perm_b32 v{vS+4*(2*w+1)+uu}, v{vR+4*(2*uu+1)+w}, v{vR+4*(2*uu)+w}, s{sSELHI}")
        consumed.add(f"V{t}p{uu}")
        if uu == 3:
            for i in range(8):
                c = "0" if t == 0 else vr(vACC + 4 * i, 4)
                a(f"v_mfma_f32_16x16x32_bf16 {vr(vACC+4*i,4)}, {vr(vS+4*i,4)}, {vr(vP+4*t,4)}, {c}")
            consumed.add(f"V{t}m")
    aOW, aOR, aF, aH1, aR2W, aL8, aH2, aR1W = [vQ + k for k in range(8)]
    aR1R, aFP, aR3, vG, vHP = vKO, vWFO, vE + 4, vE + 2, vE + 5
    def task_pre1():
        a(f"""
        v_lshrrev_b32 v{vA1}, 4, v{vL}
        v_and_b32 v{vA2}, 7, v{vL}
        v_mul_u32_u24 v{vA0}, 528, v{vA2}
        v_lshl_add_u32 v{vA0}, v{vA1}, 4, v{vA0}
        s_mul_i32 s{sT0}, s{sWV}, 4224
        v_add_u32 v{aOW}, s{sT0}, v{vA0}
        s_mul_i32 s{sT0}, s{sWV}, 528
        v_lshl_add_u32 v{aOR}, v{vL}, 3, s{sT0}
        s_lshl_b32 s{sT0}, s{sWV}, 5
        v_mov_b32 v{aF}, s{sT0}
        v_lshrrev_b32 v{vA0}, 5, v{vL}
        v_lshlrev_b32 v{vA3}, 2, v{vA0}
        v_lshl_add_u32 v{vA3}, v{vA2}, 3, v{vA3}
        s_lshl_b32 s{sT0}, s{sWV}, 6
        v_add_u32 v{aR2W}, s{sT0}, v{vA3}
        v_lshlrev_b32 v{aL8}, 3, v{vL}
        v_and_b32 v{vA2}, 15, v{vL}
        s_and_b32 s{sT1}, s{sWV}, 3
        s_lshl_b32 s{sT0}, s{sT1}, 7
        v_lshl_add_u32 v{vA3}, v{vA2}, 3, s{sT0}
        v_lshl_add_u32 v{vWDO}, v{vA1}, 14, v{vA3}
        v_lshl_add_u32 v{vA3}, v{vA0}, 11, v{vA3}
        v_and_b32 v{vA0}, 1, v{vA1}
        v_lshl_add_u32 v{vWOO}, v{vA0}, 17, v{vA3}
        v_lshl_add_u32 v{vA0}, v{vA2}, 2, v{vA1}
        s_lshl_b32 s{sT0}, s{sT1}, 9
        v_lshl_add_u32 v{aFP}, v{vA0}, 3, s{sT0}
        s_lshl_b32 s{sT0}, s{sWV}, 8
        v_lshl_add_u32 v{aR1W}, v{vA0}, 2, s{sT0}
        s_lshl_b32 s{sT0}, s{sT1}, 8
        v_lshl_add_u32 v{aR3}, v{vL}, 2, s{sT0}
        v_lshrrev_b32 v{vA0}, 8, v{vT16}
        v_lshlrev_b32 v{vA0}, 12, v{vA0}
        v_and_b32 v{vA2}, 0xf0, v{vT16}
        v_add_u32 v{aH1}, v{vA0}, v{vA2}
        v_lshrrev_b32 v{vA0}, 7, v{vT16}
        v_lshlrev_b32 v{vA0}, 11, v{vA0}
        v_and_b32 v{vA2}, 0x70, v{vT16}
        v_add_u32 v{aH2}, v{vA0}, v{vA2}
        v_lshrrev_b32 v{vT16}, 1, v{vT16}
        """)
    def task_pre2():
        wait_cnt(C_H, 1)
        a(f"""
        v_and_b32 v{vA3}, 3, v{vL}
        s_and_b32 s{sT1}, s{sWV}, {ex}
        v_xor_b32 v{vA3}, s{sT1}, v{vA3}
        v_lshrrev_b32 v{vA2}, 4, v{vL}
        v_lshl_add_u32 v{vA2}, v{vA2}, 2, v{vA3}
        s_lshr_b32 s{sT2}, s{sWV}, 2
        s_lshl_b32 s{sT0}, s{sT2}, 4
        v_add_u32 v{vA2}, s{sT0}, v{vA2}
        v_bfe_u32 v{vA3}, v{vL}, 2, 2
        v_lshlrev_b32 v{vA3}, 9, v{vA3}
        v_lshl_add_u32 v{aR1R}, v{vA2}, 3, v{vA3}
        v_lshlrev_b32 v{vA2}, 2, v{vA2}
        ds_read_b32 v{vHP}, v{vA2} offset:{L_H}
        ds_read_b64 {vr(vG,2)}, v{vE+6} offset:{L_G}
        ds_read_b32 v{vTAG}, v{vE+6} offset:{L_G+8}
        s_lshl_b32 s{sWD}, s{sLC}, 17
        s_lshl_b32 s{sT0}, s{sT2}, 16
        s_add_u32 s{sWD}, s{sWD}, s{sT0}
        s_lshl_b32 s{sT0}, s{sT1}, 12
        s_add_u32 s{sWD}, s{sWD}, s{sT0}
        s_lshl_b32 s{sT0}, s{sRB}, 9
        s_add_u32 s{sWD}, s{sWD}, s{sT0}
        s_lshl_b32 s{sB}, s{sT1}, 15
        s_add_u32 s{sB}, s{sB}, s{sT0}
        s_lshl_b32 s{sT0}, s{sT2}, 12
        s_add_u32 s{sB}, s{sB}, s{sT0}
        s_lshr_b32 s{sT1}, s{sR8}, 2
        s_lshl_b32 s{sT0}, s{sT1}, 13
        s_add_u32 s{sB}, s{sB}, s{sT0}
        s_and_b32 s{sT2}, s2, 7
        s_lshl_b32 s{sT0}, s{sG}, 3
        s_add_u32 s{sT0}, s{sT0}, s{sT2}
        s_lshl_b32 s{sT0}, s{sT0}, 18
        s_add_u32 s{sB}, s{sB}, s{sT0}
        s_lshl_b32 s{sH1}, s{sG}, 18
        s_lshl_b32 s{sT0}, s{sT2}, 9
        s_add_u32 s{sH1}, s{sH1}, s{sT0}
        s_lshl_b32 s{sT0}, s{sT1}, 8
        s_add_u32 s{sH1}, s{sH1}, s{sT0}
        s_add_u32 s{sH1}, s{sH1}, {WS_OP}
        s_add_u32 s{sH1b}, s{sH1}, {32*4096}
        s_lshl_b32 s{sPA}, s2, 12
        s_add_u32 s{sPA}, s{sPA}, {WS_OP}
        s_lshl_b32 s{sPB}, s{sRB}, 6
        s_add_u32 s{sPB}, s{sPB}, s{sPL}
        s_lshl_b32 s{sPB}, s{sPB}, 11
        s_add_u32 s{sPB}, s{sPB}, {WS_FP}
        s_lshl_b32 s{sI}, s{sT2}, 3
        s_or_b32 s{sI}, s{sI}, s{sR8}
        s_mov_b32 s{sI}, s{sI if fx else 2}
        s_lshr_b32 s{sA}, s{sI}, 4
        s_lshl_b32 s{sA}, s{sA}, 17
        s_and_b32 s{sT0}, s{sI}, 15
        s_lshl_b32 s{sT0}, s{sT0}, 7
        s_add_u32 s{sA}, s{sA}, s{sT0}
        s_add_u32 s{sA}, s{sA}, {WS_FP}
        s_waitcnt lgkmcnt(0)
        v_mov_b32 v{vB1}, v{vTAG}
        v_mov_b32 v{vE+1}, v{vTAG}
        """)
        for k in range(4): a(f"v_mov_b32 v{vBP+k}, 0")
        if po:
            a(f"""
            s_cmp_ge_u32 s2, 64
            s_cbranch_scc1 L_npo
            s_cmp_lg_u32 s{sWV}, 0
            s_cbranch_scc1 L_npo
            s_lshl_b32 s{sT0}, s{sI}, 5
            buffer_load_dword v{vE}, off, {srd(OUT_)}, s{sT0}
            L_npo:
            """)
        consumed.add("pre")
    vH1 = R1; vF = R1 + 8
    h1 = [f"buffer_load_dwordx4 {vr(vH1+4*k,4)}, v{aH1}, {srd(WS_)}, s{sH1+k} offen sc1" for k in range(2)]
    if xp & 4: h1 = []

    C = []
    for m, nm in enumerate(("wq", "gate", "up")):
        if m == 0 and xl: C.append((3, lambda: [task_g(0, j) for j in range(4)]))
        else:
            for j in range(4): C.append((idx[f"{nm}{j}"], lambda m=m, j=j: task_g(m, j)))
    C.append((p1_at, lambda: arrive(C_P1)))
    C.append((p2_at, lambda: arrive(C_P2)))
    C.append((q_at, task_qwait))
    for g in range(8): C.append((max(q_at, idx[f"K{g}_3"]), lambda g=g: task_k(g)))
    kend = idx["K7_3"]
    C.append((kend, sm_max))
    for t in range(4): C.append((kend, lambda t=t: sm_exp(t)))
    C.append((kend, sm_fin))
    for t in range(4):
        for uu in range(4): C.append((idx[f"V{t}_{2*uu+1}"], lambda t=t, uu=uu: task_vperm(t, uu)))
    C.append((idx["V1_2"], task_pre1)); C.append((idx["V1_4"], task_pre2))
    C.sort(key=lambda c: c[0])
    n = len(U); stop_at = idx["V3_7"]
    st = {"issued": 4, "c": 0, "ca": CA}
    def run_chunk():
        C[st["c"]][1](); st["c"] += 1
    def issue_upto(lim, arrived, throttle=True):
        while st["issued"] < min(n, lim):
            k = st["issued"]
            nm, lines, nv, pre = U[k]
            if throttle and k - WIN >= stop_at: return
            while pre is not None and pre not in consumed:
                assert C[st["c"]][0] <= arrived, ("issue blocked", nm, names[arrived])
                run_chunk()
            if throttle and k >= dyn0 and lv:
                lk = a.label("Li")
                wlo = WLO
                if tw and idx["V0_0"] + t0 <= k <= idx["V0_0"] + t1: wlo = tw
                if qw and q_at + WMAX - 1 <= k <= q_at + WMAX + 3: wlo = qw
                for w in range(WMAX - 1, wlo - 1, -1):
                    if w < WIN and k - w >= stop_at: break
                    a(f"s_cmp_gt_i32 s{sBOOST}, {w}")
                    a(f"s_cbranch_scc1 {lk}")
                    a(f"s_waitcnt vmcnt({sum(u[2] for u in U[k-w+1:k])})")
                a(f"{lk}:")
            elif throttle and k >= dyn0:
                lk = a.label("Li")
                a(f"s_cmp_gt_u32 s{sBOOST}, {k}")
                a(f"s_cbranch_scc1 {lk}")
                a(f"s_waitcnt vmcnt({sum(u[2] for u in U[k-WIN+1:k])})")
                a(f"{lk}:")
            for x in lines: a(x)
            st["issued"] += 1
    issue_upto(W0, -1)
    for arrived in range(stop_at + 1):
        assert st["issued"] > arrived
        a(f"s_waitcnt vmcnt({sum(u[2] for u in U[arrived + 1:st['issued']])})")
        if arrived % 8 == 7: stamp(arrived // 8 + 1, "u")
        if arrived % 6 == 5 and arrived < 60: stamp(arrived // 6 + 1, "s")
        if arrived >= k0 and arrived < stop_at - 3:
            if (arrived - k0) % CK == 0: a(f"s_memrealtime s[{sCK}:{sCK+1}]")
            if (arrived - k0) % CK == 1:
                kk = st["issued"] - WIN - 1
                if lv:
                    a(f"""
                    s_waitcnt lgkmcnt(0)
                    s_sub_u32 s{sCK}, s{sCK}, s{sM0}
                    s_sub_i32 s{sCK}, s{sCK}, {st["ca"] + CB * kk // 10}
                    s_ashr_i32 s{sCK}, s{sCK}, {lv}
                    s_add_i32 s{sBOOST}, s{sCK}, {WIN + 1}
                    """)
                else: a(f"""
                s_waitcnt lgkmcnt(0)
                s_sub_u32 s{sCK}, s{sCK}, s{sM0}
                s_sub_i32 s{sCK}, s{sCK}, {st["ca"] + CB * kk // 10}
                s_ashr_i32 s{sCK}, s{sCK}, {gsh}
                s_add_i32 s{sBOOST}, s{sCK}, {st["issued"]}
                s_max_i32 s{sBOOST}, s{sBOOST}, 0
                """)
        if arrived < stop_at: issue_upto(arrived + 1 + (W1 if arrived < dyn0 - W1 else WMAX), arrived)
        ran = 0
        while st["c"] < len(C) and C[st["c"]][0] <= arrived and (ran < 2 or arrived >= stop_at - 1):
            run_chunk(); ran += 1
    assert st["c"] == len(C)

    stamp(5)
    if not cpos: issue_upto(st["issued"] + ca, n, False)
    a("s_mov_b32 exec_lo, 0x00ff00ff")
    a("s_mov_b32 exec_hi, 0x00ff00ff")
    for i in range(8): a(f"ds_write_b128 v{aOW}, {vr(vACC+4*i,4)} offset:{L_ORED+64*i}")
    a("s_mov_b64 exec, -1")
    if cpos: issue_upto(st["issued"] + ca, n, False)
    a(f"""
    s_waitcnt lgkmcnt(0)
    s_barrier
    ds_read_b128 {vr(vF,4)}, v{aF} offset:{L_F}
    ds_read_b128 {vr(vF+4,4)}, v{aF} offset:{L_F+16}
    """)
    for w in range(8): a(f"ds_read_b64 {vr(vS+2*w,2)}, v{aOR} offset:{L_ORED+4224*w}")
    a("s_waitcnt lgkmcnt(7)")
    a(f"v_mul_f32 v{vB0}, v{vS}, v{vF}")
    a(f"v_mul_f32 v{vB2}, v{vS+1}, v{vF}")
    for w in range(1, 8):
        a(f"s_waitcnt lgkmcnt({7-w})")
        a(f"v_fmac_f32 v{vB0}, v{vS+2*w}, v{vF+w}")
        a(f"v_fmac_f32 v{vB2}, v{vS+2*w+1}, v{vF+w}")
    a(f"v_cvt_pk_bf16_f32 v{vB0}, v{vB0}, v{vB2}")
    a(f"buffer_store_dwordx2 {vr(vB0,2)}, v{vT16}, {srd(WS_)}, s{sPA} offen" + ("" if xp & 1 else " sc1"))
    stamp(6)
    k_s = st["issued"]
    issue_upto(st["issued"] + cb, n, False)
    if notail: a("s_branch L_fin")
    def outstanding_after(k): return sum(u[2] for u in U[k:st["issued"]])
    wait_to = min(st["issued"], k_s + h1d)
    a(f"s_waitcnt vmcnt({outstanding_after(wait_to)})")
    if hs: a(f"s_sleep {hs}")
    if h1first:
        for l in h1: a(l)
    k_h = st["issued"]
    issue_upto(n, n, False)
    if not h1first:
        for l in h1: a(l)
    nh = len(h1)
    lastwd = max(idx.get(f"wd{j}", 0) for j in range(4))
    w = outstanding_after(lastwd + 1) + (nh if (not h1first or lastwd + 1 <= k_h) else 0)
    a(f"s_waitcnt vmcnt({w})")
    wperm(vS + 16, WDQ)
    dot16(vS + 16, vHP, vBP)
    for k in range(4): a(f"v_mov_b32 v{vS+8+k}, 0")
    for k in range(4): a(f"v_mul_f32 v{vBP+k}, v{vBP+k}, v{vG+1}")
    a(f"s_waitcnt vmcnt({0 if h1first else nh})")
    wperm(PW, [WOR + 4 * p for p in range(4)])
    a("s_waitcnt vmcnt(0)")
    stamp(7)
    if not xp: poll(h1, [vH1 + 1, vH1 + 3, vH1 + 5, vH1 + 7], vA0, sleep1, first_issued=True)
    stamp(8)
    for r in (0, 2, 4, 6):
        a(f"v_and_b32 v{vH1+r+1}, 0xffff0000, v{vH1+r}")
        a(f"v_lshlrev_b32 v{vH1+r}, 16, v{vH1+r}")
    for r in range(4): a(f"v_add_f32 v{vH1+r}, v{vH1+r}, v{vH1+r+4}")
    tred4(vH1, vH1)
    a(f"""
    ds_write_b32 v{aR1W}, v{vH1} offset:{L_RED1}
    s_waitcnt lgkmcnt(0)
    s_barrier
    ds_read_b64 {vr(vS,2)}, v{aR1R} offset:{L_RED1}
    ds_read_b64 {vr(vS+2,2)}, v{aR1R} offset:{L_RED1+256}
    s_waitcnt lgkmcnt(0)
    v_add_f32 v{vS}, v{vS}, v{vS+2}
    v_add_f32 v{vS+1}, v{vS+1}, v{vS+3}
    v_add_f32_dpp v{vS}, v{vS}, v{vS} row_ror:4 {DPP}
    v_add_f32_dpp v{vS+1}, v{vS+1}, v{vS+1} row_ror:4 {DPP}
    v_add_f32_dpp v{vS}, v{vS}, v{vS} row_ror:8 {DPP}
    v_add_f32_dpp v{vS+1}, v{vS+1}, v{vS+1} row_ror:8 {DPP}
    v_cvt_pk_bf16_f32 v{vA0}, v{vS}, v{vS+1}
    """)
    dot16(PW, vA0, vS + 8)
    for k in range(4): a(f"v_fmac_f32 v{vBP+k}, v{vS+8+k}, v{vG}")
    tred4(vBP, vE)
    a(f"""
    s_cmp_lt_u32 s{sWV}, 4
    s_cbranch_scc1 L_lo
    ds_write_b32 v{aR3}, v{vE} offset:{L_RED3}
    s_waitcnt lgkmcnt(0)
    s_barrier
    s_branch L_st
    L_lo:
    s_barrier
    ds_read_b32 v{vA0}, v{aR3} offset:{L_RED3}
    s_waitcnt lgkmcnt(0)
    v_add_f32 v{vE}, v{vE}, v{vA0}
    buffer_store_dwordx2 {vr(vE,2)}, v{aFP}, {srd(WS_)}, s{sPB} offen sc1
    L_st:
    """)
    stamp(9)
    a("s_cmp_ge_u32 s2, 64")
    a("s_cbranch_scc1 L_fin")
    if ack2: a("s_waitcnt vmcnt(0)")
    poll([f"buffer_load_dwordx4 {vr(vS,4)}, v{aH2}, {srd(WS_)}, s{sA} offen sc1"], [vS + 1, vS + 3], vA0, sleep1)
    stamp(10)
    a(f"""
    v_permlane32_swap_b32 v{vS}, v{vS+2}
    v_add_f32 v{vS}, v{vS}, v{vS+2}
    v_add_f32_dpp v{vS}, v{vS}, v{vS} row_ror:8 {DPP}
    v_mov_b32 v{vA1}, v{vS}
    v_permlane16_swap_b32 v{vS}, v{vA1}
    v_add_f32 v{vS}, v{vS}, v{vA1}
    ds_write_b32 v{aR2W}, v{vS} offset:{L_RED2}
    s_waitcnt lgkmcnt(0)
    s_barrier
    s_cmp_lg_u32 s{sWV}, 0
    s_cbranch_scc1 L_fin
    ds_read_b64 {vr(vS,2)}, v{aL8} offset:{L_RED2}
    v_lshlrev_b32 v{vA2}, 2, v{vL}
    s_lshl_b32 s{sT0}, s{sI}, 5
    s_waitcnt lgkmcnt(0)
    """)
    red2_bits345(vS, vS + 1, vA0, vA1)
    a(f"""
    v_cvt_pk_bf16_f32 v{vA0}, v{vS}, v{vS+1}
    s_mov_b64 exec, 0xff
    buffer_store_dword v{vA0}, v{vA2}, {srd(OUT_)}, s{sT0} offen {outf.replace('+',' ')}
    s_cmp_lg_u32 s2, 0
    s_cbranch_scc1 L_fin
    s_mov_b64 exec, 1
    buffer_store_dword v{vTAG}, off, {srd(WS_)}, 0 {'' if ep else 'sc1'}
    L_fin:
    """)
    if fix:
        a(f"""
        L_fx:
        s_memrealtime s[4:5]
        s_waitcnt lgkmcnt(0)
        s_sub_u32 s4, s4, s{sM0}
        s_cmp_ge_u32 s4, {fix}
        s_cbranch_scc1 L_fxd
        s_sleep 1
        s_branch L_fx
        L_fxd:
        """)
    if stamps:
        a("s_mov_b64 exec, -1")
        a("s_waitcnt vmcnt(0)")
        a(f"s_memrealtime s[{sST+22}:{sST+23}]")
        a(f"s_mul_i32 s{sT0}, s2, 9")
        a(f"s_add_u32 s{sT0}, s{sT0}, s{sWV}")
        a(f"s_mul_i32 s{sT0}, s{sT0}, {NS*8}")
        a(f"s_add_u32 s{sT0}, s{sT0}, {STAMP_OFF}")
        a("s_waitcnt lgkmcnt(0)")
        a("s_mov_b64 exec, 1")
        for j in range(NS):
            a(f"v_mov_b32 v{vA0}, s{sST+2*j}")
            a(f"v_mov_b32 v{vA1}, s{sST+2*j+1}")
            a(f"buffer_store_dwordx2 {vr(vA0,2)}, off, {srd(WS_)}, s{sT0} offset:{8*j}")
    a("L_end:")
    a("s_endpgm")

    cX = vACC; cG = vACC + 8
    cL4, cL8, cPA, cPF, cQW, cGP = vWDO, vQ, vQ + 1, vQ + 2, vQ + 3, vQ + 4
    a(f"""
    L_comm:
    """)
    if fast: a(late_s)
    a(f"""
    s_setprio 3
    s_mov_b32 s{sWB}, 0
    v_mov_b32 v{vA0}, 0
    v_lshlrev_b32 v{cL4}, 2, v{vL}
    s_mov_b64 exec, 0xffff
    ds_write_b32 v{cL4}, v{vA0}
    s_mov_b64 exec, -1
    s_mov_b32 s{GW_+2}, 2048
    s_mov_b32 s{GW_+3}, 0x20000
    s_waitcnt lgkmcnt(0)
    s_barrier
    s_mov_b64 s[{X_}:{X_+1}], s[76:77]
    s_mov_b64 s[{GW_}:{GW_+1}], s[94:95]
    """)
    if not ev: a(f"s_load_dword s{sC}, s[{WS_}:{WS_+1}], 0")
    roles()
    def touch_kv(ptr, tiles):
        for n_, t in enumerate(tiles):
            a(f"s_xor_b32 s25, s24, {t*(4<<20)}")
            a(f"s_load_dword s{26+n_}, s[{ptr}:{ptr+1}], s25")
    if touch:
        assert ix == 0
        a(f"""
        s_mov_b64 s[4:5], s[78:79]
        s_mov_b64 s[6:7], s[80:81]
        s_mov_b64 s[8:9], s[84:85]
        s_mov_b64 s[10:11], s[92:93]
        s_mul_i32 s24, s{sG}, {(1<<24) + (gx<<22)}
        s_lshl_b32 s25, s{sI}, 16
        s_add_u32 s24, s24, s25
        """)
        if touch & 1:
            a(f"""
            s_mul_i32 s25, s{sR8}, {128*7168}
            s_load_dword s20, s[88:89], s25
            s_load_dword s21, s[90:91], s25
            s_add_u32 s25, s25, {127*7168}
            s_load_dword s22, s[88:89], s25
            s_load_dword s23, s[90:91], s25
            """)
            touch_kv(4, [0])
    def preread():
        if not prer: return
        a(f"""
        v_lshlrev_b32 v{vA2}, 7, v{vL}
        s_lshl_b32 s{sT1}, s2, 12
        s_add_u32 s{sT1}, s{sT1}, {WS_OP}
        s_lshl_b32 s{sT3}, s{sRB}, 6
        s_add_u32 s{sT3}, s{sT3}, s{sPL}
        s_lshl_b32 s{sT3}, s{sT3}, 11
        s_add_u32 s{sT3}, s{sT3}, {WS_FP}
        s_mov_b32 exec_hi, 0
        """)
        if prer & 1: a(f"buffer_load_dword v{vR}, v{vA2}, {srd(WS_)}, s{sT1} offen")
        a("s_mov_b32 exec_lo, 0xffff")
        if prer & 2: a(f"buffer_load_dword v{vR+2}, v{vA2}, {srd(WS_)}, s{sT3} offen")
        a("s_mov_b64 exec, -1")
    if ev: a(f"buffer_load_dword v{vTAG}, off, {srd(WS_)}, 0 sc1")
    if prs == 1: preread()
    a(f"""
    v_lshlrev_b32 v{cL8}, 3, v{vL}
    v_lshrrev_b32 v{vA0}, 3, v{vL}
    v_and_b32 v{vA1}, 7, v{vL}
    v_lshlrev_b32 v{cPA}, 10, v{vA0}
    v_lshl_add_u32 v{cPA}, v{vA1}, 4, v{cPA}
    v_lshrrev_b32 v{vA0}, 5, v{vL}
    v_and_b32 v{vA1}, 31, v{vL}
    v_lshlrev_b32 v{cPF}, 10, v{vA0}
    v_lshl_add_u32 v{cPF}, v{vA1}, 4, v{cPF}
    v_mul_u32_u24 v{vA0}, 272, v{vA0}
    v_lshl_add_u32 v{cQW}, v{vA1}, 3, v{vA0}
    v_add_u32 v{cGP}, {L_GP}, v{cL8}
    s_lshl_b32 s{sT1}, s{sCB}, 13
    s_add_u32 s{sT1}, s{sT1}, {WS_QP}
    s_lshl_b32 s{sT2}, s{sR8}, 10
    s_add_u32 s{sA}, s{sT1}, s{sT2}
    s_lshl_b32 s{sT2}, s{sR8}, 7
    s_add_u32 s{sPA}, s{sT1}, s{sT2}
    s_lshl_b32 s{sT1}, s{sCB}, {9+gt}
    s_lshl_b32 s{sT2}, s{sR8}, {6+gt}
    s_add_u32 s{sB}, s{sT1}, s{sT2}
    s_add_u32 s{sB}, s{sB}, {WS_QG}
    s_lshl_b32 s{sPB}, s{sG}, {12+gt}
    s_add_u32 s{sPB}, s{sPB}, {WS_QG}
    """)
    if ev:
        a(f"s_waitcnt vmcnt({bin(prer).count('1') if prs == 1 else 0})")
        a(f"v_add_u32 v{vTAG}, 1, v{vTAG}")
    else:
        a("s_waitcnt lgkmcnt(0)")
        a(f"s_add_u32 s{sC}, s{sC}, 1")
        a(f"v_mov_b32 v{vTAG}, s{sC}")
    init_stamps()
    if "x" in dg:
        arrive(C_QS); arrive(C_H); a("s_waitcnt vmcnt(0) lgkmcnt(0)"); a("s_branch L_fin")
    def gp_publish(m, base, so, off):
        for k in range(4): a(f"ds_read2st64_b64 {vr(base+4*k,4)}, v{cGP} offset0:{8*m+2*k} offset1:{8*m+2*k+1}")
        a("s_waitcnt lgkmcnt(0)")
        for step in (2, 4, 8):
            for k in range(0, 16, 2 * step):
                a(f"v_add_f32 v{base+k}, v{base+k}, v{base+k+step}")
                a(f"v_add_f32 v{base+k+1}, v{base+k+1}, v{base+k+step+1}")
        a(f"v_mov_b32 v{base+2}, v{base+1}")
        a(f"v_mov_b32 v{base+1}, v{vTAG}")
        a(f"v_mov_b32 v{base+3}, v{vTAG}")
        a(f"buffer_store_dwordx4 {vr(base,4)}, v{vVO}, {srd(WS_)}, s{so} offen offset:{off}" + ("" if loc else " sc1"))
    wait_cnt(C_Q, 8, csleep)
    gp_publish(0, vT, sA, 0)
    stamp(1)
    if ackA: a("s_waitcnt vmcnt(0)")
    poll([f"buffer_load_dwordx4 {vr(vE,4)}, v{cPA}, {srd(WS_)}, s{sPA} offen sc1"], [vE + 1, vE + 3], vA0, asleep, wb=True)
    red2_bits345(vE, vE + 2, vA0, vA1)
    a(f"""
    v_cvt_pk_bf16_f32 v{vE}, v{vE}, v{vE+2}
    s_mov_b64 exec, 0xff00
    v_mov_b32 v{vE}, s{sM0}
    s_mov_b64 exec, {0xffff if gt else 0xff}
    buffer_store_dwordx2 {vr(vE,2)}, v{cL8}, {srd(WS_)}, s{sB} offen sc1
    s_mov_b64 exec, -1
    """)
    stamp(2)
    a(f"""
    buffer_load_dwordx4 {vr(cX,4)}, v{vVO}, {srd(X_)}, 0 offen
    buffer_load_dwordx4 {vr(cX+4,4)}, v{vVO}, {srd(X_)}, 0 offen offset:1024
    buffer_load_dwordx4 {vr(cG,4)}, v{vVO}, {srd(GW_)}, 0 offen
    buffer_load_dwordx4 {vr(cG+4,4)}, v{vVO}, {srd(GW_)}, 0 offen offset:1024
    s_lshl_b32 s{sKV}, s{sCB}, 14
    s_add_u32 s{sKV}, s{sKV}, {WS_FG}
    s_lshl_b32 s{sT2}, s{sR8}, 11
    s_add_u32 s{sA}, s{sKV}, s{sT2}
    s_and_b32 s{sT2}, s{sLC}, 1
    s_lshl_b32 s{sT2}, s{sT2}, 9
    s_add_u32 s{sKV}, s{sKV}, s{sT2}
    """)
    if touch & 2: touch_kv(4, [1, 2])
    wait_cnt(C_F, 8, csleep)
    gp_publish(1, vT, sA, 0)
    gp_publish(2, vP, sA, 1024)
    if loc: a(f"""
    s_cmp_eq_u32 s{sWB}, 0
    s_cbranch_scc1 L_nwb
    s_waitcnt vmcnt(0)
    buffer_wbl2 sc1
    s_waitcnt vmcnt(0)
    L_nwb:
    """)
    a(f"""
    s_waitcnt vmcnt(2)
    v_mov_b32 v{vB0}, 0
    """)
    for k in range(8):
        a(f"""
        v_lshlrev_b32 v{vA0}, 16, v{cX+k}
        v_and_b32 v{vA1}, 0xffff0000, v{cX+k}
        v_lshlrev_b32 v{vA2}, 16, v{cG+k}
        v_and_b32 v{vA3}, 0xffff0000, v{cG+k}
        v_mul_f32 v{vA0}, v{vA0}, v{vA2}
        v_mul_f32 v{vA1}, v{vA1}, v{vA3}
        v_cvt_pk_bf16_f32 v{vA0}, v{vA0}, v{vA1}
        v_lshlrev_b32 v{vA1}, 16, v{vA0}
        v_and_b32 v{vA0}, 0xffff0000, v{vA0}
        v_add_f32 v{vB0}, v{vB0}, v{vA0}
        v_add_f32 v{vB0}, v{vB0}, v{vA1}
        """)
    for nn_ in (1, 2, 4): a(f"v_add_f32_dpp v{vB0}, v{vB0}, v{vB0} row_ror:{nn_} {DPP}")
    red_bits345("add", vB0, vA3)
    a(f"""
    v_cvt_pk_bf16_f32 v{vA0}, v{vB0}, v{vB0}
    v_and_b32 v{vA0}, 0xffff0000, v{vA0}
    v_mul_f32 v{vA0}, {hex(f2u(-math.log2(math.e)))}, v{vA0}
    v_exp_f32 v{vA0}, v{vA0}
    v_add_f32 v{vA0}, 1.0, v{vA0}
    v_rcp_f32 v{vA0}, v{vA0}
    v_cvt_pk_bf16_f32 v{vA0}, v{vA0}, v{vA0}
    v_and_b32 v{vA0}, 0xffff0000, v{vA0}
    v_sub_f32 v{vA1}, 1.0, v{vA0}
    v_cvt_pk_bf16_f32 v{vA1}, v{vA1}, v{vA1}
    v_and_b32 v{vA1}, 0xffff0000, v{vA1}
    v_mov_b32 v{vA2}, 0
    s_mov_b64 exec, 1
    ds_write_b64 v{vA2}, {vr(vA0,2)} offset:{L_G}
    ds_write_b32 v{vA2}, v{vTAG} offset:{L_G+8}
    s_mov_b64 exec, -1
    """)
    wait_cnt(C_P1, cpn, 4)
    ql = [f"buffer_load_dwordx4 {vr(vS+4*k,4)}, v{vVO}, {srd(WS_)}, s{sPB} offen offset:{1024*k} sc1" for k in range(4)]
    if gt:
        a(f"""
        v_lshrrev_b32 v{vQ+5}, 2, v{vL}
        v_lshlrev_b32 v{vQ+5}, 6, v{vQ+5}
        v_add_u32 v{vQ+5}, v{vQ+5}, v{vVO}
        v_lshlrev_b32 v{vQ+6}, 7, v{vL}
        s_add_u32 s{sT1}, s{sPB}, 4096
        """)
        ql = [f"buffer_load_dwordx4 {vr(vS+4*k,4)}, v{vQ+5}, {srd(WS_)}, s{sPB if k < 2 else sT1} offen offset:{2048*(k%2)} sc1" for k in range(4)]
        ql.append(f"buffer_load_dwordx2 {vr(vS+16,2)}, v{vQ+6}, {srd(WS_)}, s{sPB} offen offset:64 sc1")
    poll(ql, [vS + 2 * k + 1 for k in range(8 + gt)], vA2, rsleep, wb=True)
    if gt:
        a(f"v_subrev_u32 v{vS+16}, s{sM0}, v{vS+16}")
        a(f"v_cvt_f32_i32 v{vS+16}, v{vS+16}")
        for nn_ in (1, 2, 4): a(f"v_min_f32_dpp v{vS+16}, v{vS+16}, v{vS+16} row_ror:{nn_} {DPP}")
        red_bits345("min", vS + 16, vA3)
        a(f"""
        v_cvt_i32_f32 v{vS+16}, v{vS+16}
        v_add_u32 v{vS+16}, s{sM0}, v{vS+16}
        v_mov_b32 v{vA2}, 0
        s_mov_b64 exec, 1
        ds_write_b32 v{vA2}, v{vS+16} offset:{L_G+12}
        s_mov_b64 exec, -1
        """)
    for k in range(4): a(f"v_mov_b32 v{vS+4*k+1}, v{vS+4*k+2}")
    for k in range(4): a(f"ds_write_b64 v{cQW}, {vr(vS+4*k,2)} offset:{L_QS+544*k}")
    arrive(C_QS)
    stamp(3)
    for k in range(1, 4): a(f"s_add_u32 s{sT0+k}, s{sKV}, {4096*k}")
    fl = [f"buffer_load_dwordx4 {vr(vS+4*k,4)}, v{cPF}, {srd(WS_)}, s{sKV if k < 2 else sT0+k//2} offen offset:{2048*(k%2)} sc1" for k in range(8)]
    poll(fl, [vS + 2 * k + 1 for k in range(16)], vA2, rsleep, wb=True)
    for step in (4, 8, 16):
        for k in range(0, 32, 2 * step):
            a(f"v_add_f32 v{vS+k}, v{vS+k}, v{vS+k+step}")
            a(f"v_add_f32 v{vS+k+2}, v{vS+k+2}, v{vS+k+step+2}")
    a(f"""
    v_cvt_pk_bf16_f32 v{vA0}, v{vS}, v{vS+2}
    v_mov_b32 v{vA1}, v{vA0}
    v_permlane32_swap_b32 v{vA0}, v{vA1}
    v_lshlrev_b32 v{vA2}, 16, v{vA0}
    v_and_b32 v{vA0}, 0xffff0000, v{vA0}
    v_lshlrev_b32 v{vA3}, 16, v{vA1}
    v_and_b32 v{vA1}, 0xffff0000, v{vA1}
    v_max_f32 v{vA2}, 0, v{vA2}
    v_max_f32 v{vA0}, 0, v{vA0}
    v_mul_f32 v{vA2}, v{vA2}, v{vA3}
    v_mul_f32 v{vA0}, v{vA0}, v{vA1}
    v_cvt_pk_bf16_f32 v{vA0}, v{vA2}, v{vA0}
    s_mov_b32 exec_hi, 0
    ds_write_b32 v{cL4}, v{vA0} offset:{L_H}
    s_mov_b64 exec, -1
    """)
    arrive(C_H)
    stamp(4)
    if prs == 0: preread()
    a(f"""
    s_lshl_b32 s{sA}, s2, 6
    s_add_u32 s{sA}, s{sA}, {WS_ML}
    s_lshl_b32 s{sPA}, s{sG}, 12
    s_add_u32 s{sPA}, s{sPA}, {WS_ML}
    """)
    if touch & 2:
        touch_kv(4, [3]); a("s_waitcnt lgkmcnt(0)"); touch_kv(6, [0, 1])
    wait_cnt(C_ST, 8, 4)
    a(f"ds_read_b64 {vr(vT,2)}, v{cL8} offset:{L_ST}")
    a("s_waitcnt lgkmcnt(0)")
    a(f"v_mov_b32 v{vB0}, v{vT}")
    red_bits345("max", vB0, vA3)
    a(f"v_sub_f32 v{vA3}, v{vT}, v{vB0}")
    a(f"v_exp_f32 v{vA3}, v{vA3}")
    a(f"v_mul_f32 v{vT+1}, v{vT+1}, v{vA3}")
    red_bits345("add", vT + 1, vA3)
    a(f"""
    v_log_f32 v{vB1}, v{vT+1}
    v_add_f32 v{vB0}, v{vB0}, v{vB1}
    v_mov_b32 v{vB1}, v{vTAG}
    s_mov_b64 exec, 0xff
    buffer_store_dwordx2 {vr(vB0,2)}, v{cL8}, {srd(WS_)}, s{sA} offen sc1
    s_mov_b64 exec, -1
    """)
    stamp(5)
    if prs == 2: preread()
    if midwb:
        a(f"s_cmp_ge_u32 s2, {midwb}")
        a("s_cbranch_scc1 L_nmw")
        a("buffer_wbl2 sc1")
        a("L_nmw:")
    ml = [f"buffer_load_dwordx2 {vr(vS+2*k,2)}, v{cL8}, {srd(WS_)}, s{sPA} offen offset:{512*k} sc1" for k in range(8)]
    if touch & 2:
        touch_kv(6, [2, 3])
        a(f"""
        s_min_u32 s25, s{sLC}, 55
        s_lshl_b32 s25, s25, 17
        s_load_dword s20, s[10:11], s25
        s_lshl_b32 s25, s{sG}, 21
        s_load_dword s21, s[8:9], s25
        """)
    wait_cnt(C_P2, cpn, 4)
    poll(ml, [vS + 2 * k + 1 for k in range(8)], vA0, rsleep, wb=True)
    M = vE
    a(f"v_max3_f32 v{M}, v{vS}, v{vS+2}, v{vS+4}")
    a(f"v_max3_f32 v{M}, v{M}, v{vS+6}, v{vS+8}")
    a(f"v_max3_f32 v{M}, v{M}, v{vS+10}, v{vS+12}")
    a(f"v_max_f32 v{M}, v{M}, v{vS+14}")
    red_bits345("max", M, vA3)
    for k in range(8): a(f"v_sub_f32 v{vS+2*k}, v{vS+2*k}, v{M}")
    for k in range(8): a(f"v_exp_f32 v{vS+2*k}, v{vS+2*k}")
    a(f"v_add_f32 v{M+1}, v{vS}, v{vS+2}")
    for k in range(2, 8): a(f"v_add_f32 v{M+1}, v{M+1}, v{vS+2*k}")
    red_bits345("add", M + 1, vA3)
    a(f"""
    v_sub_f32 v{vA1}, v{vT}, v{M}
    v_exp_f32 v{vA1}, v{vA1}
    v_rcp_f32 v{vA2}, v{M+1}
    v_mul_f32 v{vA1}, v{vA1}, v{vA2}
    v_and_b32 v{vA2}, 7, v{vL}
    v_lshlrev_b32 v{vA2}, 5, v{vA2}
    v_lshrrev_b32 v{vA3}, 3, v{vL}
    v_lshl_add_u32 v{vA2}, v{vA3}, 2, v{vA2}
    ds_write_b32 v{vA2}, v{vA1} offset:{L_F}
    s_waitcnt lgkmcnt(0)
    """)
    if endwb:
        a("s_cmp_lt_u32 s2, 248")
        a("s_cbranch_scc1 L_cend")
        for _ in range(endwb): a("s_barrier")
        a("buffer_wbl2 sc1")
        for _ in range(3 - endwb): a("s_barrier")
        a("L_cend:")
    a("s_branch L_fin" if stamps else "s_endpgm")
    ci = [k for k, l in enumerate(a.lines) if l.strip() == "L_comm:"][0]
    if "m" in dg:
        a.lines = a.lines[:ci] + [l.replace("0x40000", "0") if ("s_cmp_gt" in l and "0x400000" not in l) else l for l in a.lines[ci:] if "buffer_" not in l]
    if "d" in dg:
        a.lines = [l for l in a.lines if "v_dot2c_f32_bf16 " not in l and "v_mfma" not in l]
    lines = hazard.fix([l for l in a.lines if not l.strip().startswith(";")])
    body = "\n".join(lines)
    if ipf: body = body.replace("CODE_BYTES", "s8") + "\nL_code_end:"
    return wrap_single(body, 256, 576, lds, NVGPR, header=HEADER)

if __name__ == "__main__":
    kw = {}
    for s in sys.argv[2:]:
        k, v = s.split("=")
        try: v = int(v)
        except: pass
        kw[k] = v
    open(sys.argv[1], "w").write(gen(**kw))
```

```python
import sys, math, struct
from asmlib import *
import hazard
def f2u(x): return struct.unpack("<I", struct.pack("<f", x))[0]
HEADER = open("cdna_kernels/" + NAME + ".s.ref").read().split("; Override launch")[0]

HEADER += """;
;   hand-offs       : 8-byte {data, tag} granules in d_ws, tag = epoch word + 1 (the epoch is advanced at the end).
"""

WS_QG = 0x10000
WS_ML = 0x8000
WS_QP = 0x40000
WS_FG = 0x80000
WS_OP = 0x100000
WS_FP = 0x200000
WS_SIZE = 0x280000
STAMP_OFF = 128 << 20
C_Q, C_F, C_QS, C_ST, C_H, C_P1, C_P2 = 0, 4, 8, 12, 16, 20, 24
L_H = 64
L_G = 192
L_GP = 256
L_QS = L_GP + 3 * 4096
L_ST = L_QS + 2176
L_F = L_ST + 512
L_RED1 = L_F + 256
L_RED2 = L_RED1 + 2048
L_RED3 = L_RED2 + 512
L_ORED = L_RED3 + 1024
L_END = L_ORED + 8 * 4224
sWV = 3
K_, V_, WQ_, WO_, WG_, WU_, WD_, X_, GW_, WS_, OUT_ = 4, 8, 12, 16, 20, 24, 28, 32, 36, 40, 44
def srd(b): return f"s[{b}:{b+3}]"
sG, sI, sPA, sPB, sKV = 48, 49, 50, 51, 52
sT0, sT1, sT2, sT3 = 53, 54, 55, 56
sSELLO, sSELHI, sC, sCAP, sA, sB, sKS = 57, 58, 59, 60, 61, 62, 63
sM0 = 64
sWD, sBOOST = 66, 67
sRB, sLC, sR8, sCB, sH1, sH1b, sPL, sXV = 68, 69, 70, 71, 72, 73, 74, 75
sST = 76
sCK = 36
sWB = 67
vL, vWDO, vT16, vTAG, vKO, vVO, vWOO, vWFO = 0, 1, 2, 3, 4, 5, 6, 7
vA0, vA1, vA2, vA3, vB0, vB1, vB2, vB3 = 8, 9, 10, 11, 12, 13, 14, 15
vT, vQ, vE, vP, vS, vACC, vR, vBP, vSP = 16, 32, 40, 48, 64, 96, 128, 160, 164
NVGPR = 168

def gen(WIN=3, WMAX=5, dyn0=10, stamps=0, sn="d", lds=82440, q_at=26, p1_at=19, p2_at=61, CA=140, CB=275, CK=6, gsh=2, k0=8,
        ca=2, cb=2, h1first=0, prer=2, fix=0, nfail=8, sleep1=2, csleep=1, asleep=4, rsleep=16, ackA=1, ack2=1, ex=3, cpn=6,
        notail=0, ncov=8, h1d=0, gt=0, CA2=None, lv=0, WLO=3, sp=0, ev=0, gx=0, ix=0, tw=0, t0=3, t1=9, qw=0, touch=0, outf='', midwb=0, endwb=0, prs=0, W0=4, W1=3, fast=0, loc=1, xp=0, cpos=0, cm=0, wofirst=0, hs=0, probe=-1, pwg=42, rj=0, dg='', ipf=0, xl=0, ep=0, fx=0, po=0, merge=0):
    a = Asm()
    SN = set(str(sn).split("+"))
    NS = 12
    def stamp(k, name="d"):
        if stamps and name in SN: a(f"s_memrealtime s[{sST+2*k}:{sST+2*k+1}]")
    def vr(b, n): return f"v[{b}:{b+n-1}]"
    DPP = "row_mask:0xf bank_mask:0xf"
    def red_bits45(op, v, t):
        for sw in ("16", "32"):
            a(f"v_mov_b32 v{t}, v{v}")
            a(f"v_permlane{sw}_swap_b32 v{v}, v{t}")
            a(f"v_{op}_f32 v{v}, v{v}, v{t}")
    def red_bits345(op, v, t):
        a(f"v_{op}_f32_dpp v{v}, v{v}, v{v} row_ror:8 {DPP}")
        red_bits45(op, v, t)
    def red2_bits345(v0, v1, t0, t1):
        a(f"v_add_f32_dpp v{v0}, v{v0}, v{v0} row_ror:8 {DPP}")
        a(f"v_add_f32_dpp v{v1}, v{v1}, v{v1} row_ror:8 {DPP}")
        for sw in ("16", "32"):
            a(f"v_mov_b32 v{t0}, v{v0}")
            a(f"v_mov_b32 v{t1}, v{v1}")
            a(f"v_permlane{sw}_swap_b32 v{v0}, v{t0}")
            a(f"v_permlane{sw}_swap_b32 v{v1}, v{t1}")
            a(f"v_add_f32 v{v0}, v{v0}, v{t0}")
            a(f"v_add_f32 v{v1}, v{v1}, v{t1}")
    def tred4(v, dst):
        a(f"""
        v_permlane32_swap_b32 v{v}, v{v+2}
        v_permlane32_swap_b32 v{v+1}, v{v+3}
        v_add_f32 v{v}, v{v}, v{v+2}
        v_add_f32 v{v+1}, v{v+1}, v{v+3}
        v_permlane16_swap_b32 v{v}, v{v+1}
        v_add_f32 v{dst}, v{v}, v{v+1}
        """)
    def arrive(cnt):
        a(f"""
        v_mov_b32 v{vA0}, {cnt}
        v_mov_b32 v{vA1}, 1
        s_waitcnt lgkmcnt(0)
        s_mov_b64 exec, 1
        ds_add_u32 v{vA0}, v{vA1}
        s_mov_b64 exec, -1
        """)
    def wait_cnt(cnt, val, sl=1):
        l = a.label("Lw"); d = a.label("Lwd")
        a(f"""
        v_mov_b32 v{vA0}, {cnt}
        s_mov_b32 s{sCAP}, 0
        {l}:
        ds_read_b32 v{vA1}, v{vA0}
        s_waitcnt lgkmcnt(0)
        v_readfirstlane_b32 s{sT0}, v{vA1}
        s_cmp_ge_u32 s{sT0}, {val}
        s_cbranch_scc1 {d}
        s_add_u32 s{sCAP}, s{sCAP}, 1
        s_cmp_gt_u32 s{sCAP}, 0x400000
        s_cbranch_scc1 {d}
        s_sleep {sl}
        s_branch {l}
        {d}:
        """)
    def poll(loads, tagregs, tmp, sleep, first_issued=False, wb=False):
        lc = a.label("Lchk"); ld = a.label("Ldone")
        a(f"s_mov_b32 s{sCAP}, 0")
        if not first_issued:
            for l in loads: a(l)
            a("s_waitcnt vmcnt(0)")
        a(f"{lc}:")
        a(f"v_xor_b32 v{tmp}, v{tagregs[0]}, v{vTAG}")
        rest = list(tagregs[1:])
        for r in rest:
            a(f"v_xor_b32 v{tmp+1}, v{r}, v{vTAG}")
            a(f"v_or_b32 v{tmp}, v{tmp}, v{tmp+1}")
        a(f"v_cmp_ne_u32 vcc, 0, v{tmp}")
        a(f"s_and_b64 exec, exec, vcc")
        a(f"s_cbranch_scc0 {ld}")
        a(f"s_add_u32 s{sCAP}, s{sCAP}, 1")
        a(f"s_cmp_gt_u32 s{sCAP}, 0x40000")
        a(f"s_cbranch_scc1 {ld}")
        if wb and loc:
            lw = a.label("Lnw")
            a(f"s_and_b32 s{sT0}, s{sCAP}, {nfail-1}")
            a(f"s_cbranch_scc1 {lw}")
            a("buffer_wbl2 sc1")
            a("s_waitcnt vmcnt(0)")
            a(f"s_mov_b32 s{sWB}, 1")
            a(f"{lw}:")
        if sleep: a(f"s_sleep {sleep}")
        for l in loads: a(l)
        a("s_waitcnt vmcnt(0)")
        a(f"s_branch {lc}")
        a(f"{ld}:")
        a("s_mov_b64 exec, -1")
    def sum8(base):
        for step in (1, 2, 4):
            for k in range(0, 8, 2 * step): a(f"v_add_f32 v{base+k}, v{base+k}, v{base+k+step}")
    def init_stamps():
        if stamps:
            for k in range(NS): a(f"s_mov_b64 s[{sST+2*k}:{sST+2*k+1}], s[{sM0}:{sM0+1}]")

    a(f"""
    s_cmp_ge_u32 s2, 256
    s_cbranch_scc1 L_end
    s_load_dwordx16 s[76:91], s[0:1], 0
    """)
    if ipf:
        a(f"""
        s_getpc_b64 s[4:5]
        L_pc0:
        s_mov_b32 s8, L_code_end-L_pc0-4
        v_lshlrev_b32 v{vA2}, {7 if ipf == 1 else 6}, v0
        v_cmp_gt_u32 vcc, CODE_BYTES, v{vA2}
        s_and_saveexec_b64 s[6:7], vcc
        s_cbranch_execz L_nipf
        global_load_dword v{vSP}, v{vA2}, s[4:5]
        L_nipf:
        s_mov_b64 exec, s[6:7]
        """)
    a(f"""
    """)
    late_s = f"""
    s_load_dwordx8 s[92:99], s[0:1], 64
    s_load_dwordx2 s[{WS_}:{WS_+1}], s[0:1], 96
    s_memrealtime s[{sM0}:{sM0+1}]
    """
    if not fast: a(late_s)
    a(f"""
    v_lshrrev_b32 v{vA0}, 6, v0
    v_lshlrev_b32 v{vT16}, 4, v0
    v_readfirstlane_b32 s{sWV}, v{vA0}
    v_and_b32 v{vL}, 63, v0
    s_lshr_b32 s{sG}, s2, 6
    s_and_b32 s{sI}, s2, 63
    s_bfe_u32 s{sR8}, s2, 0x30003
    s_and_b32 s{sT0}, s2, 7
    s_lshl_b32 s{sT1}, s{sG}, 1
    s_xor_b32 s{sT0}, s{sT0}, s{sT1}
    s_lshl_b32 s{sT0}, s{sT0}, 2
    s_or_b32 s{sCB}, s{sT0}, s{sG}
    s_mov_b32 s{X_+2}, 2048
    s_mov_b32 s{X_+3}, 0x20000
    v_lshlrev_b32 v{vVO}, 4, v{vL}
    s_cmp_eq_u32 s{sWV}, 8
    s_cbranch_scc1 L_comm
    s_mov_b32 s{WQ_+2}, {1024*8192}
    s_mov_b32 s{WQ_+3}, 0x20000
    v_lshrrev_b32 v{vA0}, 4, v{vL}
    v_and_b32 v{vA1}, 15, v{vL}
    v_lshlrev_b32 v{vA1}, 4, v{vA1}
    v_lshl_add_u32 v{vA3}, v{vA0}, {13 if rj else 15}, v{vA1}
    v_lshlrev_b32 v{vA2}, 3, v{vA0}
    s_lshl_b32 s{sT3}, s{sR8}, 3
    s_add_u32 s{sT3}, s{sT3}, s{sWV}
    s_lshl_b32 s{sT0}, s{sCB}, 8
    s_lshl_b32 s{sA}, s{sT3}, 17
    s_add_u32 s{sA}, s{sA}, s{sT0}
    s_mul_i32 s{sB}, s{sT3}, {16*7168}
    s_add_u32 s{sB}, s{sB}, s{sT0}
    s_lshl_b32 s{sT3}, s{sT3}, 5
    s_add_u32 s{sT0}, s{sA}, {8192*(4 if rj else 1)}
    s_add_u32 s{sT1}, s{sA}, {16384*(4 if rj else 1)}
    s_add_u32 s{sT2}, s{sA}, {24576*(4 if rj else 1)}
    s_waitcnt lgkmcnt(0)
    s_mov_b64 s[{WQ_}:{WQ_+1}], s[82:83]
    s_mov_b64 s[{X_}:{X_+1}], s[76:77]
    """)
    R0, R1, A0, A1 = vR, vR + 16, vACC, vACC + 16
    WQR, WGR, WUR = R0, R1, A0
    vXP = vB0
    xld = f"buffer_load_dwordx2 {vr(vXP,2)}, v{vA2}, {srd(X_)}, s{sT3} offen"
    if rj: xl = 0
    if not xl and not rj: a(xld)
    for j in range(4): a(f"buffer_load_dwordx4 {vr(WQR+4*j,4)}, v{vA3}, {srd(WQ_)}, s{[sA,sT0,sT1,sT2][j]} offen nt")
    if xl: a(xld)
    if rj and not fast: a(f"s_load_dwordx8 s[32:39], s[76:77], s{sT3}")
    if fast: a(late_s)
    def roles():
        a(f"""
        s_and_b32 s{sRB}, s{sR8}, 3
        s_lshr_b32 s{sLC}, s{sR8}, 2
        s_lshl_b32 s{sT0}, s{sCB}, 1
        s_or_b32 s{sLC}, s{sLC}, s{sT0}
        s_lshr_b32 s{sPL}, s2, 5
        s_lshl_b32 s{sPL}, s{sPL}, 3
        s_and_b32 s{sT0}, s2, 7
        s_or_b32 s{sPL}, s{sPL}, s{sT0}
        s_mov_b32 s{WS_+2}, {WS_SIZE if not stamps else (256<<20)}
        s_mov_b32 s{WS_+3}, 0x20000
        """)
    vX = vT; vGA = vT + 8
    a(f"""
    v_mul_u32_u24 v{vWFO}, {(1 if rj else 4)*7168}, v{vA0}
    v_mul_u32_u24 v{vB2}, 0x202, v{vA0}
    v_add_u32 v{vB2}, 0x0c0c0100, v{vB2}
    v_alignbit_b32 v{vB3}, v{vB2}, v{vB2}, 16
    v_add_u32 v{vWFO}, v{vWFO}, v{vA1}
    s_cmp_lt_u32 s{sCB}, 28
    s_cselect_b32 s{WG_+2}, {1024*7168}, 0
    s_cselect_b32 s{WU_+2}, {1024*7168}, 0
    s_cselect_b32 s{WD_+2}, {3584*2048}, 0
    s_mov_b32 s{WG_+3}, 0x20000
    s_mov_b32 s{WU_+3}, 0x20000
    s_mov_b64 s[{WG_}:{WG_+1}], s[88:89]
    s_mov_b64 s[{WU_}:{WU_+1}], s[90:91]
    s_mov_b64 s[{K_}:{K_+1}], s[78:79]
    s_mov_b64 s[{V_}:{V_+1}], s[80:81]
    s_mov_b64 s[{WO_}:{WO_+1}], s[84:85]
    s_mov_b32 s{K_+2}, 0x4000000
    s_mov_b32 s{K_+3}, 0x20000
    s_mov_b32 s{V_+2}, 0x4000000
    s_mov_b32 s{V_+3}, 0x20000
    s_mov_b32 s{WO_+2}, {4096*2048}
    s_mov_b32 s{WO_+3}, 0x20000
    s_mov_b32 s{WD_+3}, 0x20000
    s_mov_b32 s{OUT_+2}, 2048
    s_mov_b32 s{OUT_+3}, 0x20000
    s_mov_b32 s{sSELLO}, 0x05040100
    s_mov_b32 s{sSELHI}, 0x07060302
    s_mov_b32 s{sC}, {hex(f2u(128**-0.5 * math.log2(math.e)))}
    s_mov_b32 s{sBOOST}, {WIN if lv else 0}
    s_mul_i32 s{sKV}, s{sG}, {(1<<24) + (gx<<22)}
    """)
    if ix == 0:
        a(f"s_lshl_b32 s{sT0}, s{sI}, 16")
        a(f"s_add_u32 s{sKV}, s{sKV}, s{sT0}")
    else:
        pos = {1: [17, 18, 19, 16, 20, 21], 2: [16, 17, 19, 18, 20, 21]}[ix]
        for b in range(6):
            a(f"s_bfe_u32 s{sT0}, s2, {0x10000 + b}")
            a(f"s_lshl_b32 s{sT0}, s{sT0}, {pos[b]}")
            a(f"s_add_u32 s{sKV}, s{sKV}, s{sT0}")
    a(f"""
    s_lshl_b32 s{sT0}, s{sWV}, 13
    s_add_u32 s{sKV}, s{sKV}, s{sT0}
    s_lshl_b32 s{sT0}, s{sWV}, 10
    s_add_u32 s{sXV}, s{sKV}, s{sT0}
    s_and_b32 s{sT1}, s{sT0}, 4096
    s_add_u32 s{sKV}, s{sKV}, s{sT1}
    s_and_b32 s{sT0}, s{sT0}, 3072
    v_lshlrev_b32 v{vA2}, 1, v{vA1}
    v_lshl_add_u32 v{vA2}, v{vA0}, 3, v{vA2}
    s_lshl_b32 s{sT1}, s{sWV}, 9
    v_add_u32 v{vGA}, s{sT1}, v{vA2}
    v_and_b32 v{vA2}, 3, v{vL}
    v_lshlrev_b32 v{vA2}, 10, v{vA2}
    v_xor_b32 v{vA2}, s{sT0}, v{vA2}
    v_bfe_u32 v{vA3}, v{vL}, 2, 1
    v_lshl_add_u32 v{vA2}, v{vA3}, 8, v{vA2}
    v_bfe_u32 v{vA3}, v{vL}, 3, 1
    v_lshl_add_u32 v{vA2}, v{vA3}, 6, v{vA2}
    v_lshl_add_u32 v{vKO}, v{vA0}, 4, v{vA2}
    v_mov_b32 v{vE+6}, 0
    v_mov_b32 v{vE+7}, 0x40000000
    """)
    roles()
    if fast: a("s_waitcnt lgkmcnt(0)")
    a(f"""
    s_mov_b64 s[{WD_}:{WD_+1}], s[92:93]
    s_mov_b64 s[{OUT_}:{OUT_+1}], s[96:97]
    """)
    init_stamps()
    for r in range(24): a(f"v_mov_b32 v{vS+r}, 0")
    a("s_barrier")

    U = []
    for j in range(4): U.append((f"wq{j}", None, 2 if (xl and j == 3) else 1, None))
    for nm, R, S_ in (("gate", WGR, WG_), ("up", WUR, WU_)):
        for j in range(4):
            U.append((f"{nm}{j}", [f"s_add_u32 s{sT3}, s{sB}, {j*7168*(4 if rj else 1)}", f"buffer_load_dwordx4 {vr(R+4*j,4)}, v{vWFO}, {srd(S_)}, s{sT3} offen nt"], 1, None))
    WDQ = [vP, vP + 4, vP + 8, vSP]
    WOR = vT; PW = R0
    def wdunit(j, pre):
        if sp:
            U.append((f"wd{j}", [f"v_mov_b32_dpp v{vA2}, v{vE+5} row_newbcast:{j} {DPP}",
                      f"v_and_b32 v{vA3}, 0x7fff0000, v{vA2}", f"v_and_b32 v{vA2}, 0x7fff, v{vA2}",
                      f"v_cmp_ne_u32 vcc, 0, v{vA2}", f"v_cndmask_b32 v{vA2}, v{vE+7}, v{vWDO}, vcc",
                      f"v_cmp_ne_u32 vcc, 0, v{vA3}", f"v_cndmask_b32 v{vA3}, v{vE+7}, v{vWDO}, vcc",
                      f"s_xor_b32 s{sT3}, s{sWD}, {j*4096}", f"buffer_load_dwordx2 {vr(WDQ[j],2)}, v{vA2}, {srd(WD_)}, s{sT3} offen nt",
                      f"buffer_load_dwordx2 {vr(WDQ[j]+2,2)}, v{vA3}, {srd(WD_)}, s{sT3} offen offset:2048 nt"], 2, pre))
            return
        U.append((f"wd{j}", [f"s_xor_b32 s{sT3}, s{sWD}, {j*4096}", f"buffer_load_dwordx2 {vr(WDQ[j],2)}, v{vWDO}, {srd(WD_)}, s{sT3} offen nt",
                  f"buffer_load_dwordx2 {vr(WDQ[j]+2,2)}, v{vWDO}, {srd(WD_)}, s{sT3} offen offset:2048 nt"], 2, pre))
    KSL = [A1, vP, R0, R1, A0, A1, vP, A0]
    KPRE = [None, None, "wq", "gate", "up", "K0", "K1", "K4"]
    for g in range(8):
        t, u = g >> 1, g & 1
        for k in range(4):
            l = [f"s_xor_b32 s{sKS}, s{sKV}, {t*(4<<20) + u*4096}"] if k == 0 else []
            l.append(f"buffer_load_dwordx4 {vr(KSL[g]+4*k,4)}, v{vKO}, {srd(K_)}, s{sKS} offen offset:{(k>>1)*512+(k&1)*128} nt")
            U.append((f"K{g}_{k}", l, 1, KPRE[g]))
    nearly = 8 - ncov
    order = [3, 0, 1, 2]
    for t in range(4):
        if t == 3:
            for j in order[:min(nearly, 3)]: wdunit(j, "V1m")
        for j in range(8):
            if t == 3 and j == 4 and nearly == 4: wdunit(2, "V2m")
            U.append((f"V{t}_{j}", [f"s_xor_b32 s{sKS}, s{sXV}, {t*(4<<20) + j*1024}",
                      f"buffer_load_dwordx4 {vr(vR+4*j,4)}, v{vVO}, {srd(V_)}, s{sKS} offen nt"], 1, f"K{2+(j>>2)}" if t == 0 else f"V{t-1}p{j>>1}"))
    for j in order[nearly:]: wdunit(j, "V2m")
    for j in range(4):
        l = []
        for e in range(2 * j, 2 * j + 2):
            l += [f"s_xor_b32 s{sT3}, s{sB}, {e*16384}", f"buffer_load_dwordx2 {vr(WOR+2*e,2)}, v{vWOO}, {srd(WO_)}, s{sT3} offen nt"]
        U.append((f"wo{j}", l, 2, "pre"))
    if merge:
        k0_ = [u[0] for u in U].index("wd3")
        w = U[k0_:k0_ + 4]
        U[k0_:k0_ + 4] = [("wd0", w[0][1] + w[1][1], 4, w[1][3]), ("wd2", w[2][1] + w[3][1], 4, w[3][3])]
    names = [u[0] for u in U]
    idx = {n: k for k, n in enumerate(names)}

    consumed = set()
    def task_g(m, j):
        W, acc = [(WQR, vS), (WGR, vS + 8), (WUR, vS + 16)][m]
        if m == 0 and j == 0 and rj:
            a("s_waitcnt lgkmcnt(0)")
            for jj in range(4):
                a(f"v_mov_b32 v{vA0}, s{32+2*jj}")
                a(f"v_perm_b32 v{vX+2*jj}, s{33+2*jj}, v{vA0}, v{vB2}")
                a(f"v_perm_b32 v{vX+2*jj+1}, s{33+2*jj}, v{vA0}, v{vB3}")
        elif m == 0 and j == 0:
            for h in range(2):
                a(f"v_and_b32 v{vX+4*h}, 0xffff, v{vXP+h}")
                a(f"v_lshlrev_b32 v{vX+4*h+1}, 16, v{vXP+h}")
                a(f"v_lshrrev_b32 v{vX+4*h+2}, 16, v{vXP+h}")
                a(f"v_and_b32 v{vX+4*h+3}, 0xffff0000, v{vXP+h}")
        if "g" in dg:
            if j == 3: consumed.add(["wq", "gate", "up"][m])
            return
        for w in range(4):
            a(f"v_dot2c_f32_bf16 v{acc+2*w}, v{W+4*j+w}, v{vX+2*j}")
            a(f"v_dot2c_f32_bf16 v{acc+2*w+1}, v{W+4*j+w}, v{vX+2*j+1}")
        if j == 3:
            consumed.add(["wq", "gate", "up"][m])
            for k in range(4): a(f"v_permlane32_swap_b32 v{acc+k}, v{acc+k+4}")
            for k in range(4): a(f"v_add_f32 v{acc+k}, v{acc+k}, v{acc+k+4}")
            for k in range(2): a(f"v_permlane16_swap_b32 v{acc+k}, v{acc+k+2}")
            for k in range(2): a(f"v_add_f32 v{acc+k}, v{acc+k}, v{acc+k+2}")
            a(f"ds_write_b64 v{vGA}, {vr(acc,2)} offset:{L_GP+4096*m}")
            if m != 1: arrive(C_Q if m == 0 else C_F)
            if m == 0: stamp(1)
    def wperm(dst, quads):
        for p in range(4):
            for d in range(2):
                a(f"v_perm_b32 v{dst+4*p+2*d}, v{quads[p]+2+d}, v{quads[p]+d}, s{sSELLO}")
                a(f"v_perm_b32 v{dst+4*p+2*d+1}, v{quads[p]+2+d}, v{quads[p]+d}, s{sSELHI}")
    def dot16(W, vO, acc):
        for p in range(4):
            for c in range(4): a(f"v_dot2c_f32_bf16_dpp v{acc+c}, v{vO}, v{W+4*p+c} row_newbcast:{p} {DPP}")
    def task_qwait():
        stamp(2)
        wait_cnt(C_QS, 1)
        a(f"""
        v_and_b32 v{vA0}, 7, v{vL}
        v_mul_u32_u24 v{vA0}, 272, v{vA0}
        v_bfe_u32 v{vA1}, v{vL}, 3, 1
        v_lshl_add_u32 v{vA0}, v{vA1}, 6, v{vA0}
        v_lshrrev_b32 v{vA1}, 4, v{vL}
        v_lshl_add_u32 v{vA0}, v{vA1}, 4, v{vA0}
        """)
        for s in range(2): a(f"ds_read_b128 {vr(vQ+4*s,4)}, v{vA0} offset:{L_QS+128*s}")
        if gt: a(f"ds_read_b32 v{vA1}, v{vE+6} offset:{L_G+12}")
        a("s_waitcnt lgkmcnt(0)")
        if gt:
            a(f"v_readfirstlane_b32 s{sM0}, v{vA1}")
            st["ca"] = CA2 if CA2 is not None else CA
        stamp(3)
    def task_k(g):
        base = KSL[g]; dx = vS + 4 * g; dy = vT
        for sp in range(2):
            a(f"v_mfma_f32_16x16x32_bf16 {vr(dx,4)}, {vr(base+4*sp,4)}, {vr(vQ+4*sp,4)}, {'0' if sp==0 else vr(dx,4)}")
            a(f"v_mfma_f32_16x16x32_bf16 {vr(dy,4)}, {vr(base+8+4*sp,4)}, {vr(vQ+4*sp,4)}, {'0' if sp==0 else vr(dy,4)}")
        for r in range(4): a(f"v_permlane32_swap_b32 v{dx+r}, v{dy+r}")
        for r in range(4): a(f"v_add_f32_dpp v{dx+r}, v{dy+r}, v{dx+r} row_ror:8 {DPP}")
        consumed.add(f"K{g}")
    vM = vE
    def sm_max():
        a(f"v_max3_f32 v{vM}, v{vS}, v{vS+1}, v{vS+2}")
        a(f"v_max3_f32 v{vA2}, v{vS+3}, v{vS+4}, v{vS+5}")
        for k in range(6, 30, 4):
            a(f"v_max3_f32 v{vM}, v{vM}, v{vS+k}, v{vS+k+1}")
            a(f"v_max3_f32 v{vA2}, v{vA2}, v{vS+k+2}, v{vS+k+3}")
        a(f"v_max3_f32 v{vM}, v{vM}, v{vS+30}, v{vS+31}")
        a(f"v_max_f32 v{vM}, v{vM}, v{vA2}")
        red_bits45("max", vM, vA2)
        a(f"v_mul_f32 v{vM}, s{sC}, v{vM}")
    def sm_exp(t):
        for k in range(8 * t, 8 * t + 8): a(f"v_fma_f32 v{vS+k}, v{vS+k}, s{sC}, -v{vM}")
        for k in range(8 * t, 8 * t + 8): a(f"v_exp_f32 v{vS+k}, v{vS+k}")
        for k in range(4 * t, 4 * t + 4): a(f"v_cvt_pk_bf16_f32 v{vP+k}, v{vS+2*k}, v{vS+2*k+1}")
        sum8(vS + 8 * t)
    def sm_fin():
        a(f"v_add_f32 v{vS}, v{vS}, v{vS+8}")
        a(f"v_add_f32 v{vS+16}, v{vS+16}, v{vS+24}")
        a(f"v_add_f32 v{vM+1}, v{vS}, v{vS+16}")
        red_bits45("add", vM + 1, vA2)
        a(f"""
        s_lshl_b32 s{sT0}, s{sWV}, 6
        v_lshl_add_u32 v{vA2}, v{vL}, 3, s{sT0}
        s_mov_b64 exec, 0xff
        ds_write_b64 v{vA2}, {vr(vM,2)} offset:{L_ST}
        s_mov_b64 exec, -1
        """)
        arrive(C_ST)
        stamp(4)
    def task_vperm(t, uu):
        for w in range(4):
            a(f"v_perm_b32 v{vS+4*(2*w)+uu}, v{vR+4*(2*uu+1)+w}, v{vR+4*(2*uu)+w}, s{sSELLO}")
            a(f"v_perm_b32 v{vS+4*(2*w+1)+uu}, v{vR+4*(2*uu+1)+w}, v{vR+4*(2*uu)+w}, s{sSELHI}")
        consumed.add(f"V{t}p{uu}")
        if uu == 3:
            for i in range(8):
                c = "0" if t == 0 else vr(vACC + 4 * i, 4)
                a(f"v_mfma_f32_16x16x32_bf16 {vr(vACC+4*i,4)}, {vr(vS+4*i,4)}, {vr(vP+4*t,4)}, {c}")
            consumed.add(f"V{t}m")
    aOW, aOR, aF, aH1, aR2W, aL8, aH2, aR1W = [vQ + k for k in range(8)]
    aR1R, aFP, aR3, vG, vHP = vKO, vWFO, vE + 4, vE + 2, vE + 5
    def task_pre1():
        a(f"""
        v_lshrrev_b32 v{vA1}, 4, v{vL}
        v_and_b32 v{vA2}, 7, v{vL}
        v_mul_u32_u24 v{vA0}, 528, v{vA2}
        v_lshl_add_u32 v{vA0}, v{vA1}, 4, v{vA0}
        s_mul_i32 s{sT0}, s{sWV}, 4224
        v_add_u32 v{aOW}, s{sT0}, v{vA0}
        s_mul_i32 s{sT0}, s{sWV}, 528
        v_lshl_add_u32 v{aOR}, v{vL}, 3, s{sT0}
        s_lshl_b32 s{sT0}, s{sWV}, 5
        v_mov_b32 v{aF}, s{sT0}
        v_lshrrev_b32 v{vA0}, 5, v{vL}
        v_lshlrev_b32 v{vA3}, 2, v{vA0}
        v_lshl_add_u32 v{vA3}, v{vA2}, 3, v{vA3}
        s_lshl_b32 s{sT0}, s{sWV}, 6
        v_add_u32 v{aR2W}, s{sT0}, v{vA3}
        v_lshlrev_b32 v{aL8}, 3, v{vL}
        v_and_b32 v{vA2}, 15, v{vL}
        s_and_b32 s{sT1}, s{sWV}, 3
        s_lshl_b32 s{sT0}, s{sT1}, 7
        v_lshl_add_u32 v{vA3}, v{vA2}, 3, s{sT0}
        v_lshl_add_u32 v{vWDO}, v{vA1}, 14, v{vA3}
        v_lshl_add_u32 v{vA3}, v{vA0}, 11, v{vA3}
        v_and_b32 v{vA0}, 1, v{vA1}
        v_lshl_add_u32 v{vWOO}, v{vA0}, 17, v{vA3}
        v_lshl_add_u32 v{vA0}, v{vA2}, 2, v{vA1}
        s_lshl_b32 s{sT0}, s{sT1}, 9
        v_lshl_add_u32 v{aFP}, v{vA0}, 3, s{sT0}
        s_lshl_b32 s{sT0}, s{sWV}, 8
        v_lshl_add_u32 v{aR1W}, v{vA0}, 2, s{sT0}
        s_lshl_b32 s{sT0}, s{sT1}, 8
        v_lshl_add_u32 v{aR3}, v{vL}, 2, s{sT0}
        v_lshrrev_b32 v{vA0}, 8, v{vT16}
        v_lshlrev_b32 v{vA0}, 12, v{vA0}
        v_and_b32 v{vA2}, 0xf0, v{vT16}
        v_add_u32 v{aH1}, v{vA0}, v{vA2}
        v_lshrrev_b32 v{vA0}, 7, v{vT16}
        v_lshlrev_b32 v{vA0}, 11, v{vA0}
        v_and_b32 v{vA2}, 0x70, v{vT16}
        v_add_u32 v{aH2}, v{vA0}, v{vA2}
        v_lshrrev_b32 v{vT16}, 1, v{vT16}
        """)
    def task_pre2():
        wait_cnt(C_H, 1)
        a(f"""
        v_and_b32 v{vA3}, 3, v{vL}
        s_and_b32 s{sT1}, s{sWV}, {ex}
        v_xor_b32 v{vA3}, s{sT1}, v{vA3}
        v_lshrrev_b32 v{vA2}, 4, v{vL}
        v_lshl_add_u32 v{vA2}, v{vA2}, 2, v{vA3}
        s_lshr_b32 s{sT2}, s{sWV}, 2
        s_lshl_b32 s{sT0}, s{sT2}, 4
        v_add_u32 v{vA2}, s{sT0}, v{vA2}
        v_bfe_u32 v{vA3}, v{vL}, 2, 2
        v_lshlrev_b32 v{vA3}, 9, v{vA3}
        v_lshl_add_u32 v{aR1R}, v{vA2}, 3, v{vA3}
        v_lshlrev_b32 v{vA2}, 2, v{vA2}
        ds_read_b32 v{vHP}, v{vA2} offset:{L_H}
        ds_read_b64 {vr(vG,2)}, v{vE+6} offset:{L_G}
        ds_read_b32 v{vTAG}, v{vE+6} offset:{L_G+8}
        s_lshl_b32 s{sWD}, s{sLC}, 17
        s_lshl_b32 s{sT0}, s{sT2}, 16
        s_add_u32 s{sWD}, s{sWD}, s{sT0}
        s_lshl_b32 s{sT0}, s{sT1}, 12
        s_add_u32 s{sWD}, s{sWD}, s{sT0}
        s_lshl_b32 s{sT0}, s{sRB}, 9
        s_add_u32 s{sWD}, s{sWD}, s{sT0}
        s_lshl_b32 s{sB}, s{sT1}, 15
        s_add_u32 s{sB}, s{sB}, s{sT0}
        s_lshl_b32 s{sT0}, s{sT2}, 12
        s_add_u32 s{sB}, s{sB}, s{sT0}
        s_lshr_b32 s{sT1}, s{sR8}, 2
        s_lshl_b32 s{sT0}, s{sT1}, 13
        s_add_u32 s{sB}, s{sB}, s{sT0}
        s_and_b32 s{sT2}, s2, 7
        s_lshl_b32 s{sT0}, s{sG}, 3
        s_add_u32 s{sT0}, s{sT0}, s{sT2}
        s_lshl_b32 s{sT0}, s{sT0}, 18
        s_add_u32 s{sB}, s{sB}, s{sT0}
        s_lshl_b32 s{sH1}, s{sG}, 18
        s_lshl_b32 s{sT0}, s{sT2}, 9
        s_add_u32 s{sH1}, s{sH1}, s{sT0}
        s_lshl_b32 s{sT0}, s{sT1}, 8
        s_add_u32 s{sH1}, s{sH1}, s{sT0}
        s_add_u32 s{sH1}, s{sH1}, {WS_OP}
        s_add_u32 s{sH1b}, s{sH1}, {32*4096}
        s_lshl_b32 s{sPA}, s2, 12
        s_add_u32 s{sPA}, s{sPA}, {WS_OP}
        s_lshl_b32 s{sPB}, s{sRB}, 6
        s_add_u32 s{sPB}, s{sPB}, s{sPL}
        s_lshl_b32 s{sPB}, s{sPB}, 11
        s_add_u32 s{sPB}, s{sPB}, {WS_FP}
        s_lshl_b32 s{sI}, s{sT2}, 3
        s_or_b32 s{sI}, s{sI}, s{sR8}
        s_mov_b32 s{sI}, s{sI if fx else 2}
        s_lshr_b32 s{sA}, s{sI}, 4
        s_lshl_b32 s{sA}, s{sA}, 17
        s_and_b32 s{sT0}, s{sI}, 15
        s_lshl_b32 s{sT0}, s{sT0}, 7
        s_add_u32 s{sA}, s{sA}, s{sT0}
        s_add_u32 s{sA}, s{sA}, {WS_FP}
        s_waitcnt lgkmcnt(0)
        v_mov_b32 v{vB1}, v{vTAG}
        v_mov_b32 v{vE+1}, v{vTAG}
        """)
        for k in range(4): a(f"v_mov_b32 v{vBP+k}, 0")
        if po:
            a(f"""
            s_cmp_ge_u32 s2, 64
            s_cbranch_scc1 L_npo
            s_cmp_lg_u32 s{sWV}, 0
            s_cbranch_scc1 L_npo
            s_lshl_b32 s{sT0}, s{sI}, 5
            buffer_load_dword v{vE}, off, {srd(OUT_)}, s{sT0}
            L_npo:
            """)
        consumed.add("pre")
    vH1 = R1; vF = R1 + 8
    h1 = [f"buffer_load_dwordx4 {vr(vH1+4*k,4)}, v{aH1}, {srd(WS_)}, s{sH1+k} offen sc1" for k in range(2)]
    if xp & 4: h1 = []

    C = []
    for m, nm in enumerate(("wq", "gate", "up")):
        if m == 0 and xl: C.append((3, lambda: [task_g(0, j) for j in range(4)]))
        else:
            for j in range(4): C.append((idx[f"{nm}{j}"], lambda m=m, j=j: task_g(m, j)))
    C.append((p1_at, lambda: arrive(C_P1)))
    C.append((p2_at, lambda: arrive(C_P2)))
    C.append((q_at, task_qwait))
    for g in range(8): C.append((max(q_at, idx[f"K{g}_3"]), lambda g=g: task_k(g)))
    kend = idx["K7_3"]
    C.append((kend, sm_max))
    for t in range(4): C.append((kend, lambda t=t: sm_exp(t)))
    C.append((kend, sm_fin))
    for t in range(4):
        for uu in range(4): C.append((idx[f"V{t}_{2*uu+1}"], lambda t=t, uu=uu: task_vperm(t, uu)))
    C.append((idx["V1_2"], task_pre1)); C.append((idx["V1_4"], task_pre2))
    C.sort(key=lambda c: c[0])
    n = len(U); stop_at = idx["V3_7"]
    st = {"issued": 4, "c": 0, "ca": CA}
    def run_chunk():
        C[st["c"]][1](); st["c"] += 1
    def issue_upto(lim, arrived, throttle=True):
        while st["issued"] < min(n, lim):
            k = st["issued"]
            nm, lines, nv, pre = U[k]
            if throttle and k - WIN >= stop_at: return
            while pre is not None and pre not in consumed:
                assert C[st["c"]][0] <= arrived, ("issue blocked", nm, names[arrived])
                run_chunk()
            if throttle and k >= dyn0 and lv:
                lk = a.label("Li")
                wlo = WLO
                if tw and idx["V0_0"] + t0 <= k <= idx["V0_0"] + t1: wlo = tw
                if qw and q_at + WMAX - 1 <= k <= q_at + WMAX + 3: wlo = qw
                for w in range(WMAX - 1, wlo - 1, -1):
                    if w < WIN and k - w >= stop_at: break
                    a(f"s_cmp_gt_i32 s{sBOOST}, {w}")
                    a(f"s_cbranch_scc1 {lk}")
                    a(f"s_waitcnt vmcnt({sum(u[2] for u in U[k-w+1:k])})")
                a(f"{lk}:")
            elif throttle and k >= dyn0:
                lk = a.label("Li")
                a(f"s_cmp_gt_u32 s{sBOOST}, {k}")
                a(f"s_cbranch_scc1 {lk}")
                a(f"s_waitcnt vmcnt({sum(u[2] for u in U[k-WIN+1:k])})")
                a(f"{lk}:")
            for x in lines: a(x)
            st["issued"] += 1
    issue_upto(W0, -1)
    for arrived in range(stop_at + 1):
        assert st["issued"] > arrived
        a(f"s_waitcnt vmcnt({sum(u[2] for u in U[arrived + 1:st['issued']])})")
        if arrived == probe: a("s_memrealtime s[100:101]")
        if arrived % 8 == 7: stamp(arrived // 8 + 1, "u")
        if arrived % 6 == 5 and arrived < 60: stamp(arrived // 6 + 1, "s")
        if arrived >= k0 and arrived < stop_at - 3:
            if (arrived - k0) % CK == 0: a(f"s_memrealtime s[{sCK}:{sCK+1}]")
            if (arrived - k0) % CK == 1:
                kk = st["issued"] - WIN - 1
                if lv:
                    a(f"""
                    s_waitcnt lgkmcnt(0)
                    s_sub_u32 s{sCK}, s{sCK}, s{sM0}
                    s_sub_i32 s{sCK}, s{sCK}, {st["ca"] + CB * kk // 10}
                    s_ashr_i32 s{sCK}, s{sCK}, {lv}
                    s_add_i32 s{sBOOST}, s{sCK}, {WIN + 1}
                    """)
                else: a(f"""
                s_waitcnt lgkmcnt(0)
                s_sub_u32 s{sCK}, s{sCK}, s{sM0}
                s_sub_i32 s{sCK}, s{sCK}, {st["ca"] + CB * kk // 10}
                s_ashr_i32 s{sCK}, s{sCK}, {gsh}
                s_add_i32 s{sBOOST}, s{sCK}, {st["issued"]}
                s_max_i32 s{sBOOST}, s{sBOOST}, 0
                """)
        if arrived < stop_at: issue_upto(arrived + 1 + (W1 if arrived < dyn0 - W1 else WMAX), arrived)
        ran = 0
        while st["c"] < len(C) and C[st["c"]][0] <= arrived and (ran < 2 or arrived >= stop_at - 1):
            run_chunk(); ran += 1
    assert st["c"] == len(C)

    stamp(5)
    if not cpos: issue_upto(st["issued"] + ca, n, False)
    a("s_mov_b32 exec_lo, 0x00ff00ff")
    a("s_mov_b32 exec_hi, 0x00ff00ff")
    for i in range(8): a(f"ds_write_b128 v{aOW}, {vr(vACC+4*i,4)} offset:{L_ORED+64*i}")
    a("s_mov_b64 exec, -1")
    if cpos: issue_upto(st["issued"] + ca, n, False)
    a(f"""
    s_waitcnt lgkmcnt(0)
    s_barrier
    ds_read_b128 {vr(vF,4)}, v{aF} offset:{L_F}
    ds_read_b128 {vr(vF+4,4)}, v{aF} offset:{L_F+16}
    """)
    for w in range(8): a(f"ds_read_b64 {vr(vS+2*w,2)}, v{aOR} offset:{L_ORED+4224*w}")
    a("s_waitcnt lgkmcnt(7)")
    a(f"v_mul_f32 v{vB0}, v{vS}, v{vF}")
    a(f"v_mul_f32 v{vB2}, v{vS+1}, v{vF}")
    for w in range(1, 8):
        a(f"s_waitcnt lgkmcnt({7-w})")
        a(f"v_fmac_f32 v{vB0}, v{vS+2*w}, v{vF+w}")
        a(f"v_fmac_f32 v{vB2}, v{vS+2*w+1}, v{vF+w}")
    a(f"v_cvt_pk_bf16_f32 v{vB0}, v{vB0}, v{vB2}")
    a(f"buffer_store_dwordx2 {vr(vB0,2)}, v{vT16}, {srd(WS_)}, s{sPA} offen" + ("" if xp & 1 else " sc1"))
    stamp(6)
    k_s = st["issued"]
    issue_upto(st["issued"] + cb, n, False)
    if notail: a("s_branch L_fin")
    def outstanding_after(k): return sum(u[2] for u in U[k:st["issued"]])
    wait_to = min(st["issued"], k_s + h1d)
    a(f"s_waitcnt vmcnt({outstanding_after(wait_to)})")
    if hs: a(f"s_sleep {hs}")
    if h1first:
        for l in h1: a(l)
    k_h = st["issued"]
    issue_upto(n, n, False)
    if not h1first:
        for l in h1: a(l)
    nh = len(h1)
    lastwd = max(idx.get(f"wd{j}", 0) for j in range(4))
    w = outstanding_after(lastwd + 1) + (nh if (not h1first or lastwd + 1 <= k_h) else 0)
    a(f"s_waitcnt vmcnt({w})")
    wperm(vS + 16, WDQ)
    dot16(vS + 16, vHP, vBP)
    for k in range(4): a(f"v_mov_b32 v{vS+8+k}, 0")
    for k in range(4): a(f"v_mul_f32 v{vBP+k}, v{vBP+k}, v{vG+1}")
    a(f"s_waitcnt vmcnt({0 if h1first else nh})")
    wperm(PW, [WOR + 4 * p for p in range(4)])
    a("s_waitcnt vmcnt(0)")
    stamp(7)
    if not xp: poll(h1, [vH1 + 1, vH1 + 3, vH1 + 5, vH1 + 7], vA0, sleep1, first_issued=True)
    stamp(8)
    for r in (0, 2, 4, 6):
        a(f"v_and_b32 v{vH1+r+1}, 0xffff0000, v{vH1+r}")
        a(f"v_lshlrev_b32 v{vH1+r}, 16, v{vH1+r}")
    for r in range(4): a(f"v_add_f32 v{vH1+r}, v{vH1+r}, v{vH1+r+4}")
    tred4(vH1, vH1)
    a(f"""
    ds_write_b32 v{aR1W}, v{vH1} offset:{L_RED1}
    s_waitcnt lgkmcnt(0)
    s_barrier
    ds_read_b64 {vr(vS,2)}, v{aR1R} offset:{L_RED1}
    ds_read_b64 {vr(vS+2,2)}, v{aR1R} offset:{L_RED1+256}
    s_waitcnt lgkmcnt(0)
    v_add_f32 v{vS}, v{vS}, v{vS+2}
    v_add_f32 v{vS+1}, v{vS+1}, v{vS+3}
    v_add_f32_dpp v{vS}, v{vS}, v{vS} row_ror:4 {DPP}
    v_add_f32_dpp v{vS+1}, v{vS+1}, v{vS+1} row_ror:4 {DPP}
    v_add_f32_dpp v{vS}, v{vS}, v{vS} row_ror:8 {DPP}
    v_add_f32_dpp v{vS+1}, v{vS+1}, v{vS+1} row_ror:8 {DPP}
    v_cvt_pk_bf16_f32 v{vA0}, v{vS}, v{vS+1}
    """)
    dot16(PW, vA0, vS + 8)
    for k in range(4): a(f"v_fmac_f32 v{vBP+k}, v{vS+8+k}, v{vG}")
    tred4(vBP, vE)
    a(f"""
    s_cmp_lt_u32 s{sWV}, 4
    s_cbranch_scc1 L_lo
    ds_write_b32 v{aR3}, v{vE} offset:{L_RED3}
    s_waitcnt lgkmcnt(0)
    s_barrier
    s_branch L_st
    L_lo:
    s_barrier
    ds_read_b32 v{vA0}, v{aR3} offset:{L_RED3}
    s_waitcnt lgkmcnt(0)
    v_add_f32 v{vE}, v{vE}, v{vA0}
    buffer_store_dwordx2 {vr(vE,2)}, v{aFP}, {srd(WS_)}, s{sPB} offen sc1
    L_st:
    """)
    stamp(9)
    a("s_cmp_ge_u32 s2, 64")
    a("s_cbranch_scc1 L_fin")
    if ack2: a("s_waitcnt vmcnt(0)")
    poll([f"buffer_load_dwordx4 {vr(vS,4)}, v{aH2}, {srd(WS_)}, s{sA} offen sc1"], [vS + 1, vS + 3], vA0, sleep1)
    stamp(10)
    a(f"""
    v_permlane32_swap_b32 v{vS}, v{vS+2}
    v_add_f32 v{vS}, v{vS}, v{vS+2}
    v_add_f32_dpp v{vS}, v{vS}, v{vS} row_ror:8 {DPP}
    v_mov_b32 v{vA1}, v{vS}
    v_permlane16_swap_b32 v{vS}, v{vA1}
    v_add_f32 v{vS}, v{vS}, v{vA1}
    ds_write_b32 v{aR2W}, v{vS} offset:{L_RED2}
    s_waitcnt lgkmcnt(0)
    s_barrier
    s_cmp_lg_u32 s{sWV}, 0
    s_cbranch_scc1 L_fin
    ds_read_b64 {vr(vS,2)}, v{aL8} offset:{L_RED2}
    v_lshlrev_b32 v{vA2}, 2, v{vL}
    s_lshl_b32 s{sT0}, s{sI}, 5
    s_waitcnt lgkmcnt(0)
    """)
    red2_bits345(vS, vS + 1, vA0, vA1)
    a(f"""
    v_cvt_pk_bf16_f32 v{vA0}, v{vS}, v{vS+1}
    s_mov_b64 exec, 0xff
    buffer_store_dword v{vA0}, v{vA2}, {srd(OUT_)}, s{sT0} offen {outf.replace('+',' ')}
    s_cmp_lg_u32 s2, 0
    s_cbranch_scc1 L_fin
    s_mov_b64 exec, 1
    buffer_store_dword v{vTAG}, off, {srd(WS_)}, 0 {'' if ep else 'sc1'}
    L_fin:
    """)
    if probe >= 0:
        a(f"""
        s_cmp_lg_u32 s2, {pwg}
        s_cbranch_scc1 L_end
        s_cmp_lg_u32 s{sWV}, 4
        s_cbranch_scc1 L_end
        s_waitcnt lgkmcnt(0)
        s_sub_u32 s6, s100, s{sM0}
        s_lshl_b32 s6, s6, 2
        s_add_u32 s6, s6, 3000
        L_px:
        s_memrealtime s[4:5]
        s_waitcnt lgkmcnt(0)
        s_sub_u32 s4, s4, s{sM0}
        s_cmp_ge_u32 s4, s6
        s_cbranch_scc1 L_end
        s_sleep 1
        s_branch L_px
        """)
    if fix:
        a(f"""
        L_fx:
        s_memrealtime s[4:5]
        s_waitcnt lgkmcnt(0)
        s_sub_u32 s4, s4, s{sM0}
        s_cmp_ge_u32 s4, {fix}
        s_cbranch_scc1 L_fxd
        s_sleep 1
        s_branch L_fx
        L_fxd:
        """)
    if stamps:
        a("s_mov_b64 exec, -1")
        a("s_waitcnt vmcnt(0)")
        a(f"s_memrealtime s[{sST+22}:{sST+23}]")
        a(f"s_mul_i32 s{sT0}, s2, 9")
        a(f"s_add_u32 s{sT0}, s{sT0}, s{sWV}")
        a(f"s_mul_i32 s{sT0}, s{sT0}, {NS*8}")
        a(f"s_add_u32 s{sT0}, s{sT0}, {STAMP_OFF}")
        a("s_waitcnt lgkmcnt(0)")
        a("s_mov_b64 exec, 1")
        for j in range(NS):
            a(f"v_mov_b32 v{vA0}, s{sST+2*j}")
            a(f"v_mov_b32 v{vA1}, s{sST+2*j+1}")
            a(f"buffer_store_dwordx2 {vr(vA0,2)}, off, {srd(WS_)}, s{sT0} offset:{8*j}")
    a("L_end:")
    a("s_endpgm")

    cX = vACC; cG = vACC + 8
    cL4, cL8, cPA, cPF, cQW, cGP = vWDO, vQ, vQ + 1, vQ + 2, vQ + 3, vQ + 4
    a(f"""
    L_comm:
    """)
    if fast: a(late_s)
    a(f"""
    s_setprio 3
    s_mov_b32 s{sWB}, 0
    v_mov_b32 v{vA0}, 0
    v_lshlrev_b32 v{cL4}, 2, v{vL}
    s_mov_b64 exec, 0xffff
    ds_write_b32 v{cL4}, v{vA0}
    s_mov_b64 exec, -1
    s_mov_b32 s{GW_+2}, 2048
    s_mov_b32 s{GW_+3}, 0x20000
    s_waitcnt lgkmcnt(0)
    s_barrier
    s_mov_b64 s[{X_}:{X_+1}], s[76:77]
    s_mov_b64 s[{GW_}:{GW_+1}], s[94:95]
    """)
    if not ev: a(f"s_load_dword s{sC}, s[{WS_}:{WS_+1}], 0")
    roles()
    def touch_kv(ptr, tiles):
        for n_, t in enumerate(tiles):
            a(f"s_xor_b32 s25, s24, {t*(4<<20)}")
            a(f"s_load_dword s{26+n_}, s[{ptr}:{ptr+1}], s25")
    if touch:
        assert ix == 0
        a(f"""
        s_mov_b64 s[4:5], s[78:79]
        s_mov_b64 s[6:7], s[80:81]
        s_mov_b64 s[8:9], s[84:85]
        s_mov_b64 s[10:11], s[92:93]
        s_mul_i32 s24, s{sG}, {(1<<24) + (gx<<22)}
        s_lshl_b32 s25, s{sI}, 16
        s_add_u32 s24, s24, s25
        """)
        if touch & 1:
            a(f"""
            s_mul_i32 s25, s{sR8}, {128*7168}
            s_load_dword s20, s[88:89], s25
            s_load_dword s21, s[90:91], s25
            s_add_u32 s25, s25, {127*7168}
            s_load_dword s22, s[88:89], s25
            s_load_dword s23, s[90:91], s25
            """)
            touch_kv(4, [0])
    def preread():
        if not prer: return
        a(f"""
        v_lshlrev_b32 v{vA2}, 7, v{vL}
        s_lshl_b32 s{sT1}, s2, 12
        s_add_u32 s{sT1}, s{sT1}, {WS_OP}
        s_lshl_b32 s{sT3}, s{sRB}, 6
        s_add_u32 s{sT3}, s{sT3}, s{sPL}
        s_lshl_b32 s{sT3}, s{sT3}, 11
        s_add_u32 s{sT3}, s{sT3}, {WS_FP}
        s_mov_b32 exec_hi, 0
        """)
        if prer & 1: a(f"buffer_load_dword v{vR}, v{vA2}, {srd(WS_)}, s{sT1} offen")
        a("s_mov_b32 exec_lo, 0xffff")
        if prer & 2: a(f"buffer_load_dword v{vR+2}, v{vA2}, {srd(WS_)}, s{sT3} offen")
        a("s_mov_b64 exec, -1")
    if ev: a(f"buffer_load_dword v{vTAG}, off, {srd(WS_)}, 0 sc1")
    if prs == 1: preread()
    a(f"""
    v_lshlrev_b32 v{cL8}, 3, v{vL}
    v_lshrrev_b32 v{vA0}, 3, v{vL}
    v_and_b32 v{vA1}, 7, v{vL}
    v_lshlrev_b32 v{cPA}, 10, v{vA0}
    v_lshl_add_u32 v{cPA}, v{vA1}, 4, v{cPA}
    v_lshrrev_b32 v{vA0}, 5, v{vL}
    v_and_b32 v{vA1}, 31, v{vL}
    v_lshlrev_b32 v{cPF}, 10, v{vA0}
    v_lshl_add_u32 v{cPF}, v{vA1}, 4, v{cPF}
    v_mul_u32_u24 v{vA0}, 272, v{vA0}
    v_lshl_add_u32 v{cQW}, v{vA1}, 3, v{vA0}
    v_add_u32 v{cGP}, {L_GP}, v{cL8}
    s_lshl_b32 s{sT1}, s{sCB}, 13
    s_add_u32 s{sT1}, s{sT1}, {WS_QP}
    s_lshl_b32 s{sT2}, s{sR8}, 10
    s_add_u32 s{sA}, s{sT1}, s{sT2}
    s_lshl_b32 s{sT2}, s{sR8}, 7
    s_add_u32 s{sPA}, s{sT1}, s{sT2}
    s_lshl_b32 s{sT1}, s{sCB}, {9+gt}
    s_lshl_b32 s{sT2}, s{sR8}, {6+gt}
    s_add_u32 s{sB}, s{sT1}, s{sT2}
    s_add_u32 s{sB}, s{sB}, {WS_QG}
    s_lshl_b32 s{sPB}, s{sG}, {12+gt}
    s_add_u32 s{sPB}, s{sPB}, {WS_QG}
    """)
    if ev:
        a(f"s_waitcnt vmcnt({bin(prer).count('1') if prs == 1 else 0})")
        a(f"v_add_u32 v{vTAG}, 1, v{vTAG}")
    else:
        a("s_waitcnt lgkmcnt(0)")
        a(f"s_add_u32 s{sC}, s{sC}, 1")
        a(f"v_mov_b32 v{vTAG}, s{sC}")
    init_stamps()
    if "x" in dg:
        arrive(C_QS); arrive(C_H); a("s_waitcnt vmcnt(0) lgkmcnt(0)"); a("s_branch L_fin")
    def gp_publish(m, base, so, off):
        for k in range(4): a(f"ds_read2st64_b64 {vr(base+4*k,4)}, v{cGP} offset0:{8*m+2*k} offset1:{8*m+2*k+1}")
        a("s_waitcnt lgkmcnt(0)")
        for step in (2, 4, 8):
            for k in range(0, 16, 2 * step):
                a(f"v_add_f32 v{base+k}, v{base+k}, v{base+k+step}")
                a(f"v_add_f32 v{base+k+1}, v{base+k+1}, v{base+k+step+1}")
        a(f"v_mov_b32 v{base+2}, v{base+1}")
        a(f"v_mov_b32 v{base+1}, v{vTAG}")
        a(f"v_mov_b32 v{base+3}, v{vTAG}")
        a(f"buffer_store_dwordx4 {vr(base,4)}, v{vVO}, {srd(WS_)}, s{so} offen offset:{off}" + ("" if loc else " sc1"))
    wait_cnt(C_Q, 8, csleep)
    gp_publish(0, vT, sA, 0)
    stamp(1)
    if ackA: a("s_waitcnt vmcnt(0)")
    poll([f"buffer_load_dwordx4 {vr(vE,4)}, v{cPA}, {srd(WS_)}, s{sPA} offen sc1"], [vE + 1, vE + 3], vA0, asleep, wb=True)
    red2_bits345(vE, vE + 2, vA0, vA1)
    a(f"""
    v_cvt_pk_bf16_f32 v{vE}, v{vE}, v{vE+2}
    s_mov_b64 exec, 0xff00
    v_mov_b32 v{vE}, s{sM0}
    s_mov_b64 exec, {0xffff if gt else 0xff}
    buffer_store_dwordx2 {vr(vE,2)}, v{cL8}, {srd(WS_)}, s{sB} offen sc1
    s_mov_b64 exec, -1
    """)
    stamp(2)
    a(f"""
    buffer_load_dwordx4 {vr(cX,4)}, v{vVO}, {srd(X_)}, 0 offen
    buffer_load_dwordx4 {vr(cX+4,4)}, v{vVO}, {srd(X_)}, 0 offen offset:1024
    buffer_load_dwordx4 {vr(cG,4)}, v{vVO}, {srd(GW_)}, 0 offen
    buffer_load_dwordx4 {vr(cG+4,4)}, v{vVO}, {srd(GW_)}, 0 offen offset:1024
    s_lshl_b32 s{sKV}, s{sCB}, 14
    s_add_u32 s{sKV}, s{sKV}, {WS_FG}
    s_lshl_b32 s{sT2}, s{sR8}, 11
    s_add_u32 s{sA}, s{sKV}, s{sT2}
    s_and_b32 s{sT2}, s{sLC}, 1
    s_lshl_b32 s{sT2}, s{sT2}, 9
    s_add_u32 s{sKV}, s{sKV}, s{sT2}
    """)
    if touch & 2: touch_kv(4, [1, 2])
    wait_cnt(C_F, 8, csleep)
    gp_publish(1, vT, sA, 0)
    gp_publish(2, vP, sA, 1024)
    if loc: a(f"""
    s_cmp_eq_u32 s{sWB}, 0
    s_cbranch_scc1 L_nwb
    s_waitcnt vmcnt(0)
    buffer_wbl2 sc1
    s_waitcnt vmcnt(0)
    L_nwb:
    """)
    a(f"""
    s_waitcnt vmcnt(2)
    v_mov_b32 v{vB0}, 0
    """)
    for k in range(8):
        a(f"""
        v_lshlrev_b32 v{vA0}, 16, v{cX+k}
        v_and_b32 v{vA1}, 0xffff0000, v{cX+k}
        v_lshlrev_b32 v{vA2}, 16, v{cG+k}
        v_and_b32 v{vA3}, 0xffff0000, v{cG+k}
        v_mul_f32 v{vA0}, v{vA0}, v{vA2}
        v_mul_f32 v{vA1}, v{vA1}, v{vA3}
        v_cvt_pk_bf16_f32 v{vA0}, v{vA0}, v{vA1}
        v_lshlrev_b32 v{vA1}, 16, v{vA0}
        v_and_b32 v{vA0}, 0xffff0000, v{vA0}
        v_add_f32 v{vB0}, v{vB0}, v{vA0}
        v_add_f32 v{vB0}, v{vB0}, v{vA1}
        """)
    for nn_ in (1, 2, 4): a(f"v_add_f32_dpp v{vB0}, v{vB0}, v{vB0} row_ror:{nn_} {DPP}")
    red_bits345("add", vB0, vA3)
    a(f"""
    v_cvt_pk_bf16_f32 v{vA0}, v{vB0}, v{vB0}
    v_and_b32 v{vA0}, 0xffff0000, v{vA0}
    v_mul_f32 v{vA0}, {hex(f2u(-math.log2(math.e)))}, v{vA0}
    v_exp_f32 v{vA0}, v{vA0}
    v_add_f32 v{vA0}, 1.0, v{vA0}
    v_rcp_f32 v{vA0}, v{vA0}
    v_cvt_pk_bf16_f32 v{vA0}, v{vA0}, v{vA0}
    v_and_b32 v{vA0}, 0xffff0000, v{vA0}
    v_sub_f32 v{vA1}, 1.0, v{vA0}
    v_cvt_pk_bf16_f32 v{vA1}, v{vA1}, v{vA1}
    v_and_b32 v{vA1}, 0xffff0000, v{vA1}
    v_mov_b32 v{vA2}, 0
    s_mov_b64 exec, 1
    ds_write_b64 v{vA2}, {vr(vA0,2)} offset:{L_G}
    ds_write_b32 v{vA2}, v{vTAG} offset:{L_G+8}
    s_mov_b64 exec, -1
    """)
    wait_cnt(C_P1, cpn, 4)
    ql = [f"buffer_load_dwordx4 {vr(vS+4*k,4)}, v{vVO}, {srd(WS_)}, s{sPB} offen offset:{1024*k} sc1" for k in range(4)]
    if gt:
        a(f"""
        v_lshrrev_b32 v{vQ+5}, 2, v{vL}
        v_lshlrev_b32 v{vQ+5}, 6, v{vQ+5}
        v_add_u32 v{vQ+5}, v{vQ+5}, v{vVO}
        v_lshlrev_b32 v{vQ+6}, 7, v{vL}
        s_add_u32 s{sT1}, s{sPB}, 4096
        """)
        ql = [f"buffer_load_dwordx4 {vr(vS+4*k,4)}, v{vQ+5}, {srd(WS_)}, s{sPB if k < 2 else sT1} offen offset:{2048*(k%2)} sc1" for k in range(4)]
        ql.append(f"buffer_load_dwordx2 {vr(vS+16,2)}, v{vQ+6}, {srd(WS_)}, s{sPB} offen offset:64 sc1")
    poll(ql, [vS + 2 * k + 1 for k in range(8 + gt)], vA2, rsleep, wb=True)
    if gt:
        a(f"v_subrev_u32 v{vS+16}, s{sM0}, v{vS+16}")
        a(f"v_cvt_f32_i32 v{vS+16}, v{vS+16}")
        for nn_ in (1, 2, 4): a(f"v_min_f32_dpp v{vS+16}, v{vS+16}, v{vS+16} row_ror:{nn_} {DPP}")
        red_bits345("min", vS + 16, vA3)
        a(f"""
        v_cvt_i32_f32 v{vS+16}, v{vS+16}
        v_add_u32 v{vS+16}, s{sM0}, v{vS+16}
        v_mov_b32 v{vA2}, 0
        s_mov_b64 exec, 1
        ds_write_b32 v{vA2}, v{vS+16} offset:{L_G+12}
        s_mov_b64 exec, -1
        """)
    for k in range(4): a(f"v_mov_b32 v{vS+4*k+1}, v{vS+4*k+2}")
    for k in range(4): a(f"ds_write_b64 v{cQW}, {vr(vS+4*k,2)} offset:{L_QS+544*k}")
    arrive(C_QS)
    stamp(3)
    for k in range(1, 4): a(f"s_add_u32 s{sT0+k}, s{sKV}, {4096*k}")
    fl = [f"buffer_load_dwordx4 {vr(vS+4*k,4)}, v{cPF}, {srd(WS_)}, s{sKV if k < 2 else sT0+k//2} offen offset:{2048*(k%2)} sc1" for k in range(8)]
    poll(fl, [vS + 2 * k + 1 for k in range(16)], vA2, rsleep, wb=True)
    for step in (4, 8, 16):
        for k in range(0, 32, 2 * step):
            a(f"v_add_f32 v{vS+k}, v{vS+k}, v{vS+k+step}")
            a(f"v_add_f32 v{vS+k+2}, v{vS+k+2}, v{vS+k+step+2}")
    a(f"""
    v_cvt_pk_bf16_f32 v{vA0}, v{vS}, v{vS+2}
    v_mov_b32 v{vA1}, v{vA0}
    v_permlane32_swap_b32 v{vA0}, v{vA1}
    v_lshlrev_b32 v{vA2}, 16, v{vA0}
    v_and_b32 v{vA0}, 0xffff0000, v{vA0}
    v_lshlrev_b32 v{vA3}, 16, v{vA1}
    v_and_b32 v{vA1}, 0xffff0000, v{vA1}
    v_max_f32 v{vA2}, 0, v{vA2}
    v_max_f32 v{vA0}, 0, v{vA0}
    v_mul_f32 v{vA2}, v{vA2}, v{vA3}
    v_mul_f32 v{vA0}, v{vA0}, v{vA1}
    v_cvt_pk_bf16_f32 v{vA0}, v{vA2}, v{vA0}
    s_mov_b32 exec_hi, 0
    ds_write_b32 v{cL4}, v{vA0} offset:{L_H}
    s_mov_b64 exec, -1
    """)
    arrive(C_H)
    stamp(4)
    if prs == 0: preread()
    a(f"""
    s_lshl_b32 s{sA}, s2, 6
    s_add_u32 s{sA}, s{sA}, {WS_ML}
    s_lshl_b32 s{sPA}, s{sG}, 12
    s_add_u32 s{sPA}, s{sPA}, {WS_ML}
    """)
    if touch & 2:
        touch_kv(4, [3]); a("s_waitcnt lgkmcnt(0)"); touch_kv(6, [0, 1])
    wait_cnt(C_ST, 8, 4)
    a(f"ds_read_b64 {vr(vT,2)}, v{cL8} offset:{L_ST}")
    a("s_waitcnt lgkmcnt(0)")
    a(f"v_mov_b32 v{vB0}, v{vT}")
    red_bits345("max", vB0, vA3)
    a(f"v_sub_f32 v{vA3}, v{vT}, v{vB0}")
    a(f"v_exp_f32 v{vA3}, v{vA3}")
    a(f"v_mul_f32 v{vT+1}, v{vT+1}, v{vA3}")
    red_bits345("add", vT + 1, vA3)
    a(f"""
    v_log_f32 v{vB1}, v{vT+1}
    v_add_f32 v{vB0}, v{vB0}, v{vB1}
    v_mov_b32 v{vB1}, v{vTAG}
    s_mov_b64 exec, 0xff
    buffer_store_dwordx2 {vr(vB0,2)}, v{cL8}, {srd(WS_)}, s{sA} offen sc1
    s_mov_b64 exec, -1
    """)
    stamp(5)
    if prs == 2: preread()
    if midwb:
        a(f"s_cmp_ge_u32 s2, {midwb}")
        a("s_cbranch_scc1 L_nmw")
        a("buffer_wbl2 sc1")
        a("L_nmw:")
    ml = [f"buffer_load_dwordx2 {vr(vS+2*k,2)}, v{cL8}, {srd(WS_)}, s{sPA} offen offset:{512*k} sc1" for k in range(8)]
    if touch & 2:
        touch_kv(6, [2, 3])
        a(f"""
        s_min_u32 s25, s{sLC}, 55
        s_lshl_b32 s25, s25, 17
        s_load_dword s20, s[10:11], s25
        s_lshl_b32 s25, s{sG}, 21
        s_load_dword s21, s[8:9], s25
        """)
    wait_cnt(C_P2, cpn, 4)
    poll(ml, [vS + 2 * k + 1 for k in range(8)], vA0, rsleep, wb=True)
    M = vE
    a(f"v_max3_f32 v{M}, v{vS}, v{vS+2}, v{vS+4}")
    a(f"v_max3_f32 v{M}, v{M}, v{vS+6}, v{vS+8}")
    a(f"v_max3_f32 v{M}, v{M}, v{vS+10}, v{vS+12}")
    a(f"v_max_f32 v{M}, v{M}, v{vS+14}")
    red_bits345("max", M, vA3)
    for k in range(8): a(f"v_sub_f32 v{vS+2*k}, v{vS+2*k}, v{M}")
    for k in range(8): a(f"v_exp_f32 v{vS+2*k}, v{vS+2*k}")
    a(f"v_add_f32 v{M+1}, v{vS}, v{vS+2}")
    for k in range(2, 8): a(f"v_add_f32 v{M+1}, v{M+1}, v{vS+2*k}")
    red_bits345("add", M + 1, vA3)
    a(f"""
    v_sub_f32 v{vA1}, v{vT}, v{M}
    v_exp_f32 v{vA1}, v{vA1}
    v_rcp_f32 v{vA2}, v{M+1}
    v_mul_f32 v{vA1}, v{vA1}, v{vA2}
    v_and_b32 v{vA2}, 7, v{vL}
    v_lshlrev_b32 v{vA2}, 5, v{vA2}
    v_lshrrev_b32 v{vA3}, 3, v{vL}
    v_lshl_add_u32 v{vA2}, v{vA3}, 2, v{vA2}
    ds_write_b32 v{vA2}, v{vA1} offset:{L_F}
    s_waitcnt lgkmcnt(0)
    """)
    if endwb:
        a("s_cmp_lt_u32 s2, 248")
        a("s_cbranch_scc1 L_cend")
        for _ in range(endwb): a("s_barrier")
        a("buffer_wbl2 sc1")
        for _ in range(3 - endwb): a("s_barrier")
        a("L_cend:")
    a("s_branch L_fin" if stamps else "s_endpgm")
    ci = [k for k, l in enumerate(a.lines) if l.strip() == "L_comm:"][0]
    if "m" in dg:
        a.lines = a.lines[:ci] + [l.replace("0x40000", "0") if ("s_cmp_gt" in l and "0x400000" not in l) else l for l in a.lines[ci:] if "buffer_" not in l]
    if "d" in dg:
        a.lines = [l for l in a.lines if "v_dot2c_f32_bf16 " not in l and "v_mfma" not in l]
    lines = hazard.fix([l for l in a.lines if not l.strip().startswith(";")])
    body = "\n".join(lines)
    if ipf: body = body.replace("CODE_BYTES", "s8") + "\nL_code_end:"
    return wrap_single(body, 256, 576, lds, NVGPR, header=HEADER)

if __name__ == "__main__":
    kw = {}
    for s in sys.argv[2:]:
        k, v = s.split("=")
        try: v = int(v)
        except: pass
        kw[k] = v
    open(sys.argv[1], "w").write(gen(**kw))
```

```python
import sys, math, struct
from asmlib import *
import hazard
def f2u(x): return struct.unpack("<I", struct.pack("<f", x))[0]
HEADER = open("cdna_kernels/" + NAME + ".s.ref").read().split("; Override launch")[0]

HEADER += """;
;   hand-offs       : 8-byte {data, tag} granules in d_ws, tag = epoch word + 1 (the epoch is advanced at the end).
"""

WS_QG = 0x10000
WS_ML = 0x8000
WS_QP = 0x40000
WS_FG = 0x80000
WS_OP = 0x100000
WS_FP = 0x200000
WS_SIZE = 0x280000
STAMP_OFF = 128 << 20
C_Q, C_F, C_QS, C_ST, C_H, C_P1, C_P2, L_TM = 0, 4, 8, 12, 16, 20, 24, 28
L_H = 64
L_G = 192
L_GP = 256
L_QS = L_GP + 3 * 4096
L_ST = L_QS + 2176
L_F = L_ST + 512
L_RED1 = L_F + 256
L_RED2 = L_RED1 + 2048
L_RED3 = L_RED2 + 512
L_ORED = L_RED3 + 1024
L_END = L_ORED + 8 * 4224
sWV = 3
K_, V_, WQ_, WO_, WG_, WU_, WD_, X_, GW_, WS_, OUT_ = 4, 8, 12, 16, 20, 24, 28, 32, 36, 40, 44
def srd(b): return f"s[{b}:{b+3}]"
sG, sI, sPA, sPB, sKV = 48, 49, 50, 51, 52
sT0, sT1, sT2, sT3 = 53, 54, 55, 56
sSELLO, sSELHI, sC, sCAP, sA, sB, sKS = 57, 58, 59, 60, 61, 62, 63
sM0 = 64
sWD, sBOOST = 66, 67
sRB, sLC, sR8, sCB, sH1, sH1b, sPL, sXV = 68, 69, 70, 71, 72, 73, 74, 75
sST = 76
sCK = 36
sWB = 67
vL, vWDO, vT16, vTAG, vKO, vVO, vWOO, vWFO = 0, 1, 2, 3, 4, 5, 6, 7
vA0, vA1, vA2, vA3, vB0, vB1, vB2, vB3 = 8, 9, 10, 11, 12, 13, 14, 15
vT, vQ, vE, vP, vS, vACC, vR, vBP, vSP = 16, 32, 40, 48, 64, 96, 128, 160, 164
NVGPR = 168

def gen(WIN=3, WMAX=5, dyn0=10, stamps=0, sn="d", lds=82440, q_at=26, p1_at=19, p2_at=61, CA=140, CB=275, CK=6, gsh=2, k0=8,
        ca=2, cb=2, h1first=0, prer=2, fix=0, nfail=8, sleep1=2, csleep=1, asleep=4, rsleep=16, ackA=1, ack2=1, ex=3, cpn=6,
        notail=0, ncov=8, h1d=0, gt=0, CA2=None, lv=0, WLO=3, sp=0, ev=0, gx=0, ix=0, tw=0, t0=3, t1=9, qw=0, touch=0, outf='', midwb=0, endwb=0, prs=0, W0=4, W1=3, fast=0, loc=1, xp=0, cpos=0, cm=0, wofirst=0, hs=0, cal=0, CM=-15, CV=268, KR=48, probe=-1, pwg=42, rj=0, dg='', ipf=0, xl=0, ep=0, fx=0, po=0, merge=0):
    a = Asm()
    SN = set(str(sn).split("+"))
    NS = 12
    def stamp(k, name="d"):
        if stamps and name in SN: a(f"s_memrealtime s[{sST+2*k}:{sST+2*k+1}]")
    def vr(b, n): return f"v[{b}:{b+n-1}]"
    DPP = "row_mask:0xf bank_mask:0xf"
    def red_bits45(op, v, t):
        for sw in ("16", "32"):
            a(f"v_mov_b32 v{t}, v{v}")
            a(f"v_permlane{sw}_swap_b32 v{v}, v{t}")
            a(f"v_{op}_f32 v{v}, v{v}, v{t}")
    def red_bits345(op, v, t):
        a(f"v_{op}_f32_dpp v{v}, v{v}, v{v} row_ror:8 {DPP}")
        red_bits45(op, v, t)
    def red2_bits345(v0, v1, t0, t1):
        a(f"v_add_f32_dpp v{v0}, v{v0}, v{v0} row_ror:8 {DPP}")
        a(f"v_add_f32_dpp v{v1}, v{v1}, v{v1} row_ror:8 {DPP}")
        for sw in ("16", "32"):
            a(f"v_mov_b32 v{t0}, v{v0}")
            a(f"v_mov_b32 v{t1}, v{v1}")
            a(f"v_permlane{sw}_swap_b32 v{v0}, v{t0}")
            a(f"v_permlane{sw}_swap_b32 v{v1}, v{t1}")
            a(f"v_add_f32 v{v0}, v{v0}, v{t0}")
            a(f"v_add_f32 v{v1}, v{v1}, v{t1}")
    def tred4(v, dst):
        a(f"""
        v_permlane32_swap_b32 v{v}, v{v+2}
        v_permlane32_swap_b32 v{v+1}, v{v+3}
        v_add_f32 v{v}, v{v}, v{v+2}
        v_add_f32 v{v+1}, v{v+1}, v{v+3}
        v_permlane16_swap_b32 v{v}, v{v+1}
        v_add_f32 v{dst}, v{v}, v{v+1}
        """)
    def arrive(cnt):
        a(f"""
        v_mov_b32 v{vA0}, {cnt}
        v_mov_b32 v{vA1}, 1
        s_waitcnt lgkmcnt(0)
        s_mov_b64 exec, 1
        ds_add_u32 v{vA0}, v{vA1}
        s_mov_b64 exec, -1
        """)
    def wait_cnt(cnt, val, sl=1):
        l = a.label("Lw"); d = a.label("Lwd")
        a(f"""
        v_mov_b32 v{vA0}, {cnt}
        s_mov_b32 s{sCAP}, 0
        {l}:
        ds_read_b32 v{vA1}, v{vA0}
        s_waitcnt lgkmcnt(0)
        v_readfirstlane_b32 s{sT0}, v{vA1}
        s_cmp_ge_u32 s{sT0}, {val}
        s_cbranch_scc1 {d}
        s_add_u32 s{sCAP}, s{sCAP}, 1
        s_cmp_gt_u32 s{sCAP}, 0x400000
        s_cbranch_scc1 {d}
        s_sleep {sl}
        s_branch {l}
        {d}:
        """)
    def poll(loads, tagregs, tmp, sleep, first_issued=False, wb=False):
        lc = a.label("Lchk"); ld = a.label("Ldone")
        a(f"s_mov_b32 s{sCAP}, 0")
        if not first_issued:
            for l in loads: a(l)
            a("s_waitcnt vmcnt(0)")
        a(f"{lc}:")
        a(f"v_xor_b32 v{tmp}, v{tagregs[0]}, v{vTAG}")
        rest = list(tagregs[1:])
        for r in rest:
            a(f"v_xor_b32 v{tmp+1}, v{r}, v{vTAG}")
            a(f"v_or_b32 v{tmp}, v{tmp}, v{tmp+1}")
        a(f"v_cmp_ne_u32 vcc, 0, v{tmp}")
        a(f"s_and_b64 exec, exec, vcc")
        a(f"s_cbranch_scc0 {ld}")
        a(f"s_add_u32 s{sCAP}, s{sCAP}, 1")
        a(f"s_cmp_gt_u32 s{sCAP}, 0x40000")
        a(f"s_cbranch_scc1 {ld}")
        if wb and loc:
            lw = a.label("Lnw")
            a(f"s_and_b32 s{sT0}, s{sCAP}, {nfail-1}")
            a(f"s_cbranch_scc1 {lw}")
            a("buffer_wbl2 sc1")
            a("s_waitcnt vmcnt(0)")
            a(f"s_mov_b32 s{sWB}, 1")
            a(f"{lw}:")
        if sleep: a(f"s_sleep {sleep}")
        for l in loads: a(l)
        a("s_waitcnt vmcnt(0)")
        a(f"s_branch {lc}")
        a(f"{ld}:")
        a("s_mov_b64 exec, -1")
    def sum8(base):
        for step in (1, 2, 4):
            for k in range(0, 8, 2 * step): a(f"v_add_f32 v{base+k}, v{base+k}, v{base+k+step}")
    def init_stamps():
        if stamps:
            for k in range(NS): a(f"s_mov_b64 s[{sST+2*k}:{sST+2*k+1}], s[{sM0}:{sM0+1}]")

    a(f"""
    s_cmp_ge_u32 s2, 256
    s_cbranch_scc1 L_end
    s_load_dwordx16 s[76:91], s[0:1], 0
    """)
    if ipf:
        a(f"""
        s_getpc_b64 s[4:5]
        L_pc0:
        s_mov_b32 s8, L_code_end-L_pc0-4
        v_lshlrev_b32 v{vA2}, {7 if ipf == 1 else 6}, v0
        v_cmp_gt_u32 vcc, CODE_BYTES, v{vA2}
        s_and_saveexec_b64 s[6:7], vcc
        s_cbranch_execz L_nipf
        global_load_dword v{vSP}, v{vA2}, s[4:5]
        L_nipf:
        s_mov_b64 exec, s[6:7]
        """)
    a(f"""
    """)
    late_s = f"""
    s_load_dwordx8 s[92:99], s[0:1], 64
    s_load_dwordx2 s[{WS_}:{WS_+1}], s[0:1], 96
    s_memrealtime s[{sM0}:{sM0+1}]
    """
    if not fast: a(late_s)
    a(f"""
    v_lshrrev_b32 v{vA0}, 6, v0
    v_lshlrev_b32 v{vT16}, 4, v0
    v_readfirstlane_b32 s{sWV}, v{vA0}
    v_and_b32 v{vL}, 63, v0
    s_lshr_b32 s{sG}, s2, 6
    s_and_b32 s{sI}, s2, 63
    s_bfe_u32 s{sR8}, s2, 0x30003
    s_and_b32 s{sT0}, s2, 7
    s_lshl_b32 s{sT1}, s{sG}, 1
    s_xor_b32 s{sT0}, s{sT0}, s{sT1}
    s_lshl_b32 s{sT0}, s{sT0}, 2
    s_or_b32 s{sCB}, s{sT0}, s{sG}
    s_mov_b32 s{X_+2}, 2048
    s_mov_b32 s{X_+3}, 0x20000
    v_lshlrev_b32 v{vVO}, 4, v{vL}
    s_cmp_eq_u32 s{sWV}, 8
    s_cbranch_scc1 L_comm
    s_mov_b32 s{WQ_+2}, {1024*8192}
    s_mov_b32 s{WQ_+3}, 0x20000
    v_lshrrev_b32 v{vA0}, 4, v{vL}
    v_and_b32 v{vA1}, 15, v{vL}
    v_lshlrev_b32 v{vA1}, 4, v{vA1}
    v_lshl_add_u32 v{vA3}, v{vA0}, {13 if rj else 15}, v{vA1}
    v_lshlrev_b32 v{vA2}, 3, v{vA0}
    s_lshl_b32 s{sT3}, s{sR8}, 3
    s_add_u32 s{sT3}, s{sT3}, s{sWV}
    s_lshl_b32 s{sT0}, s{sCB}, 8
    s_lshl_b32 s{sA}, s{sT3}, 17
    s_add_u32 s{sA}, s{sA}, s{sT0}
    s_mul_i32 s{sB}, s{sT3}, {16*7168}
    s_add_u32 s{sB}, s{sB}, s{sT0}
    s_lshl_b32 s{sT3}, s{sT3}, 5
    s_add_u32 s{sT0}, s{sA}, {8192*(4 if rj else 1)}
    s_add_u32 s{sT1}, s{sA}, {16384*(4 if rj else 1)}
    s_add_u32 s{sT2}, s{sA}, {24576*(4 if rj else 1)}
    s_waitcnt lgkmcnt(0)
    s_mov_b64 s[{WQ_}:{WQ_+1}], s[82:83]
    s_mov_b64 s[{X_}:{X_+1}], s[76:77]
    """)
    R0, R1, A0, A1 = vR, vR + 16, vACC, vACC + 16
    WQR, WGR, WUR = R0, R1, A0
    vXP = vB0
    xld = f"buffer_load_dwordx2 {vr(vXP,2)}, v{vA2}, {srd(X_)}, s{sT3} offen"
    if rj: xl = 0
    if not xl and not rj: a(xld)
    for j in range(4): a(f"buffer_load_dwordx4 {vr(WQR+4*j,4)}, v{vA3}, {srd(WQ_)}, s{[sA,sT0,sT1,sT2][j]} offen nt")
    if xl: a(xld)
    if rj and not fast: a(f"s_load_dwordx8 s[32:39], s[76:77], s{sT3}")
    if fast: a(late_s)
    def roles():
        a(f"""
        s_and_b32 s{sRB}, s{sR8}, 3
        s_lshr_b32 s{sLC}, s{sR8}, 2
        s_lshl_b32 s{sT0}, s{sCB}, 1
        s_or_b32 s{sLC}, s{sLC}, s{sT0}
        s_lshr_b32 s{sPL}, s2, 5
        s_lshl_b32 s{sPL}, s{sPL}, 3
        s_and_b32 s{sT0}, s2, 7
        s_or_b32 s{sPL}, s{sPL}, s{sT0}
        s_mov_b32 s{WS_+2}, {WS_SIZE if not stamps else (256<<20)}
        s_mov_b32 s{WS_+3}, 0x20000
        """)
    vX = vT; vGA = vT + 8
    a(f"""
    v_mul_u32_u24 v{vWFO}, {(1 if rj else 4)*7168}, v{vA0}
    v_mul_u32_u24 v{vB2}, 0x202, v{vA0}
    v_add_u32 v{vB2}, 0x0c0c0100, v{vB2}
    v_alignbit_b32 v{vB3}, v{vB2}, v{vB2}, 16
    v_add_u32 v{vWFO}, v{vWFO}, v{vA1}
    s_cmp_lt_u32 s{sCB}, 28
    s_cselect_b32 s{WG_+2}, {1024*7168}, 0
    s_cselect_b32 s{WU_+2}, {1024*7168}, 0
    s_cselect_b32 s{WD_+2}, {3584*2048}, 0
    s_mov_b32 s{WG_+3}, 0x20000
    s_mov_b32 s{WU_+3}, 0x20000
    s_mov_b64 s[{WG_}:{WG_+1}], s[88:89]
    s_mov_b64 s[{WU_}:{WU_+1}], s[90:91]
    s_mov_b64 s[{K_}:{K_+1}], s[78:79]
    s_mov_b64 s[{V_}:{V_+1}], s[80:81]
    s_mov_b64 s[{WO_}:{WO_+1}], s[84:85]
    s_mov_b32 s{K_+2}, 0x4000000
    s_mov_b32 s{K_+3}, 0x20000
    s_mov_b32 s{V_+2}, 0x4000000
    s_mov_b32 s{V_+3}, 0x20000
    s_mov_b32 s{WO_+2}, {4096*2048}
    s_mov_b32 s{WO_+3}, 0x20000
    s_mov_b32 s{WD_+3}, 0x20000
    s_mov_b32 s{OUT_+2}, 2048
    s_mov_b32 s{OUT_+3}, 0x20000
    s_mov_b32 s{sSELLO}, 0x05040100
    s_mov_b32 s{sSELHI}, 0x07060302
    s_mov_b32 s{sC}, {hex(f2u(128**-0.5 * math.log2(math.e)))}
    s_mov_b32 s{sBOOST}, {WIN if lv else 0}
    s_mul_i32 s{sKV}, s{sG}, {(1<<24) + (gx<<22)}
    """)
    if ix == 0:
        a(f"s_lshl_b32 s{sT0}, s{sI}, 16")
        a(f"s_add_u32 s{sKV}, s{sKV}, s{sT0}")
    else:
        pos = {1: [17, 18, 19, 16, 20, 21], 2: [16, 17, 19, 18, 20, 21]}[ix]
        for b in range(6):
            a(f"s_bfe_u32 s{sT0}, s2, {0x10000 + b}")
            a(f"s_lshl_b32 s{sT0}, s{sT0}, {pos[b]}")
            a(f"s_add_u32 s{sKV}, s{sKV}, s{sT0}")
    a(f"""
    s_lshl_b32 s{sT0}, s{sWV}, 13
    s_add_u32 s{sKV}, s{sKV}, s{sT0}
    s_lshl_b32 s{sT0}, s{sWV}, 10
    s_add_u32 s{sXV}, s{sKV}, s{sT0}
    s_and_b32 s{sT1}, s{sT0}, 4096
    s_add_u32 s{sKV}, s{sKV}, s{sT1}
    s_and_b32 s{sT0}, s{sT0}, 3072
    v_lshlrev_b32 v{vA2}, 1, v{vA1}
    v_lshl_add_u32 v{vA2}, v{vA0}, 3, v{vA2}
    s_lshl_b32 s{sT1}, s{sWV}, 9
    v_add_u32 v{vGA}, s{sT1}, v{vA2}
    v_and_b32 v{vA2}, 3, v{vL}
    v_lshlrev_b32 v{vA2}, 10, v{vA2}
    v_xor_b32 v{vA2}, s{sT0}, v{vA2}
    v_bfe_u32 v{vA3}, v{vL}, 2, 1
    v_lshl_add_u32 v{vA2}, v{vA3}, 8, v{vA2}
    v_bfe_u32 v{vA3}, v{vL}, 3, 1
    v_lshl_add_u32 v{vA2}, v{vA3}, 6, v{vA2}
    v_lshl_add_u32 v{vKO}, v{vA0}, 4, v{vA2}
    v_mov_b32 v{vE+6}, 0
    v_mov_b32 v{vE+7}, 0x40000000
    """)
    roles()
    if fast: a("s_waitcnt lgkmcnt(0)")
    a(f"""
    s_mov_b64 s[{WD_}:{WD_+1}], s[92:93]
    s_mov_b64 s[{OUT_}:{OUT_+1}], s[96:97]
    """)
    init_stamps()
    for r in range(24): a(f"v_mov_b32 v{vS+r}, 0")
    a("s_barrier")

    U = []
    for j in range(4): U.append((f"wq{j}", None, 2 if (xl and j == 3) else 1, None))
    for nm, R, S_ in (("gate", WGR, WG_), ("up", WUR, WU_)):
        for j in range(4):
            U.append((f"{nm}{j}", [f"s_add_u32 s{sT3}, s{sB}, {j*7168*(4 if rj else 1)}", f"buffer_load_dwordx4 {vr(R+4*j,4)}, v{vWFO}, {srd(S_)}, s{sT3} offen nt"], 1, None))
    WDQ = [vP, vP + 4, vP + 8, vSP]
    WOR = vT; PW = R0
    def wdunit(j, pre):
        if sp:
            U.append((f"wd{j}", [f"v_mov_b32_dpp v{vA2}, v{vE+5} row_newbcast:{j} {DPP}",
                      f"v_and_b32 v{vA3}, 0x7fff0000, v{vA2}", f"v_and_b32 v{vA2}, 0x7fff, v{vA2}",
                      f"v_cmp_ne_u32 vcc, 0, v{vA2}", f"v_cndmask_b32 v{vA2}, v{vE+7}, v{vWDO}, vcc",
                      f"v_cmp_ne_u32 vcc, 0, v{vA3}", f"v_cndmask_b32 v{vA3}, v{vE+7}, v{vWDO}, vcc",
                      f"s_xor_b32 s{sT3}, s{sWD}, {j*4096}", f"buffer_load_dwordx2 {vr(WDQ[j],2)}, v{vA2}, {srd(WD_)}, s{sT3} offen nt",
                      f"buffer_load_dwordx2 {vr(WDQ[j]+2,2)}, v{vA3}, {srd(WD_)}, s{sT3} offen offset:2048 nt"], 2, pre))
            return
        U.append((f"wd{j}", [f"s_xor_b32 s{sT3}, s{sWD}, {j*4096}", f"buffer_load_dwordx2 {vr(WDQ[j],2)}, v{vWDO}, {srd(WD_)}, s{sT3} offen nt",
                  f"buffer_load_dwordx2 {vr(WDQ[j]+2,2)}, v{vWDO}, {srd(WD_)}, s{sT3} offen offset:2048 nt"], 2, pre))
    KSL = [A1, vP, R0, R1, A0, A1, vP, A0]
    KPRE = [None, None, "wq", "gate", "up", "K0", "K1", "K4"]
    for g in range(8):
        t, u = g >> 1, g & 1
        for k in range(4):
            l = [f"s_xor_b32 s{sKS}, s{sKV}, {t*(4<<20) + u*4096}"] if k == 0 else []
            l.append(f"buffer_load_dwordx4 {vr(KSL[g]+4*k,4)}, v{vKO}, {srd(K_)}, s{sKS} offen offset:{(k>>1)*512+(k&1)*128} nt")
            U.append((f"K{g}_{k}", l, 1, KPRE[g]))
    nearly = 8 - ncov
    order = [3, 0, 1, 2]
    for t in range(4):
        if t == 3:
            for j in order[:min(nearly, 3)]: wdunit(j, "V1m")
        for j in range(8):
            if t == 3 and j == 4 and nearly == 4: wdunit(2, "V2m")
            U.append((f"V{t}_{j}", [f"s_xor_b32 s{sKS}, s{sXV}, {t*(4<<20) + j*1024}",
                      f"buffer_load_dwordx4 {vr(vR+4*j,4)}, v{vVO}, {srd(V_)}, s{sKS} offen nt"], 1, f"K{2+(j>>2)}" if t == 0 else f"V{t-1}p{j>>1}"))
    for j in order[nearly:]: wdunit(j, "V2m")
    for j in range(4):
        l = []
        for e in range(2 * j, 2 * j + 2):
            l += [f"s_xor_b32 s{sT3}, s{sB}, {e*16384}", f"buffer_load_dwordx2 {vr(WOR+2*e,2)}, v{vWOO}, {srd(WO_)}, s{sT3} offen nt"]
        U.append((f"wo{j}", l, 2, "pre"))
    if merge:
        k0_ = [u[0] for u in U].index("wd3")
        w = U[k0_:k0_ + 4]
        U[k0_:k0_ + 4] = [("wd0", w[0][1] + w[1][1], 4, w[1][3]), ("wd2", w[2][1] + w[3][1], 4, w[3][3])]
    names = [u[0] for u in U]
    idx = {n: k for k, n in enumerate(names)}

    consumed = set()
    def task_g(m, j):
        W, acc = [(WQR, vS), (WGR, vS + 8), (WUR, vS + 16)][m]
        if m == 0 and j == 0 and rj:
            a("s_waitcnt lgkmcnt(0)")
            for jj in range(4):
                a(f"v_mov_b32 v{vA0}, s{32+2*jj}")
                a(f"v_perm_b32 v{vX+2*jj}, s{33+2*jj}, v{vA0}, v{vB2}")
                a(f"v_perm_b32 v{vX+2*jj+1}, s{33+2*jj}, v{vA0}, v{vB3}")
        elif m == 0 and j == 0:
            for h in range(2):
                a(f"v_and_b32 v{vX+4*h}, 0xffff, v{vXP+h}")
                a(f"v_lshlrev_b32 v{vX+4*h+1}, 16, v{vXP+h}")
                a(f"v_lshrrev_b32 v{vX+4*h+2}, 16, v{vXP+h}")
                a(f"v_and_b32 v{vX+4*h+3}, 0xffff0000, v{vXP+h}")
        if "g" in dg:
            if j == 3: consumed.add(["wq", "gate", "up"][m])
            return
        for w in range(4):
            a(f"v_dot2c_f32_bf16 v{acc+2*w}, v{W+4*j+w}, v{vX+2*j}")
            a(f"v_dot2c_f32_bf16 v{acc+2*w+1}, v{W+4*j+w}, v{vX+2*j+1}")
        if j == 3:
            consumed.add(["wq", "gate", "up"][m])
            for k in range(4): a(f"v_permlane32_swap_b32 v{acc+k}, v{acc+k+4}")
            for k in range(4): a(f"v_add_f32 v{acc+k}, v{acc+k}, v{acc+k+4}")
            for k in range(2): a(f"v_permlane16_swap_b32 v{acc+k}, v{acc+k+2}")
            for k in range(2): a(f"v_add_f32 v{acc+k}, v{acc+k}, v{acc+k+2}")
            a(f"ds_write_b64 v{vGA}, {vr(acc,2)} offset:{L_GP+4096*m}")
            if m != 1: arrive(C_Q if m == 0 else C_F)
            if m == 0: stamp(1)
    def wperm(dst, quads):
        for p in range(4):
            for d in range(2):
                a(f"v_perm_b32 v{dst+4*p+2*d}, v{quads[p]+2+d}, v{quads[p]+d}, s{sSELLO}")
                a(f"v_perm_b32 v{dst+4*p+2*d+1}, v{quads[p]+2+d}, v{quads[p]+d}, s{sSELHI}")
    def dot16(W, vO, acc):
        for p in range(4):
            for c in range(4): a(f"v_dot2c_f32_bf16_dpp v{acc+c}, v{vO}, v{W+4*p+c} row_newbcast:{p} {DPP}")
    def task_qwait():
        stamp(2)
        wait_cnt(C_QS, 1)
        a(f"""
        v_and_b32 v{vA0}, 7, v{vL}
        v_mul_u32_u24 v{vA0}, 272, v{vA0}
        v_bfe_u32 v{vA1}, v{vL}, 3, 1
        v_lshl_add_u32 v{vA0}, v{vA1}, 6, v{vA0}
        v_lshrrev_b32 v{vA1}, 4, v{vL}
        v_lshl_add_u32 v{vA0}, v{vA1}, 4, v{vA0}
        """)
        for s in range(2): a(f"ds_read_b128 {vr(vQ+4*s,4)}, v{vA0} offset:{L_QS+128*s}")
        if gt: a(f"ds_read_b32 v{vA1}, v{vE+6} offset:{L_G+12}")
        a("s_waitcnt lgkmcnt(0)")
        if gt:
            a(f"v_readfirstlane_b32 s{sM0}, v{vA1}")
            st["ca"] = CA2 if CA2 is not None else CA
        stamp(3)
    def task_k(g):
        base = KSL[g]; dx = vS + 4 * g; dy = vT
        for sp in range(2):
            a(f"v_mfma_f32_16x16x32_bf16 {vr(dx,4)}, {vr(base+4*sp,4)}, {vr(vQ+4*sp,4)}, {'0' if sp==0 else vr(dx,4)}")
            a(f"v_mfma_f32_16x16x32_bf16 {vr(dy,4)}, {vr(base+8+4*sp,4)}, {vr(vQ+4*sp,4)}, {'0' if sp==0 else vr(dy,4)}")
        for r in range(4): a(f"v_permlane32_swap_b32 v{dx+r}, v{dy+r}")
        for r in range(4): a(f"v_add_f32_dpp v{dx+r}, v{dy+r}, v{dx+r} row_ror:8 {DPP}")
        consumed.add(f"K{g}")
    vM = vE
    def sm_max():
        a(f"v_max3_f32 v{vM}, v{vS}, v{vS+1}, v{vS+2}")
        a(f"v_max3_f32 v{vA2}, v{vS+3}, v{vS+4}, v{vS+5}")
        for k in range(6, 30, 4):
            a(f"v_max3_f32 v{vM}, v{vM}, v{vS+k}, v{vS+k+1}")
            a(f"v_max3_f32 v{vA2}, v{vA2}, v{vS+k+2}, v{vS+k+3}")
        a(f"v_max3_f32 v{vM}, v{vM}, v{vS+30}, v{vS+31}")
        a(f"v_max_f32 v{vM}, v{vM}, v{vA2}")
        red_bits45("max", vM, vA2)
        a(f"v_mul_f32 v{vM}, s{sC}, v{vM}")
    def sm_exp(t):
        for k in range(8 * t, 8 * t + 8): a(f"v_fma_f32 v{vS+k}, v{vS+k}, s{sC}, -v{vM}")
        for k in range(8 * t, 8 * t + 8): a(f"v_exp_f32 v{vS+k}, v{vS+k}")
        for k in range(4 * t, 4 * t + 4): a(f"v_cvt_pk_bf16_f32 v{vP+k}, v{vS+2*k}, v{vS+2*k+1}")
        sum8(vS + 8 * t)
    def sm_fin():
        a(f"v_add_f32 v{vS}, v{vS}, v{vS+8}")
        a(f"v_add_f32 v{vS+16}, v{vS+16}, v{vS+24}")
        a(f"v_add_f32 v{vM+1}, v{vS}, v{vS+16}")
        red_bits45("add", vM + 1, vA2)
        a(f"""
        s_lshl_b32 s{sT0}, s{sWV}, 6
        v_lshl_add_u32 v{vA2}, v{vL}, 3, s{sT0}
        s_mov_b64 exec, 0xff
        ds_write_b64 v{vA2}, {vr(vM,2)} offset:{L_ST}
        s_mov_b64 exec, -1
        """)
        arrive(C_ST)
        stamp(4)
    def task_vperm(t, uu):
        for w in range(4):
            a(f"v_perm_b32 v{vS+4*(2*w)+uu}, v{vR+4*(2*uu+1)+w}, v{vR+4*(2*uu)+w}, s{sSELLO}")
            a(f"v_perm_b32 v{vS+4*(2*w+1)+uu}, v{vR+4*(2*uu+1)+w}, v{vR+4*(2*uu)+w}, s{sSELHI}")
        consumed.add(f"V{t}p{uu}")
        if uu == 3:
            for i in range(8):
                c = "0" if t == 0 else vr(vACC + 4 * i, 4)
                a(f"v_mfma_f32_16x16x32_bf16 {vr(vACC+4*i,4)}, {vr(vS+4*i,4)}, {vr(vP+4*t,4)}, {c}")
            consumed.add(f"V{t}m")
    aOW, aOR, aF, aH1, aR2W, aL8, aH2, aR1W = [vQ + k for k in range(8)]
    aR1R, aFP, aR3, vG, vHP = vKO, vWFO, vE + 4, vE + 2, vE + 5
    def task_pre1():
        a(f"""
        v_lshrrev_b32 v{vA1}, 4, v{vL}
        v_and_b32 v{vA2}, 7, v{vL}
        v_mul_u32_u24 v{vA0}, 528, v{vA2}
        v_lshl_add_u32 v{vA0}, v{vA1}, 4, v{vA0}
        s_mul_i32 s{sT0}, s{sWV}, 4224
        v_add_u32 v{aOW}, s{sT0}, v{vA0}
        s_mul_i32 s{sT0}, s{sWV}, 528
        v_lshl_add_u32 v{aOR}, v{vL}, 3, s{sT0}
        s_lshl_b32 s{sT0}, s{sWV}, 5
        v_mov_b32 v{aF}, s{sT0}
        v_lshrrev_b32 v{vA0}, 5, v{vL}
        v_lshlrev_b32 v{vA3}, 2, v{vA0}
        v_lshl_add_u32 v{vA3}, v{vA2}, 3, v{vA3}
        s_lshl_b32 s{sT0}, s{sWV}, 6
        v_add_u32 v{aR2W}, s{sT0}, v{vA3}
        v_lshlrev_b32 v{aL8}, 3, v{vL}
        v_and_b32 v{vA2}, 15, v{vL}
        s_and_b32 s{sT1}, s{sWV}, 3
        s_lshl_b32 s{sT0}, s{sT1}, 7
        v_lshl_add_u32 v{vA3}, v{vA2}, 3, s{sT0}
        v_lshl_add_u32 v{vWDO}, v{vA1}, 14, v{vA3}
        v_lshl_add_u32 v{vA3}, v{vA0}, 11, v{vA3}
        v_and_b32 v{vA0}, 1, v{vA1}
        v_lshl_add_u32 v{vWOO}, v{vA0}, 17, v{vA3}
        v_lshl_add_u32 v{vA0}, v{vA2}, 2, v{vA1}
        s_lshl_b32 s{sT0}, s{sT1}, 9
        v_lshl_add_u32 v{aFP}, v{vA0}, 3, s{sT0}
        s_lshl_b32 s{sT0}, s{sWV}, 8
        v_lshl_add_u32 v{aR1W}, v{vA0}, 2, s{sT0}
        s_lshl_b32 s{sT0}, s{sT1}, 8
        v_lshl_add_u32 v{aR3}, v{vL}, 2, s{sT0}
        v_lshrrev_b32 v{vA0}, 8, v{vT16}
        v_lshlrev_b32 v{vA0}, 12, v{vA0}
        v_and_b32 v{vA2}, 0xf0, v{vT16}
        v_add_u32 v{aH1}, v{vA0}, v{vA2}
        v_lshrrev_b32 v{vA0}, 7, v{vT16}
        v_lshlrev_b32 v{vA0}, 11, v{vA0}
        v_and_b32 v{vA2}, 0x70, v{vT16}
        v_add_u32 v{aH2}, v{vA0}, v{vA2}
        v_lshrrev_b32 v{vT16}, 1, v{vT16}
        """)
    def task_pre2():
        wait_cnt(C_H, 1)
        a(f"""
        v_and_b32 v{vA3}, 3, v{vL}
        s_and_b32 s{sT1}, s{sWV}, {ex}
        v_xor_b32 v{vA3}, s{sT1}, v{vA3}
        v_lshrrev_b32 v{vA2}, 4, v{vL}
        v_lshl_add_u32 v{vA2}, v{vA2}, 2, v{vA3}
        s_lshr_b32 s{sT2}, s{sWV}, 2
        s_lshl_b32 s{sT0}, s{sT2}, 4
        v_add_u32 v{vA2}, s{sT0}, v{vA2}
        v_bfe_u32 v{vA3}, v{vL}, 2, 2
        v_lshlrev_b32 v{vA3}, 9, v{vA3}
        v_lshl_add_u32 v{aR1R}, v{vA2}, 3, v{vA3}
        v_lshlrev_b32 v{vA2}, 2, v{vA2}
        ds_read_b32 v{vHP}, v{vA2} offset:{L_H}
        ds_read_b64 {vr(vG,2)}, v{vE+6} offset:{L_G}
        ds_read_b32 v{vTAG}, v{vE+6} offset:{L_G+8}
        s_lshl_b32 s{sWD}, s{sLC}, 17
        s_lshl_b32 s{sT0}, s{sT2}, 16
        s_add_u32 s{sWD}, s{sWD}, s{sT0}
        s_lshl_b32 s{sT0}, s{sT1}, 12
        s_add_u32 s{sWD}, s{sWD}, s{sT0}
        s_lshl_b32 s{sT0}, s{sRB}, 9
        s_add_u32 s{sWD}, s{sWD}, s{sT0}
        s_lshl_b32 s{sB}, s{sT1}, 15
        s_add_u32 s{sB}, s{sB}, s{sT0}
        s_lshl_b32 s{sT0}, s{sT2}, 12
        s_add_u32 s{sB}, s{sB}, s{sT0}
        s_lshr_b32 s{sT1}, s{sR8}, 2
        s_lshl_b32 s{sT0}, s{sT1}, 13
        s_add_u32 s{sB}, s{sB}, s{sT0}
        s_and_b32 s{sT2}, s2, 7
        s_lshl_b32 s{sT0}, s{sG}, 3
        s_add_u32 s{sT0}, s{sT0}, s{sT2}
        s_lshl_b32 s{sT0}, s{sT0}, 18
        s_add_u32 s{sB}, s{sB}, s{sT0}
        s_lshl_b32 s{sH1}, s{sG}, 18
        s_lshl_b32 s{sT0}, s{sT2}, 9
        s_add_u32 s{sH1}, s{sH1}, s{sT0}
        s_lshl_b32 s{sT0}, s{sT1}, 8
        s_add_u32 s{sH1}, s{sH1}, s{sT0}
        s_add_u32 s{sH1}, s{sH1}, {WS_OP}
        s_add_u32 s{sH1b}, s{sH1}, {32*4096}
        s_lshl_b32 s{sPA}, s2, 12
        s_add_u32 s{sPA}, s{sPA}, {WS_OP}
        s_lshl_b32 s{sPB}, s{sRB}, 6
        s_add_u32 s{sPB}, s{sPB}, s{sPL}
        s_lshl_b32 s{sPB}, s{sPB}, 11
        s_add_u32 s{sPB}, s{sPB}, {WS_FP}
        s_lshl_b32 s{sI}, s{sT2}, 3
        s_or_b32 s{sI}, s{sI}, s{sR8}
        s_mov_b32 s{sI}, s{sI if fx else 2}
        s_lshr_b32 s{sA}, s{sI}, 4
        s_lshl_b32 s{sA}, s{sA}, 17
        s_and_b32 s{sT0}, s{sI}, 15
        s_lshl_b32 s{sT0}, s{sT0}, 7
        s_add_u32 s{sA}, s{sA}, s{sT0}
        s_add_u32 s{sA}, s{sA}, {WS_FP}
        s_waitcnt lgkmcnt(0)
        v_mov_b32 v{vB1}, v{vTAG}
        v_mov_b32 v{vE+1}, v{vTAG}
        """)
        for k in range(4): a(f"v_mov_b32 v{vBP+k}, 0")
        if po:
            a(f"""
            s_cmp_ge_u32 s2, 64
            s_cbranch_scc1 L_npo
            s_cmp_lg_u32 s{sWV}, 0
            s_cbranch_scc1 L_npo
            s_lshl_b32 s{sT0}, s{sI}, 5
            buffer_load_dword v{vE}, off, {srd(OUT_)}, s{sT0}
            L_npo:
            """)
        consumed.add("pre")
    vH1 = R1; vF = R1 + 8
    h1 = [f"buffer_load_dwordx4 {vr(vH1+4*k,4)}, v{aH1}, {srd(WS_)}, s{sH1+k} offen sc1" for k in range(2)]
    if xp & 4: h1 = []

    C = []
    for m, nm in enumerate(("wq", "gate", "up")):
        if m == 0 and xl: C.append((3, lambda: [task_g(0, j) for j in range(4)]))
        else:
            for j in range(4): C.append((idx[f"{nm}{j}"], lambda m=m, j=j: task_g(m, j)))
    C.append((p1_at, lambda: arrive(C_P1)))
    C.append((p2_at, lambda: arrive(C_P2)))
    C.append((q_at, task_qwait))
    for g in range(8): C.append((max(q_at, idx[f"K{g}_3"]), lambda g=g: task_k(g)))
    kend = idx["K7_3"]
    C.append((kend, sm_max))
    for t in range(4): C.append((kend, lambda t=t: sm_exp(t)))
    C.append((kend, sm_fin))
    for t in range(4):
        for uu in range(4): C.append((idx[f"V{t}_{2*uu+1}"], lambda t=t, uu=uu: task_vperm(t, uu)))
    C.append((idx["V1_2"], task_pre1)); C.append((idx["V1_4"], task_pre2))
    C.sort(key=lambda c: c[0])
    n = len(U); stop_at = idx["V3_7"]
    st = {"issued": 4, "c": 0, "ca": CA}
    def run_chunk():
        C[st["c"]][1](); st["c"] += 1
    def issue_upto(lim, arrived, throttle=True):
        while st["issued"] < min(n, lim):
            k = st["issued"]
            nm, lines, nv, pre = U[k]
            if throttle and k - WIN >= stop_at: return
            while pre is not None and pre not in consumed:
                assert C[st["c"]][0] <= arrived, ("issue blocked", nm, names[arrived])
                run_chunk()
            if throttle and k >= dyn0 and lv:
                lk = a.label("Li")
                wlo = WLO
                if tw and idx["V0_0"] + t0 <= k <= idx["V0_0"] + t1: wlo = tw
                if qw and q_at + WMAX - 1 <= k <= q_at + WMAX + 3: wlo = qw
                for w in range(WMAX - 1, wlo - 1, -1):
                    if w < WIN and k - w >= stop_at: break
                    a(f"s_cmp_gt_i32 s{sBOOST}, {w}")
                    a(f"s_cbranch_scc1 {lk}")
                    a(f"s_waitcnt vmcnt({sum(u[2] for u in U[k-w+1:k])})")
                a(f"{lk}:")
            elif throttle and k >= dyn0:
                lk = a.label("Li")
                a(f"s_cmp_gt_u32 s{sBOOST}, {k}")
                a(f"s_cbranch_scc1 {lk}")
                a(f"s_waitcnt vmcnt({sum(u[2] for u in U[k-WIN+1:k])})")
                a(f"{lk}:")
            for x in lines: a(x)
            st["issued"] += 1
    issue_upto(W0, -1)
    for arrived in range(stop_at + 1):
        assert st["issued"] > arrived
        a(f"s_waitcnt vmcnt({sum(u[2] for u in U[arrived + 1:st['issued']])})")
        if arrived == probe: a("s_memrealtime s[100:101]")
        if arrived % 8 == 7: stamp(arrived // 8 + 1, "u")
        if arrived % 6 == 5 and arrived < 60: stamp(arrived // 6 + 1, "s")
        if arrived >= k0 and arrived < stop_at - 3:
            if (arrived - k0) % CK == 0:
                a(f"s_memrealtime s[{sCK}:{sCK+1}]")
                if cal and arrived > p2_at: a(f"ds_read_b32 v{vB3}, v{vE+6} offset:{L_TM}")
            if (arrived - k0) % CK == 1:
                kk = st["issued"] - WIN - 1
                if lv and cal and arrived - 1 > p2_at:
                    a(f"""
                    s_waitcnt lgkmcnt(0)
                    v_readfirstlane_b32 s{sT0}, v{vB3}
                    s_cmp_lg_u32 s{sT0}, 0
                    s_cselect_b32 s{sT0}, s{sT0}, s{sM0}
                    s_mov_b32 s{sT1}, {st["ca"] + CB * kk // 10}
                    s_cselect_b32 s{sT1}, {CM + CV * (kk - KR) // 10}, s{sT1}
                    s_sub_u32 s{sCK}, s{sCK}, s{sT0}
                    s_sub_i32 s{sCK}, s{sCK}, s{sT1}
                    s_ashr_i32 s{sCK}, s{sCK}, {lv}
                    s_add_i32 s{sBOOST}, s{sCK}, {WIN + 1}
                    """)
                elif lv:
                    a(f"""
                    s_waitcnt lgkmcnt(0)
                    s_sub_u32 s{sCK}, s{sCK}, s{sM0}
                    s_sub_i32 s{sCK}, s{sCK}, {st["ca"] + CB * kk // 10}
                    s_ashr_i32 s{sCK}, s{sCK}, {lv}
                    s_add_i32 s{sBOOST}, s{sCK}, {WIN + 1}
                    """)
                else: a(f"""
                s_waitcnt lgkmcnt(0)
                s_sub_u32 s{sCK}, s{sCK}, s{sM0}
                s_sub_i32 s{sCK}, s{sCK}, {st["ca"] + CB * kk // 10}
                s_ashr_i32 s{sCK}, s{sCK}, {gsh}
                s_add_i32 s{sBOOST}, s{sCK}, {st["issued"]}
                s_max_i32 s{sBOOST}, s{sBOOST}, 0
                """)
        if arrived < stop_at: issue_upto(arrived + 1 + (W1 if arrived < dyn0 - W1 else WMAX), arrived)
        ran = 0
        while st["c"] < len(C) and C[st["c"]][0] <= arrived and (ran < 2 or arrived >= stop_at - 1):
            run_chunk(); ran += 1
    assert st["c"] == len(C)

    stamp(5)
    if not cpos: issue_upto(st["issued"] + ca, n, False)
    a("s_mov_b32 exec_lo, 0x00ff00ff")
    a("s_mov_b32 exec_hi, 0x00ff00ff")
    for i in range(8): a(f"ds_write_b128 v{aOW}, {vr(vACC+4*i,4)} offset:{L_ORED+64*i}")
    a("s_mov_b64 exec, -1")
    if cpos: issue_upto(st["issued"] + ca, n, False)
    a(f"""
    s_waitcnt lgkmcnt(0)
    s_barrier
    ds_read_b128 {vr(vF,4)}, v{aF} offset:{L_F}
    ds_read_b128 {vr(vF+4,4)}, v{aF} offset:{L_F+16}
    """)
    for w in range(8): a(f"ds_read_b64 {vr(vS+2*w,2)}, v{aOR} offset:{L_ORED+4224*w}")
    a("s_waitcnt lgkmcnt(7)")
    a(f"v_mul_f32 v{vB0}, v{vS}, v{vF}")
    a(f"v_mul_f32 v{vB2}, v{vS+1}, v{vF}")
    for w in range(1, 8):
        a(f"s_waitcnt lgkmcnt({7-w})")
        a(f"v_fmac_f32 v{vB0}, v{vS+2*w}, v{vF+w}")
        a(f"v_fmac_f32 v{vB2}, v{vS+2*w+1}, v{vF+w}")
    a(f"v_cvt_pk_bf16_f32 v{vB0}, v{vB0}, v{vB2}")
    a(f"buffer_store_dwordx2 {vr(vB0,2)}, v{vT16}, {srd(WS_)}, s{sPA} offen" + ("" if xp & 1 else " sc1"))
    stamp(6)
    k_s = st["issued"]
    issue_upto(st["issued"] + cb, n, False)
    if notail: a("s_branch L_fin")
    def outstanding_after(k): return sum(u[2] for u in U[k:st["issued"]])
    wait_to = min(st["issued"], k_s + h1d)
    a(f"s_waitcnt vmcnt({outstanding_after(wait_to)})")
    if hs: a(f"s_sleep {hs}")
    if h1first:
        for l in h1: a(l)
    k_h = st["issued"]
    issue_upto(n, n, False)
    if not h1first:
        for l in h1: a(l)
    nh = len(h1)
    lastwd = max(idx.get(f"wd{j}", 0) for j in range(4))
    w = outstanding_after(lastwd + 1) + (nh if (not h1first or lastwd + 1 <= k_h) else 0)
    a(f"s_waitcnt vmcnt({w})")
    wperm(vS + 16, WDQ)
    dot16(vS + 16, vHP, vBP)
    for k in range(4): a(f"v_mov_b32 v{vS+8+k}, 0")
    for k in range(4): a(f"v_mul_f32 v{vBP+k}, v{vBP+k}, v{vG+1}")
    a(f"s_waitcnt vmcnt({0 if h1first else nh})")
    wperm(PW, [WOR + 4 * p for p in range(4)])
    a("s_waitcnt vmcnt(0)")
    stamp(7)
    if not xp: poll(h1, [vH1 + 1, vH1 + 3, vH1 + 5, vH1 + 7], vA0, sleep1, first_issued=True)
    stamp(8)
    for r in (0, 2, 4, 6):
        a(f"v_and_b32 v{vH1+r+1}, 0xffff0000, v{vH1+r}")
        a(f"v_lshlrev_b32 v{vH1+r}, 16, v{vH1+r}")
    for r in range(4): a(f"v_add_f32 v{vH1+r}, v{vH1+r}, v{vH1+r+4}")
    tred4(vH1, vH1)
    a(f"""
    ds_write_b32 v{aR1W}, v{vH1} offset:{L_RED1}
    s_waitcnt lgkmcnt(0)
    s_barrier
    ds_read_b64 {vr(vS,2)}, v{aR1R} offset:{L_RED1}
    ds_read_b64 {vr(vS+2,2)}, v{aR1R} offset:{L_RED1+256}
    s_waitcnt lgkmcnt(0)
    v_add_f32 v{vS}, v{vS}, v{vS+2}
    v_add_f32 v{vS+1}, v{vS+1}, v{vS+3}
    v_add_f32_dpp v{vS}, v{vS}, v{vS} row_ror:4 {DPP}
    v_add_f32_dpp v{vS+1}, v{vS+1}, v{vS+1} row_ror:4 {DPP}
    v_add_f32_dpp v{vS}, v{vS}, v{vS} row_ror:8 {DPP}
    v_add_f32_dpp v{vS+1}, v{vS+1}, v{vS+1} row_ror:8 {DPP}
    v_cvt_pk_bf16_f32 v{vA0}, v{vS}, v{vS+1}
    """)
    dot16(PW, vA0, vS + 8)
    for k in range(4): a(f"v_fmac_f32 v{vBP+k}, v{vS+8+k}, v{vG}")
    tred4(vBP, vE)
    a(f"""
    s_cmp_lt_u32 s{sWV}, 4
    s_cbranch_scc1 L_lo
    ds_write_b32 v{aR3}, v{vE} offset:{L_RED3}
    s_waitcnt lgkmcnt(0)
    s_barrier
    s_branch L_st
    L_lo:
    s_barrier
    ds_read_b32 v{vA0}, v{aR3} offset:{L_RED3}
    s_waitcnt lgkmcnt(0)
    v_add_f32 v{vE}, v{vE}, v{vA0}
    buffer_store_dwordx2 {vr(vE,2)}, v{aFP}, {srd(WS_)}, s{sPB} offen sc1
    L_st:
    """)
    stamp(9)
    a("s_cmp_ge_u32 s2, 64")
    a("s_cbranch_scc1 L_fin")
    if ack2: a("s_waitcnt vmcnt(0)")
    poll([f"buffer_load_dwordx4 {vr(vS,4)}, v{aH2}, {srd(WS_)}, s{sA} offen sc1"], [vS + 1, vS + 3], vA0, sleep1)
    stamp(10)
    a(f"""
    v_permlane32_swap_b32 v{vS}, v{vS+2}
    v_add_f32 v{vS}, v{vS}, v{vS+2}
    v_add_f32_dpp v{vS}, v{vS}, v{vS} row_ror:8 {DPP}
    v_mov_b32 v{vA1}, v{vS}
    v_permlane16_swap_b32 v{vS}, v{vA1}
    v_add_f32 v{vS}, v{vS}, v{vA1}
    ds_write_b32 v{aR2W}, v{vS} offset:{L_RED2}
    s_waitcnt lgkmcnt(0)
    s_barrier
    s_cmp_lg_u32 s{sWV}, 0
    s_cbranch_scc1 L_fin
    ds_read_b64 {vr(vS,2)}, v{aL8} offset:{L_RED2}
    v_lshlrev_b32 v{vA2}, 2, v{vL}
    s_lshl_b32 s{sT0}, s{sI}, 5
    s_waitcnt lgkmcnt(0)
    """)
    red2_bits345(vS, vS + 1, vA0, vA1)
    a(f"""
    v_cvt_pk_bf16_f32 v{vA0}, v{vS}, v{vS+1}
    s_mov_b64 exec, 0xff
    buffer_store_dword v{vA0}, v{vA2}, {srd(OUT_)}, s{sT0} offen {outf.replace('+',' ')}
    s_cmp_lg_u32 s2, 0
    s_cbranch_scc1 L_fin
    s_mov_b64 exec, 1
    buffer_store_dword v{vTAG}, off, {srd(WS_)}, 0 {'' if ep else 'sc1'}
    L_fin:
    """)
    if probe >= 0:
        a(f"""
        s_cmp_lg_u32 s2, {pwg}
        s_cbranch_scc1 L_end
        s_cmp_lg_u32 s{sWV}, 4
        s_cbranch_scc1 L_end
        s_waitcnt lgkmcnt(0)
        s_sub_u32 s6, s100, s{sM0}
        s_lshl_b32 s6, s6, 2
        s_add_u32 s6, s6, 3000
        L_px:
        s_memrealtime s[4:5]
        s_waitcnt lgkmcnt(0)
        s_sub_u32 s4, s4, s{sM0}
        s_cmp_ge_u32 s4, s6
        s_cbranch_scc1 L_end
        s_sleep 1
        s_branch L_px
        """)
    if fix:
        a(f"""
        L_fx:
        s_memrealtime s[4:5]
        s_waitcnt lgkmcnt(0)
        s_sub_u32 s4, s4, s{sM0}
        s_cmp_ge_u32 s4, {fix}
        s_cbranch_scc1 L_fxd
        s_sleep 1
        s_branch L_fx
        L_fxd:
        """)
    if stamps:
        a("s_mov_b64 exec, -1")
        a("s_waitcnt vmcnt(0)")
        a(f"s_memrealtime s[{sST+22}:{sST+23}]")
        a(f"s_mul_i32 s{sT0}, s2, 9")
        a(f"s_add_u32 s{sT0}, s{sT0}, s{sWV}")
        a(f"s_mul_i32 s{sT0}, s{sT0}, {NS*8}")
        a(f"s_add_u32 s{sT0}, s{sT0}, {STAMP_OFF}")
        a("s_waitcnt lgkmcnt(0)")
        a("s_mov_b64 exec, 1")
        for j in range(NS):
            a(f"v_mov_b32 v{vA0}, s{sST+2*j}")
            a(f"v_mov_b32 v{vA1}, s{sST+2*j+1}")
            a(f"buffer_store_dwordx2 {vr(vA0,2)}, off, {srd(WS_)}, s{sT0} offset:{8*j}")
    a("L_end:")
    a("s_endpgm")

    cX = vACC; cG = vACC + 8
    cL4, cL8, cPA, cPF, cQW, cGP = vWDO, vQ, vQ + 1, vQ + 2, vQ + 3, vQ + 4
    a(f"""
    L_comm:
    """)
    if fast: a(late_s)
    a(f"""
    s_setprio 3
    s_mov_b32 s{sWB}, 0
    v_mov_b32 v{vA0}, 0
    v_lshlrev_b32 v{cL4}, 2, v{vL}
    s_mov_b64 exec, 0xffff
    ds_write_b32 v{cL4}, v{vA0}
    s_mov_b64 exec, -1
    s_mov_b32 s{GW_+2}, 2048
    s_mov_b32 s{GW_+3}, 0x20000
    s_waitcnt lgkmcnt(0)
    s_barrier
    s_mov_b64 s[{X_}:{X_+1}], s[76:77]
    s_mov_b64 s[{GW_}:{GW_+1}], s[94:95]
    """)
    if not ev: a(f"s_load_dword s{sC}, s[{WS_}:{WS_+1}], 0")
    roles()
    def touch_kv(ptr, tiles):
        for n_, t in enumerate(tiles):
            a(f"s_xor_b32 s25, s24, {t*(4<<20)}")
            a(f"s_load_dword s{26+n_}, s[{ptr}:{ptr+1}], s25")
    if touch:
        assert ix == 0
        a(f"""
        s_mov_b64 s[4:5], s[78:79]
        s_mov_b64 s[6:7], s[80:81]
        s_mov_b64 s[8:9], s[84:85]
        s_mov_b64 s[10:11], s[92:93]
        s_mul_i32 s24, s{sG}, {(1<<24) + (gx<<22)}
        s_lshl_b32 s25, s{sI}, 16
        s_add_u32 s24, s24, s25
        """)
        if touch & 1:
            a(f"""
            s_mul_i32 s25, s{sR8}, {128*7168}
            s_load_dword s20, s[88:89], s25
            s_load_dword s21, s[90:91], s25
            s_add_u32 s25, s25, {127*7168}
            s_load_dword s22, s[88:89], s25
            s_load_dword s23, s[90:91], s25
            """)
            touch_kv(4, [0])
    def preread():
        if not prer: return
        a(f"""
        v_lshlrev_b32 v{vA2}, 7, v{vL}
        s_lshl_b32 s{sT1}, s2, 12
        s_add_u32 s{sT1}, s{sT1}, {WS_OP}
        s_lshl_b32 s{sT3}, s{sRB}, 6
        s_add_u32 s{sT3}, s{sT3}, s{sPL}
        s_lshl_b32 s{sT3}, s{sT3}, 11
        s_add_u32 s{sT3}, s{sT3}, {WS_FP}
        s_mov_b32 exec_hi, 0
        """)
        if prer & 1: a(f"buffer_load_dword v{vR}, v{vA2}, {srd(WS_)}, s{sT1} offen")
        a("s_mov_b32 exec_lo, 0xffff")
        if prer & 2: a(f"buffer_load_dword v{vR+2}, v{vA2}, {srd(WS_)}, s{sT3} offen")
        a("s_mov_b64 exec, -1")
    if ev: a(f"buffer_load_dword v{vTAG}, off, {srd(WS_)}, 0 sc1")
    if prs == 1: preread()
    a(f"""
    v_lshlrev_b32 v{cL8}, 3, v{vL}
    v_lshrrev_b32 v{vA0}, 3, v{vL}
    v_and_b32 v{vA1}, 7, v{vL}
    v_lshlrev_b32 v{cPA}, 10, v{vA0}
    v_lshl_add_u32 v{cPA}, v{vA1}, 4, v{cPA}
    v_lshrrev_b32 v{vA0}, 5, v{vL}
    v_and_b32 v{vA1}, 31, v{vL}
    v_lshlrev_b32 v{cPF}, 10, v{vA0}
    v_lshl_add_u32 v{cPF}, v{vA1}, 4, v{cPF}
    v_mul_u32_u24 v{vA0}, 272, v{vA0}
    v_lshl_add_u32 v{cQW}, v{vA1}, 3, v{vA0}
    v_add_u32 v{cGP}, {L_GP}, v{cL8}
    s_lshl_b32 s{sT1}, s{sCB}, 13
    s_add_u32 s{sT1}, s{sT1}, {WS_QP}
    s_lshl_b32 s{sT2}, s{sR8}, 10
    s_add_u32 s{sA}, s{sT1}, s{sT2}
    s_lshl_b32 s{sT2}, s{sR8}, 7
    s_add_u32 s{sPA}, s{sT1}, s{sT2}
    s_lshl_b32 s{sT1}, s{sCB}, {9+gt}
    s_lshl_b32 s{sT2}, s{sR8}, {6+gt}
    s_add_u32 s{sB}, s{sT1}, s{sT2}
    s_add_u32 s{sB}, s{sB}, {WS_QG}
    s_lshl_b32 s{sPB}, s{sG}, {12+gt}
    s_add_u32 s{sPB}, s{sPB}, {WS_QG}
    """)
    if ev:
        a(f"s_waitcnt vmcnt({bin(prer).count('1') if prs == 1 else 0})")
        a(f"v_add_u32 v{vTAG}, 1, v{vTAG}")
    else:
        a("s_waitcnt lgkmcnt(0)")
        a(f"s_add_u32 s{sC}, s{sC}, 1")
        a(f"v_mov_b32 v{vTAG}, s{sC}")
    init_stamps()
    if "x" in dg:
        arrive(C_QS); arrive(C_H); a("s_waitcnt vmcnt(0) lgkmcnt(0)"); a("s_branch L_fin")
    def gp_publish(m, base, so, off):
        for k in range(4): a(f"ds_read2st64_b64 {vr(base+4*k,4)}, v{cGP} offset0:{8*m+2*k} offset1:{8*m+2*k+1}")
        a("s_waitcnt lgkmcnt(0)")
        for step in (2, 4, 8):
            for k in range(0, 16, 2 * step):
                a(f"v_add_f32 v{base+k}, v{base+k}, v{base+k+step}")
                a(f"v_add_f32 v{base+k+1}, v{base+k+1}, v{base+k+step+1}")
        a(f"v_mov_b32 v{base+2}, v{base+1}")
        a(f"v_mov_b32 v{base+1}, v{vTAG}")
        a(f"v_mov_b32 v{base+3}, v{vTAG}")
        a(f"buffer_store_dwordx4 {vr(base,4)}, v{vVO}, {srd(WS_)}, s{so} offen offset:{off}" + ("" if loc else " sc1"))
    wait_cnt(C_Q, 8, csleep)
    gp_publish(0, vT, sA, 0)
    stamp(1)
    if ackA: a("s_waitcnt vmcnt(0)")
    poll([f"buffer_load_dwordx4 {vr(vE,4)}, v{cPA}, {srd(WS_)}, s{sPA} offen sc1"], [vE + 1, vE + 3], vA0, asleep, wb=True)
    red2_bits345(vE, vE + 2, vA0, vA1)
    a(f"""
    v_cvt_pk_bf16_f32 v{vE}, v{vE}, v{vE+2}
    s_mov_b64 exec, 0xff00
    v_mov_b32 v{vE}, s{sM0}
    s_mov_b64 exec, {0xffff if gt else 0xff}
    buffer_store_dwordx2 {vr(vE,2)}, v{cL8}, {srd(WS_)}, s{sB} offen sc1
    s_mov_b64 exec, -1
    """)
    stamp(2)
    a(f"""
    buffer_load_dwordx4 {vr(cX,4)}, v{vVO}, {srd(X_)}, 0 offen
    buffer_load_dwordx4 {vr(cX+4,4)}, v{vVO}, {srd(X_)}, 0 offen offset:1024
    buffer_load_dwordx4 {vr(cG,4)}, v{vVO}, {srd(GW_)}, 0 offen
    buffer_load_dwordx4 {vr(cG+4,4)}, v{vVO}, {srd(GW_)}, 0 offen offset:1024
    s_lshl_b32 s{sKV}, s{sCB}, 14
    s_add_u32 s{sKV}, s{sKV}, {WS_FG}
    s_lshl_b32 s{sT2}, s{sR8}, 11
    s_add_u32 s{sA}, s{sKV}, s{sT2}
    s_and_b32 s{sT2}, s{sLC}, 1
    s_lshl_b32 s{sT2}, s{sT2}, 9
    s_add_u32 s{sKV}, s{sKV}, s{sT2}
    """)
    if touch & 2: touch_kv(4, [1, 2])
    wait_cnt(C_F, 8, csleep)
    gp_publish(1, vT, sA, 0)
    gp_publish(2, vP, sA, 1024)
    if loc: a(f"""
    s_cmp_eq_u32 s{sWB}, 0
    s_cbranch_scc1 L_nwb
    s_waitcnt vmcnt(0)
    buffer_wbl2 sc1
    s_waitcnt vmcnt(0)
    L_nwb:
    """)
    a(f"""
    s_waitcnt vmcnt(2)
    v_mov_b32 v{vB0}, 0
    """)
    for k in range(8):
        a(f"""
        v_lshlrev_b32 v{vA0}, 16, v{cX+k}
        v_and_b32 v{vA1}, 0xffff0000, v{cX+k}
        v_lshlrev_b32 v{vA2}, 16, v{cG+k}
        v_and_b32 v{vA3}, 0xffff0000, v{cG+k}
        v_mul_f32 v{vA0}, v{vA0}, v{vA2}
        v_mul_f32 v{vA1}, v{vA1}, v{vA3}
        v_cvt_pk_bf16_f32 v{vA0}, v{vA0}, v{vA1}
        v_lshlrev_b32 v{vA1}, 16, v{vA0}
        v_and_b32 v{vA0}, 0xffff0000, v{vA0}
        v_add_f32 v{vB0}, v{vB0}, v{vA0}
        v_add_f32 v{vB0}, v{vB0}, v{vA1}
        """)
    for nn_ in (1, 2, 4): a(f"v_add_f32_dpp v{vB0}, v{vB0}, v{vB0} row_ror:{nn_} {DPP}")
    red_bits345("add", vB0, vA3)
    a(f"""
    v_cvt_pk_bf16_f32 v{vA0}, v{vB0}, v{vB0}
    v_and_b32 v{vA0}, 0xffff0000, v{vA0}
    v_mul_f32 v{vA0}, {hex(f2u(-math.log2(math.e)))}, v{vA0}
    v_exp_f32 v{vA0}, v{vA0}
    v_add_f32 v{vA0}, 1.0, v{vA0}
    v_rcp_f32 v{vA0}, v{vA0}
    v_cvt_pk_bf16_f32 v{vA0}, v{vA0}, v{vA0}
    v_and_b32 v{vA0}, 0xffff0000, v{vA0}
    v_sub_f32 v{vA1}, 1.0, v{vA0}
    v_cvt_pk_bf16_f32 v{vA1}, v{vA1}, v{vA1}
    v_and_b32 v{vA1}, 0xffff0000, v{vA1}
    v_mov_b32 v{vA2}, 0
    s_mov_b64 exec, 1
    ds_write_b64 v{vA2}, {vr(vA0,2)} offset:{L_G}
    ds_write_b32 v{vA2}, v{vTAG} offset:{L_G+8}
    s_mov_b64 exec, -1
    """)
    wait_cnt(C_P1, cpn, 4)
    ql = [f"buffer_load_dwordx4 {vr(vS+4*k,4)}, v{vVO}, {srd(WS_)}, s{sPB} offen offset:{1024*k} sc1" for k in range(4)]
    if gt:
        a(f"""
        v_lshrrev_b32 v{vQ+5}, 2, v{vL}
        v_lshlrev_b32 v{vQ+5}, 6, v{vQ+5}
        v_add_u32 v{vQ+5}, v{vQ+5}, v{vVO}
        v_lshlrev_b32 v{vQ+6}, 7, v{vL}
        s_add_u32 s{sT1}, s{sPB}, 4096
        """)
        ql = [f"buffer_load_dwordx4 {vr(vS+4*k,4)}, v{vQ+5}, {srd(WS_)}, s{sPB if k < 2 else sT1} offen offset:{2048*(k%2)} sc1" for k in range(4)]
        ql.append(f"buffer_load_dwordx2 {vr(vS+16,2)}, v{vQ+6}, {srd(WS_)}, s{sPB} offen offset:64 sc1")
    poll(ql, [vS + 2 * k + 1 for k in range(8 + gt)], vA2, rsleep, wb=True)
    if gt:
        a(f"v_subrev_u32 v{vS+16}, s{sM0}, v{vS+16}")
        a(f"v_cvt_f32_i32 v{vS+16}, v{vS+16}")
        for nn_ in (1, 2, 4): a(f"v_min_f32_dpp v{vS+16}, v{vS+16}, v{vS+16} row_ror:{nn_} {DPP}")
        red_bits345("min", vS + 16, vA3)
        a(f"""
        v_cvt_i32_f32 v{vS+16}, v{vS+16}
        v_add_u32 v{vS+16}, s{sM0}, v{vS+16}
        v_mov_b32 v{vA2}, 0
        s_mov_b64 exec, 1
        ds_write_b32 v{vA2}, v{vS+16} offset:{L_G+12}
        s_mov_b64 exec, -1
        """)
    for k in range(4): a(f"v_mov_b32 v{vS+4*k+1}, v{vS+4*k+2}")
    for k in range(4): a(f"ds_write_b64 v{cQW}, {vr(vS+4*k,2)} offset:{L_QS+544*k}")
    arrive(C_QS)
    stamp(3)
    for k in range(1, 4): a(f"s_add_u32 s{sT0+k}, s{sKV}, {4096*k}")
    fl = [f"buffer_load_dwordx4 {vr(vS+4*k,4)}, v{cPF}, {srd(WS_)}, s{sKV if k < 2 else sT0+k//2} offen offset:{2048*(k%2)} sc1" for k in range(8)]
    poll(fl, [vS + 2 * k + 1 for k in range(16)], vA2, rsleep, wb=True)
    for step in (4, 8, 16):
        for k in range(0, 32, 2 * step):
            a(f"v_add_f32 v{vS+k}, v{vS+k}, v{vS+k+step}")
            a(f"v_add_f32 v{vS+k+2}, v{vS+k+2}, v{vS+k+step+2}")
    a(f"""
    v_cvt_pk_bf16_f32 v{vA0}, v{vS}, v{vS+2}
    v_mov_b32 v{vA1}, v{vA0}
    v_permlane32_swap_b32 v{vA0}, v{vA1}
    v_lshlrev_b32 v{vA2}, 16, v{vA0}
    v_and_b32 v{vA0}, 0xffff0000, v{vA0}
    v_lshlrev_b32 v{vA3}, 16, v{vA1}
    v_and_b32 v{vA1}, 0xffff0000, v{vA1}
    v_max_f32 v{vA2}, 0, v{vA2}
    v_max_f32 v{vA0}, 0, v{vA0}
    v_mul_f32 v{vA2}, v{vA2}, v{vA3}
    v_mul_f32 v{vA0}, v{vA0}, v{vA1}
    v_cvt_pk_bf16_f32 v{vA0}, v{vA2}, v{vA0}
    s_mov_b32 exec_hi, 0
    ds_write_b32 v{cL4}, v{vA0} offset:{L_H}
    s_mov_b64 exec, -1
    """)
    arrive(C_H)
    stamp(4)
    if prs == 0: preread()
    a(f"""
    s_lshl_b32 s{sA}, s2, {6+cal}
    s_add_u32 s{sA}, s{sA}, {WS_ML}
    s_lshl_b32 s{sPA}, s{sG}, {12+cal}
    s_add_u32 s{sPA}, s{sPA}, {WS_ML}
    s_add_u32 s{sT1}, s{sPA}, 4096
    v_lshrrev_b32 v{vQ+5}, 3, v{vL}
    v_lshlrev_b32 v{vQ+5}, 6, v{vQ+5}
    v_add_u32 v{vQ+5}, v{vQ+5}, v{cL8}
    v_lshlrev_b32 v{vQ+6}, 7, v{vL}
    """)
    if touch & 2:
        touch_kv(4, [3]); a("s_waitcnt lgkmcnt(0)"); touch_kv(6, [0, 1])
    wait_cnt(C_ST, 8, 4)
    if cal: a("s_memrealtime s[12:13]")
    a(f"ds_read_b64 {vr(vT,2)}, v{cL8} offset:{L_ST}")
    a("s_waitcnt lgkmcnt(0)")
    a(f"v_mov_b32 v{vB0}, v{vT}")
    red_bits345("max", vB0, vA3)
    a(f"v_sub_f32 v{vA3}, v{vT}, v{vB0}")
    a(f"v_exp_f32 v{vA3}, v{vA3}")
    a(f"v_mul_f32 v{vT+1}, v{vT+1}, v{vA3}")
    red_bits345("add", vT + 1, vA3)
    a(f"""
    v_log_f32 v{vB1}, v{vT+1}
    v_add_f32 v{vB0}, v{vB0}, v{vB1}
    v_mov_b32 v{vB1}, v{vTAG}
    s_mov_b64 exec, 0xff00
    v_mov_b32 v{vB0}, s{12 if cal else sC}
    s_mov_b64 exec, {0xffff if cal else 0xff}
    buffer_store_dwordx2 {vr(vB0,2)}, v{cL8}, {srd(WS_)}, s{sA} offen sc1
    s_mov_b64 exec, -1
    """)
    stamp(5)
    if prs == 2: preread()
    if midwb:
        a(f"s_cmp_ge_u32 s2, {midwb}")
        a("s_cbranch_scc1 L_nmw")
        a("buffer_wbl2 sc1")
        a("L_nmw:")
    ml = [f"buffer_load_dwordx2 {vr(vS+2*k,2)}, v{cL8}, {srd(WS_)}, s{sPA} offen offset:{512*k} sc1" for k in range(8)]
    if touch & 2:
        touch_kv(6, [2, 3])
        a(f"""
        s_min_u32 s25, s{sLC}, 55
        s_lshl_b32 s25, s25, 17
        s_load_dword s20, s[10:11], s25
        s_lshl_b32 s25, s{sG}, 21
        s_load_dword s21, s[8:9], s25
        """)
    wait_cnt(C_P2, cpn, 4)
    if cal:
        ml = [f"buffer_load_dwordx2 {vr(vS+2*k,2)}, v{vQ+5}, {srd(WS_)}, s{sPA if k < 4 else sT1} offen offset:{1024*(k%4)} sc1" for k in range(8)]
        ml.append(f"buffer_load_dwordx2 {vr(vS+16,2)}, v{vQ+6}, {srd(WS_)}, s{sPA} offen offset:64 sc1")
    poll(ml, [vS + 2 * k + 1 for k in range(len(ml))], vA0, rsleep, wb=True)
    if cal:
        a(f"v_subrev_u32 v{vS+16}, s12, v{vS+16}")
        a(f"v_cvt_f32_i32 v{vS+16}, v{vS+16}")
        for nn_ in (1, 2, 4): a(f"v_add_f32_dpp v{vS+16}, v{vS+16}, v{vS+16} row_ror:{nn_} {DPP}")
        red_bits345("add", vS + 16, vA3)
        a(f"""
        v_mul_f32 v{vS+16}, {hex(f2u(1/64))}, v{vS+16}
        v_cvt_i32_f32 v{vS+16}, v{vS+16}
        v_add_u32 v{vS+16}, s12, v{vS+16}
        v_mov_b32 v{vA2}, 0
        s_mov_b64 exec, 1
        ds_write_b32 v{vA2}, v{vS+16} offset:{L_TM}
        s_mov_b64 exec, -1
        """)
    M = vE
    a(f"v_max3_f32 v{M}, v{vS}, v{vS+2}, v{vS+4}")
    a(f"v_max3_f32 v{M}, v{M}, v{vS+6}, v{vS+8}")
    a(f"v_max3_f32 v{M}, v{M}, v{vS+10}, v{vS+12}")
    a(f"v_max_f32 v{M}, v{M}, v{vS+14}")
    red_bits345("max", M, vA3)
    for k in range(8): a(f"v_sub_f32 v{vS+2*k}, v{vS+2*k}, v{M}")
    for k in range(8): a(f"v_exp_f32 v{vS+2*k}, v{vS+2*k}")
    a(f"v_add_f32 v{M+1}, v{vS}, v{vS+2}")
    for k in range(2, 8): a(f"v_add_f32 v{M+1}, v{M+1}, v{vS+2*k}")
    red_bits345("add", M + 1, vA3)
    a(f"""
    v_sub_f32 v{vA1}, v{vT}, v{M}
    v_exp_f32 v{vA1}, v{vA1}
    v_rcp_f32 v{vA2}, v{M+1}
    v_mul_f32 v{vA1}, v{vA1}, v{vA2}
    v_and_b32 v{vA2}, 7, v{vL}
    v_lshlrev_b32 v{vA2}, 5, v{vA2}
    v_lshrrev_b32 v{vA3}, 3, v{vL}
    v_lshl_add_u32 v{vA2}, v{vA3}, 2, v{vA2}
    ds_write_b32 v{vA2}, v{vA1} offset:{L_F}
    s_waitcnt lgkmcnt(0)
    """)
    if endwb:
        a("s_cmp_lt_u32 s2, 248")
        a("s_cbranch_scc1 L_cend")
        for _ in range(endwb): a("s_barrier")
        a("buffer_wbl2 sc1")
        for _ in range(3 - endwb): a("s_barrier")
        a("L_cend:")
    a("s_branch L_fin" if stamps else "s_endpgm")
    ci = [k for k, l in enumerate(a.lines) if l.strip() == "L_comm:"][0]
    if "m" in dg:
        a.lines = a.lines[:ci] + [l.replace("0x40000", "0") if ("s_cmp_gt" in l and "0x400000" not in l) else l for l in a.lines[ci:] if "buffer_" not in l]
    if "d" in dg:
        a.lines = [l for l in a.lines if "v_dot2c_f32_bf16 " not in l and "v_mfma" not in l]
    lines = hazard.fix([l for l in a.lines if not l.strip().startswith(";")])
    body = "\n".join(lines)
    if ipf: body = body.replace("CODE_BYTES", "s8") + "\nL_code_end:"
    return wrap_single(body, 256, 576, lds, NVGPR, header=HEADER)

if __name__ == "__main__":
    kw = {}
    for s in sys.argv[2:]:
        k, v = s.split("=")
        try: v = int(v)
        except: pass
        kw[k] = v
    open(sys.argv[1], "w").write(gen(**kw))
```

```python
import sys, math, struct
from asmlib import *
import hazard
def f2u(x): return struct.unpack("<I", struct.pack("<f", x))[0]
HEADER = open("cdna_kernels/" + NAME + ".s.ref").read().split("; Override launch")[0]

HEADER += """;
;   hand-offs       : 8-byte {data, tag} granules in d_ws, tag = epoch word + 1 (the epoch is advanced at the end).
"""

WS_QG = 0x10000
WS_ML = 0x8000
WS_QP = 0x40000
WS_FG = 0x80000
WS_OP = 0x100000
WS_FP = 0x200000
WS_SIZE = 0x280000
STAMP_OFF = 128 << 20
C_Q, C_F, C_QS, C_ST, C_H, C_P1, C_P2, L_TM = 0, 4, 8, 12, 16, 20, 24, 28
L_H = 64
L_G = 192
L_GP = 256
L_QS = L_GP + 3 * 4096
L_ST = L_QS + 2176
L_F = L_ST + 512
L_RED1 = L_F + 256
L_RED2 = L_RED1 + 2048
L_RED3 = L_RED2 + 512
L_ORED = L_RED3 + 1024
L_END = L_ORED + 8 * 4224
sWV = 3
K_, V_, WQ_, WO_, WG_, WU_, WD_, X_, GW_, WS_, OUT_ = 4, 8, 12, 16, 20, 24, 28, 32, 36, 40, 44
def srd(b): return f"s[{b}:{b+3}]"
sG, sI, sPA, sPB, sKV = 48, 49, 50, 51, 52
sT0, sT1, sT2, sT3 = 53, 54, 55, 56
sSELLO, sSELHI, sC, sCAP, sA, sB, sKS = 57, 58, 59, 60, 61, 62, 63
sM0 = 64
sWD, sBOOST = 66, 67
sRB, sLC, sR8, sCB, sH1, sH1b, sPL, sXV = 68, 69, 70, 71, 72, 73, 74, 75
sST = 76
sCK = 36
sWB = 67
vL, vWDO, vT16, vTAG, vKO, vVO, vWOO, vWFO = 0, 1, 2, 3, 4, 5, 6, 7
vA0, vA1, vA2, vA3, vB0, vB1, vB2, vB3 = 8, 9, 10, 11, 12, 13, 14, 15
vT, vQ, vE, vP, vS, vACC, vR, vBP, vSP = 16, 32, 40, 48, 64, 96, 128, 160, 164
NVGPR = 168

def gen(WIN=3, WMAX=5, dyn0=10, stamps=0, sn="d", lds=82440, q_at=26, p1_at=19, p2_at=61, CA=140, CB=275, CK=6, gsh=2, k0=8,
        ca=2, cb=2, h1first=0, prer=2, fix=0, nfail=8, sleep1=2, csleep=1, asleep=4, rsleep=16, ackA=1, ack2=1, ex=3, cpn=6,
        notail=0, ncov=8, h1d=0, gt=0, CA2=None, lv=0, WLO=3, sp=0, ev=0, gx=0, ix=0, tw=0, t0=3, t1=9, qw=0, touch=0, outf='', midwb=0, endwb=0, prs=0, W0=4, W1=3, fast=0, loc=1, xp=0, cpos=0, cm=0, wofirst=0, hs=0, dry=0, h4=0, h4s=0, cal=0, CM=-15, CV=268, KR=48, probe=-1, pwg=42, rj=0, dg='', ipf=0, xl=0, ep=0, fx=0, po=0, merge=0):
    a = Asm()
    SN = set(str(sn).split("+"))
    NS = 12
    def stamp(k, name="d"):
        if stamps and name in SN: a(f"s_memrealtime s[{sST+2*k}:{sST+2*k+1}]")
    def vr(b, n): return f"v[{b}:{b+n-1}]"
    DPP = "row_mask:0xf bank_mask:0xf"
    def red_bits45(op, v, t):
        for sw in ("16", "32"):
            a(f"v_mov_b32 v{t}, v{v}")
            a(f"v_permlane{sw}_swap_b32 v{v}, v{t}")
            a(f"v_{op}_f32 v{v}, v{v}, v{t}")
    def red_bits345(op, v, t):
        a(f"v_{op}_f32_dpp v{v}, v{v}, v{v} row_ror:8 {DPP}")
        red_bits45(op, v, t)
    def red2_bits345(v0, v1, t0, t1):
        a(f"v_add_f32_dpp v{v0}, v{v0}, v{v0} row_ror:8 {DPP}")
        a(f"v_add_f32_dpp v{v1}, v{v1}, v{v1} row_ror:8 {DPP}")
        for sw in ("16", "32"):
            a(f"v_mov_b32 v{t0}, v{v0}")
            a(f"v_mov_b32 v{t1}, v{v1}")
            a(f"v_permlane{sw}_swap_b32 v{v0}, v{t0}")
            a(f"v_permlane{sw}_swap_b32 v{v1}, v{t1}")
            a(f"v_add_f32 v{v0}, v{v0}, v{t0}")
            a(f"v_add_f32 v{v1}, v{v1}, v{t1}")
    def tred4(v, dst):
        a(f"""
        v_permlane32_swap_b32 v{v}, v{v+2}
        v_permlane32_swap_b32 v{v+1}, v{v+3}
        v_add_f32 v{v}, v{v}, v{v+2}
        v_add_f32 v{v+1}, v{v+1}, v{v+3}
        v_permlane16_swap_b32 v{v}, v{v+1}
        v_add_f32 v{dst}, v{v}, v{v+1}
        """)
    def arrive(cnt):
        a(f"""
        v_mov_b32 v{vA0}, {cnt}
        v_mov_b32 v{vA1}, 1
        s_waitcnt lgkmcnt(0)
        s_mov_b64 exec, 1
        ds_add_u32 v{vA0}, v{vA1}
        s_mov_b64 exec, -1
        """)
    def wait_cnt(cnt, val, sl=1):
        l = a.label("Lw"); d = a.label("Lwd")
        a(f"""
        v_mov_b32 v{vA0}, {cnt}
        s_mov_b32 s{sCAP}, 0
        {l}:
        ds_read_b32 v{vA1}, v{vA0}
        s_waitcnt lgkmcnt(0)
        v_readfirstlane_b32 s{sT0}, v{vA1}
        s_cmp_ge_u32 s{sT0}, {val}
        s_cbranch_scc1 {d}
        s_add_u32 s{sCAP}, s{sCAP}, 1
        s_cmp_gt_u32 s{sCAP}, 0x400000
        s_cbranch_scc1 {d}
        s_sleep {sl}
        s_branch {l}
        {d}:
        """)
    def poll(loads, tagregs, tmp, sleep, first_issued=False, wb=False):
        lc = a.label("Lchk"); ld = a.label("Ldone")
        a(f"s_mov_b32 s{sCAP}, 0")
        if not first_issued:
            for l in loads: a(l)
            a("s_waitcnt vmcnt(0)")
        a(f"{lc}:")
        a(f"v_xor_b32 v{tmp}, v{tagregs[0]}, v{vTAG}")
        rest = list(tagregs[1:])
        for r in rest:
            a(f"v_xor_b32 v{tmp+1}, v{r}, v{vTAG}")
            a(f"v_or_b32 v{tmp}, v{tmp}, v{tmp+1}")
        a(f"v_cmp_ne_u32 vcc, 0, v{tmp}")
        a(f"s_and_b64 exec, exec, vcc")
        a(f"s_cbranch_scc0 {ld}")
        a(f"s_add_u32 s{sCAP}, s{sCAP}, 1")
        a(f"s_cmp_gt_u32 s{sCAP}, 0x40000")
        a(f"s_cbranch_scc1 {ld}")
        if wb and loc:
            lw = a.label("Lnw")
            a(f"s_and_b32 s{sT0}, s{sCAP}, {nfail-1}")
            a(f"s_cbranch_scc1 {lw}")
            a("buffer_wbl2 sc1")
            a("s_waitcnt vmcnt(0)")
            a(f"s_mov_b32 s{sWB}, 1")
            a(f"{lw}:")
        if sleep: a(f"s_sleep {sleep}")
        for l in loads: a(l)
        a("s_waitcnt vmcnt(0)")
        a(f"s_branch {lc}")
        a(f"{ld}:")
        a("s_mov_b64 exec, -1")
    def sum8(base):
        for step in (1, 2, 4):
            for k in range(0, 8, 2 * step): a(f"v_add_f32 v{base+k}, v{base+k}, v{base+k+step}")
    def init_stamps():
        if stamps:
            for k in range(NS): a(f"s_mov_b64 s[{sST+2*k}:{sST+2*k+1}], s[{sM0}:{sM0+1}]")

    a(f"""
    s_cmp_ge_u32 s2, 256
    s_cbranch_scc1 L_end
    s_load_dwordx16 s[76:91], s[0:1], 0
    """)
    if ipf:
        a(f"""
        s_getpc_b64 s[4:5]
        L_pc0:
        s_mov_b32 s8, L_code_end-L_pc0-4
        v_lshlrev_b32 v{vA2}, {7 if ipf == 1 else 6}, v0
        v_cmp_gt_u32 vcc, CODE_BYTES, v{vA2}
        s_and_saveexec_b64 s[6:7], vcc
        s_cbranch_execz L_nipf
        global_load_dword v{vSP}, v{vA2}, s[4:5]
        L_nipf:
        s_mov_b64 exec, s[6:7]
        """)
    a(f"""
    """)
    late_s = f"""
    s_load_dwordx8 s[92:99], s[0:1], 64
    s_load_dwordx2 s[{WS_}:{WS_+1}], s[0:1], 96
    s_memrealtime s[{sM0}:{sM0+1}]
    """
    if not fast: a(late_s)
    a(f"""
    v_lshrrev_b32 v{vA0}, 6, v0
    v_lshlrev_b32 v{vT16}, 4, v0
    v_readfirstlane_b32 s{sWV}, v{vA0}
    v_and_b32 v{vL}, 63, v0
    s_lshr_b32 s{sG}, s2, 6
    s_and_b32 s{sI}, s2, 63
    s_bfe_u32 s{sR8}, s2, 0x30003
    s_and_b32 s{sT0}, s2, 7
    s_lshl_b32 s{sT1}, s{sG}, 1
    s_xor_b32 s{sT0}, s{sT0}, s{sT1}
    s_lshl_b32 s{sT0}, s{sT0}, 2
    s_or_b32 s{sCB}, s{sT0}, s{sG}
    s_mov_b32 s{X_+2}, 2048
    s_mov_b32 s{X_+3}, 0x20000
    v_lshlrev_b32 v{vVO}, 4, v{vL}
    s_cmp_eq_u32 s{sWV}, 8
    s_cbranch_scc1 L_comm
    s_mov_b32 s{WQ_+2}, {1024*8192}
    s_mov_b32 s{WQ_+3}, 0x20000
    v_lshrrev_b32 v{vA0}, 4, v{vL}
    v_and_b32 v{vA1}, 15, v{vL}
    v_lshlrev_b32 v{vA1}, 4, v{vA1}
    v_lshl_add_u32 v{vA3}, v{vA0}, {13 if rj else 15}, v{vA1}
    v_lshlrev_b32 v{vA2}, 3, v{vA0}
    s_lshl_b32 s{sT3}, s{sR8}, 3
    s_add_u32 s{sT3}, s{sT3}, s{sWV}
    s_lshl_b32 s{sT0}, s{sCB}, 8
    s_lshl_b32 s{sA}, s{sT3}, 17
    s_add_u32 s{sA}, s{sA}, s{sT0}
    s_mul_i32 s{sB}, s{sT3}, {16*7168}
    s_add_u32 s{sB}, s{sB}, s{sT0}
    s_lshl_b32 s{sT3}, s{sT3}, 5
    s_add_u32 s{sT0}, s{sA}, {8192*(4 if rj else 1)}
    s_add_u32 s{sT1}, s{sA}, {16384*(4 if rj else 1)}
    s_add_u32 s{sT2}, s{sA}, {24576*(4 if rj else 1)}
    s_waitcnt lgkmcnt(0)
    s_mov_b64 s[{WQ_}:{WQ_+1}], s[82:83]
    s_mov_b64 s[{X_}:{X_+1}], s[76:77]
    """)
    R0, R1, A0, A1 = vR, vR + 16, vACC, vACC + 16
    WQR, WGR, WUR = R0, R1, A0
    vXP = vB0
    xld = f"buffer_load_dwordx2 {vr(vXP,2)}, v{vA2}, {srd(X_)}, s{sT3} offen"
    if rj: xl = 0
    if not xl and not rj: a(xld)
    for j in range(4): a(f"buffer_load_dwordx4 {vr(WQR+4*j,4)}, v{vA3}, {srd(WQ_)}, s{[sA,sT0,sT1,sT2][j]} offen nt")
    if xl: a(xld)
    if rj and not fast: a(f"s_load_dwordx8 s[32:39], s[76:77], s{sT3}")
    if fast: a(late_s)
    def roles():
        a(f"""
        s_and_b32 s{sRB}, s{sR8}, 3
        s_lshr_b32 s{sLC}, s{sR8}, 2
        s_lshl_b32 s{sT0}, s{sCB}, 1
        s_or_b32 s{sLC}, s{sLC}, s{sT0}
        s_lshr_b32 s{sPL}, s2, 5
        s_lshl_b32 s{sPL}, s{sPL}, 3
        s_and_b32 s{sT0}, s2, 7
        s_or_b32 s{sPL}, s{sPL}, s{sT0}
        s_mov_b32 s{WS_+2}, {WS_SIZE if not stamps else (256<<20)}
        s_mov_b32 s{WS_+3}, 0x20000
        """)
    vX = vT; vGA = vT + 8
    a(f"""
    v_mul_u32_u24 v{vWFO}, {(1 if rj else 4)*7168}, v{vA0}
    v_mul_u32_u24 v{vB2}, 0x202, v{vA0}
    v_add_u32 v{vB2}, 0x0c0c0100, v{vB2}
    v_alignbit_b32 v{vB3}, v{vB2}, v{vB2}, 16
    v_add_u32 v{vWFO}, v{vWFO}, v{vA1}
    s_cmp_lt_u32 s{sCB}, 28
    s_cselect_b32 s{WG_+2}, {1024*7168}, 0
    s_cselect_b32 s{WU_+2}, {1024*7168}, 0
    s_cselect_b32 s{WD_+2}, {3584*2048}, 0
    s_mov_b32 s{WG_+3}, 0x20000
    s_mov_b32 s{WU_+3}, 0x20000
    s_mov_b64 s[{WG_}:{WG_+1}], s[88:89]
    s_mov_b64 s[{WU_}:{WU_+1}], s[90:91]
    s_mov_b64 s[{K_}:{K_+1}], s[78:79]
    s_mov_b64 s[{V_}:{V_+1}], s[80:81]
    s_mov_b64 s[{WO_}:{WO_+1}], s[84:85]
    s_mov_b32 s{K_+2}, 0x4000000
    s_mov_b32 s{K_+3}, 0x20000
    s_mov_b32 s{V_+2}, 0x4000000
    s_mov_b32 s{V_+3}, 0x20000
    s_mov_b32 s{WO_+2}, {4096*2048}
    s_mov_b32 s{WO_+3}, 0x20000
    s_mov_b32 s{WD_+3}, 0x20000
    s_mov_b32 s{OUT_+2}, 2048
    s_mov_b32 s{OUT_+3}, 0x20000
    s_mov_b32 s{sSELLO}, 0x05040100
    s_mov_b32 s{sSELHI}, 0x07060302
    s_mov_b32 s{sC}, {hex(f2u(128**-0.5 * math.log2(math.e)))}
    s_mov_b32 s{sBOOST}, {WIN if lv else 0}
    s_mul_i32 s{sKV}, s{sG}, {(1<<24) + (gx<<22)}
    """)
    if ix == 0:
        a(f"s_lshl_b32 s{sT0}, s{sI}, 16")
        a(f"s_add_u32 s{sKV}, s{sKV}, s{sT0}")
    else:
        pos = {1: [17, 18, 19, 16, 20, 21], 2: [16, 17, 19, 18, 20, 21]}[ix]
        for b in range(6):
            a(f"s_bfe_u32 s{sT0}, s2, {0x10000 + b}")
            a(f"s_lshl_b32 s{sT0}, s{sT0}, {pos[b]}")
            a(f"s_add_u32 s{sKV}, s{sKV}, s{sT0}")
    a(f"""
    s_lshl_b32 s{sT0}, s{sWV}, 13
    s_add_u32 s{sKV}, s{sKV}, s{sT0}
    s_lshl_b32 s{sT0}, s{sWV}, 10
    s_add_u32 s{sXV}, s{sKV}, s{sT0}
    s_and_b32 s{sT1}, s{sT0}, 4096
    s_add_u32 s{sKV}, s{sKV}, s{sT1}
    s_and_b32 s{sT0}, s{sT0}, 3072
    v_lshlrev_b32 v{vA2}, 1, v{vA1}
    v_lshl_add_u32 v{vA2}, v{vA0}, 3, v{vA2}
    s_lshl_b32 s{sT1}, s{sWV}, 9
    v_add_u32 v{vGA}, s{sT1}, v{vA2}
    v_and_b32 v{vA2}, 3, v{vL}
    v_lshlrev_b32 v{vA2}, 10, v{vA2}
    v_xor_b32 v{vA2}, s{sT0}, v{vA2}
    v_bfe_u32 v{vA3}, v{vL}, 2, 1
    v_lshl_add_u32 v{vA2}, v{vA3}, 8, v{vA2}
    v_bfe_u32 v{vA3}, v{vL}, 3, 1
    v_lshl_add_u32 v{vA2}, v{vA3}, 6, v{vA2}
    v_lshl_add_u32 v{vKO}, v{vA0}, 4, v{vA2}
    v_mov_b32 v{vE+6}, 0
    v_mov_b32 v{vE+7}, 0x40000000
    """)
    roles()
    if fast: a("s_waitcnt lgkmcnt(0)")
    a(f"""
    s_mov_b64 s[{WD_}:{WD_+1}], s[92:93]
    s_mov_b64 s[{OUT_}:{OUT_+1}], s[96:97]
    """)
    init_stamps()
    for r in range(24): a(f"v_mov_b32 v{vS+r}, 0")
    a("s_barrier")

    U = []
    for j in range(4): U.append((f"wq{j}", None, 2 if (xl and j == 3) else 1, None))
    for nm, R, S_ in (("gate", WGR, WG_), ("up", WUR, WU_)):
        for j in range(4):
            U.append((f"{nm}{j}", [f"s_add_u32 s{sT3}, s{sB}, {j*7168*(4 if rj else 1)}", f"buffer_load_dwordx4 {vr(R+4*j,4)}, v{vWFO}, {srd(S_)}, s{sT3} offen nt"], 1, None))
    WDQ = [vP, vP + 4, vP + 8, vSP]
    WOR = vT; PW = R0
    def wdunit(j, pre):
        if sp:
            U.append((f"wd{j}", [f"v_mov_b32_dpp v{vA2}, v{vE+5} row_newbcast:{j} {DPP}",
                      f"v_and_b32 v{vA3}, 0x7fff0000, v{vA2}", f"v_and_b32 v{vA2}, 0x7fff, v{vA2}",
                      f"v_cmp_ne_u32 vcc, 0, v{vA2}", f"v_cndmask_b32 v{vA2}, v{vE+7}, v{vWDO}, vcc",
                      f"v_cmp_ne_u32 vcc, 0, v{vA3}", f"v_cndmask_b32 v{vA3}, v{vE+7}, v{vWDO}, vcc",
                      f"s_xor_b32 s{sT3}, s{sWD}, {j*4096}", f"buffer_load_dwordx2 {vr(WDQ[j],2)}, v{vA2}, {srd(WD_)}, s{sT3} offen nt",
                      f"buffer_load_dwordx2 {vr(WDQ[j]+2,2)}, v{vA3}, {srd(WD_)}, s{sT3} offen offset:2048 nt"], 2, pre))
            return
        U.append((f"wd{j}", [f"s_xor_b32 s{sT3}, s{sWD}, {j*4096}", f"buffer_load_dwordx2 {vr(WDQ[j],2)}, v{vWDO}, {srd(WD_)}, s{sT3} offen nt",
                  f"buffer_load_dwordx2 {vr(WDQ[j]+2,2)}, v{vWDO}, {srd(WD_)}, s{sT3} offen offset:2048 nt"], 2, pre))
    KSL = [A1, vP, R0, R1, A0, A1, vP, A0]
    KPRE = [None, None, "wq", "gate", "up", "K0", "K1", "K4"]
    for g in range(8):
        t, u = g >> 1, g & 1
        for k in range(4):
            l = [f"s_xor_b32 s{sKS}, s{sKV}, {t*(4<<20) + u*4096}"] if k == 0 else []
            l.append(f"buffer_load_dwordx4 {vr(KSL[g]+4*k,4)}, v{vKO}, {srd(K_)}, s{sKS} offen offset:{(k>>1)*512+(k&1)*128} nt")
            U.append((f"K{g}_{k}", l, 1, KPRE[g]))
    nearly = 8 - ncov
    order = [3, 0, 1, 2]
    for t in range(4):
        if t == 3:
            for j in order[:min(nearly, 3)]: wdunit(j, "V1m")
        for j in range(8):
            if t == 3 and j == 4 and nearly == 4: wdunit(2, "V2m")
            U.append((f"V{t}_{j}", [f"s_xor_b32 s{sKS}, s{sXV}, {t*(4<<20) + j*1024}",
                      f"buffer_load_dwordx4 {vr(vR+4*j,4)}, v{vVO}, {srd(V_)}, s{sKS} offen nt"], 1, f"K{2+(j>>2)}" if t == 0 else f"V{t-1}p{j>>1}"))
    for j in order[nearly:]: wdunit(j, "V2m")
    for j in range(4):
        l = []
        for e in range(2 * j, 2 * j + 2):
            l += [f"s_xor_b32 s{sT3}, s{sB}, {e*16384}", f"buffer_load_dwordx2 {vr(WOR+2*e,2)}, v{vWOO}, {srd(WO_)}, s{sT3} offen nt"]
        U.append((f"wo{j}", l, 2, "pre"))
    if merge:
        k0_ = [u[0] for u in U].index("wd3")
        w = U[k0_:k0_ + 4]
        U[k0_:k0_ + 4] = [("wd0", w[0][1] + w[1][1], 4, w[1][3]), ("wd2", w[2][1] + w[3][1], 4, w[3][3])]
    names = [u[0] for u in U]
    idx = {n: k for k, n in enumerate(names)}

    consumed = set()
    def task_g(m, j):
        W, acc = [(WQR, vS), (WGR, vS + 8), (WUR, vS + 16)][m]
        if m == 0 and j == 0 and rj:
            a("s_waitcnt lgkmcnt(0)")
            for jj in range(4):
                a(f"v_mov_b32 v{vA0}, s{32+2*jj}")
                a(f"v_perm_b32 v{vX+2*jj}, s{33+2*jj}, v{vA0}, v{vB2}")
                a(f"v_perm_b32 v{vX+2*jj+1}, s{33+2*jj}, v{vA0}, v{vB3}")
        elif m == 0 and j == 0:
            for h in range(2):
                a(f"v_and_b32 v{vX+4*h}, 0xffff, v{vXP+h}")
                a(f"v_lshlrev_b32 v{vX+4*h+1}, 16, v{vXP+h}")
                a(f"v_lshrrev_b32 v{vX+4*h+2}, 16, v{vXP+h}")
                a(f"v_and_b32 v{vX+4*h+3}, 0xffff0000, v{vXP+h}")
        if "g" in dg:
            if j == 3: consumed.add(["wq", "gate", "up"][m])
            return
        for w in range(4):
            a(f"v_dot2c_f32_bf16 v{acc+2*w}, v{W+4*j+w}, v{vX+2*j}")
            a(f"v_dot2c_f32_bf16 v{acc+2*w+1}, v{W+4*j+w}, v{vX+2*j+1}")
        if j == 3:
            consumed.add(["wq", "gate", "up"][m])
            for k in range(4): a(f"v_permlane32_swap_b32 v{acc+k}, v{acc+k+4}")
            for k in range(4): a(f"v_add_f32 v{acc+k}, v{acc+k}, v{acc+k+4}")
            for k in range(2): a(f"v_permlane16_swap_b32 v{acc+k}, v{acc+k+2}")
            for k in range(2): a(f"v_add_f32 v{acc+k}, v{acc+k}, v{acc+k+2}")
            a(f"ds_write_b64 v{vGA}, {vr(acc,2)} offset:{L_GP+4096*m}")
            if m != 1: arrive(C_Q if m == 0 else C_F)
            if m == 0: stamp(1)
    def wperm(dst, quads):
        for p in range(4):
            for d in range(2):
                a(f"v_perm_b32 v{dst+4*p+2*d}, v{quads[p]+2+d}, v{quads[p]+d}, s{sSELLO}")
                a(f"v_perm_b32 v{dst+4*p+2*d+1}, v{quads[p]+2+d}, v{quads[p]+d}, s{sSELHI}")
    def dot16(W, vO, acc):
        for p in range(4):
            for c in range(4): a(f"v_dot2c_f32_bf16_dpp v{acc+c}, v{vO}, v{W+4*p+c} row_newbcast:{p} {DPP}")
    def task_qwait():
        stamp(2)
        wait_cnt(C_QS, 1)
        a(f"""
        v_and_b32 v{vA0}, 7, v{vL}
        v_mul_u32_u24 v{vA0}, 272, v{vA0}
        v_bfe_u32 v{vA1}, v{vL}, 3, 1
        v_lshl_add_u32 v{vA0}, v{vA1}, 6, v{vA0}
        v_lshrrev_b32 v{vA1}, 4, v{vL}
        v_lshl_add_u32 v{vA0}, v{vA1}, 4, v{vA0}
        """)
        for s in range(2): a(f"ds_read_b128 {vr(vQ+4*s,4)}, v{vA0} offset:{L_QS+128*s}")
        if gt: a(f"ds_read_b32 v{vA1}, v{vE+6} offset:{L_G+12}")
        a("s_waitcnt lgkmcnt(0)")
        if gt:
            a(f"v_readfirstlane_b32 s{sM0}, v{vA1}")
            st["ca"] = CA2 if CA2 is not None else CA
        stamp(3)
    def task_k(g):
        base = KSL[g]; dx = vS + 4 * g; dy = vT
        for sp in range(2):
            a(f"v_mfma_f32_16x16x32_bf16 {vr(dx,4)}, {vr(base+4*sp,4)}, {vr(vQ+4*sp,4)}, {'0' if sp==0 else vr(dx,4)}")
            a(f"v_mfma_f32_16x16x32_bf16 {vr(dy,4)}, {vr(base+8+4*sp,4)}, {vr(vQ+4*sp,4)}, {'0' if sp==0 else vr(dy,4)}")
        for r in range(4): a(f"v_permlane32_swap_b32 v{dx+r}, v{dy+r}")
        for r in range(4): a(f"v_add_f32_dpp v{dx+r}, v{dy+r}, v{dx+r} row_ror:8 {DPP}")
        consumed.add(f"K{g}")
    vM = vE
    def sm_max():
        a(f"v_max3_f32 v{vM}, v{vS}, v{vS+1}, v{vS+2}")
        a(f"v_max3_f32 v{vA2}, v{vS+3}, v{vS+4}, v{vS+5}")
        for k in range(6, 30, 4):
            a(f"v_max3_f32 v{vM}, v{vM}, v{vS+k}, v{vS+k+1}")
            a(f"v_max3_f32 v{vA2}, v{vA2}, v{vS+k+2}, v{vS+k+3}")
        a(f"v_max3_f32 v{vM}, v{vM}, v{vS+30}, v{vS+31}")
        a(f"v_max_f32 v{vM}, v{vM}, v{vA2}")
        red_bits45("max", vM, vA2)
        a(f"v_mul_f32 v{vM}, s{sC}, v{vM}")
    def sm_exp(t):
        for k in range(8 * t, 8 * t + 8): a(f"v_fma_f32 v{vS+k}, v{vS+k}, s{sC}, -v{vM}")
        for k in range(8 * t, 8 * t + 8): a(f"v_exp_f32 v{vS+k}, v{vS+k}")
        for k in range(4 * t, 4 * t + 4): a(f"v_cvt_pk_bf16_f32 v{vP+k}, v{vS+2*k}, v{vS+2*k+1}")
        sum8(vS + 8 * t)
    def sm_fin():
        a(f"v_add_f32 v{vS}, v{vS}, v{vS+8}")
        a(f"v_add_f32 v{vS+16}, v{vS+16}, v{vS+24}")
        a(f"v_add_f32 v{vM+1}, v{vS}, v{vS+16}")
        red_bits45("add", vM + 1, vA2)
        a(f"""
        s_lshl_b32 s{sT0}, s{sWV}, 6
        v_lshl_add_u32 v{vA2}, v{vL}, 3, s{sT0}
        s_mov_b64 exec, 0xff
        ds_write_b64 v{vA2}, {vr(vM,2)} offset:{L_ST}
        s_mov_b64 exec, -1
        """)
        arrive(C_ST)
        stamp(4)
    def task_vperm(t, uu):
        for w in range(4):
            a(f"v_perm_b32 v{vS+4*(2*w)+uu}, v{vR+4*(2*uu+1)+w}, v{vR+4*(2*uu)+w}, s{sSELLO}")
            a(f"v_perm_b32 v{vS+4*(2*w+1)+uu}, v{vR+4*(2*uu+1)+w}, v{vR+4*(2*uu)+w}, s{sSELHI}")
        consumed.add(f"V{t}p{uu}")
        if uu == 3:
            for i in range(8):
                c = "0" if t == 0 else vr(vACC + 4 * i, 4)
                a(f"v_mfma_f32_16x16x32_bf16 {vr(vACC+4*i,4)}, {vr(vS+4*i,4)}, {vr(vP+4*t,4)}, {c}")
            consumed.add(f"V{t}m")
    aOW, aOR, aF, aH1, aR2W, aL8, aH2, aR1W = [vQ + k for k in range(8)]
    aR1R, aFP, aR3, vG, vHP = vKO, vWFO, vE + 4, vE + 2, vE + 5
    def task_pre1():
        a(f"""
        v_lshrrev_b32 v{vA1}, 4, v{vL}
        v_and_b32 v{vA2}, 7, v{vL}
        v_mul_u32_u24 v{vA0}, 528, v{vA2}
        v_lshl_add_u32 v{vA0}, v{vA1}, 4, v{vA0}
        s_mul_i32 s{sT0}, s{sWV}, 4224
        v_add_u32 v{aOW}, s{sT0}, v{vA0}
        s_mul_i32 s{sT0}, s{sWV}, 528
        v_lshl_add_u32 v{aOR}, v{vL}, 3, s{sT0}
        s_lshl_b32 s{sT0}, s{sWV}, 5
        v_mov_b32 v{aF}, s{sT0}
        v_lshrrev_b32 v{vA0}, 5, v{vL}
        v_lshlrev_b32 v{vA3}, 2, v{vA0}
        v_lshl_add_u32 v{vA3}, v{vA2}, 3, v{vA3}
        s_lshl_b32 s{sT0}, s{sWV}, 6
        v_add_u32 v{aR2W}, s{sT0}, v{vA3}
        v_lshlrev_b32 v{aL8}, 3, v{vL}
        v_and_b32 v{vA2}, 15, v{vL}
        s_and_b32 s{sT1}, s{sWV}, 3
        s_lshl_b32 s{sT0}, s{sT1}, 7
        v_lshl_add_u32 v{vA3}, v{vA2}, 3, s{sT0}
        v_lshl_add_u32 v{vWDO}, v{vA1}, 14, v{vA3}
        v_lshl_add_u32 v{vA3}, v{vA0}, 11, v{vA3}
        v_and_b32 v{vA0}, 1, v{vA1}
        v_lshl_add_u32 v{vWOO}, v{vA0}, 17, v{vA3}
        v_lshl_add_u32 v{vA0}, v{vA2}, 2, v{vA1}
        s_lshl_b32 s{sT0}, s{sT1}, 9
        v_lshl_add_u32 v{aFP}, v{vA0}, 3, s{sT0}
        s_lshl_b32 s{sT0}, s{sWV}, 8
        v_lshl_add_u32 v{aR1W}, v{vA0}, 2, s{sT0}
        s_lshl_b32 s{sT0}, s{sT1}, 8
        v_lshl_add_u32 v{aR3}, v{vL}, 2, s{sT0}
        v_lshrrev_b32 v{vA0}, 8, v{vT16}
        v_lshlrev_b32 v{vA0}, 12, v{vA0}
        v_and_b32 v{vA2}, 0xf0, v{vT16}
        v_add_u32 v{aH1}, v{vA0}, v{vA2}
        v_lshrrev_b32 v{vA0}, 7, v{vT16}
        v_lshlrev_b32 v{vA0}, 11, v{vA0}
        v_and_b32 v{vA2}, 0x70, v{vT16}
        v_add_u32 v{aH2}, v{vA0}, v{vA2}
        v_lshrrev_b32 v{vT16}, 1, v{vT16}
        """)
    def task_pre2():
        wait_cnt(C_H, 1)
        a(f"""
        v_and_b32 v{vA3}, 3, v{vL}
        s_and_b32 s{sT1}, s{sWV}, {ex}
        v_xor_b32 v{vA3}, s{sT1}, v{vA3}
        v_lshrrev_b32 v{vA2}, 4, v{vL}
        v_lshl_add_u32 v{vA2}, v{vA2}, 2, v{vA3}
        s_lshr_b32 s{sT2}, s{sWV}, 2
        s_lshl_b32 s{sT0}, s{sT2}, 4
        v_add_u32 v{vA2}, s{sT0}, v{vA2}
        v_bfe_u32 v{vA3}, v{vL}, 2, 2
        v_lshlrev_b32 v{vA3}, 9, v{vA3}
        v_lshl_add_u32 v{aR1R}, v{vA2}, 3, v{vA3}
        v_lshlrev_b32 v{vA2}, 2, v{vA2}
        ds_read_b32 v{vHP}, v{vA2} offset:{L_H}
        ds_read_b64 {vr(vG,2)}, v{vE+6} offset:{L_G}
        ds_read_b32 v{vTAG}, v{vE+6} offset:{L_G+8}
        s_lshl_b32 s{sWD}, s{sLC}, 17
        s_lshl_b32 s{sT0}, s{sT2}, 16
        s_add_u32 s{sWD}, s{sWD}, s{sT0}
        s_lshl_b32 s{sT0}, s{sT1}, 12
        s_add_u32 s{sWD}, s{sWD}, s{sT0}
        s_lshl_b32 s{sT0}, s{sRB}, 9
        s_add_u32 s{sWD}, s{sWD}, s{sT0}
        s_lshl_b32 s{sB}, s{sT1}, 15
        s_add_u32 s{sB}, s{sB}, s{sT0}
        s_lshl_b32 s{sT0}, s{sT2}, 12
        s_add_u32 s{sB}, s{sB}, s{sT0}
        s_lshr_b32 s{sT1}, s{sR8}, 2
        s_lshl_b32 s{sT0}, s{sT1}, 13
        s_add_u32 s{sB}, s{sB}, s{sT0}
        s_and_b32 s{sT2}, s2, 7
        s_lshl_b32 s{sT0}, s{sG}, 3
        s_add_u32 s{sT0}, s{sT0}, s{sT2}
        s_lshl_b32 s{sT0}, s{sT0}, 18
        s_add_u32 s{sB}, s{sB}, s{sT0}
        s_lshl_b32 s{sH1}, s{sG}, 18
        s_lshl_b32 s{sT0}, s{sT2}, 9
        s_add_u32 s{sH1}, s{sH1}, s{sT0}
        s_lshl_b32 s{sT0}, s{sT1}, 8
        s_add_u32 s{sH1}, s{sH1}, s{sT0}
        s_add_u32 s{sH1}, s{sH1}, {WS_OP}
        s_add_u32 s{sH1b}, s{sH1}, {32*4096}
        s_lshl_b32 s{sPA}, s2, 12
        s_add_u32 s{sPA}, s{sPA}, {WS_OP}
        s_lshl_b32 s{sPB}, s{sRB}, 6
        s_add_u32 s{sPB}, s{sPB}, s{sPL}
        s_lshl_b32 s{sPB}, s{sPB}, 11
        s_add_u32 s{sPB}, s{sPB}, {WS_FP}
        s_lshl_b32 s{sI}, s{sT2}, 3
        s_or_b32 s{sI}, s{sI}, s{sR8}
        s_mov_b32 s{sI}, s{sI if fx else 2}
        s_lshr_b32 s{sA}, s{sI}, 4
        s_lshl_b32 s{sA}, s{sA}, 17
        s_and_b32 s{sT0}, s{sI}, 15
        s_lshl_b32 s{sT0}, s{sT0}, 7
        s_add_u32 s{sA}, s{sA}, s{sT0}
        s_add_u32 s{sA}, s{sA}, {WS_FP}
        s_waitcnt lgkmcnt(0)
        v_mov_b32 v{vB1}, v{vTAG}
        v_mov_b32 v{vE+1}, v{vTAG}
        """)
        for k in range(4): a(f"v_mov_b32 v{vBP+k}, 0")
        if po:
            a(f"""
            s_cmp_ge_u32 s2, 64
            s_cbranch_scc1 L_npo
            s_cmp_lg_u32 s{sWV}, 0
            s_cbranch_scc1 L_npo
            s_lshl_b32 s{sT0}, s{sI}, 5
            buffer_load_dword v{vE}, off, {srd(OUT_)}, s{sT0}
            L_npo:
            """)
        consumed.add("pre")
    vH1 = R1; vF = R1 + 8
    h1 = [f"buffer_load_dwordx4 {vr(vH1+4*k,4)}, v{aH1}, {srd(WS_)}, s{sH1+k} offen sc1" for k in range(2)]
    if xp & 4: h1 = []

    C = []
    for m, nm in enumerate(("wq", "gate", "up")):
        if m == 0 and xl: C.append((3, lambda: [task_g(0, j) for j in range(4)]))
        else:
            for j in range(4): C.append((idx[f"{nm}{j}"], lambda m=m, j=j: task_g(m, j)))
    C.append((p1_at, lambda: arrive(C_P1)))
    C.append((p2_at, lambda: arrive(C_P2)))
    C.append((q_at, task_qwait))
    for g in range(8): C.append((max(q_at, idx[f"K{g}_3"]), lambda g=g: task_k(g)))
    kend = idx["K7_3"]
    C.append((kend, sm_max))
    for t in range(4): C.append((kend, lambda t=t: sm_exp(t)))
    C.append((kend, sm_fin))
    for t in range(4):
        for uu in range(4): C.append((idx[f"V{t}_{2*uu+1}"], lambda t=t, uu=uu: task_vperm(t, uu)))
    C.append((idx["V1_2"], task_pre1)); C.append((idx["V1_4"], task_pre2))
    C.sort(key=lambda c: c[0])
    n = len(U); stop_at = idx["V3_7"]
    st = {"issued": 4, "c": 0, "ca": CA}
    def run_chunk():
        C[st["c"]][1](); st["c"] += 1
    def issue_upto(lim, arrived, throttle=True):
        while st["issued"] < min(n, lim):
            k = st["issued"]
            nm, lines, nv, pre = U[k]
            if throttle and k - WIN >= stop_at: return
            while pre is not None and pre not in consumed:
                assert C[st["c"]][0] <= arrived, ("issue blocked", nm, names[arrived])
                run_chunk()
            if throttle and k >= dyn0 and lv:
                lk = a.label("Li")
                wlo = WLO
                if tw and idx["V0_0"] + t0 <= k <= idx["V0_0"] + t1: wlo = tw
                if qw and q_at + WMAX - 1 <= k <= q_at + WMAX + 3: wlo = qw
                for w in range(WMAX - 1, wlo - 1, -1):
                    if w < WIN and k - w >= stop_at: break
                    a(f"s_cmp_gt_i32 s{sBOOST}, {w}")
                    a(f"s_cbranch_scc1 {lk}")
                    a(f"s_waitcnt vmcnt({sum(u[2] for u in U[k-w+1:k])})")
                a(f"{lk}:")
            elif throttle and k >= dyn0:
                lk = a.label("Li")
                a(f"s_cmp_gt_u32 s{sBOOST}, {k}")
                a(f"s_cbranch_scc1 {lk}")
                a(f"s_waitcnt vmcnt({sum(u[2] for u in U[k-WIN+1:k])})")
                a(f"{lk}:")
            for x in lines: a(x)
            st["issued"] += 1
    issue_upto(W0, -1)
    for arrived in range(stop_at + 1):
        assert st["issued"] > arrived
        a(f"s_waitcnt vmcnt({sum(u[2] for u in U[arrived + 1:st['issued']])})")
        if arrived == probe: a("s_memrealtime s[100:101]")
        if arrived % 8 == 7: stamp(arrived // 8 + 1, "u")
        if arrived % 6 == 5 and arrived < 60: stamp(arrived // 6 + 1, "s")
        if arrived >= k0 and arrived < stop_at - 3:
            if (arrived - k0) % CK == 0:
                a(f"s_memrealtime s[{sCK}:{sCK+1}]")
                if cal and arrived > p2_at: a(f"ds_read_b32 v{vB3}, v{vE+6} offset:{L_TM}")
            if (arrived - k0) % CK == 1:
                kk = st["issued"] - WIN - 1
                if lv and cal and arrived - 1 > p2_at:
                    a(f"""
                    s_waitcnt lgkmcnt(0)
                    v_readfirstlane_b32 s{sT0}, v{vB3}
                    s_cmp_lg_u32 s{sT0}, 0
                    s_cselect_b32 s{sT0}, s{sT0}, s{sM0}
                    s_mov_b32 s{sT1}, {st["ca"] + CB * kk // 10}
                    s_cselect_b32 s{sT1}, {CM + CV * (kk - KR) // 10}, s{sT1}
                    s_sub_u32 s{sCK}, s{sCK}, s{sT0}
                    s_sub_i32 s{sCK}, s{sCK}, s{sT1}
                    s_ashr_i32 s{sCK}, s{sCK}, {lv}
                    s_add_i32 s{sBOOST}, s{sCK}, {WIN + 1}
                    """)
                elif lv:
                    a(f"""
                    s_waitcnt lgkmcnt(0)
                    s_sub_u32 s{sCK}, s{sCK}, s{sM0}
                    s_sub_i32 s{sCK}, s{sCK}, {st["ca"] + CB * kk // 10}
                    s_ashr_i32 s{sCK}, s{sCK}, {lv}
                    s_add_i32 s{sBOOST}, s{sCK}, {WIN + 1}
                    """)
                else: a(f"""
                s_waitcnt lgkmcnt(0)
                s_sub_u32 s{sCK}, s{sCK}, s{sM0}
                s_sub_i32 s{sCK}, s{sCK}, {st["ca"] + CB * kk // 10}
                s_ashr_i32 s{sCK}, s{sCK}, {gsh}
                s_add_i32 s{sBOOST}, s{sCK}, {st["issued"]}
                s_max_i32 s{sBOOST}, s{sBOOST}, 0
                """)
        if arrived < stop_at: issue_upto(arrived + 1 + (W1 if arrived < dyn0 - W1 else WMAX), arrived)
        ran = 0
        while st["c"] < len(C) and C[st["c"]][0] <= arrived and (ran < 2 or arrived >= stop_at - 1):
            run_chunk(); ran += 1
    assert st["c"] == len(C)

    stamp(5)
    if not cpos: issue_upto(st["issued"] + ca, n, False)
    a("s_mov_b32 exec_lo, 0x00ff00ff")
    a("s_mov_b32 exec_hi, 0x00ff00ff")
    for i in range(8): a(f"ds_write_b128 v{aOW}, {vr(vACC+4*i,4)} offset:{L_ORED+64*i}")
    a("s_mov_b64 exec, -1")
    if cpos: issue_upto(st["issued"] + ca, n, False)
    a(f"""
    s_waitcnt lgkmcnt(0)
    s_barrier
    ds_read_b128 {vr(vF,4)}, v{aF} offset:{L_F}
    ds_read_b128 {vr(vF+4,4)}, v{aF} offset:{L_F+16}
    """)
    for w in range(8): a(f"ds_read_b64 {vr(vS+2*w,2)}, v{aOR} offset:{L_ORED+4224*w}")
    a("s_waitcnt lgkmcnt(7)")
    a(f"v_mul_f32 v{vB0}, v{vS}, v{vF}")
    a(f"v_mul_f32 v{vB2}, v{vS+1}, v{vF}")
    for w in range(1, 8):
        a(f"s_waitcnt lgkmcnt({7-w})")
        a(f"v_fmac_f32 v{vB0}, v{vS+2*w}, v{vF+w}")
        a(f"v_fmac_f32 v{vB2}, v{vS+2*w+1}, v{vF+w}")
    a(f"v_cvt_pk_bf16_f32 v{vB0}, v{vB0}, v{vB2}")
    a(f"buffer_store_dwordx2 {vr(vB0,2)}, v{vT16}, {srd(WS_)}, s{sPA} offen" + ("" if xp & 1 else " sc1"))
    stamp(6)
    k_s = st["issued"]
    issue_upto(st["issued"] + cb, n, False)
    if notail: a("s_branch L_fin")
    def outstanding_after(k): return sum(u[2] for u in U[k:st["issued"]])
    wait_to = min(st["issued"], k_s + h1d)
    a(f"s_waitcnt vmcnt({outstanding_after(wait_to)})")
    if hs: a(f"s_sleep {hs}")
    if h1first:
        for l in h1: a(l)
    k_h = st["issued"]
    issue_upto(n, n, False)
    if not h1first:
        for l in h1: a(l)
    nh = len(h1)
    lastwd = max(idx.get(f"wd{j}", 0) for j in range(4))
    w = outstanding_after(lastwd + 1) + (nh if (not h1first or lastwd + 1 <= k_h) else 0)
    a(f"s_waitcnt vmcnt({w})")
    wperm(vS + 16, WDQ)
    dot16(vS + 16, vHP, vBP)
    for k in range(4): a(f"v_mov_b32 v{vS+8+k}, 0")
    for k in range(4): a(f"v_mul_f32 v{vBP+k}, v{vBP+k}, v{vG+1}")
    a(f"s_waitcnt vmcnt({0 if h1first else nh})")
    wperm(PW, [WOR + 4 * p for p in range(4)])
    a("s_waitcnt vmcnt(0)")
    stamp(7)
    if not xp: poll(h1, [vH1 + 1, vH1 + 3, vH1 + 5, vH1 + 7], vA0, sleep1, first_issued=True)
    stamp(8)
    for r in (0, 2, 4, 6):
        a(f"v_and_b32 v{vH1+r+1}, 0xffff0000, v{vH1+r}")
        a(f"v_lshlrev_b32 v{vH1+r}, 16, v{vH1+r}")
    for r in range(4): a(f"v_add_f32 v{vH1+r}, v{vH1+r}, v{vH1+r+4}")
    tred4(vH1, vH1)
    a(f"""
    ds_write_b32 v{aR1W}, v{vH1} offset:{L_RED1}
    s_waitcnt lgkmcnt(0)
    s_barrier
    ds_read_b64 {vr(vS,2)}, v{aR1R} offset:{L_RED1}
    ds_read_b64 {vr(vS+2,2)}, v{aR1R} offset:{L_RED1+256}
    s_waitcnt lgkmcnt(0)
    v_add_f32 v{vS}, v{vS}, v{vS+2}
    v_add_f32 v{vS+1}, v{vS+1}, v{vS+3}
    v_add_f32_dpp v{vS}, v{vS}, v{vS} row_ror:4 {DPP}
    v_add_f32_dpp v{vS+1}, v{vS+1}, v{vS+1} row_ror:4 {DPP}
    v_add_f32_dpp v{vS}, v{vS}, v{vS} row_ror:8 {DPP}
    v_add_f32_dpp v{vS+1}, v{vS+1}, v{vS+1} row_ror:8 {DPP}
    v_cvt_pk_bf16_f32 v{vA0}, v{vS}, v{vS+1}
    """)
    dot16(PW, vA0, vS + 8)
    for k in range(4): a(f"v_fmac_f32 v{vBP+k}, v{vS+8+k}, v{vG}")
    tred4(vBP, vE)
    a(f"""
    s_cmp_lt_u32 s{sWV}, 4
    s_cbranch_scc1 L_lo
    ds_write_b32 v{aR3}, v{vE} offset:{L_RED3}
    s_waitcnt lgkmcnt(0)
    s_barrier
    s_branch L_st
    L_lo:
    s_barrier
    ds_read_b32 v{vA0}, v{aR3} offset:{L_RED3}
    s_waitcnt lgkmcnt(0)
    v_add_f32 v{vE}, v{vE}, v{vA0}
    buffer_store_dwordx2 {vr(vE,2)}, v{aFP}, {srd(WS_)}, s{sPB} offen sc1
    L_st:
    """)
    stamp(9)
    a("s_cmp_ge_u32 s2, 64")
    a("s_cbranch_scc1 L_fin")
    if h4:
        a(f"""
        s_cmp_ge_u32 s{sWV}, 4
        s_cbranch_scc1 L_h4
        s_barrier
        s_branch L_fin
        L_h4:
        s_sub_u32 s{sT1}, s{sA}, {32*2048}
        """)
        if h4s: a(f"s_sleep {h4s}")
        poll([f"buffer_load_dwordx4 {vr(vS,4)}, v{aH2}, {srd(WS_)}, s{sA} offen sc1", f"buffer_load_dwordx4 {vr(vS+4,4)}, v{aH2}, {srd(WS_)}, s{sT1} offen sc1"],
             [vS + 1, vS + 3, vS + 5, vS + 7], vA0, sleep1)
        stamp(10)
        a(f"v_add_f32 v{vS}, v{vS}, v{vS+4}")
        a(f"v_add_f32 v{vS+2}, v{vS+2}, v{vS+6}")
    else:
        if dry:
            a(f"""
            s_cmp_eq_u32 s{sWV}, 0
            s_cselect_b32 s{sT2}, 1, 0
            s_cbranch_scc1 L_post2
            L_poll2:
            s_mov_b32 s{sT2}, 0
            """)
        if ack2: a("s_waitcnt vmcnt(0)")
        poll([f"buffer_load_dwordx4 {vr(vS,4)}, v{aH2}, {srd(WS_)}, s{sA} offen sc1"], [vS + 1, vS + 3], vA0, sleep1)
        stamp(10)
    if dry: a("L_post2:")
    a(f"""
    v_permlane32_swap_b32 v{vS}, v{vS+2}
    v_add_f32 v{vS}, v{vS}, v{vS+2}
    v_add_f32_dpp v{vS}, v{vS}, v{vS} row_ror:8 {DPP}
    v_mov_b32 v{vA1}, v{vS}
    v_permlane16_swap_b32 v{vS}, v{vA1}
    v_add_f32 v{vS}, v{vS}, v{vA1}
    ds_write_b32 v{aR2W}, v{vS} offset:{L_RED2}
    """)
    if dry:
        a(f"s_cmp_lg_u32 s{sT2}, 0")
        a("s_cbranch_scc1 L_nb2")
    a(f"""
    s_waitcnt lgkmcnt(0)
    s_barrier
    s_cmp_lg_u32 s{sWV}, {4 if h4 else 0}
    s_cbranch_scc1 L_fin
    L_nb2:
    ds_read_b64 {vr(vS,2)}, v{aL8} offset:{L_RED2 + (256 if h4 else 0)}
    v_lshlrev_b32 v{vA2}, 2, v{vL}
    s_lshl_b32 s{sT0}, s{sI}, 5
    """)
    if dry: a(f"s_cmp_lg_u32 s{sT2}, 0")
    a("s_waitcnt lgkmcnt(0)")
    if h4:
        a(f"""
        v_add_f32_dpp v{vS}, v{vS}, v{vS} row_ror:8 {DPP}
        v_add_f32_dpp v{vS+1}, v{vS+1}, v{vS+1} row_ror:8 {DPP}
        v_mov_b32 v{vA0}, v{vS}
        v_mov_b32 v{vA1}, v{vS+1}
        v_permlane16_swap_b32 v{vS}, v{vA0}
        v_permlane16_swap_b32 v{vS+1}, v{vA1}
        v_add_f32 v{vS}, v{vS}, v{vA0}
        v_add_f32 v{vS+1}, v{vS+1}, v{vA1}
        """)
    else: red2_bits345(vS, vS + 1, vA0, vA1)
    a(f"""
    v_cvt_pk_bf16_f32 v{vA0}, v{vS}, v{vS+1}
    """)
    if dry: a("s_cbranch_scc1 L_poll2")
    a(f"""
    s_mov_b64 exec, 0xff
    buffer_store_dword v{vA0}, v{vA2}, {srd(OUT_)}, s{sT0} offen {outf.replace('+',' ')}
    s_cmp_lg_u32 s2, 0
    s_cbranch_scc1 L_fin
    s_mov_b64 exec, 1
    buffer_store_dword v{vTAG}, off, {srd(WS_)}, 0 {'' if ep else 'sc1'}
    L_fin:
    """)
    if probe >= 0:
        a(f"""
        s_cmp_lg_u32 s2, {pwg}
        s_cbranch_scc1 L_end
        s_cmp_lg_u32 s{sWV}, 4
        s_cbranch_scc1 L_end
        s_waitcnt lgkmcnt(0)
        s_sub_u32 s6, s100, s{sM0}
        s_lshl_b32 s6, s6, 2
        s_add_u32 s6, s6, 3000
        L_px:
        s_memrealtime s[4:5]
        s_waitcnt lgkmcnt(0)
        s_sub_u32 s4, s4, s{sM0}
        s_cmp_ge_u32 s4, s6
        s_cbranch_scc1 L_end
        s_sleep 1
        s_branch L_px
        """)
    if fix:
        a(f"""
        L_fx:
        s_memrealtime s[4:5]
        s_waitcnt lgkmcnt(0)
        s_sub_u32 s4, s4, s{sM0}
        s_cmp_ge_u32 s4, {fix}
        s_cbranch_scc1 L_fxd
        s_sleep 1
        s_branch L_fx
        L_fxd:
        """)
    if stamps:
        a("s_mov_b64 exec, -1")
        a("s_waitcnt vmcnt(0)")
        a(f"s_memrealtime s[{sST+22}:{sST+23}]")
        a(f"s_mul_i32 s{sT0}, s2, 9")
        a(f"s_add_u32 s{sT0}, s{sT0}, s{sWV}")
        a(f"s_mul_i32 s{sT0}, s{sT0}, {NS*8}")
        a(f"s_add_u32 s{sT0}, s{sT0}, {STAMP_OFF}")
        a("s_waitcnt lgkmcnt(0)")
        a("s_mov_b64 exec, 1")
        for j in range(NS):
            a(f"v_mov_b32 v{vA0}, s{sST+2*j}")
            a(f"v_mov_b32 v{vA1}, s{sST+2*j+1}")
            a(f"buffer_store_dwordx2 {vr(vA0,2)}, off, {srd(WS_)}, s{sT0} offset:{8*j}")
    a("L_end:")
    a("s_endpgm")

    cX = vACC; cG = vACC + 8
    cL4, cL8, cPA, cPF, cQW, cGP = vWDO, vQ, vQ + 1, vQ + 2, vQ + 3, vQ + 4
    a(f"""
    L_comm:
    """)
    if fast: a(late_s)
    a(f"""
    s_setprio 3
    s_mov_b32 s{sWB}, 0
    v_mov_b32 v{vA0}, 0
    v_lshlrev_b32 v{cL4}, 2, v{vL}
    s_mov_b64 exec, 0xffff
    ds_write_b32 v{cL4}, v{vA0}
    s_mov_b64 exec, -1
    s_mov_b32 s{GW_+2}, 2048
    s_mov_b32 s{GW_+3}, 0x20000
    s_waitcnt lgkmcnt(0)
    s_barrier
    s_mov_b64 s[{X_}:{X_+1}], s[76:77]
    s_mov_b64 s[{GW_}:{GW_+1}], s[94:95]
    """)
    if not ev: a(f"s_load_dword s{sC}, s[{WS_}:{WS_+1}], 0")
    roles()
    def touch_kv(ptr, tiles):
        for n_, t in enumerate(tiles):
            a(f"s_xor_b32 s25, s24, {t*(4<<20)}")
            a(f"s_load_dword s{26+n_}, s[{ptr}:{ptr+1}], s25")
    if touch:
        assert ix == 0
        a(f"""
        s_mov_b64 s[4:5], s[78:79]
        s_mov_b64 s[6:7], s[80:81]
        s_mov_b64 s[8:9], s[84:85]
        s_mov_b64 s[10:11], s[92:93]
        s_mul_i32 s24, s{sG}, {(1<<24) + (gx<<22)}
        s_lshl_b32 s25, s{sI}, 16
        s_add_u32 s24, s24, s25
        """)
        if touch & 1:
            a(f"""
            s_mul_i32 s25, s{sR8}, {128*7168}
            s_load_dword s20, s[88:89], s25
            s_load_dword s21, s[90:91], s25
            s_add_u32 s25, s25, {127*7168}
            s_load_dword s22, s[88:89], s25
            s_load_dword s23, s[90:91], s25
            """)
            touch_kv(4, [0])
    def preread():
        if not prer: return
        a(f"""
        v_lshlrev_b32 v{vA2}, 7, v{vL}
        s_lshl_b32 s{sT1}, s2, 12
        s_add_u32 s{sT1}, s{sT1}, {WS_OP}
        s_lshl_b32 s{sT3}, s{sRB}, 6
        s_add_u32 s{sT3}, s{sT3}, s{sPL}
        s_lshl_b32 s{sT3}, s{sT3}, 11
        s_add_u32 s{sT3}, s{sT3}, {WS_FP}
        s_mov_b32 exec_hi, 0
        """)
        if prer & 1: a(f"buffer_load_dword v{vR}, v{vA2}, {srd(WS_)}, s{sT1} offen")
        a("s_mov_b32 exec_lo, 0xffff")
        if prer & 2: a(f"buffer_load_dword v{vR+2}, v{vA2}, {srd(WS_)}, s{sT3} offen")
        a("s_mov_b64 exec, -1")
    if ev: a(f"buffer_load_dword v{vTAG}, off, {srd(WS_)}, 0 sc1")
    if prs == 1: preread()
    a(f"""
    v_lshlrev_b32 v{cL8}, 3, v{vL}
    v_lshrrev_b32 v{vA0}, 3, v{vL}
    v_and_b32 v{vA1}, 7, v{vL}
    v_lshlrev_b32 v{cPA}, 10, v{vA0}
    v_lshl_add_u32 v{cPA}, v{vA1}, 4, v{cPA}
    v_lshrrev_b32 v{vA0}, 5, v{vL}
    v_and_b32 v{vA1}, 31, v{vL}
    v_lshlrev_b32 v{cPF}, 10, v{vA0}
    v_lshl_add_u32 v{cPF}, v{vA1}, 4, v{cPF}
    v_mul_u32_u24 v{vA0}, 272, v{vA0}
    v_lshl_add_u32 v{cQW}, v{vA1}, 3, v{vA0}
    v_add_u32 v{cGP}, {L_GP}, v{cL8}
    s_lshl_b32 s{sT1}, s{sCB}, 13
    s_add_u32 s{sT1}, s{sT1}, {WS_QP}
    s_lshl_b32 s{sT2}, s{sR8}, 10
    s_add_u32 s{sA}, s{sT1}, s{sT2}
    s_lshl_b32 s{sT2}, s{sR8}, 7
    s_add_u32 s{sPA}, s{sT1}, s{sT2}
    s_lshl_b32 s{sT1}, s{sCB}, {9+gt}
    s_lshl_b32 s{sT2}, s{sR8}, {6+gt}
    s_add_u32 s{sB}, s{sT1}, s{sT2}
    s_add_u32 s{sB}, s{sB}, {WS_QG}
    s_lshl_b32 s{sPB}, s{sG}, {12+gt}
    s_add_u32 s{sPB}, s{sPB}, {WS_QG}
    """)
    if ev:
        a(f"s_waitcnt vmcnt({bin(prer).count('1') if prs == 1 else 0})")
        a(f"v_add_u32 v{vTAG}, 1, v{vTAG}")
    else:
        a("s_waitcnt lgkmcnt(0)")
        a(f"s_add_u32 s{sC}, s{sC}, 1")
        a(f"v_mov_b32 v{vTAG}, s{sC}")
    init_stamps()
    if "x" in dg:
        arrive(C_QS); arrive(C_H); a("s_waitcnt vmcnt(0) lgkmcnt(0)"); a("s_branch L_fin")
    def gp_publish(m, base, so, off):
        for k in range(4): a(f"ds_read2st64_b64 {vr(base+4*k,4)}, v{cGP} offset0:{8*m+2*k} offset1:{8*m+2*k+1}")
        a("s_waitcnt lgkmcnt(0)")
        for step in (2, 4, 8):
            for k in range(0, 16, 2 * step):
                a(f"v_add_f32 v{base+k}, v{base+k}, v{base+k+step}")
                a(f"v_add_f32 v{base+k+1}, v{base+k+1}, v{base+k+step+1}")
        a(f"v_mov_b32 v{base+2}, v{base+1}")
        a(f"v_mov_b32 v{base+1}, v{vTAG}")
        a(f"v_mov_b32 v{base+3}, v{vTAG}")
        a(f"buffer_store_dwordx4 {vr(base,4)}, v{vVO}, {srd(WS_)}, s{so} offen offset:{off}" + ("" if loc else " sc1"))
    wait_cnt(C_Q, 8, csleep)
    gp_publish(0, vT, sA, 0)
    stamp(1)
    if ackA: a("s_waitcnt vmcnt(0)")
    poll([f"buffer_load_dwordx4 {vr(vE,4)}, v{cPA}, {srd(WS_)}, s{sPA} offen sc1"], [vE + 1, vE + 3], vA0, asleep, wb=True)
    red2_bits345(vE, vE + 2, vA0, vA1)
    a(f"""
    v_cvt_pk_bf16_f32 v{vE}, v{vE}, v{vE+2}
    s_mov_b64 exec, 0xff00
    v_mov_b32 v{vE}, s{sM0}
    s_mov_b64 exec, {0xffff if gt else 0xff}
    buffer_store_dwordx2 {vr(vE,2)}, v{cL8}, {srd(WS_)}, s{sB} offen sc1
    s_mov_b64 exec, -1
    """)
    stamp(2)
    a(f"""
    buffer_load_dwordx4 {vr(cX,4)}, v{vVO}, {srd(X_)}, 0 offen
    buffer_load_dwordx4 {vr(cX+4,4)}, v{vVO}, {srd(X_)}, 0 offen offset:1024
    buffer_load_dwordx4 {vr(cG,4)}, v{vVO}, {srd(GW_)}, 0 offen
    buffer_load_dwordx4 {vr(cG+4,4)}, v{vVO}, {srd(GW_)}, 0 offen offset:1024
    s_lshl_b32 s{sKV}, s{sCB}, 14
    s_add_u32 s{sKV}, s{sKV}, {WS_FG}
    s_lshl_b32 s{sT2}, s{sR8}, 11
    s_add_u32 s{sA}, s{sKV}, s{sT2}
    s_and_b32 s{sT2}, s{sLC}, 1
    s_lshl_b32 s{sT2}, s{sT2}, 9
    s_add_u32 s{sKV}, s{sKV}, s{sT2}
    """)
    if touch & 2: touch_kv(4, [1, 2])
    wait_cnt(C_F, 8, csleep)
    gp_publish(1, vT, sA, 0)
    gp_publish(2, vP, sA, 1024)
    if loc: a(f"""
    s_cmp_eq_u32 s{sWB}, 0
    s_cbranch_scc1 L_nwb
    s_waitcnt vmcnt(0)
    buffer_wbl2 sc1
    s_waitcnt vmcnt(0)
    L_nwb:
    """)
    a(f"""
    s_waitcnt vmcnt(2)
    v_mov_b32 v{vB0}, 0
    """)
    for k in range(8):
        a(f"""
        v_lshlrev_b32 v{vA0}, 16, v{cX+k}
        v_and_b32 v{vA1}, 0xffff0000, v{cX+k}
        v_lshlrev_b32 v{vA2}, 16, v{cG+k}
        v_and_b32 v{vA3}, 0xffff0000, v{cG+k}
        v_mul_f32 v{vA0}, v{vA0}, v{vA2}
        v_mul_f32 v{vA1}, v{vA1}, v{vA3}
        v_cvt_pk_bf16_f32 v{vA0}, v{vA0}, v{vA1}
        v_lshlrev_b32 v{vA1}, 16, v{vA0}
        v_and_b32 v{vA0}, 0xffff0000, v{vA0}
        v_add_f32 v{vB0}, v{vB0}, v{vA0}
        v_add_f32 v{vB0}, v{vB0}, v{vA1}
        """)
    for nn_ in (1, 2, 4): a(f"v_add_f32_dpp v{vB0}, v{vB0}, v{vB0} row_ror:{nn_} {DPP}")
    red_bits345("add", vB0, vA3)
    a(f"""
    v_cvt_pk_bf16_f32 v{vA0}, v{vB0}, v{vB0}
    v_and_b32 v{vA0}, 0xffff0000, v{vA0}
    v_mul_f32 v{vA0}, {hex(f2u(-math.log2(math.e)))}, v{vA0}
    v_exp_f32 v{vA0}, v{vA0}
    v_add_f32 v{vA0}, 1.0, v{vA0}
    v_rcp_f32 v{vA0}, v{vA0}
    v_cvt_pk_bf16_f32 v{vA0}, v{vA0}, v{vA0}
    v_and_b32 v{vA0}, 0xffff0000, v{vA0}
    v_sub_f32 v{vA1}, 1.0, v{vA0}
    v_cvt_pk_bf16_f32 v{vA1}, v{vA1}, v{vA1}
    v_and_b32 v{vA1}, 0xffff0000, v{vA1}
    v_mov_b32 v{vA2}, 0
    s_mov_b64 exec, 1
    ds_write_b64 v{vA2}, {vr(vA0,2)} offset:{L_G}
    ds_write_b32 v{vA2}, v{vTAG} offset:{L_G+8}
    s_mov_b64 exec, -1
    """)
    wait_cnt(C_P1, cpn, 4)
    ql = [f"buffer_load_dwordx4 {vr(vS+4*k,4)}, v{vVO}, {srd(WS_)}, s{sPB} offen offset:{1024*k} sc1" for k in range(4)]
    if gt:
        a(f"""
        v_lshrrev_b32 v{vQ+5}, 2, v{vL}
        v_lshlrev_b32 v{vQ+5}, 6, v{vQ+5}
        v_add_u32 v{vQ+5}, v{vQ+5}, v{vVO}
        v_lshlrev_b32 v{vQ+6}, 7, v{vL}
        s_add_u32 s{sT1}, s{sPB}, 4096
        """)
        ql = [f"buffer_load_dwordx4 {vr(vS+4*k,4)}, v{vQ+5}, {srd(WS_)}, s{sPB if k < 2 else sT1} offen offset:{2048*(k%2)} sc1" for k in range(4)]
        ql.append(f"buffer_load_dwordx2 {vr(vS+16,2)}, v{vQ+6}, {srd(WS_)}, s{sPB} offen offset:64 sc1")
    poll(ql, [vS + 2 * k + 1 for k in range(8 + gt)], vA2, rsleep, wb=True)
    if gt:
        a(f"v_subrev_u32 v{vS+16}, s{sM0}, v{vS+16}")
        a(f"v_cvt_f32_i32 v{vS+16}, v{vS+16}")
        for nn_ in (1, 2, 4): a(f"v_min_f32_dpp v{vS+16}, v{vS+16}, v{vS+16} row_ror:{nn_} {DPP}")
        red_bits345("min", vS + 16, vA3)
        a(f"""
        v_cvt_i32_f32 v{vS+16}, v{vS+16}
        v_add_u32 v{vS+16}, s{sM0}, v{vS+16}
        v_mov_b32 v{vA2}, 0
        s_mov_b64 exec, 1
        ds_write_b32 v{vA2}, v{vS+16} offset:{L_G+12}
        s_mov_b64 exec, -1
        """)
    for k in range(4): a(f"v_mov_b32 v{vS+4*k+1}, v{vS+4*k+2}")
    for k in range(4): a(f"ds_write_b64 v{cQW}, {vr(vS+4*k,2)} offset:{L_QS+544*k}")
    arrive(C_QS)
    stamp(3)
    for k in range(1, 4): a(f"s_add_u32 s{sT0+k}, s{sKV}, {4096*k}")
    fl = [f"buffer_load_dwordx4 {vr(vS+4*k,4)}, v{cPF}, {srd(WS_)}, s{sKV if k < 2 else sT0+k//2} offen offset:{2048*(k%2)} sc1" for k in range(8)]
    poll(fl, [vS + 2 * k + 1 for k in range(16)], vA2, rsleep, wb=True)
    for step in (4, 8, 16):
        for k in range(0, 32, 2 * step):
            a(f"v_add_f32 v{vS+k}, v{vS+k}, v{vS+k+step}")
            a(f"v_add_f32 v{vS+k+2}, v{vS+k+2}, v{vS+k+step+2}")
    a(f"""
    v_cvt_pk_bf16_f32 v{vA0}, v{vS}, v{vS+2}
    v_mov_b32 v{vA1}, v{vA0}
    v_permlane32_swap_b32 v{vA0}, v{vA1}
    v_lshlrev_b32 v{vA2}, 16, v{vA0}
    v_and_b32 v{vA0}, 0xffff0000, v{vA0}
    v_lshlrev_b32 v{vA3}, 16, v{vA1}
    v_and_b32 v{vA1}, 0xffff0000, v{vA1}
    v_max_f32 v{vA2}, 0, v{vA2}
    v_max_f32 v{vA0}, 0, v{vA0}
    v_mul_f32 v{vA2}, v{vA2}, v{vA3}
    v_mul_f32 v{vA0}, v{vA0}, v{vA1}
    v_cvt_pk_bf16_f32 v{vA0}, v{vA2}, v{vA0}
    s_mov_b32 exec_hi, 0
    ds_write_b32 v{cL4}, v{vA0} offset:{L_H}
    s_mov_b64 exec, -1
    """)
    arrive(C_H)
    stamp(4)
    if prs == 0: preread()
    a(f"""
    s_lshl_b32 s{sA}, s2, {6+cal}
    s_add_u32 s{sA}, s{sA}, {WS_ML}
    s_lshl_b32 s{sPA}, s{sG}, {12+cal}
    s_add_u32 s{sPA}, s{sPA}, {WS_ML}
    s_add_u32 s{sT1}, s{sPA}, 4096
    v_lshrrev_b32 v{vQ+5}, 3, v{vL}
    v_lshlrev_b32 v{vQ+5}, 6, v{vQ+5}
    v_add_u32 v{vQ+5}, v{vQ+5}, v{cL8}
    v_lshlrev_b32 v{vQ+6}, 7, v{vL}
    """)
    if touch & 2:
        touch_kv(4, [3]); a("s_waitcnt lgkmcnt(0)"); touch_kv(6, [0, 1])
    wait_cnt(C_ST, 8, 4)
    if cal: a("s_memrealtime s[12:13]")
    a(f"ds_read_b64 {vr(vT,2)}, v{cL8} offset:{L_ST}")
    a("s_waitcnt lgkmcnt(0)")
    a(f"v_mov_b32 v{vB0}, v{vT}")
    red_bits345("max", vB0, vA3)
    a(f"v_sub_f32 v{vA3}, v{vT}, v{vB0}")
    a(f"v_exp_f32 v{vA3}, v{vA3}")
    a(f"v_mul_f32 v{vT+1}, v{vT+1}, v{vA3}")
    red_bits345("add", vT + 1, vA3)
    a(f"""
    v_log_f32 v{vB1}, v{vT+1}
    v_add_f32 v{vB0}, v{vB0}, v{vB1}
    v_mov_b32 v{vB1}, v{vTAG}
    s_mov_b64 exec, 0xff00
    v_mov_b32 v{vB0}, s{12 if cal else sC}
    s_mov_b64 exec, {0xffff if cal else 0xff}
    buffer_store_dwordx2 {vr(vB0,2)}, v{cL8}, {srd(WS_)}, s{sA} offen sc1
    s_mov_b64 exec, -1
    """)
    stamp(5)
    if prs == 2: preread()
    if midwb:
        a(f"s_cmp_ge_u32 s2, {midwb}")
        a("s_cbranch_scc1 L_nmw")
        a("buffer_wbl2 sc1")
        a("L_nmw:")
    ml = [f"buffer_load_dwordx2 {vr(vS+2*k,2)}, v{cL8}, {srd(WS_)}, s{sPA} offen offset:{512*k} sc1" for k in range(8)]
    if touch & 2:
        touch_kv(6, [2, 3])
        a(f"""
        s_min_u32 s25, s{sLC}, 55
        s_lshl_b32 s25, s25, 17
        s_load_dword s20, s[10:11], s25
        s_lshl_b32 s25, s{sG}, 21
        s_load_dword s21, s[8:9], s25
        """)
    wait_cnt(C_P2, cpn, 4)
    if cal:
        ml = [f"buffer_load_dwordx2 {vr(vS+2*k,2)}, v{vQ+5}, {srd(WS_)}, s{sPA if k < 4 else sT1} offen offset:{1024*(k%4)} sc1" for k in range(8)]
        ml.append(f"buffer_load_dwordx2 {vr(vS+16,2)}, v{vQ+6}, {srd(WS_)}, s{sPA} offen offset:64 sc1")
    poll(ml, [vS + 2 * k + 1 for k in range(len(ml))], vA0, rsleep, wb=True)
    if cal:
        a(f"v_subrev_u32 v{vS+16}, s12, v{vS+16}")
        a(f"v_cvt_f32_i32 v{vS+16}, v{vS+16}")
        for nn_ in (1, 2, 4): a(f"v_add_f32_dpp v{vS+16}, v{vS+16}, v{vS+16} row_ror:{nn_} {DPP}")
        red_bits345("add", vS + 16, vA3)
        a(f"""
        v_mul_f32 v{vS+16}, {hex(f2u(1/64))}, v{vS+16}
        v_cvt_i32_f32 v{vS+16}, v{vS+16}
        v_add_u32 v{vS+16}, s12, v{vS+16}
        v_mov_b32 v{vA2}, 0
        s_mov_b64 exec, 1
        ds_write_b32 v{vA2}, v{vS+16} offset:{L_TM}
        s_mov_b64 exec, -1
        """)
    M = vE
    a(f"v_max3_f32 v{M}, v{vS}, v{vS+2}, v{vS+4}")
    a(f"v_max3_f32 v{M}, v{M}, v{vS+6}, v{vS+8}")
    a(f"v_max3_f32 v{M}, v{M}, v{vS+10}, v{vS+12}")
    a(f"v_max_f32 v{M}, v{M}, v{vS+14}")
    red_bits345("max", M, vA3)
    for k in range(8): a(f"v_sub_f32 v{vS+2*k}, v{vS+2*k}, v{M}")
    for k in range(8): a(f"v_exp_f32 v{vS+2*k}, v{vS+2*k}")
    a(f"v_add_f32 v{M+1}, v{vS}, v{vS+2}")
    for k in range(2, 8): a(f"v_add_f32 v{M+1}, v{M+1}, v{vS+2*k}")
    red_bits345("add", M + 1, vA3)
    a(f"""
    v_sub_f32 v{vA1}, v{vT}, v{M}
    v_exp_f32 v{vA1}, v{vA1}
    v_rcp_f32 v{vA2}, v{M+1}
    v_mul_f32 v{vA1}, v{vA1}, v{vA2}
    v_and_b32 v{vA2}, 7, v{vL}
    v_lshlrev_b32 v{vA2}, 5, v{vA2}
    v_lshrrev_b32 v{vA3}, 3, v{vL}
    v_lshl_add_u32 v{vA2}, v{vA3}, 2, v{vA2}
    ds_write_b32 v{vA2}, v{vA1} offset:{L_F}
    s_waitcnt lgkmcnt(0)
    """)
    if endwb:
        a("s_cmp_lt_u32 s2, 248")
        a("s_cbranch_scc1 L_cend")
        for _ in range(endwb): a("s_barrier")
        a("buffer_wbl2 sc1")
        for _ in range(3 - endwb): a("s_barrier")
        a("L_cend:")
    a("s_branch L_fin" if stamps else "s_endpgm")
    ci = [k for k, l in enumerate(a.lines) if l.strip() == "L_comm:"][0]
    if "m" in dg:
        a.lines = a.lines[:ci] + [l.replace("0x40000", "0") if ("s_cmp_gt" in l and "0x400000" not in l) else l for l in a.lines[ci:] if "buffer_" not in l]
    if "d" in dg:
        a.lines = [l for l in a.lines if "v_dot2c_f32_bf16 " not in l and "v_mfma" not in l]
    lines = hazard.fix([l for l in a.lines if not l.strip().startswith(";")])
    body = "\n".join(lines)
    if ipf: body = body.replace("CODE_BYTES", "s8") + "\nL_code_end:"
    return wrap_single(body, 256, 576, lds, NVGPR, header=HEADER)

if __name__ == "__main__":
    kw = {}
    for s in sys.argv[2:]:
        k, v = s.split("=")
        try: v = int(v)
        except: pass
        kw[k] = v
    open(sys.argv[1], "w").write(gen(**kw))
```

```python
import sys, math, struct
from asmlib import *
import hazard
def f2u(x): return struct.unpack("<I", struct.pack("<f", x))[0]
HEADER = open("cdna_kernels/" + NAME + ".s.ref").read().split("; Override launch")[0]

HEADER += """;
;   hand-offs       : 8-byte {data, tag} granules in d_ws, tag = epoch word + 1 (the epoch is advanced at the end).
"""

WS_QG = 0x10000
WS_ML = 0x8000
WS_QP = 0x40000
WS_FG = 0x80000
WS_OP = 0x100000
WS_FP = 0x200000
WS_SIZE = 0x280000
STAMP_OFF = 128 << 20
C_Q, C_F, C_QS, C_ST, C_H, C_P1, C_P2, L_TM = 0, 4, 8, 12, 16, 20, 24, 28
L_H = 64
L_G = 192
L_GP = 256
L_QS = L_GP + 3 * 4096
L_ST = L_QS + 2176
L_F = L_ST + 512
L_RED1 = L_F + 256
L_RED2 = L_RED1 + 2048
L_RED3 = L_RED2 + 512
L_ORED = L_RED3 + 1024
L_END = L_ORED + 8 * 4224
sWV = 3
K_, V_, WQ_, WO_, WG_, WU_, WD_, X_, GW_, WS_, OUT_ = 4, 8, 12, 16, 20, 24, 28, 32, 36, 40, 44
def srd(b): return f"s[{b}:{b+3}]"
sG, sI, sPA, sPB, sKV = 48, 49, 50, 51, 52
sT0, sT1, sT2, sT3 = 53, 54, 55, 56
sSELLO, sSELHI, sC, sCAP, sA, sB, sKS = 57, 58, 59, 60, 61, 62, 63
sM0 = 64
sWD, sBOOST = 66, 67
sRB, sLC, sR8, sCB, sH1, sH1b, sPL, sXV = 68, 69, 70, 71, 72, 73, 74, 75
sST = 76
sCK = 36
sWB = 67
vL, vWDO, vT16, vTAG, vKO, vVO, vWOO, vWFO = 0, 1, 2, 3, 4, 5, 6, 7
vA0, vA1, vA2, vA3, vB0, vB1, vB2, vB3 = 8, 9, 10, 11, 12, 13, 14, 15
vT, vQ, vE, vP, vS, vACC, vR, vBP, vSP = 16, 32, 40, 48, 64, 96, 128, 160, 164
NVGPR = 168

def gen(WIN=3, WMAX=5, dyn0=10, stamps=0, sn="d", lds=82440, q_at=26, p1_at=19, p2_at=61, CA=140, CB=275, CK=6, gsh=2, k0=8,
        ca=2, cb=2, h1first=0, prer=2, fix=0, nfail=8, sleep1=2, csleep=1, asleep=4, rsleep=16, ackA=1, ack2=1, ex=3, cpn=6,
        notail=0, ncov=8, h1d=0, gt=0, CA2=None, lv=0, WLO=3, sp=0, ev=0, gx=0, ix=0, tw=0, t0=3, t1=9, qw=0, touch=0, outf='', midwb=0, endwb=0, prs=0, W0=4, W1=3, fast=0, loc=1, xp=0, cpos=0, cm=0, wofirst=0, hs=0, dry=0, h4=0, h4s=0, cal=0, CM=-15, CV=268, KR=48, probe=-1, pwg=42, rj=0, dg='', ipf=0, xl=0, ep=0, fx=0, po=0, merge=0):
    a = Asm()
    SN = set(str(sn).split("+"))
    NS = 12
    def stamp(k, name="d"):
        if stamps and name in SN: a(f"s_memrealtime s[{sST+2*k}:{sST+2*k+1}]")
    def vr(b, n): return f"v[{b}:{b+n-1}]"
    DPP = "row_mask:0xf bank_mask:0xf"
    def red_bits45(op, v, t):
        for sw in ("16", "32"):
            a(f"v_mov_b32 v{t}, v{v}")
            a(f"v_permlane{sw}_swap_b32 v{v}, v{t}")
            a(f"v_{op}_f32 v{v}, v{v}, v{t}")
    def red_bits345(op, v, t):
        a(f"v_{op}_f32_dpp v{v}, v{v}, v{v} row_ror:8 {DPP}")
        red_bits45(op, v, t)
    def red2_bits345(v0, v1, t0, t1):
        a(f"v_add_f32_dpp v{v0}, v{v0}, v{v0} row_ror:8 {DPP}")
        a(f"v_add_f32_dpp v{v1}, v{v1}, v{v1} row_ror:8 {DPP}")
        for sw in ("16", "32"):
            a(f"v_mov_b32 v{t0}, v{v0}")
            a(f"v_mov_b32 v{t1}, v{v1}")
            a(f"v_permlane{sw}_swap_b32 v{v0}, v{t0}")
            a(f"v_permlane{sw}_swap_b32 v{v1}, v{t1}")
            a(f"v_add_f32 v{v0}, v{v0}, v{t0}")
            a(f"v_add_f32 v{v1}, v{v1}, v{t1}")
    def tred4(v, dst):
        a(f"""
        v_permlane32_swap_b32 v{v}, v{v+2}
        v_permlane32_swap_b32 v{v+1}, v{v+3}
        v_add_f32 v{v}, v{v}, v{v+2}
        v_add_f32 v{v+1}, v{v+1}, v{v+3}
        v_permlane16_swap_b32 v{v}, v{v+1}
        v_add_f32 v{dst}, v{v}, v{v+1}
        """)
    def arrive(cnt):
        a(f"""
        v_mov_b32 v{vA0}, {cnt}
        v_mov_b32 v{vA1}, 1
        s_waitcnt lgkmcnt(0)
        s_mov_b64 exec, 1
        ds_add_u32 v{vA0}, v{vA1}
        s_mov_b64 exec, -1
        """)
    def wait_cnt(cnt, val, sl=1):
        l = a.label("Lw"); d = a.label("Lwd")
        a(f"""
        v_mov_b32 v{vA0}, {cnt}
        s_mov_b32 s{sCAP}, 0
        {l}:
        ds_read_b32 v{vA1}, v{vA0}
        s_waitcnt lgkmcnt(0)
        v_readfirstlane_b32 s{sT0}, v{vA1}
        s_cmp_ge_u32 s{sT0}, {val}
        s_cbranch_scc1 {d}
        s_add_u32 s{sCAP}, s{sCAP}, 1
        s_cmp_gt_u32 s{sCAP}, 0x400000
        s_cbranch_scc1 {d}
        s_sleep {sl}
        s_branch {l}
        {d}:
        """)
    def poll(loads, tagregs, tmp, sleep, first_issued=False, wb=False):
        lc = a.label("Lchk"); ld = a.label("Ldone")
        a(f"s_mov_b32 s{sCAP}, 0")
        if not first_issued:
            for l in loads: a(l)
            a("s_waitcnt vmcnt(0)")
        a(f"{lc}:")
        a(f"v_xor_b32 v{tmp}, v{tagregs[0]}, v{vTAG}")
        rest = list(tagregs[1:])
        for r in rest:
            a(f"v_xor_b32 v{tmp+1}, v{r}, v{vTAG}")
            a(f"v_or_b32 v{tmp}, v{tmp}, v{tmp+1}")
        a(f"v_cmp_ne_u32 vcc, 0, v{tmp}")
        a(f"s_and_b64 exec, exec, vcc")
        a(f"s_cbranch_scc0 {ld}")
        a(f"s_add_u32 s{sCAP}, s{sCAP}, 1")
        a(f"s_cmp_gt_u32 s{sCAP}, 0x40000")
        a(f"s_cbranch_scc1 {ld}")
        if wb and loc:
            lw = a.label("Lnw")
            a(f"s_and_b32 s{sT0}, s{sCAP}, {nfail-1}")
            a(f"s_cbranch_scc1 {lw}")
            a("buffer_wbl2 sc1")
            a("s_waitcnt vmcnt(0)")
            a(f"s_mov_b32 s{sWB}, 1")
            a(f"{lw}:")
        if sleep: a(f"s_sleep {sleep}")
        for l in loads: a(l)
        a("s_waitcnt vmcnt(0)")
        a(f"s_branch {lc}")
        a(f"{ld}:")
        a("s_mov_b64 exec, -1")
    def sum8(base):
        for step in (1, 2, 4):
            for k in range(0, 8, 2 * step): a(f"v_add_f32 v{base+k}, v{base+k}, v{base+k+step}")
    def init_stamps():
        if stamps:
            for k in range(NS): a(f"s_mov_b64 s[{sST+2*k}:{sST+2*k+1}], s[{sM0}:{sM0+1}]")

    a(f"""
    s_cmp_ge_u32 s2, 256
    s_cbranch_scc1 L_end
    s_load_dwordx16 s[76:91], s[0:1], 0
    """)
    if ipf:
        a(f"""
        s_getpc_b64 s[4:5]
        L_pc0:
        s_mov_b32 s8, L_code_end-L_pc0-4
        v_lshlrev_b32 v{vA2}, {7 if ipf == 1 else 6}, v0
        v_cmp_gt_u32 vcc, CODE_BYTES, v{vA2}
        s_and_saveexec_b64 s[6:7], vcc
        s_cbranch_execz L_nipf
        global_load_dword v{vSP}, v{vA2}, s[4:5]
        L_nipf:
        s_mov_b64 exec, s[6:7]
        """)
    a(f"""
    """)
    late_s = f"""
    s_load_dwordx8 s[92:99], s[0:1], 64
    s_load_dwordx2 s[{WS_}:{WS_+1}], s[0:1], 96
    s_memrealtime s[{sM0}:{sM0+1}]
    """
    if not fast: a(late_s)
    a(f"""
    v_lshrrev_b32 v{vA0}, 6, v0
    v_lshlrev_b32 v{vT16}, 4, v0
    v_readfirstlane_b32 s{sWV}, v{vA0}
    v_and_b32 v{vL}, 63, v0
    s_lshr_b32 s{sG}, s2, 6
    s_and_b32 s{sI}, s2, 63
    s_bfe_u32 s{sR8}, s2, 0x30003
    s_and_b32 s{sT0}, s2, 7
    s_lshl_b32 s{sT1}, s{sG}, 1
    s_xor_b32 s{sT0}, s{sT0}, s{sT1}
    s_lshl_b32 s{sT0}, s{sT0}, 2
    s_or_b32 s{sCB}, s{sT0}, s{sG}
    s_mov_b32 s{X_+2}, 2048
    s_mov_b32 s{X_+3}, 0x20000
    v_lshlrev_b32 v{vVO}, 4, v{vL}
    s_cmp_eq_u32 s{sWV}, 8
    s_cbranch_scc1 L_comm
    s_mov_b32 s{WQ_+2}, {1024*8192}
    s_mov_b32 s{WQ_+3}, 0x20000
    v_lshrrev_b32 v{vA0}, 4, v{vL}
    v_and_b32 v{vA1}, 15, v{vL}
    v_lshlrev_b32 v{vA1}, 4, v{vA1}
    v_lshl_add_u32 v{vA3}, v{vA0}, {13 if rj else 15}, v{vA1}
    v_lshlrev_b32 v{vA2}, 3, v{vA0}
    s_lshl_b32 s{sT3}, s{sR8}, 3
    s_add_u32 s{sT3}, s{sT3}, s{sWV}
    s_lshl_b32 s{sT0}, s{sCB}, 8
    s_lshl_b32 s{sA}, s{sT3}, 17
    s_add_u32 s{sA}, s{sA}, s{sT0}
    s_mul_i32 s{sB}, s{sT3}, {16*7168}
    s_add_u32 s{sB}, s{sB}, s{sT0}
    s_lshl_b32 s{sT3}, s{sT3}, 5
    s_add_u32 s{sT0}, s{sA}, {8192*(4 if rj else 1)}
    s_add_u32 s{sT1}, s{sA}, {16384*(4 if rj else 1)}
    s_add_u32 s{sT2}, s{sA}, {24576*(4 if rj else 1)}
    s_waitcnt lgkmcnt(0)
    s_mov_b64 s[{WQ_}:{WQ_+1}], s[82:83]
    s_mov_b64 s[{X_}:{X_+1}], s[76:77]
    """)
    R0, R1, A0, A1 = vR, vR + 16, vACC, vACC + 16
    WQR, WGR, WUR = R0, R1, A0
    vXP = vB0
    xld = f"buffer_load_dwordx2 {vr(vXP,2)}, v{vA2}, {srd(X_)}, s{sT3} offen"
    if rj: xl = 0
    if not xl and not rj: a(xld)
    for j in range(4): a(f"buffer_load_dwordx4 {vr(WQR+4*j,4)}, v{vA3}, {srd(WQ_)}, s{[sA,sT0,sT1,sT2][j]} offen nt")
    if xl: a(xld)
    if rj and not fast: a(f"s_load_dwordx8 s[32:39], s[76:77], s{sT3}")
    if fast: a(late_s)
    def roles():
        a(f"""
        s_and_b32 s{sRB}, s{sR8}, 3
        s_lshr_b32 s{sLC}, s{sR8}, 2
        s_lshl_b32 s{sT0}, s{sCB}, 1
        s_or_b32 s{sLC}, s{sLC}, s{sT0}
        s_lshr_b32 s{sPL}, s2, 5
        s_lshl_b32 s{sPL}, s{sPL}, 3
        s_and_b32 s{sT0}, s2, 7
        s_or_b32 s{sPL}, s{sPL}, s{sT0}
        s_mov_b32 s{WS_+2}, {WS_SIZE if not stamps else (256<<20)}
        s_mov_b32 s{WS_+3}, 0x20000
        """)
    vX = vT; vGA = vT + 8
    a(f"""
    v_mul_u32_u24 v{vWFO}, {(1 if rj else 4)*7168}, v{vA0}
    v_mul_u32_u24 v{vB2}, 0x202, v{vA0}
    v_add_u32 v{vB2}, 0x0c0c0100, v{vB2}
    v_alignbit_b32 v{vB3}, v{vB2}, v{vB2}, 16
    v_add_u32 v{vWFO}, v{vWFO}, v{vA1}
    s_cmp_lt_u32 s{sCB}, 28
    s_cselect_b32 s{WG_+2}, {1024*7168}, 0
    s_cselect_b32 s{WU_+2}, {1024*7168}, 0
    s_cselect_b32 s{WD_+2}, {3584*2048}, 0
    s_mov_b32 s{WG_+3}, 0x20000
    s_mov_b32 s{WU_+3}, 0x20000
    s_mov_b64 s[{WG_}:{WG_+1}], s[88:89]
    s_mov_b64 s[{WU_}:{WU_+1}], s[90:91]
    s_mov_b64 s[{K_}:{K_+1}], s[78:79]
    s_mov_b64 s[{V_}:{V_+1}], s[80:81]
    s_mov_b64 s[{WO_}:{WO_+1}], s[84:85]
    s_mov_b32 s{K_+2}, 0x4000000
    s_mov_b32 s{K_+3}, 0x20000
    s_mov_b32 s{V_+2}, 0x4000000
    s_mov_b32 s{V_+3}, 0x20000
    s_mov_b32 s{WO_+2}, {4096*2048}
    s_mov_b32 s{WO_+3}, 0x20000
    s_mov_b32 s{WD_+3}, 0x20000
    s_mov_b32 s{OUT_+2}, 2048
    s_mov_b32 s{OUT_+3}, 0x20000
    s_mov_b32 s{sSELLO}, 0x05040100
    s_mov_b32 s{sSELHI}, 0x07060302
    s_mov_b32 s{sC}, {hex(f2u(128**-0.5 * math.log2(math.e)))}
    s_mov_b32 s{sBOOST}, {WIN if lv else 0}
    s_mul_i32 s{sKV}, s{sG}, {(1<<24) + ((gx&1)<<22)}
    """)
    if gx == 2:
        a(f"s_and_b32 s{sT0}, s2, 6")
        a(f"s_lshl_b32 s{sT0}, s{sT0}, 21")
        a(f"s_add_u32 s{sKV}, s{sKV}, s{sT0}")
    if ix == 0:
        a(f"s_lshl_b32 s{sT0}, s{sI}, 16")
        a(f"s_add_u32 s{sKV}, s{sKV}, s{sT0}")
    else:
        pos = {1: [17, 18, 19, 16, 20, 21], 2: [16, 17, 19, 18, 20, 21]}[ix]
        for b in range(6):
            a(f"s_bfe_u32 s{sT0}, s2, {0x10000 + b}")
            a(f"s_lshl_b32 s{sT0}, s{sT0}, {pos[b]}")
            a(f"s_add_u32 s{sKV}, s{sKV}, s{sT0}")
    a(f"""
    s_lshl_b32 s{sT0}, s{sWV}, 13
    s_add_u32 s{sKV}, s{sKV}, s{sT0}
    s_lshl_b32 s{sT0}, s{sWV}, 10
    s_add_u32 s{sXV}, s{sKV}, s{sT0}
    s_and_b32 s{sT1}, s{sT0}, 4096
    s_add_u32 s{sKV}, s{sKV}, s{sT1}
    s_and_b32 s{sT0}, s{sT0}, 3072
    v_lshlrev_b32 v{vA2}, 1, v{vA1}
    v_lshl_add_u32 v{vA2}, v{vA0}, 3, v{vA2}
    s_lshl_b32 s{sT1}, s{sWV}, 9
    v_add_u32 v{vGA}, s{sT1}, v{vA2}
    v_and_b32 v{vA2}, 3, v{vL}
    v_lshlrev_b32 v{vA2}, 10, v{vA2}
    v_xor_b32 v{vA2}, s{sT0}, v{vA2}
    v_bfe_u32 v{vA3}, v{vL}, 2, 1
    v_lshl_add_u32 v{vA2}, v{vA3}, 8, v{vA2}
    v_bfe_u32 v{vA3}, v{vL}, 3, 1
    v_lshl_add_u32 v{vA2}, v{vA3}, 6, v{vA2}
    v_lshl_add_u32 v{vKO}, v{vA0}, 4, v{vA2}
    v_mov_b32 v{vE+6}, 0
    v_mov_b32 v{vE+7}, 0x40000000
    """)
    roles()
    if fast: a("s_waitcnt lgkmcnt(0)")
    a(f"""
    s_mov_b64 s[{WD_}:{WD_+1}], s[92:93]
    s_mov_b64 s[{OUT_}:{OUT_+1}], s[96:97]
    """)
    init_stamps()
    for r in range(24): a(f"v_mov_b32 v{vS+r}, 0")
    a("s_barrier")

    U = []
    for j in range(4): U.append((f"wq{j}", None, 2 if (xl and j == 3) else 1, None))
    for nm, R, S_ in (("gate", WGR, WG_), ("up", WUR, WU_)):
        for j in range(4):
            U.append((f"{nm}{j}", [f"s_add_u32 s{sT3}, s{sB}, {j*7168*(4 if rj else 1)}", f"buffer_load_dwordx4 {vr(R+4*j,4)}, v{vWFO}, {srd(S_)}, s{sT3} offen nt"], 1, None))
    WDQ = [vP, vP + 4, vP + 8, vSP]
    WOR = vT; PW = R0
    def wdunit(j, pre):
        if sp:
            U.append((f"wd{j}", [f"v_mov_b32_dpp v{vA2}, v{vE+5} row_newbcast:{j} {DPP}",
                      f"v_and_b32 v{vA3}, 0x7fff0000, v{vA2}", f"v_and_b32 v{vA2}, 0x7fff, v{vA2}",
                      f"v_cmp_ne_u32 vcc, 0, v{vA2}", f"v_cndmask_b32 v{vA2}, v{vE+7}, v{vWDO}, vcc",
                      f"v_cmp_ne_u32 vcc, 0, v{vA3}", f"v_cndmask_b32 v{vA3}, v{vE+7}, v{vWDO}, vcc",
                      f"s_xor_b32 s{sT3}, s{sWD}, {j*4096}", f"buffer_load_dwordx2 {vr(WDQ[j],2)}, v{vA2}, {srd(WD_)}, s{sT3} offen nt",
                      f"buffer_load_dwordx2 {vr(WDQ[j]+2,2)}, v{vA3}, {srd(WD_)}, s{sT3} offen offset:2048 nt"], 2, pre))
            return
        U.append((f"wd{j}", [f"s_xor_b32 s{sT3}, s{sWD}, {j*4096}", f"buffer_load_dwordx2 {vr(WDQ[j],2)}, v{vWDO}, {srd(WD_)}, s{sT3} offen nt",
                  f"buffer_load_dwordx2 {vr(WDQ[j]+2,2)}, v{vWDO}, {srd(WD_)}, s{sT3} offen offset:2048 nt"], 2, pre))
    KSL = [A1, vP, R0, R1, A0, A1, vP, A0]
    KPRE = [None, None, "wq", "gate", "up", "K0", "K1", "K4"]
    for g in range(8):
        t, u = g >> 1, g & 1
        for k in range(4):
            l = [f"s_xor_b32 s{sKS}, s{sKV}, {t*(4<<20) + u*4096}"] if k == 0 else []
            l.append(f"buffer_load_dwordx4 {vr(KSL[g]+4*k,4)}, v{vKO}, {srd(K_)}, s{sKS} offen offset:{(k>>1)*512+(k&1)*128} nt")
            U.append((f"K{g}_{k}", l, 1, KPRE[g]))
    nearly = 8 - ncov
    order = [3, 0, 1, 2]
    for t in range(4):
        if t == 3:
            for j in order[:min(nearly, 3)]: wdunit(j, "V1m")
        for j in range(8):
            if t == 3 and j == 4 and nearly == 4: wdunit(2, "V2m")
            U.append((f"V{t}_{j}", [f"s_xor_b32 s{sKS}, s{sXV}, {t*(4<<20) + j*1024}",
                      f"buffer_load_dwordx4 {vr(vR+4*j,4)}, v{vVO}, {srd(V_)}, s{sKS} offen nt"], 1, f"K{2+(j>>2)}" if t == 0 else f"V{t-1}p{j>>1}"))
    for j in order[nearly:]: wdunit(j, "V2m")
    for j in range(4):
        l = []
        for e in range(2 * j, 2 * j + 2):
            l += [f"s_xor_b32 s{sT3}, s{sB}, {e*16384}", f"buffer_load_dwordx2 {vr(WOR+2*e,2)}, v{vWOO}, {srd(WO_)}, s{sT3} offen nt"]
        U.append((f"wo{j}", l, 2, "pre"))
    if merge:
        k0_ = [u[0] for u in U].index("wd3")
        w = U[k0_:k0_ + 4]
        U[k0_:k0_ + 4] = [("wd0", w[0][1] + w[1][1], 4, w[1][3]), ("wd2", w[2][1] + w[3][1], 4, w[3][3])]
    names = [u[0] for u in U]
    idx = {n: k for k, n in enumerate(names)}

    consumed = set()
    def task_g(m, j):
        W, acc = [(WQR, vS), (WGR, vS + 8), (WUR, vS + 16)][m]
        if m == 0 and j == 0 and rj:
            a("s_waitcnt lgkmcnt(0)")
            for jj in range(4):
                a(f"v_mov_b32 v{vA0}, s{32+2*jj}")
                a(f"v_perm_b32 v{vX+2*jj}, s{33+2*jj}, v{vA0}, v{vB2}")
                a(f"v_perm_b32 v{vX+2*jj+1}, s{33+2*jj}, v{vA0}, v{vB3}")
        elif m == 0 and j == 0:
            for h in range(2):
                a(f"v_and_b32 v{vX+4*h}, 0xffff, v{vXP+h}")
                a(f"v_lshlrev_b32 v{vX+4*h+1}, 16, v{vXP+h}")
                a(f"v_lshrrev_b32 v{vX+4*h+2}, 16, v{vXP+h}")
                a(f"v_and_b32 v{vX+4*h+3}, 0xffff0000, v{vXP+h}")
        if "g" in dg:
            if j == 3: consumed.add(["wq", "gate", "up"][m])
            return
        for w in range(4):
            a(f"v_dot2c_f32_bf16 v{acc+2*w}, v{W+4*j+w}, v{vX+2*j}")
            a(f"v_dot2c_f32_bf16 v{acc+2*w+1}, v{W+4*j+w}, v{vX+2*j+1}")
        if j == 3:
            consumed.add(["wq", "gate", "up"][m])
            for k in range(4): a(f"v_permlane32_swap_b32 v{acc+k}, v{acc+k+4}")
            for k in range(4): a(f"v_add_f32 v{acc+k}, v{acc+k}, v{acc+k+4}")
            for k in range(2): a(f"v_permlane16_swap_b32 v{acc+k}, v{acc+k+2}")
            for k in range(2): a(f"v_add_f32 v{acc+k}, v{acc+k}, v{acc+k+2}")
            a(f"ds_write_b64 v{vGA}, {vr(acc,2)} offset:{L_GP+4096*m}")
            if m != 1: arrive(C_Q if m == 0 else C_F)
            if m == 0: stamp(1)
    def wperm(dst, quads):
        for p in range(4):
            for d in range(2):
                a(f"v_perm_b32 v{dst+4*p+2*d}, v{quads[p]+2+d}, v{quads[p]+d}, s{sSELLO}")
                a(f"v_perm_b32 v{dst+4*p+2*d+1}, v{quads[p]+2+d}, v{quads[p]+d}, s{sSELHI}")
    def dot16(W, vO, acc):
        for p in range(4):
            for c in range(4): a(f"v_dot2c_f32_bf16_dpp v{acc+c}, v{vO}, v{W+4*p+c} row_newbcast:{p} {DPP}")
    def task_qwait():
        stamp(2)
        wait_cnt(C_QS, 1)
        a(f"""
        v_and_b32 v{vA0}, 7, v{vL}
        v_mul_u32_u24 v{vA0}, 272, v{vA0}
        v_bfe_u32 v{vA1}, v{vL}, 3, 1
        v_lshl_add_u32 v{vA0}, v{vA1}, 6, v{vA0}
        v_lshrrev_b32 v{vA1}, 4, v{vL}
        v_lshl_add_u32 v{vA0}, v{vA1}, 4, v{vA0}
        """)
        for s in range(2): a(f"ds_read_b128 {vr(vQ+4*s,4)}, v{vA0} offset:{L_QS+128*s}")
        if gt: a(f"ds_read_b32 v{vA1}, v{vE+6} offset:{L_G+12}")
        a("s_waitcnt lgkmcnt(0)")
        if gt:
            a(f"v_readfirstlane_b32 s{sM0}, v{vA1}")
            st["ca"] = CA2 if CA2 is not None else CA
        stamp(3)
    def task_k(g):
        base = KSL[g]; dx = vS + 4 * g; dy = vT
        for sp in range(2):
            a(f"v_mfma_f32_16x16x32_bf16 {vr(dx,4)}, {vr(base+4*sp,4)}, {vr(vQ+4*sp,4)}, {'0' if sp==0 else vr(dx,4)}")
            a(f"v_mfma_f32_16x16x32_bf16 {vr(dy,4)}, {vr(base+8+4*sp,4)}, {vr(vQ+4*sp,4)}, {'0' if sp==0 else vr(dy,4)}")
        for r in range(4): a(f"v_permlane32_swap_b32 v{dx+r}, v{dy+r}")
        for r in range(4): a(f"v_add_f32_dpp v{dx+r}, v{dy+r}, v{dx+r} row_ror:8 {DPP}")
        consumed.add(f"K{g}")
    vM = vE
    def sm_max():
        a(f"v_max3_f32 v{vM}, v{vS}, v{vS+1}, v{vS+2}")
        a(f"v_max3_f32 v{vA2}, v{vS+3}, v{vS+4}, v{vS+5}")
        for k in range(6, 30, 4):
            a(f"v_max3_f32 v{vM}, v{vM}, v{vS+k}, v{vS+k+1}")
            a(f"v_max3_f32 v{vA2}, v{vA2}, v{vS+k+2}, v{vS+k+3}")
        a(f"v_max3_f32 v{vM}, v{vM}, v{vS+30}, v{vS+31}")
        a(f"v_max_f32 v{vM}, v{vM}, v{vA2}")
        red_bits45("max", vM, vA2)
        a(f"v_mul_f32 v{vM}, s{sC}, v{vM}")
    def sm_exp(t):
        for k in range(8 * t, 8 * t + 8): a(f"v_fma_f32 v{vS+k}, v{vS+k}, s{sC}, -v{vM}")
        for k in range(8 * t, 8 * t + 8): a(f"v_exp_f32 v{vS+k}, v{vS+k}")
        for k in range(4 * t, 4 * t + 4): a(f"v_cvt_pk_bf16_f32 v{vP+k}, v{vS+2*k}, v{vS+2*k+1}")
        sum8(vS + 8 * t)
    def sm_fin():
        a(f"v_add_f32 v{vS}, v{vS}, v{vS+8}")
        a(f"v_add_f32 v{vS+16}, v{vS+16}, v{vS+24}")
        a(f"v_add_f32 v{vM+1}, v{vS}, v{vS+16}")
        red_bits45("add", vM + 1, vA2)
        a(f"""
        s_lshl_b32 s{sT0}, s{sWV}, 6
        v_lshl_add_u32 v{vA2}, v{vL}, 3, s{sT0}
        s_mov_b64 exec, 0xff
        ds_write_b64 v{vA2}, {vr(vM,2)} offset:{L_ST}
        s_mov_b64 exec, -1
        """)
        arrive(C_ST)
        stamp(4)
    def task_vperm(t, uu):
        for w in range(4):
            a(f"v_perm_b32 v{vS+4*(2*w)+uu}, v{vR+4*(2*uu+1)+w}, v{vR+4*(2*uu)+w}, s{sSELLO}")
            a(f"v_perm_b32 v{vS+4*(2*w+1)+uu}, v{vR+4*(2*uu+1)+w}, v{vR+4*(2*uu)+w}, s{sSELHI}")
        consumed.add(f"V{t}p{uu}")
        if uu == 3:
            for i in range(8):
                c = "0" if t == 0 else vr(vACC + 4 * i, 4)
                a(f"v_mfma_f32_16x16x32_bf16 {vr(vACC+4*i,4)}, {vr(vS+4*i,4)}, {vr(vP+4*t,4)}, {c}")
            consumed.add(f"V{t}m")
    aOW, aOR, aF, aH1, aR2W, aL8, aH2, aR1W = [vQ + k for k in range(8)]
    aR1R, aFP, aR3, vG, vHP = vKO, vWFO, vE + 4, vE + 2, vE + 5
    def task_pre1():
        a(f"""
        v_lshrrev_b32 v{vA1}, 4, v{vL}
        v_and_b32 v{vA2}, 7, v{vL}
        v_mul_u32_u24 v{vA0}, 528, v{vA2}
        v_lshl_add_u32 v{vA0}, v{vA1}, 4, v{vA0}
        s_mul_i32 s{sT0}, s{sWV}, 4224
        v_add_u32 v{aOW}, s{sT0}, v{vA0}
        s_mul_i32 s{sT0}, s{sWV}, 528
        v_lshl_add_u32 v{aOR}, v{vL}, 3, s{sT0}
        s_lshl_b32 s{sT0}, s{sWV}, 5
        v_mov_b32 v{aF}, s{sT0}
        v_lshrrev_b32 v{vA0}, 5, v{vL}
        v_lshlrev_b32 v{vA3}, 2, v{vA0}
        v_lshl_add_u32 v{vA3}, v{vA2}, 3, v{vA3}
        s_lshl_b32 s{sT0}, s{sWV}, 6
        v_add_u32 v{aR2W}, s{sT0}, v{vA3}
        v_lshlrev_b32 v{aL8}, 3, v{vL}
        v_and_b32 v{vA2}, 15, v{vL}
        s_and_b32 s{sT1}, s{sWV}, 3
        s_lshl_b32 s{sT0}, s{sT1}, 7
        v_lshl_add_u32 v{vA3}, v{vA2}, 3, s{sT0}
        v_lshl_add_u32 v{vWDO}, v{vA1}, 14, v{vA3}
        v_lshl_add_u32 v{vA3}, v{vA0}, 11, v{vA3}
        v_and_b32 v{vA0}, 1, v{vA1}
        v_lshl_add_u32 v{vWOO}, v{vA0}, 17, v{vA3}
        v_lshl_add_u32 v{vA0}, v{vA2}, 2, v{vA1}
        s_lshl_b32 s{sT0}, s{sT1}, 9
        v_lshl_add_u32 v{aFP}, v{vA0}, 3, s{sT0}
        s_lshl_b32 s{sT0}, s{sWV}, 8
        v_lshl_add_u32 v{aR1W}, v{vA0}, 2, s{sT0}
        s_lshl_b32 s{sT0}, s{sT1}, 8
        v_lshl_add_u32 v{aR3}, v{vL}, 2, s{sT0}
        v_lshrrev_b32 v{vA0}, 8, v{vT16}
        v_lshlrev_b32 v{vA0}, 12, v{vA0}
        v_and_b32 v{vA2}, 0xf0, v{vT16}
        v_add_u32 v{aH1}, v{vA0}, v{vA2}
        v_lshrrev_b32 v{vA0}, 7, v{vT16}
        v_lshlrev_b32 v{vA0}, 11, v{vA0}
        v_and_b32 v{vA2}, 0x70, v{vT16}
        v_add_u32 v{aH2}, v{vA0}, v{vA2}
        v_lshrrev_b32 v{vT16}, 1, v{vT16}
        """)
    def task_pre2():
        wait_cnt(C_H, 1)
        a(f"""
        v_and_b32 v{vA3}, 3, v{vL}
        s_and_b32 s{sT1}, s{sWV}, {ex}
        v_xor_b32 v{vA3}, s{sT1}, v{vA3}
        v_lshrrev_b32 v{vA2}, 4, v{vL}
        v_lshl_add_u32 v{vA2}, v{vA2}, 2, v{vA3}
        s_lshr_b32 s{sT2}, s{sWV}, 2
        s_lshl_b32 s{sT0}, s{sT2}, 4
        v_add_u32 v{vA2}, s{sT0}, v{vA2}
        v_bfe_u32 v{vA3}, v{vL}, 2, 2
        v_lshlrev_b32 v{vA3}, 9, v{vA3}
        v_lshl_add_u32 v{aR1R}, v{vA2}, 3, v{vA3}
        v_lshlrev_b32 v{vA2}, 2, v{vA2}
        ds_read_b32 v{vHP}, v{vA2} offset:{L_H}
        ds_read_b64 {vr(vG,2)}, v{vE+6} offset:{L_G}
        ds_read_b32 v{vTAG}, v{vE+6} offset:{L_G+8}
        s_lshl_b32 s{sWD}, s{sLC}, 17
        s_lshl_b32 s{sT0}, s{sT2}, 16
        s_add_u32 s{sWD}, s{sWD}, s{sT0}
        s_lshl_b32 s{sT0}, s{sT1}, 12
        s_add_u32 s{sWD}, s{sWD}, s{sT0}
        s_lshl_b32 s{sT0}, s{sRB}, 9
        s_add_u32 s{sWD}, s{sWD}, s{sT0}
        s_lshl_b32 s{sB}, s{sT1}, 15
        s_add_u32 s{sB}, s{sB}, s{sT0}
        s_lshl_b32 s{sT0}, s{sT2}, 12
        s_add_u32 s{sB}, s{sB}, s{sT0}
        s_lshr_b32 s{sT1}, s{sR8}, 2
        s_lshl_b32 s{sT0}, s{sT1}, 13
        s_add_u32 s{sB}, s{sB}, s{sT0}
        s_and_b32 s{sT2}, s2, 7
        s_lshl_b32 s{sT0}, s{sG}, 3
        s_add_u32 s{sT0}, s{sT0}, s{sT2}
        s_lshl_b32 s{sT0}, s{sT0}, 18
        s_add_u32 s{sB}, s{sB}, s{sT0}
        s_lshl_b32 s{sH1}, s{sG}, 18
        s_lshl_b32 s{sT0}, s{sT2}, 9
        s_add_u32 s{sH1}, s{sH1}, s{sT0}
        s_lshl_b32 s{sT0}, s{sT1}, 8
        s_add_u32 s{sH1}, s{sH1}, s{sT0}
        s_add_u32 s{sH1}, s{sH1}, {WS_OP}
        s_add_u32 s{sH1b}, s{sH1}, {32*4096}
        s_lshl_b32 s{sPA}, s2, 12
        s_add_u32 s{sPA}, s{sPA}, {WS_OP}
        s_lshl_b32 s{sPB}, s{sRB}, 6
        s_add_u32 s{sPB}, s{sPB}, s{sPL}
        s_lshl_b32 s{sPB}, s{sPB}, 11
        s_add_u32 s{sPB}, s{sPB}, {WS_FP}
        s_lshl_b32 s{sI}, s{sT2}, 3
        s_or_b32 s{sI}, s{sI}, s{sR8}
        s_mov_b32 s{sI}, s{sI if fx else 2}
        s_lshr_b32 s{sA}, s{sI}, 4
        s_lshl_b32 s{sA}, s{sA}, 17
        s_and_b32 s{sT0}, s{sI}, 15
        s_lshl_b32 s{sT0}, s{sT0}, 7
        s_add_u32 s{sA}, s{sA}, s{sT0}
        s_add_u32 s{sA}, s{sA}, {WS_FP}
        s_waitcnt lgkmcnt(0)
        v_mov_b32 v{vB1}, v{vTAG}
        v_mov_b32 v{vE+1}, v{vTAG}
        """)
        for k in range(4): a(f"v_mov_b32 v{vBP+k}, 0")
        if po:
            a(f"""
            s_cmp_ge_u32 s2, 64
            s_cbranch_scc1 L_npo
            s_cmp_lg_u32 s{sWV}, 0
            s_cbranch_scc1 L_npo
            s_lshl_b32 s{sT0}, s{sI}, 5
            buffer_load_dword v{vE}, off, {srd(OUT_)}, s{sT0}
            L_npo:
            """)
        consumed.add("pre")
    vH1 = R1; vF = R1 + 8
    h1 = [f"buffer_load_dwordx4 {vr(vH1+4*k,4)}, v{aH1}, {srd(WS_)}, s{sH1+k} offen sc1" for k in range(2)]
    if xp & 4: h1 = []

    C = []
    for m, nm in enumerate(("wq", "gate", "up")):
        if m == 0 and xl: C.append((3, lambda: [task_g(0, j) for j in range(4)]))
        else:
            for j in range(4): C.append((idx[f"{nm}{j}"], lambda m=m, j=j: task_g(m, j)))
    C.append((p1_at, lambda: arrive(C_P1)))
    C.append((p2_at, lambda: arrive(C_P2)))
    C.append((q_at, task_qwait))
    for g in range(8): C.append((max(q_at, idx[f"K{g}_3"]), lambda g=g: task_k(g)))
    kend = idx["K7_3"]
    C.append((kend, sm_max))
    for t in range(4): C.append((kend, lambda t=t: sm_exp(t)))
    C.append((kend, sm_fin))
    for t in range(4):
        for uu in range(4): C.append((idx[f"V{t}_{2*uu+1}"], lambda t=t, uu=uu: task_vperm(t, uu)))
    C.append((idx["V1_2"], task_pre1)); C.append((idx["V1_4"], task_pre2))
    C.sort(key=lambda c: c[0])
    n = len(U); stop_at = idx["V3_7"]
    st = {"issued": 4, "c": 0, "ca": CA}
    def run_chunk():
        C[st["c"]][1](); st["c"] += 1
    def issue_upto(lim, arrived, throttle=True):
        while st["issued"] < min(n, lim):
            k = st["issued"]
            nm, lines, nv, pre = U[k]
            if throttle and k - WIN >= stop_at: return
            while pre is not None and pre not in consumed:
                assert C[st["c"]][0] <= arrived, ("issue blocked", nm, names[arrived])
                run_chunk()
            if throttle and k >= dyn0 and lv:
                lk = a.label("Li")
                wlo = WLO
                if tw and idx["V0_0"] + t0 <= k <= idx["V0_0"] + t1: wlo = tw
                if qw and q_at + WMAX - 1 <= k <= q_at + WMAX + 3: wlo = qw
                for w in range(WMAX - 1, wlo - 1, -1):
                    if w < WIN and k - w >= stop_at: break
                    a(f"s_cmp_gt_i32 s{sBOOST}, {w}")
                    a(f"s_cbranch_scc1 {lk}")
                    a(f"s_waitcnt vmcnt({sum(u[2] for u in U[k-w+1:k])})")
                a(f"{lk}:")
            elif throttle and k >= dyn0:
                lk = a.label("Li")
                a(f"s_cmp_gt_u32 s{sBOOST}, {k}")
                a(f"s_cbranch_scc1 {lk}")
                a(f"s_waitcnt vmcnt({sum(u[2] for u in U[k-WIN+1:k])})")
                a(f"{lk}:")
            for x in lines: a(x)
            st["issued"] += 1
    issue_upto(W0, -1)
    for arrived in range(stop_at + 1):
        assert st["issued"] > arrived
        a(f"s_waitcnt vmcnt({sum(u[2] for u in U[arrived + 1:st['issued']])})")
        if arrived == probe: a("s_memrealtime s[100:101]")
        if arrived % 8 == 7: stamp(arrived // 8 + 1, "u")
        if arrived % 6 == 5 and arrived < 60: stamp(arrived // 6 + 1, "s")
        if arrived >= k0 and arrived < stop_at - 3:
            if (arrived - k0) % CK == 0:
                a(f"s_memrealtime s[{sCK}:{sCK+1}]")
                if cal and arrived > p2_at: a(f"ds_read_b32 v{vB3}, v{vE+6} offset:{L_TM}")
            if (arrived - k0) % CK == 1:
                kk = st["issued"] - WIN - 1
                if lv and cal and arrived - 1 > p2_at:
                    a(f"""
                    s_waitcnt lgkmcnt(0)
                    v_readfirstlane_b32 s{sT0}, v{vB3}
                    s_cmp_lg_u32 s{sT0}, 0
                    s_cselect_b32 s{sT0}, s{sT0}, s{sM0}
                    s_mov_b32 s{sT1}, {st["ca"] + CB * kk // 10}
                    s_cselect_b32 s{sT1}, {CM + CV * (kk - KR) // 10}, s{sT1}
                    s_sub_u32 s{sCK}, s{sCK}, s{sT0}
                    s_sub_i32 s{sCK}, s{sCK}, s{sT1}
                    s_ashr_i32 s{sCK}, s{sCK}, {lv}
                    s_add_i32 s{sBOOST}, s{sCK}, {WIN + 1}
                    """)
                elif lv:
                    a(f"""
                    s_waitcnt lgkmcnt(0)
                    s_sub_u32 s{sCK}, s{sCK}, s{sM0}
                    s_sub_i32 s{sCK}, s{sCK}, {st["ca"] + CB * kk // 10}
                    s_ashr_i32 s{sCK}, s{sCK}, {lv}
                    s_add_i32 s{sBOOST}, s{sCK}, {WIN + 1}
                    """)
                else: a(f"""
                s_waitcnt lgkmcnt(0)
                s_sub_u32 s{sCK}, s{sCK}, s{sM0}
                s_sub_i32 s{sCK}, s{sCK}, {st["ca"] + CB * kk // 10}
                s_ashr_i32 s{sCK}, s{sCK}, {gsh}
                s_add_i32 s{sBOOST}, s{sCK}, {st["issued"]}
                s_max_i32 s{sBOOST}, s{sBOOST}, 0
                """)
        if arrived < stop_at: issue_upto(arrived + 1 + (W1 if arrived < dyn0 - W1 else WMAX), arrived)
        ran = 0
        while st["c"] < len(C) and C[st["c"]][0] <= arrived and (ran < 2 or arrived >= stop_at - 1):
            run_chunk(); ran += 1
    assert st["c"] == len(C)

    stamp(5)
    if not cpos: issue_upto(st["issued"] + ca, n, False)
    a("s_mov_b32 exec_lo, 0x00ff00ff")
    a("s_mov_b32 exec_hi, 0x00ff00ff")
    for i in range(8): a(f"ds_write_b128 v{aOW}, {vr(vACC+4*i,4)} offset:{L_ORED+64*i}")
    a("s_mov_b64 exec, -1")
    if cpos: issue_upto(st["issued"] + ca, n, False)
    a(f"""
    s_waitcnt lgkmcnt(0)
    s_barrier
    ds_read_b128 {vr(vF,4)}, v{aF} offset:{L_F}
    ds_read_b128 {vr(vF+4,4)}, v{aF} offset:{L_F+16}
    """)
    for w in range(8): a(f"ds_read_b64 {vr(vS+2*w,2)}, v{aOR} offset:{L_ORED+4224*w}")
    a("s_waitcnt lgkmcnt(7)")
    a(f"v_mul_f32 v{vB0}, v{vS}, v{vF}")
    a(f"v_mul_f32 v{vB2}, v{vS+1}, v{vF}")
    for w in range(1, 8):
        a(f"s_waitcnt lgkmcnt({7-w})")
        a(f"v_fmac_f32 v{vB0}, v{vS+2*w}, v{vF+w}")
        a(f"v_fmac_f32 v{vB2}, v{vS+2*w+1}, v{vF+w}")
    a(f"v_cvt_pk_bf16_f32 v{vB0}, v{vB0}, v{vB2}")
    a(f"buffer_store_dwordx2 {vr(vB0,2)}, v{vT16}, {srd(WS_)}, s{sPA} offen" + ("" if xp & 1 else " sc1"))
    stamp(6)
    k_s = st["issued"]
    issue_upto(st["issued"] + cb, n, False)
    if notail: a("s_branch L_fin")
    def outstanding_after(k): return sum(u[2] for u in U[k:st["issued"]])
    wait_to = min(st["issued"], k_s + h1d)
    a(f"s_waitcnt vmcnt({outstanding_after(wait_to)})")
    if hs: a(f"s_sleep {hs}")
    if h1first:
        for l in h1: a(l)
    k_h = st["issued"]
    issue_upto(n, n, False)
    if not h1first:
        for l in h1: a(l)
    nh = len(h1)
    lastwd = max(idx.get(f"wd{j}", 0) for j in range(4))
    w = outstanding_after(lastwd + 1) + (nh if (not h1first or lastwd + 1 <= k_h) else 0)
    a(f"s_waitcnt vmcnt({w})")
    wperm(vS + 16, WDQ)
    dot16(vS + 16, vHP, vBP)
    for k in range(4): a(f"v_mov_b32 v{vS+8+k}, 0")
    for k in range(4): a(f"v_mul_f32 v{vBP+k}, v{vBP+k}, v{vG+1}")
    a(f"s_waitcnt vmcnt({0 if h1first else nh})")
    wperm(PW, [WOR + 4 * p for p in range(4)])
    a("s_waitcnt vmcnt(0)")
    stamp(7)
    if not xp: poll(h1, [vH1 + 1, vH1 + 3, vH1 + 5, vH1 + 7], vA0, sleep1, first_issued=True)
    stamp(8)
    for r in (0, 2, 4, 6):
        a(f"v_and_b32 v{vH1+r+1}, 0xffff0000, v{vH1+r}")
        a(f"v_lshlrev_b32 v{vH1+r}, 16, v{vH1+r}")
    for r in range(4): a(f"v_add_f32 v{vH1+r}, v{vH1+r}, v{vH1+r+4}")
    tred4(vH1, vH1)
    a(f"""
    ds_write_b32 v{aR1W}, v{vH1} offset:{L_RED1}
    s_waitcnt lgkmcnt(0)
    s_barrier
    ds_read_b64 {vr(vS,2)}, v{aR1R} offset:{L_RED1}
    ds_read_b64 {vr(vS+2,2)}, v{aR1R} offset:{L_RED1+256}
    s_waitcnt lgkmcnt(0)
    v_add_f32 v{vS}, v{vS}, v{vS+2}
    v_add_f32 v{vS+1}, v{vS+1}, v{vS+3}
    v_add_f32_dpp v{vS}, v{vS}, v{vS} row_ror:4 {DPP}
    v_add_f32_dpp v{vS+1}, v{vS+1}, v{vS+1} row_ror:4 {DPP}
    v_add_f32_dpp v{vS}, v{vS}, v{vS} row_ror:8 {DPP}
    v_add_f32_dpp v{vS+1}, v{vS+1}, v{vS+1} row_ror:8 {DPP}
    v_cvt_pk_bf16_f32 v{vA0}, v{vS}, v{vS+1}
    """)
    dot16(PW, vA0, vS + 8)
    for k in range(4): a(f"v_fmac_f32 v{vBP+k}, v{vS+8+k}, v{vG}")
    tred4(vBP, vE)
    a(f"""
    s_cmp_lt_u32 s{sWV}, 4
    s_cbranch_scc1 L_lo
    ds_write_b32 v{aR3}, v{vE} offset:{L_RED3}
    s_waitcnt lgkmcnt(0)
    s_barrier
    s_branch L_st
    L_lo:
    s_barrier
    ds_read_b32 v{vA0}, v{aR3} offset:{L_RED3}
    s_waitcnt lgkmcnt(0)
    v_add_f32 v{vE}, v{vE}, v{vA0}
    buffer_store_dwordx2 {vr(vE,2)}, v{aFP}, {srd(WS_)}, s{sPB} offen sc1
    L_st:
    """)
    stamp(9)
    a("s_cmp_ge_u32 s2, 64")
    a("s_cbranch_scc1 L_fin")
    if h4:
        a(f"""
        s_cmp_ge_u32 s{sWV}, 4
        s_cbranch_scc1 L_h4
        s_barrier
        s_branch L_fin
        L_h4:
        s_sub_u32 s{sT1}, s{sA}, {32*2048}
        """)
        if h4s: a(f"s_sleep {h4s}")
        poll([f"buffer_load_dwordx4 {vr(vS,4)}, v{aH2}, {srd(WS_)}, s{sA} offen sc1", f"buffer_load_dwordx4 {vr(vS+4,4)}, v{aH2}, {srd(WS_)}, s{sT1} offen sc1"],
             [vS + 1, vS + 3, vS + 5, vS + 7], vA0, sleep1)
        stamp(10)
        a(f"v_add_f32 v{vS}, v{vS}, v{vS+4}")
        a(f"v_add_f32 v{vS+2}, v{vS+2}, v{vS+6}")
    else:
        if dry:
            a(f"""
            s_cmp_eq_u32 s{sWV}, 0
            s_cselect_b32 s{sT2}, 1, 0
            s_cbranch_scc1 L_post2
            L_poll2:
            s_mov_b32 s{sT2}, 0
            """)
        if ack2: a("s_waitcnt vmcnt(0)")
        poll([f"buffer_load_dwordx4 {vr(vS,4)}, v{aH2}, {srd(WS_)}, s{sA} offen sc1"], [vS + 1, vS + 3], vA0, sleep1)
        stamp(10)
    if dry: a("L_post2:")
    a(f"""
    v_permlane32_swap_b32 v{vS}, v{vS+2}
    v_add_f32 v{vS}, v{vS}, v{vS+2}
    v_add_f32_dpp v{vS}, v{vS}, v{vS} row_ror:8 {DPP}
    v_mov_b32 v{vA1}, v{vS}
    v_permlane16_swap_b32 v{vS}, v{vA1}
    v_add_f32 v{vS}, v{vS}, v{vA1}
    ds_write_b32 v{aR2W}, v{vS} offset:{L_RED2}
    """)
    if dry:
        a(f"s_cmp_lg_u32 s{sT2}, 0")
        a("s_cbranch_scc1 L_nb2")
    a(f"""
    s_waitcnt lgkmcnt(0)
    s_barrier
    s_cmp_lg_u32 s{sWV}, {4 if h4 else 0}
    s_cbranch_scc1 L_fin
    L_nb2:
    ds_read_b64 {vr(vS,2)}, v{aL8} offset:{L_RED2 + (256 if h4 else 0)}
    v_lshlrev_b32 v{vA2}, 2, v{vL}
    s_lshl_b32 s{sT0}, s{sI}, 5
    """)
    if dry: a(f"s_cmp_lg_u32 s{sT2}, 0")
    a("s_waitcnt lgkmcnt(0)")
    if h4:
        a(f"""
        v_add_f32_dpp v{vS}, v{vS}, v{vS} row_ror:8 {DPP}
        v_add_f32_dpp v{vS+1}, v{vS+1}, v{vS+1} row_ror:8 {DPP}
        v_mov_b32 v{vA0}, v{vS}
        v_mov_b32 v{vA1}, v{vS+1}
        v_permlane16_swap_b32 v{vS}, v{vA0}
        v_permlane16_swap_b32 v{vS+1}, v{vA1}
        v_add_f32 v{vS}, v{vS}, v{vA0}
        v_add_f32 v{vS+1}, v{vS+1}, v{vA1}
        """)
    else: red2_bits345(vS, vS + 1, vA0, vA1)
    a(f"""
    v_cvt_pk_bf16_f32 v{vA0}, v{vS}, v{vS+1}
    """)
    if dry: a("s_cbranch_scc1 L_poll2")
    a(f"""
    s_mov_b64 exec, 0xff
    buffer_store_dword v{vA0}, v{vA2}, {srd(OUT_)}, s{sT0} offen {outf.replace('+',' ')}
    s_cmp_lg_u32 s2, 0
    s_cbranch_scc1 L_fin
    s_mov_b64 exec, 1
    buffer_store_dword v{vTAG}, off, {srd(WS_)}, 0 {'' if ep else 'sc1'}
    L_fin:
    """)
    if probe >= 0:
        a(f"""
        s_cmp_lg_u32 s2, {pwg}
        s_cbranch_scc1 L_end
        s_cmp_lg_u32 s{sWV}, 4
        s_cbranch_scc1 L_end
        s_waitcnt lgkmcnt(0)
        s_sub_u32 s6, s100, s{sM0}
        s_lshl_b32 s6, s6, 2
        s_add_u32 s6, s6, 3000
        L_px:
        s_memrealtime s[4:5]
        s_waitcnt lgkmcnt(0)
        s_sub_u32 s4, s4, s{sM0}
        s_cmp_ge_u32 s4, s6
        s_cbranch_scc1 L_end
        s_sleep 1
        s_branch L_px
        """)
    if fix:
        a(f"""
        L_fx:
        s_memrealtime s[4:5]
        s_waitcnt lgkmcnt(0)
        s_sub_u32 s4, s4, s{sM0}
        s_cmp_ge_u32 s4, {fix}
        s_cbranch_scc1 L_fxd
        s_sleep 1
        s_branch L_fx
        L_fxd:
        """)
    if stamps:
        a("s_mov_b64 exec, -1")
        a("s_waitcnt vmcnt(0)")
        a(f"s_memrealtime s[{sST+22}:{sST+23}]")
        a(f"s_mul_i32 s{sT0}, s2, 9")
        a(f"s_add_u32 s{sT0}, s{sT0}, s{sWV}")
        a(f"s_mul_i32 s{sT0}, s{sT0}, {NS*8}")
        a(f"s_add_u32 s{sT0}, s{sT0}, {STAMP_OFF}")
        a("s_waitcnt lgkmcnt(0)")
        a("s_mov_b64 exec, 1")
        for j in range(NS):
            a(f"v_mov_b32 v{vA0}, s{sST+2*j}")
            a(f"v_mov_b32 v{vA1}, s{sST+2*j+1}")
            a(f"buffer_store_dwordx2 {vr(vA0,2)}, off, {srd(WS_)}, s{sT0} offset:{8*j}")
    a("L_end:")
    a("s_endpgm")

    cX = vACC; cG = vACC + 8
    cL4, cL8, cPA, cPF, cQW, cGP = vWDO, vQ, vQ + 1, vQ + 2, vQ + 3, vQ + 4
    a(f"""
    L_comm:
    """)
    if fast: a(late_s)
    a(f"""
    s_setprio 3
    s_mov_b32 s{sWB}, 0
    v_mov_b32 v{vA0}, 0
    v_lshlrev_b32 v{cL4}, 2, v{vL}
    s_mov_b64 exec, 0xffff
    ds_write_b32 v{cL4}, v{vA0}
    s_mov_b64 exec, -1
    s_mov_b32 s{GW_+2}, 2048
    s_mov_b32 s{GW_+3}, 0x20000
    s_waitcnt lgkmcnt(0)
    s_barrier
    s_mov_b64 s[{X_}:{X_+1}], s[76:77]
    s_mov_b64 s[{GW_}:{GW_+1}], s[94:95]
    """)
    if not ev: a(f"s_load_dword s{sC}, s[{WS_}:{WS_+1}], 0")
    roles()
    def touch_kv(ptr, tiles):
        for n_, t in enumerate(tiles):
            a(f"s_xor_b32 s25, s24, {t*(4<<20)}")
            a(f"s_load_dword s{26+n_}, s[{ptr}:{ptr+1}], s25")
    if touch:
        assert ix == 0
        a(f"""
        s_mov_b64 s[4:5], s[78:79]
        s_mov_b64 s[6:7], s[80:81]
        s_mov_b64 s[8:9], s[84:85]
        s_mov_b64 s[10:11], s[92:93]
        s_mul_i32 s24, s{sG}, {(1<<24) + (gx<<22)}
        s_lshl_b32 s25, s{sI}, 16
        s_add_u32 s24, s24, s25
        """)
        if touch & 1:
            a(f"""
            s_mul_i32 s25, s{sR8}, {128*7168}
            s_load_dword s20, s[88:89], s25
            s_load_dword s21, s[90:91], s25
            s_add_u32 s25, s25, {127*7168}
            s_load_dword s22, s[88:89], s25
            s_load_dword s23, s[90:91], s25
            """)
            touch_kv(4, [0])
    def preread():
        if not prer: return
        a(f"""
        v_lshlrev_b32 v{vA2}, 7, v{vL}
        s_lshl_b32 s{sT1}, s2, 12
        s_add_u32 s{sT1}, s{sT1}, {WS_OP}
        s_lshl_b32 s{sT3}, s{sRB}, 6
        s_add_u32 s{sT3}, s{sT3}, s{sPL}
        s_lshl_b32 s{sT3}, s{sT3}, 11
        s_add_u32 s{sT3}, s{sT3}, {WS_FP}
        s_mov_b32 exec_hi, 0
        """)
        if prer & 1: a(f"buffer_load_dword v{vR}, v{vA2}, {srd(WS_)}, s{sT1} offen")
        a("s_mov_b32 exec_lo, 0xffff")
        if prer & 2: a(f"buffer_load_dword v{vR+2}, v{vA2}, {srd(WS_)}, s{sT3} offen")
        a("s_mov_b64 exec, -1")
    if ev: a(f"buffer_load_dword v{vTAG}, off, {srd(WS_)}, 0 sc1")
    if prs == 1: preread()
    a(f"""
    v_lshlrev_b32 v{cL8}, 3, v{vL}
    v_lshrrev_b32 v{vA0}, 3, v{vL}
    v_and_b32 v{vA1}, 7, v{vL}
    v_lshlrev_b32 v{cPA}, 10, v{vA0}
    v_lshl_add_u32 v{cPA}, v{vA1}, 4, v{cPA}
    v_lshrrev_b32 v{vA0}, 5, v{vL}
    v_and_b32 v{vA1}, 31, v{vL}
    v_lshlrev_b32 v{cPF}, 10, v{vA0}
    v_lshl_add_u32 v{cPF}, v{vA1}, 4, v{cPF}
    v_mul_u32_u24 v{vA0}, 272, v{vA0}
    v_lshl_add_u32 v{cQW}, v{vA1}, 3, v{vA0}
    v_add_u32 v{cGP}, {L_GP}, v{cL8}
    s_lshl_b32 s{sT1}, s{sCB}, 13
    s_add_u32 s{sT1}, s{sT1}, {WS_QP}
    s_lshl_b32 s{sT2}, s{sR8}, 10
    s_add_u32 s{sA}, s{sT1}, s{sT2}
    s_lshl_b32 s{sT2}, s{sR8}, 7
    s_add_u32 s{sPA}, s{sT1}, s{sT2}
    s_lshl_b32 s{sT1}, s{sCB}, {9+gt}
    s_lshl_b32 s{sT2}, s{sR8}, {6+gt}
    s_add_u32 s{sB}, s{sT1}, s{sT2}
    s_add_u32 s{sB}, s{sB}, {WS_QG}
    s_lshl_b32 s{sPB}, s{sG}, {12+gt}
    s_add_u32 s{sPB}, s{sPB}, {WS_QG}
    """)
    if ev:
        a(f"s_waitcnt vmcnt({bin(prer).count('1') if prs == 1 else 0})")
        a(f"v_add_u32 v{vTAG}, 1, v{vTAG}")
    else:
        a("s_waitcnt lgkmcnt(0)")
        a(f"s_add_u32 s{sC}, s{sC}, 1")
        a(f"v_mov_b32 v{vTAG}, s{sC}")
    init_stamps()
    if "x" in dg:
        arrive(C_QS); arrive(C_H); a("s_waitcnt vmcnt(0) lgkmcnt(0)"); a("s_branch L_fin")
    def gp_publish(m, base, so, off):
        for k in range(4): a(f"ds_read2st64_b64 {vr(base+4*k,4)}, v{cGP} offset0:{8*m+2*k} offset1:{8*m+2*k+1}")
        a("s_waitcnt lgkmcnt(0)")
        for step in (2, 4, 8):
            for k in range(0, 16, 2 * step):
                a(f"v_add_f32 v{base+k}, v{base+k}, v{base+k+step}")
                a(f"v_add_f32 v{base+k+1}, v{base+k+1}, v{base+k+step+1}")
        a(f"v_mov_b32 v{base+2}, v{base+1}")
        a(f"v_mov_b32 v{base+1}, v{vTAG}")
        a(f"v_mov_b32 v{base+3}, v{vTAG}")
        a(f"buffer_store_dwordx4 {vr(base,4)}, v{vVO}, {srd(WS_)}, s{so} offen offset:{off}" + ("" if loc else " sc1"))
    wait_cnt(C_Q, 8, csleep)
    gp_publish(0, vT, sA, 0)
    stamp(1)
    if ackA: a("s_waitcnt vmcnt(0)")
    poll([f"buffer_load_dwordx4 {vr(vE,4)}, v{cPA}, {srd(WS_)}, s{sPA} offen sc1"], [vE + 1, vE + 3], vA0, asleep, wb=True)
    red2_bits345(vE, vE + 2, vA0, vA1)
    a(f"""
    v_cvt_pk_bf16_f32 v{vE}, v{vE}, v{vE+2}
    s_mov_b64 exec, 0xff00
    v_mov_b32 v{vE}, s{sM0}
    s_mov_b64 exec, {0xffff if gt else 0xff}
    buffer_store_dwordx2 {vr(vE,2)}, v{cL8}, {srd(WS_)}, s{sB} offen sc1
    s_mov_b64 exec, -1
    """)
    stamp(2)
    a(f"""
    buffer_load_dwordx4 {vr(cX,4)}, v{vVO}, {srd(X_)}, 0 offen
    buffer_load_dwordx4 {vr(cX+4,4)}, v{vVO}, {srd(X_)}, 0 offen offset:1024
    buffer_load_dwordx4 {vr(cG,4)}, v{vVO}, {srd(GW_)}, 0 offen
    buffer_load_dwordx4 {vr(cG+4,4)}, v{vVO}, {srd(GW_)}, 0 offen offset:1024
    s_lshl_b32 s{sKV}, s{sCB}, 14
    s_add_u32 s{sKV}, s{sKV}, {WS_FG}
    s_lshl_b32 s{sT2}, s{sR8}, 11
    s_add_u32 s{sA}, s{sKV}, s{sT2}
    s_and_b32 s{sT2}, s{sLC}, 1
    s_lshl_b32 s{sT2}, s{sT2}, 9
    s_add_u32 s{sKV}, s{sKV}, s{sT2}
    """)
    if touch & 2: touch_kv(4, [1, 2])
    wait_cnt(C_F, 8, csleep)
    gp_publish(1, vT, sA, 0)
    gp_publish(2, vP, sA, 1024)
    if loc: a(f"""
    s_cmp_eq_u32 s{sWB}, 0
    s_cbranch_scc1 L_nwb
    s_waitcnt vmcnt(0)
    buffer_wbl2 sc1
    s_waitcnt vmcnt(0)
    L_nwb:
    """)
    a(f"""
    s_waitcnt vmcnt(2)
    v_mov_b32 v{vB0}, 0
    """)
    for k in range(8):
        a(f"""
        v_lshlrev_b32 v{vA0}, 16, v{cX+k}
        v_and_b32 v{vA1}, 0xffff0000, v{cX+k}
        v_lshlrev_b32 v{vA2}, 16, v{cG+k}
        v_and_b32 v{vA3}, 0xffff0000, v{cG+k}
        v_mul_f32 v{vA0}, v{vA0}, v{vA2}
        v_mul_f32 v{vA1}, v{vA1}, v{vA3}
        v_cvt_pk_bf16_f32 v{vA0}, v{vA0}, v{vA1}
        v_lshlrev_b32 v{vA1}, 16, v{vA0}
        v_and_b32 v{vA0}, 0xffff0000, v{vA0}
        v_add_f32 v{vB0}, v{vB0}, v{vA0}
        v_add_f32 v{vB0}, v{vB0}, v{vA1}
        """)
    for nn_ in (1, 2, 4): a(f"v_add_f32_dpp v{vB0}, v{vB0}, v{vB0} row_ror:{nn_} {DPP}")
    red_bits345("add", vB0, vA3)
    a(f"""
    v_cvt_pk_bf16_f32 v{vA0}, v{vB0}, v{vB0}
    v_and_b32 v{vA0}, 0xffff0000, v{vA0}
    v_mul_f32 v{vA0}, {hex(f2u(-math.log2(math.e)))}, v{vA0}
    v_exp_f32 v{vA0}, v{vA0}
    v_add_f32 v{vA0}, 1.0, v{vA0}
    v_rcp_f32 v{vA0}, v{vA0}
    v_cvt_pk_bf16_f32 v{vA0}, v{vA0}, v{vA0}
    v_and_b32 v{vA0}, 0xffff0000, v{vA0}
    v_sub_f32 v{vA1}, 1.0, v{vA0}
    v_cvt_pk_bf16_f32 v{vA1}, v{vA1}, v{vA1}
    v_and_b32 v{vA1}, 0xffff0000, v{vA1}
    v_mov_b32 v{vA2}, 0
    s_mov_b64 exec, 1
    ds_write_b64 v{vA2}, {vr(vA0,2)} offset:{L_G}
    ds_write_b32 v{vA2}, v{vTAG} offset:{L_G+8}
    s_mov_b64 exec, -1
    """)
    wait_cnt(C_P1, cpn, 4)
    ql = [f"buffer_load_dwordx4 {vr(vS+4*k,4)}, v{vVO}, {srd(WS_)}, s{sPB} offen offset:{1024*k} sc1" for k in range(4)]
    if gt:
        a(f"""
        v_lshrrev_b32 v{vQ+5}, 2, v{vL}
        v_lshlrev_b32 v{vQ+5}, 6, v{vQ+5}
        v_add_u32 v{vQ+5}, v{vQ+5}, v{vVO}
        v_lshlrev_b32 v{vQ+6}, 7, v{vL}
        s_add_u32 s{sT1}, s{sPB}, 4096
        """)
        ql = [f"buffer_load_dwordx4 {vr(vS+4*k,4)}, v{vQ+5}, {srd(WS_)}, s{sPB if k < 2 else sT1} offen offset:{2048*(k%2)} sc1" for k in range(4)]
        ql.append(f"buffer_load_dwordx2 {vr(vS+16,2)}, v{vQ+6}, {srd(WS_)}, s{sPB} offen offset:64 sc1")
    poll(ql, [vS + 2 * k + 1 for k in range(8 + gt)], vA2, rsleep, wb=True)
    if gt:
        a(f"v_subrev_u32 v{vS+16}, s{sM0}, v{vS+16}")
        a(f"v_cvt_f32_i32 v{vS+16}, v{vS+16}")
        for nn_ in (1, 2, 4): a(f"v_min_f32_dpp v{vS+16}, v{vS+16}, v{vS+16} row_ror:{nn_} {DPP}")
        red_bits345("min", vS + 16, vA3)
        a(f"""
        v_cvt_i32_f32 v{vS+16}, v{vS+16}
        v_add_u32 v{vS+16}, s{sM0}, v{vS+16}
        v_mov_b32 v{vA2}, 0
        s_mov_b64 exec, 1
        ds_write_b32 v{vA2}, v{vS+16} offset:{L_G+12}
        s_mov_b64 exec, -1
        """)
    for k in range(4): a(f"v_mov_b32 v{vS+4*k+1}, v{vS+4*k+2}")
    for k in range(4): a(f"ds_write_b64 v{cQW}, {vr(vS+4*k,2)} offset:{L_QS+544*k}")
    arrive(C_QS)
    stamp(3)
    for k in range(1, 4): a(f"s_add_u32 s{sT0+k}, s{sKV}, {4096*k}")
    fl = [f"buffer_load_dwordx4 {vr(vS+4*k,4)}, v{cPF}, {srd(WS_)}, s{sKV if k < 2 else sT0+k//2} offen offset:{2048*(k%2)} sc1" for k in range(8)]
    poll(fl, [vS + 2 * k + 1 for k in range(16)], vA2, rsleep, wb=True)
    for step in (4, 8, 16):
        for k in range(0, 32, 2 * step):
            a(f"v_add_f32 v{vS+k}, v{vS+k}, v{vS+k+step}")
            a(f"v_add_f32 v{vS+k+2}, v{vS+k+2}, v{vS+k+step+2}")
    a(f"""
    v_cvt_pk_bf16_f32 v{vA0}, v{vS}, v{vS+2}
    v_mov_b32 v{vA1}, v{vA0}
    v_permlane32_swap_b32 v{vA0}, v{vA1}
    v_lshlrev_b32 v{vA2}, 16, v{vA0}
    v_and_b32 v{vA0}, 0xffff0000, v{vA0}
    v_lshlrev_b32 v{vA3}, 16, v{vA1}
    v_and_b32 v{vA1}, 0xffff0000, v{vA1}
    v_max_f32 v{vA2}, 0, v{vA2}
    v_max_f32 v{vA0}, 0, v{vA0}
    v_mul_f32 v{vA2}, v{vA2}, v{vA3}
    v_mul_f32 v{vA0}, v{vA0}, v{vA1}
    v_cvt_pk_bf16_f32 v{vA0}, v{vA2}, v{vA0}
    s_mov_b32 exec_hi, 0
    ds_write_b32 v{cL4}, v{vA0} offset:{L_H}
    s_mov_b64 exec, -1
    """)
    arrive(C_H)
    stamp(4)
    if prs == 0: preread()
    a(f"""
    s_lshl_b32 s{sA}, s2, {6+cal}
    s_add_u32 s{sA}, s{sA}, {WS_ML}
    s_lshl_b32 s{sPA}, s{sG}, {12+cal}
    s_add_u32 s{sPA}, s{sPA}, {WS_ML}
    s_add_u32 s{sT1}, s{sPA}, 4096
    v_lshrrev_b32 v{vQ+5}, 3, v{vL}
    v_lshlrev_b32 v{vQ+5}, 6, v{vQ+5}
    v_add_u32 v{vQ+5}, v{vQ+5}, v{cL8}
    v_lshlrev_b32 v{vQ+6}, 7, v{vL}
    """)
    if touch & 2:
        touch_kv(4, [3]); a("s_waitcnt lgkmcnt(0)"); touch_kv(6, [0, 1])
    wait_cnt(C_ST, 8, 4)
    if cal: a("s_memrealtime s[12:13]")
    a(f"ds_read_b64 {vr(vT,2)}, v{cL8} offset:{L_ST}")
    a("s_waitcnt lgkmcnt(0)")
    a(f"v_mov_b32 v{vB0}, v{vT}")
    red_bits345("max", vB0, vA3)
    a(f"v_sub_f32 v{vA3}, v{vT}, v{vB0}")
    a(f"v_exp_f32 v{vA3}, v{vA3}")
    a(f"v_mul_f32 v{vT+1}, v{vT+1}, v{vA3}")
    red_bits345("add", vT + 1, vA3)
    a(f"""
    v_log_f32 v{vB1}, v{vT+1}
    v_add_f32 v{vB0}, v{vB0}, v{vB1}
    v_mov_b32 v{vB1}, v{vTAG}
    s_mov_b64 exec, 0xff00
    v_mov_b32 v{vB0}, s{12 if cal else sC}
    s_mov_b64 exec, {0xffff if cal else 0xff}
    buffer_store_dwordx2 {vr(vB0,2)}, v{cL8}, {srd(WS_)}, s{sA} offen sc1
    s_mov_b64 exec, -1
    """)
    stamp(5)
    if prs == 2: preread()
    if midwb:
        a(f"s_cmp_ge_u32 s2, {midwb}")
        a("s_cbranch_scc1 L_nmw")
        a("buffer_wbl2 sc1")
        a("L_nmw:")
    ml = [f"buffer_load_dwordx2 {vr(vS+2*k,2)}, v{cL8}, {srd(WS_)}, s{sPA} offen offset:{512*k} sc1" for k in range(8)]
    if touch & 2:
        touch_kv(6, [2, 3])
        a(f"""
        s_min_u32 s25, s{sLC}, 55
        s_lshl_b32 s25, s25, 17
        s_load_dword s20, s[10:11], s25
        s_lshl_b32 s25, s{sG}, 21
        s_load_dword s21, s[8:9], s25
        """)
    wait_cnt(C_P2, cpn, 4)
    if cal:
        ml = [f"buffer_load_dwordx2 {vr(vS+2*k,2)}, v{vQ+5}, {srd(WS_)}, s{sPA if k < 4 else sT1} offen offset:{1024*(k%4)} sc1" for k in range(8)]
        ml.append(f"buffer_load_dwordx2 {vr(vS+16,2)}, v{vQ+6}, {srd(WS_)}, s{sPA} offen offset:64 sc1")
    poll(ml, [vS + 2 * k + 1 for k in range(len(ml))], vA0, rsleep, wb=True)
    if cal:
        a(f"v_subrev_u32 v{vS+16}, s12, v{vS+16}")
        a(f"v_cvt_f32_i32 v{vS+16}, v{vS+16}")
        for nn_ in (1, 2, 4): a(f"v_add_f32_dpp v{vS+16}, v{vS+16}, v{vS+16} row_ror:{nn_} {DPP}")
        red_bits345("add", vS + 16, vA3)
        a(f"""
        v_mul_f32 v{vS+16}, {hex(f2u(1/64))}, v{vS+16}
        v_cvt_i32_f32 v{vS+16}, v{vS+16}
        v_add_u32 v{vS+16}, s12, v{vS+16}
        v_mov_b32 v{vA2}, 0
        s_mov_b64 exec, 1
        ds_write_b32 v{vA2}, v{vS+16} offset:{L_TM}
        s_mov_b64 exec, -1
        """)
    M = vE
    a(f"v_max3_f32 v{M}, v{vS}, v{vS+2}, v{vS+4}")
    a(f"v_max3_f32 v{M}, v{M}, v{vS+6}, v{vS+8}")
    a(f"v_max3_f32 v{M}, v{M}, v{vS+10}, v{vS+12}")
    a(f"v_max_f32 v{M}, v{M}, v{vS+14}")
    red_bits345("max", M, vA3)
    for k in range(8): a(f"v_sub_f32 v{vS+2*k}, v{vS+2*k}, v{M}")
    for k in range(8): a(f"v_exp_f32 v{vS+2*k}, v{vS+2*k}")
    a(f"v_add_f32 v{M+1}, v{vS}, v{vS+2}")
    for k in range(2, 8): a(f"v_add_f32 v{M+1}, v{M+1}, v{vS+2*k}")
    red_bits345("add", M + 1, vA3)
    a(f"""
    v_sub_f32 v{vA1}, v{vT}, v{M}
    v_exp_f32 v{vA1}, v{vA1}
    v_rcp_f32 v{vA2}, v{M+1}
    v_mul_f32 v{vA1}, v{vA1}, v{vA2}
    v_and_b32 v{vA2}, 7, v{vL}
    v_lshlrev_b32 v{vA2}, 5, v{vA2}
    v_lshrrev_b32 v{vA3}, 3, v{vL}
    v_lshl_add_u32 v{vA2}, v{vA3}, 2, v{vA2}
    ds_write_b32 v{vA2}, v{vA1} offset:{L_F}
    s_waitcnt lgkmcnt(0)
    """)
    if endwb:
        a("s_cmp_lt_u32 s2, 248")
        a("s_cbranch_scc1 L_cend")
        for _ in range(endwb): a("s_barrier")
        a("buffer_wbl2 sc1")
        for _ in range(3 - endwb): a("s_barrier")
        a("L_cend:")
    a("s_branch L_fin" if stamps else "s_endpgm")
    ci = [k for k, l in enumerate(a.lines) if l.strip() == "L_comm:"][0]
    if "m" in dg:
        a.lines = a.lines[:ci] + [l.replace("0x40000", "0") if ("s_cmp_gt" in l and "0x400000" not in l) else l for l in a.lines[ci:] if "buffer_" not in l]
    if "d" in dg:
        a.lines = [l for l in a.lines if "v_dot2c_f32_bf16 " not in l and "v_mfma" not in l]
    lines = hazard.fix([l for l in a.lines if not l.strip().startswith(";")])
    body = "\n".join(lines)
    if ipf: body = body.replace("CODE_BYTES", "s8") + "\nL_code_end:"
    return wrap_single(body, 256, 576, lds, NVGPR, header=HEADER)

if __name__ == "__main__":
    kw = {}
    for s in sys.argv[2:]:
        k, v = s.split("=")
        try: v = int(v)
        except: pass
        kw[k] = v
    open(sys.argv[1], "w").write(gen(**kw))
```

```python
import sys, math, struct
from asmlib import *
import hazard
def f2u(x): return struct.unpack("<I", struct.pack("<f", x))[0]
HEADER = open("cdna_kernels/" + NAME + ".s.ref").read().split("; Override launch")[0]

HEADER += """;
;   hand-offs       : 8-byte {data, tag} granules in d_ws, tag = epoch word + 1 (the epoch is advanced at the end).
"""

WS_QG = 0x10000
WS_ML = 0x8000
WS_QP = 0x40000
WS_FG = 0x80000
WS_OP = 0x100000
WS_FP = 0x200000
WS_SIZE = 0x280000
STAMP_OFF = 128 << 20
C_Q, C_F, C_QS, C_ST, C_H, C_P1, C_P2, L_TM = 0, 4, 8, 12, 16, 20, 24, 28
L_H = 64
L_G = 192
L_GP = 256
L_QS = L_GP + 3 * 4096
L_ST = L_QS + 2176
L_F = L_ST + 512
L_RED1 = L_F + 256
L_RED2 = L_RED1 + 2048
L_RED3 = L_RED2 + 512
L_ORED = L_RED3 + 1024
L_END = L_ORED + 8 * 4224
sWV = 3
K_, V_, WQ_, WO_, WG_, WU_, WD_, X_, GW_, WS_, OUT_ = 4, 8, 12, 16, 20, 24, 28, 32, 36, 40, 44
def srd(b): return f"s[{b}:{b+3}]"
sG, sI, sPA, sPB, sKV = 48, 49, 50, 51, 52
sT0, sT1, sT2, sT3 = 53, 54, 55, 56
sSELLO, sSELHI, sC, sCAP, sA, sB, sKS = 57, 58, 59, 60, 61, 62, 63
sM0 = 64
sWD, sBOOST = 66, 67
sRB, sLC, sR8, sCB, sH1, sH1b, sPL, sXV = 68, 69, 70, 71, 72, 73, 74, 75
sST = 76
sCK = 36
sWB = 67
vL, vWDO, vT16, vTAG, vKO, vVO, vWOO, vWFO = 0, 1, 2, 3, 4, 5, 6, 7
vA0, vA1, vA2, vA3, vB0, vB1, vB2, vB3 = 8, 9, 10, 11, 12, 13, 14, 15
vT, vQ, vE, vP, vS, vACC, vR, vBP, vSP = 16, 32, 40, 48, 64, 96, 128, 160, 164
NVGPR = 168

def gen(WIN=3, WMAX=5, dyn0=10, stamps=0, sn="d", lds=82440, q_at=26, p1_at=19, p2_at=61, CA=140, CB=275, CK=6, gsh=2, k0=8,
        ca=2, cb=2, h1first=0, prer=2, fix=0, nfail=8, sleep1=2, csleep=1, asleep=4, rsleep=16, ackA=1, ack2=1, ex=3, cpn=6,
        notail=0, ncov=8, h1d=0, gt=0, CA2=None, lv=0, WLO=3, sp=0, ev=0, gx=0, ix=0, tw=0, t0=3, t1=9, qw=0, touch=0, outf='', midwb=0, endwb=0, prs=0, W0=4, W1=3, fast=0, loc=1, xp=0, cpos=0, cm=0, wofirst=0, hs=0, dry=0, h4=0, h4s=0, cal=0, CM=-15, CV=268, KR=48, probe=-1, pwg=42, rj=0, dg='', ipf=0, xl=0, ep=0, fx=0, po=0, merge=0):
    a = Asm()
    SN = set(str(sn).split("+"))
    NS = 12
    def stamp(k, name="d"):
        if stamps and name in SN: a(f"s_memrealtime s[{sST+2*k}:{sST+2*k+1}]")
    def vr(b, n): return f"v[{b}:{b+n-1}]"
    DPP = "row_mask:0xf bank_mask:0xf"
    def red_bits45(op, v, t):
        for sw in ("16", "32"):
            a(f"v_mov_b32 v{t}, v{v}")
            a(f"v_permlane{sw}_swap_b32 v{v}, v{t}")
            a(f"v_{op}_f32 v{v}, v{v}, v{t}")
    def red_bits345(op, v, t):
        a(f"v_{op}_f32_dpp v{v}, v{v}, v{v} row_ror:8 {DPP}")
        red_bits45(op, v, t)
    def red2_bits345(v0, v1, t0, t1):
        a(f"v_add_f32_dpp v{v0}, v{v0}, v{v0} row_ror:8 {DPP}")
        a(f"v_add_f32_dpp v{v1}, v{v1}, v{v1} row_ror:8 {DPP}")
        for sw in ("16", "32"):
            a(f"v_mov_b32 v{t0}, v{v0}")
            a(f"v_mov_b32 v{t1}, v{v1}")
            a(f"v_permlane{sw}_swap_b32 v{v0}, v{t0}")
            a(f"v_permlane{sw}_swap_b32 v{v1}, v{t1}")
            a(f"v_add_f32 v{v0}, v{v0}, v{t0}")
            a(f"v_add_f32 v{v1}, v{v1}, v{t1}")
    def tred4(v, dst):
        a(f"""
        v_permlane32_swap_b32 v{v}, v{v+2}
        v_permlane32_swap_b32 v{v+1}, v{v+3}
        v_add_f32 v{v}, v{v}, v{v+2}
        v_add_f32 v{v+1}, v{v+1}, v{v+3}
        v_permlane16_swap_b32 v{v}, v{v+1}
        v_add_f32 v{dst}, v{v}, v{v+1}
        """)
    def arrive(cnt):
        a(f"""
        v_mov_b32 v{vA0}, {cnt}
        v_mov_b32 v{vA1}, 1
        s_waitcnt lgkmcnt(0)
        s_mov_b64 exec, 1
        ds_add_u32 v{vA0}, v{vA1}
        s_mov_b64 exec, -1
        """)
    def wait_cnt(cnt, val, sl=1):
        l = a.label("Lw"); d = a.label("Lwd")
        a(f"""
        v_mov_b32 v{vA0}, {cnt}
        s_mov_b32 s{sCAP}, 0
        {l}:
        ds_read_b32 v{vA1}, v{vA0}
        s_waitcnt lgkmcnt(0)
        v_readfirstlane_b32 s{sT0}, v{vA1}
        s_cmp_ge_u32 s{sT0}, {val}
        s_cbranch_scc1 {d}
        s_add_u32 s{sCAP}, s{sCAP}, 1
        s_cmp_gt_u32 s{sCAP}, 0x400000
        s_cbranch_scc1 {d}
        s_sleep {sl}
        s_branch {l}
        {d}:
        """)
    def poll(loads, tagregs, tmp, sleep, first_issued=False, wb=False):
        lc = a.label("Lchk"); ld = a.label("Ldone")
        a(f"s_mov_b32 s{sCAP}, 0")
        if not first_issued:
            for l in loads: a(l)
            a("s_waitcnt vmcnt(0)")
        a(f"{lc}:")
        a(f"v_xor_b32 v{tmp}, v{tagregs[0]}, v{vTAG}")
        rest = list(tagregs[1:])
        for r in rest:
            a(f"v_xor_b32 v{tmp+1}, v{r}, v{vTAG}")
            a(f"v_or_b32 v{tmp}, v{tmp}, v{tmp+1}")
        a(f"v_cmp_ne_u32 vcc, 0, v{tmp}")
        a(f"s_and_b64 exec, exec, vcc")
        a(f"s_cbranch_scc0 {ld}")
        a(f"s_add_u32 s{sCAP}, s{sCAP}, 1")
        a(f"s_cmp_gt_u32 s{sCAP}, 0x40000")
        a(f"s_cbranch_scc1 {ld}")
        if wb and loc:
            lw = a.label("Lnw")
            a(f"s_and_b32 s{sT0}, s{sCAP}, {nfail-1}")
            a(f"s_cbranch_scc1 {lw}")
            a("buffer_wbl2 sc1")
            a("s_waitcnt vmcnt(0)")
            a(f"s_mov_b32 s{sWB}, 1")
            a(f"{lw}:")
        if sleep: a(f"s_sleep {sleep}")
        for l in loads: a(l)
        a("s_waitcnt vmcnt(0)")
        a(f"s_branch {lc}")
        a(f"{ld}:")
        a("s_mov_b64 exec, -1")
    def sum8(base):
        for step in (1, 2, 4):
            for k in range(0, 8, 2 * step): a(f"v_add_f32 v{base+k}, v{base+k}, v{base+k+step}")
    def init_stamps():
        if stamps:
            for k in range(NS): a(f"s_mov_b64 s[{sST+2*k}:{sST+2*k+1}], s[{sM0}:{sM0+1}]")

    a(f"""
    s_cmp_ge_u32 s2, 256
    s_cbranch_scc1 L_end
    s_load_dwordx16 s[76:91], s[0:1], 0
    """)
    if ipf:
        a(f"""
        s_getpc_b64 s[4:5]
        L_pc0:
        s_mov_b32 s8, L_code_end-L_pc0-4
        v_lshlrev_b32 v{vA2}, {7 if ipf == 1 else 6}, v0
        v_cmp_gt_u32 vcc, CODE_BYTES, v{vA2}
        s_and_saveexec_b64 s[6:7], vcc
        s_cbranch_execz L_nipf
        global_load_dword v{vSP}, v{vA2}, s[4:5]
        L_nipf:
        s_mov_b64 exec, s[6:7]
        """)
    a(f"""
    """)
    late_s = f"""
    s_load_dwordx8 s[92:99], s[0:1], 64
    s_load_dwordx2 s[{WS_}:{WS_+1}], s[0:1], 96
    s_memrealtime s[{sM0}:{sM0+1}]
    """
    if not fast: a(late_s)
    a(f"""
    v_lshrrev_b32 v{vA0}, 6, v0
    v_lshlrev_b32 v{vT16}, 4, v0
    v_readfirstlane_b32 s{sWV}, v{vA0}
    v_and_b32 v{vL}, 63, v0
    s_lshr_b32 s{sG}, s2, 6
    s_and_b32 s{sI}, s2, 63
    s_bfe_u32 s{sR8}, s2, 0x30003
    s_and_b32 s{sT0}, s2, 7
    s_lshl_b32 s{sT1}, s{sG}, 1
    s_xor_b32 s{sT0}, s{sT0}, s{sT1}
    s_lshl_b32 s{sT0}, s{sT0}, 2
    s_or_b32 s{sCB}, s{sT0}, s{sG}
    s_mov_b32 s{X_+2}, 2048
    s_mov_b32 s{X_+3}, 0x20000
    v_lshlrev_b32 v{vVO}, 4, v{vL}
    s_cmp_eq_u32 s{sWV}, 8
    s_cbranch_scc1 L_comm
    s_mov_b32 s{WQ_+2}, {1024*8192}
    s_mov_b32 s{WQ_+3}, 0x20000
    v_lshrrev_b32 v{vA0}, 4, v{vL}
    v_and_b32 v{vA1}, 15, v{vL}
    v_lshlrev_b32 v{vA1}, 4, v{vA1}
    v_lshl_add_u32 v{vA3}, v{vA0}, {13 if rj else 15}, v{vA1}
    v_lshlrev_b32 v{vA2}, 3, v{vA0}
    s_lshl_b32 s{sT3}, s{sR8}, 3
    s_add_u32 s{sT3}, s{sT3}, s{sWV}
    s_lshl_b32 s{sT0}, s{sCB}, 8
    s_lshl_b32 s{sA}, s{sT3}, 17
    s_add_u32 s{sA}, s{sA}, s{sT0}
    s_mul_i32 s{sB}, s{sT3}, {16*7168}
    s_add_u32 s{sB}, s{sB}, s{sT0}
    s_lshl_b32 s{sT3}, s{sT3}, 5
    s_add_u32 s{sT0}, s{sA}, {8192*(4 if rj else 1)}
    s_add_u32 s{sT1}, s{sA}, {16384*(4 if rj else 1)}
    s_add_u32 s{sT2}, s{sA}, {24576*(4 if rj else 1)}
    s_waitcnt lgkmcnt(0)
    s_mov_b64 s[{WQ_}:{WQ_+1}], s[82:83]
    s_mov_b64 s[{X_}:{X_+1}], s[76:77]
    """)
    R0, R1, A0, A1 = vR, vR + 16, vACC, vACC + 16
    WQR, WGR, WUR = R0, R1, A0
    vXP = vB0
    xld = f"buffer_load_dwordx2 {vr(vXP,2)}, v{vA2}, {srd(X_)}, s{sT3} offen"
    if rj: xl = 0
    if not xl and not rj: a(xld)
    for j in range(4): a(f"buffer_load_dwordx4 {vr(WQR+4*j,4)}, v{vA3}, {srd(WQ_)}, s{[sA,sT0,sT1,sT2][j]} offen nt")
    if xl: a(xld)
    if rj and not fast: a(f"s_load_dwordx8 s[32:39], s[76:77], s{sT3}")
    if fast: a(late_s)
    def roles():
        a(f"""
        s_and_b32 s{sRB}, s{sR8}, 3
        s_lshr_b32 s{sLC}, s{sR8}, 2
        s_lshl_b32 s{sT0}, s{sCB}, 1
        s_or_b32 s{sLC}, s{sLC}, s{sT0}
        s_lshr_b32 s{sPL}, s2, 5
        s_lshl_b32 s{sPL}, s{sPL}, 3
        s_and_b32 s{sT0}, s2, 7
        s_or_b32 s{sPL}, s{sPL}, s{sT0}
        s_mov_b32 s{WS_+2}, {WS_SIZE if not stamps else (256<<20)}
        s_mov_b32 s{WS_+3}, 0x20000
        """)
    vX = vT; vGA = vT + 8
    a(f"""
    v_mul_u32_u24 v{vWFO}, {(1 if rj else 4)*7168}, v{vA0}
    v_mul_u32_u24 v{vB2}, 0x202, v{vA0}
    v_add_u32 v{vB2}, 0x0c0c0100, v{vB2}
    v_alignbit_b32 v{vB3}, v{vB2}, v{vB2}, 16
    v_add_u32 v{vWFO}, v{vWFO}, v{vA1}
    s_cmp_lt_u32 s{sCB}, 28
    s_cselect_b32 s{WG_+2}, {1024*7168}, 0
    s_cselect_b32 s{WU_+2}, {1024*7168}, 0
    s_cselect_b32 s{WD_+2}, {3584*2048}, 0
    s_mov_b32 s{WG_+3}, 0x20000
    s_mov_b32 s{WU_+3}, 0x20000
    s_mov_b64 s[{WG_}:{WG_+1}], s[88:89]
    s_mov_b64 s[{WU_}:{WU_+1}], s[90:91]
    s_mov_b64 s[{K_}:{K_+1}], s[78:79]
    s_mov_b64 s[{V_}:{V_+1}], s[80:81]
    s_mov_b64 s[{WO_}:{WO_+1}], s[84:85]
    s_mov_b32 s{K_+2}, 0x4000000
    s_mov_b32 s{K_+3}, 0x20000
    s_mov_b32 s{V_+2}, 0x4000000
    s_mov_b32 s{V_+3}, 0x20000
    s_mov_b32 s{WO_+2}, {4096*2048}
    s_mov_b32 s{WO_+3}, 0x20000
    s_mov_b32 s{WD_+3}, 0x20000
    s_mov_b32 s{OUT_+2}, 2048
    s_mov_b32 s{OUT_+3}, 0x20000
    s_mov_b32 s{sSELLO}, 0x05040100
    s_mov_b32 s{sSELHI}, 0x07060302
    s_mov_b32 s{sC}, {hex(f2u(128**-0.5 * math.log2(math.e)))}
    s_mov_b32 s{sBOOST}, {WIN if lv else 0}
    s_mul_i32 s{sKV}, s{sG}, {(1<<24) + ((gx&1)<<22)}
    """)
    if gx == 2:
        a(f"s_and_b32 s{sT0}, s2, 6")
        a(f"s_lshl_b32 s{sT0}, s{sT0}, 21")
        a(f"s_add_u32 s{sKV}, s{sKV}, s{sT0}")
    if ix == 0:
        a(f"s_lshl_b32 s{sT0}, s{sI}, 16")
        a(f"s_add_u32 s{sKV}, s{sKV}, s{sT0}")
    else:
        pos = {1: [17, 18, 19, 16, 20, 21], 2: [16, 17, 19, 18, 20, 21]}[ix]
        for b in range(6):
            a(f"s_bfe_u32 s{sT0}, s2, {0x10000 + b}")
            a(f"s_lshl_b32 s{sT0}, s{sT0}, {pos[b]}")
            a(f"s_add_u32 s{sKV}, s{sKV}, s{sT0}")
    a(f"""
    s_lshl_b32 s{sT0}, s{sWV}, 13
    s_add_u32 s{sKV}, s{sKV}, s{sT0}
    s_lshl_b32 s{sT0}, s{sWV}, 10
    s_add_u32 s{sXV}, s{sKV}, s{sT0}
    s_and_b32 s{sT1}, s{sT0}, 4096
    s_add_u32 s{sKV}, s{sKV}, s{sT1}
    s_and_b32 s{sT0}, s{sT0}, 3072
    v_lshlrev_b32 v{vA2}, 1, v{vA1}
    v_lshl_add_u32 v{vA2}, v{vA0}, 3, v{vA2}
    s_lshl_b32 s{sT1}, s{sWV}, 9
    v_add_u32 v{vGA}, s{sT1}, v{vA2}
    v_and_b32 v{vA2}, 3, v{vL}
    v_lshlrev_b32 v{vA2}, 10, v{vA2}
    v_xor_b32 v{vA2}, s{sT0}, v{vA2}
    v_bfe_u32 v{vA3}, v{vL}, 2, 1
    v_lshl_add_u32 v{vA2}, v{vA3}, 8, v{vA2}
    v_bfe_u32 v{vA3}, v{vL}, 3, 1
    v_lshl_add_u32 v{vA2}, v{vA3}, 6, v{vA2}
    v_lshl_add_u32 v{vKO}, v{vA0}, 4, v{vA2}
    v_mov_b32 v{vE+6}, 0
    v_mov_b32 v{vE+7}, 0x40000000
    """)
    roles()
    if fast: a("s_waitcnt lgkmcnt(0)")
    a(f"""
    s_mov_b64 s[{WD_}:{WD_+1}], s[92:93]
    s_mov_b64 s[{OUT_}:{OUT_+1}], s[96:97]
    """)
    init_stamps()
    for r in range(24): a(f"v_mov_b32 v{vS+r}, 0")
    a("s_barrier")

    U = []
    for j in range(4): U.append((f"wq{j}", None, 2 if (xl and j == 3) else 1, None))
    for nm, R, S_ in (("gate", WGR, WG_), ("up", WUR, WU_)):
        for j in range(4):
            U.append((f"{nm}{j}", [f"s_add_u32 s{sT3}, s{sB}, {j*7168*(4 if rj else 1)}", f"buffer_load_dwordx4 {vr(R+4*j,4)}, v{vWFO}, {srd(S_)}, s{sT3} offen nt"], 1, None))
    WDQ = [vP, vP + 4, vP + 8, vSP]
    WOR = vT; PW = R0
    def wdunit(j, pre):
        if sp:
            U.append((f"wd{j}", [f"v_mov_b32_dpp v{vA2}, v{vE+5} row_newbcast:{j} {DPP}",
                      f"v_and_b32 v{vA3}, 0x7fff0000, v{vA2}", f"v_and_b32 v{vA2}, 0x7fff, v{vA2}",
                      f"v_cmp_ne_u32 vcc, 0, v{vA2}", f"v_cndmask_b32 v{vA2}, v{vE+7}, v{vWDO}, vcc",
                      f"v_cmp_ne_u32 vcc, 0, v{vA3}", f"v_cndmask_b32 v{vA3}, v{vE+7}, v{vWDO}, vcc",
                      f"s_xor_b32 s{sT3}, s{sWD}, {j*4096}", f"buffer_load_dwordx2 {vr(WDQ[j],2)}, v{vA2}, {srd(WD_)}, s{sT3} offen nt",
                      f"buffer_load_dwordx2 {vr(WDQ[j]+2,2)}, v{vA3}, {srd(WD_)}, s{sT3} offen offset:2048 nt"], 2, pre))
            return
        U.append((f"wd{j}", [f"s_xor_b32 s{sT3}, s{sWD}, {j*4096}", f"buffer_load_dwordx2 {vr(WDQ[j],2)}, v{vWDO}, {srd(WD_)}, s{sT3} offen nt",
                  f"buffer_load_dwordx2 {vr(WDQ[j]+2,2)}, v{vWDO}, {srd(WD_)}, s{sT3} offen offset:2048 nt"], 2, pre))
    KSL = [A1, vP, R0, R1, A0, A1, vP, A0]
    KPRE = [None, None, "wq", "gate", "up", "K0", "K1", "K4"]
    for g in range(8):
        t, u = g >> 1, g & 1
        for k in range(4):
            l = [f"s_xor_b32 s{sKS}, s{sKV}, {t*(4<<20) + u*4096}"] if k == 0 else []
            l.append(f"buffer_load_dwordx4 {vr(KSL[g]+4*k,4)}, v{vKO}, {srd(K_)}, s{sKS} offen offset:{(k>>1)*512+(k&1)*128} nt")
            U.append((f"K{g}_{k}", l, 1, KPRE[g]))
    nearly = 8 - ncov
    order = [3, 0, 1, 2]
    for t in range(4):
        if t == 3:
            for j in order[:min(nearly, 3)]: wdunit(j, "V1m")
        for j in range(8):
            if t == 3 and j == 4 and nearly == 4: wdunit(2, "V2m")
            U.append((f"V{t}_{j}", [f"s_xor_b32 s{sKS}, s{sXV}, {t*(4<<20) + j*1024}",
                      f"buffer_load_dwordx4 {vr(vR+4*j,4)}, v{vVO}, {srd(V_)}, s{sKS} offen nt"], 1, f"K{2+(j>>2)}" if t == 0 else f"V{t-1}p{j>>1}"))
    for j in order[nearly:]: wdunit(j, "V2m")
    for j in range(4):
        l = []
        for e in range(2 * j, 2 * j + 2):
            l += [f"s_xor_b32 s{sT3}, s{sB}, {e*16384}", f"buffer_load_dwordx2 {vr(WOR+2*e,2)}, v{vWOO}, {srd(WO_)}, s{sT3} offen nt"]
        U.append((f"wo{j}", l, 2, "pre"))
    if merge:
        k0_ = [u[0] for u in U].index("wd3")
        w = U[k0_:k0_ + 4]
        U[k0_:k0_ + 4] = [("wd0", w[0][1] + w[1][1], 4, w[1][3]), ("wd2", w[2][1] + w[3][1], 4, w[3][3])]
    names = [u[0] for u in U]
    idx = {n: k for k, n in enumerate(names)}

    consumed = set()
    def task_g(m, j):
        W, acc = [(WQR, vS), (WGR, vS + 8), (WUR, vS + 16)][m]
        if m == 0 and j == 0 and rj:
            a("s_waitcnt lgkmcnt(0)")
            for jj in range(4):
                a(f"v_mov_b32 v{vA0}, s{32+2*jj}")
                a(f"v_perm_b32 v{vX+2*jj}, s{33+2*jj}, v{vA0}, v{vB2}")
                a(f"v_perm_b32 v{vX+2*jj+1}, s{33+2*jj}, v{vA0}, v{vB3}")
        elif m == 0 and j == 0:
            for h in range(2):
                a(f"v_and_b32 v{vX+4*h}, 0xffff, v{vXP+h}")
                a(f"v_lshlrev_b32 v{vX+4*h+1}, 16, v{vXP+h}")
                a(f"v_lshrrev_b32 v{vX+4*h+2}, 16, v{vXP+h}")
                a(f"v_and_b32 v{vX+4*h+3}, 0xffff0000, v{vXP+h}")
        if "g" in dg:
            if j == 3: consumed.add(["wq", "gate", "up"][m])
            return
        for w in range(4):
            a(f"v_dot2c_f32_bf16 v{acc+2*w}, v{W+4*j+w}, v{vX+2*j}")
            a(f"v_dot2c_f32_bf16 v{acc+2*w+1}, v{W+4*j+w}, v{vX+2*j+1}")
        if j == 3:
            consumed.add(["wq", "gate", "up"][m])
            for k in range(4): a(f"v_permlane32_swap_b32 v{acc+k}, v{acc+k+4}")
            for k in range(4): a(f"v_add_f32 v{acc+k}, v{acc+k}, v{acc+k+4}")
            for k in range(2): a(f"v_permlane16_swap_b32 v{acc+k}, v{acc+k+2}")
            for k in range(2): a(f"v_add_f32 v{acc+k}, v{acc+k}, v{acc+k+2}")
            a(f"ds_write_b64 v{vGA}, {vr(acc,2)} offset:{L_GP+4096*m}")
            if m != 1: arrive(C_Q if m == 0 else C_F)
            if m == 0: stamp(1)
    def wperm(dst, quads):
        for p in range(4):
            for d in range(2):
                a(f"v_perm_b32 v{dst+4*p+2*d}, v{quads[p]+2+d}, v{quads[p]+d}, s{sSELLO}")
                a(f"v_perm_b32 v{dst+4*p+2*d+1}, v{quads[p]+2+d}, v{quads[p]+d}, s{sSELHI}")
    def dot16(W, vO, acc):
        for p in range(4):
            for c in range(4): a(f"v_dot2c_f32_bf16_dpp v{acc+c}, v{vO}, v{W+4*p+c} row_newbcast:{p} {DPP}")
    def task_qwait():
        stamp(2)
        wait_cnt(C_QS, 1)
        a(f"""
        v_and_b32 v{vA0}, 7, v{vL}
        v_mul_u32_u24 v{vA0}, 272, v{vA0}
        v_bfe_u32 v{vA1}, v{vL}, 3, 1
        v_lshl_add_u32 v{vA0}, v{vA1}, 6, v{vA0}
        v_lshrrev_b32 v{vA1}, 4, v{vL}
        v_lshl_add_u32 v{vA0}, v{vA1}, 4, v{vA0}
        """)
        for s in range(2): a(f"ds_read_b128 {vr(vQ+4*s,4)}, v{vA0} offset:{L_QS+128*s}")
        if gt: a(f"ds_read_b32 v{vA1}, v{vE+6} offset:{L_G+12}")
        a("s_waitcnt lgkmcnt(0)")
        if gt:
            a(f"v_readfirstlane_b32 s{sM0}, v{vA1}")
            st["ca"] = CA2 if CA2 is not None else CA
        stamp(3)
    def task_k(g):
        base = KSL[g]; dx = vS + 4 * g; dy = vT
        for sp in range(2):
            a(f"v_mfma_f32_16x16x32_bf16 {vr(dx,4)}, {vr(base+4*sp,4)}, {vr(vQ+4*sp,4)}, {'0' if sp==0 else vr(dx,4)}")
            a(f"v_mfma_f32_16x16x32_bf16 {vr(dy,4)}, {vr(base+8+4*sp,4)}, {vr(vQ+4*sp,4)}, {'0' if sp==0 else vr(dy,4)}")
        for r in range(4): a(f"v_permlane32_swap_b32 v{dx+r}, v{dy+r}")
        for r in range(4): a(f"v_add_f32_dpp v{dx+r}, v{dy+r}, v{dx+r} row_ror:8 {DPP}")
        consumed.add(f"K{g}")
    vM = vE
    def sm_max():
        a(f"v_max3_f32 v{vM}, v{vS}, v{vS+1}, v{vS+2}")
        a(f"v_max3_f32 v{vA2}, v{vS+3}, v{vS+4}, v{vS+5}")
        for k in range(6, 30, 4):
            a(f"v_max3_f32 v{vM}, v{vM}, v{vS+k}, v{vS+k+1}")
            a(f"v_max3_f32 v{vA2}, v{vA2}, v{vS+k+2}, v{vS+k+3}")
        a(f"v_max3_f32 v{vM}, v{vM}, v{vS+30}, v{vS+31}")
        a(f"v_max_f32 v{vM}, v{vM}, v{vA2}")
        red_bits45("max", vM, vA2)
        a(f"v_mul_f32 v{vM}, s{sC}, v{vM}")
    def sm_exp(t):
        for k in range(8 * t, 8 * t + 8): a(f"v_fma_f32 v{vS+k}, v{vS+k}, s{sC}, -v{vM}")
        for k in range(8 * t, 8 * t + 8): a(f"v_exp_f32 v{vS+k}, v{vS+k}")
        for k in range(4 * t, 4 * t + 4): a(f"v_cvt_pk_bf16_f32 v{vP+k}, v{vS+2*k}, v{vS+2*k+1}")
        sum8(vS + 8 * t)
    def sm_fin():
        a(f"v_add_f32 v{vS}, v{vS}, v{vS+8}")
        a(f"v_add_f32 v{vS+16}, v{vS+16}, v{vS+24}")
        a(f"v_add_f32 v{vM+1}, v{vS}, v{vS+16}")
        red_bits45("add", vM + 1, vA2)
        a(f"""
        s_lshl_b32 s{sT0}, s{sWV}, 6
        v_lshl_add_u32 v{vA2}, v{vL}, 3, s{sT0}
        s_mov_b64 exec, 0xff
        ds_write_b64 v{vA2}, {vr(vM,2)} offset:{L_ST}
        s_mov_b64 exec, -1
        """)
        arrive(C_ST)
        stamp(4)
    def task_vperm(t, uu):
        for w in range(4):
            a(f"v_perm_b32 v{vS+4*(2*w)+uu}, v{vR+4*(2*uu+1)+w}, v{vR+4*(2*uu)+w}, s{sSELLO}")
            a(f"v_perm_b32 v{vS+4*(2*w+1)+uu}, v{vR+4*(2*uu+1)+w}, v{vR+4*(2*uu)+w}, s{sSELHI}")
        consumed.add(f"V{t}p{uu}")
        if uu == 3:
            for i in range(8):
                c = "0" if t == 0 else vr(vACC + 4 * i, 4)
                a(f"v_mfma_f32_16x16x32_bf16 {vr(vACC+4*i,4)}, {vr(vS+4*i,4)}, {vr(vP+4*t,4)}, {c}")
            consumed.add(f"V{t}m")
    aOW, aOR, aF, aH1, aR2W, aL8, aH2, aR1W = [vQ + k for k in range(8)]
    aR1R, aFP, aR3, vG, vHP = vKO, vWFO, vE + 4, vE + 2, vE + 5
    def task_pre1():
        a(f"""
        v_lshrrev_b32 v{vA1}, 4, v{vL}
        v_and_b32 v{vA2}, 7, v{vL}
        v_mul_u32_u24 v{vA0}, 528, v{vA2}
        v_lshl_add_u32 v{vA0}, v{vA1}, 4, v{vA0}
        s_mul_i32 s{sT0}, s{sWV}, 4224
        v_add_u32 v{aOW}, s{sT0}, v{vA0}
        s_mul_i32 s{sT0}, s{sWV}, 528
        v_lshl_add_u32 v{aOR}, v{vL}, 3, s{sT0}
        s_lshl_b32 s{sT0}, s{sWV}, 5
        v_mov_b32 v{aF}, s{sT0}
        v_lshrrev_b32 v{vA0}, 5, v{vL}
        v_lshlrev_b32 v{vA3}, 2, v{vA0}
        v_lshl_add_u32 v{vA3}, v{vA2}, 3, v{vA3}
        s_lshl_b32 s{sT0}, s{sWV}, 6
        v_add_u32 v{aR2W}, s{sT0}, v{vA3}
        v_lshlrev_b32 v{aL8}, 3, v{vL}
        v_and_b32 v{vA2}, 15, v{vL}
        s_and_b32 s{sT1}, s{sWV}, 3
        s_lshl_b32 s{sT0}, s{sT1}, 7
        v_lshl_add_u32 v{vA3}, v{vA2}, 3, s{sT0}
        v_lshl_add_u32 v{vWDO}, v{vA1}, 14, v{vA3}
        v_lshl_add_u32 v{vA3}, v{vA0}, 11, v{vA3}
        v_and_b32 v{vA0}, 1, v{vA1}
        v_lshl_add_u32 v{vWOO}, v{vA0}, 17, v{vA3}
        v_lshl_add_u32 v{vA0}, v{vA2}, 2, v{vA1}
        s_lshl_b32 s{sT0}, s{sT1}, 9
        v_lshl_add_u32 v{aFP}, v{vA0}, 3, s{sT0}
        s_lshl_b32 s{sT0}, s{sWV}, 8
        v_lshl_add_u32 v{aR1W}, v{vA0}, 2, s{sT0}
        s_lshl_b32 s{sT0}, s{sT1}, 8
        v_lshl_add_u32 v{aR3}, v{vL}, 2, s{sT0}
        v_lshrrev_b32 v{vA0}, 8, v{vT16}
        v_lshlrev_b32 v{vA0}, 12, v{vA0}
        v_and_b32 v{vA2}, 0xf0, v{vT16}
        v_add_u32 v{aH1}, v{vA0}, v{vA2}
        v_lshrrev_b32 v{vA0}, 7, v{vT16}
        v_lshlrev_b32 v{vA0}, 11, v{vA0}
        v_and_b32 v{vA2}, 0x70, v{vT16}
        v_add_u32 v{aH2}, v{vA0}, v{vA2}
        v_lshrrev_b32 v{vT16}, 1, v{vT16}
        """)
    def task_pre2():
        wait_cnt(C_H, 1)
        a(f"""
        v_and_b32 v{vA3}, 3, v{vL}
        s_and_b32 s{sT1}, s{sWV}, {ex}
        v_xor_b32 v{vA3}, s{sT1}, v{vA3}
        v_lshrrev_b32 v{vA2}, 4, v{vL}
        v_lshl_add_u32 v{vA2}, v{vA2}, 2, v{vA3}
        s_lshr_b32 s{sT2}, s{sWV}, 2
        s_lshl_b32 s{sT0}, s{sT2}, 4
        v_add_u32 v{vA2}, s{sT0}, v{vA2}
        v_bfe_u32 v{vA3}, v{vL}, 2, 2
        v_lshlrev_b32 v{vA3}, 9, v{vA3}
        v_lshl_add_u32 v{aR1R}, v{vA2}, 3, v{vA3}
        v_lshlrev_b32 v{vA2}, 2, v{vA2}
        ds_read_b32 v{vHP}, v{vA2} offset:{L_H}
        ds_read_b64 {vr(vG,2)}, v{vE+6} offset:{L_G}
        ds_read_b32 v{vTAG}, v{vE+6} offset:{L_G+8}
        s_lshl_b32 s{sWD}, s{sLC}, 17
        s_lshl_b32 s{sT0}, s{sT2}, 16
        s_add_u32 s{sWD}, s{sWD}, s{sT0}
        s_lshl_b32 s{sT0}, s{sT1}, 12
        s_add_u32 s{sWD}, s{sWD}, s{sT0}
        s_lshl_b32 s{sT0}, s{sRB}, 9
        s_add_u32 s{sWD}, s{sWD}, s{sT0}
        s_lshl_b32 s{sB}, s{sT1}, 15
        s_add_u32 s{sB}, s{sB}, s{sT0}
        s_lshl_b32 s{sT0}, s{sT2}, 12
        s_add_u32 s{sB}, s{sB}, s{sT0}
        s_lshr_b32 s{sT1}, s{sR8}, 2
        s_lshl_b32 s{sT0}, s{sT1}, 13
        s_add_u32 s{sB}, s{sB}, s{sT0}
        s_and_b32 s{sT2}, s2, 7
        s_lshl_b32 s{sT0}, s{sG}, 3
        s_add_u32 s{sT0}, s{sT0}, s{sT2}
        s_lshl_b32 s{sT0}, s{sT0}, 18
        s_add_u32 s{sB}, s{sB}, s{sT0}
        s_lshl_b32 s{sH1}, s{sG}, 18
        s_lshl_b32 s{sT0}, s{sT2}, 9
        s_add_u32 s{sH1}, s{sH1}, s{sT0}
        s_lshl_b32 s{sT0}, s{sT1}, 8
        s_add_u32 s{sH1}, s{sH1}, s{sT0}
        s_add_u32 s{sH1}, s{sH1}, {WS_OP}
        s_add_u32 s{sH1b}, s{sH1}, {32*4096}
        s_lshl_b32 s{sPA}, s2, 12
        s_add_u32 s{sPA}, s{sPA}, {WS_OP}
        s_lshl_b32 s{sPB}, s{sRB}, 6
        s_add_u32 s{sPB}, s{sPB}, s{sPL}
        s_lshl_b32 s{sPB}, s{sPB}, 11
        s_add_u32 s{sPB}, s{sPB}, {WS_FP}
        s_lshl_b32 s{sI}, s{sT2}, 3
        s_or_b32 s{sI}, s{sI}, s{sR8}
        s_mov_b32 s{sI}, s{sI if fx else 2}
        s_lshr_b32 s{sA}, s{sI}, 4
        s_lshl_b32 s{sA}, s{sA}, 17
        s_and_b32 s{sT0}, s{sI}, 15
        s_lshl_b32 s{sT0}, s{sT0}, 7
        s_add_u32 s{sA}, s{sA}, s{sT0}
        s_add_u32 s{sA}, s{sA}, {WS_FP}
        s_waitcnt lgkmcnt(0)
        v_mov_b32 v{vB1}, v{vTAG}
        v_mov_b32 v{vE+1}, v{vTAG}
        """)
        for k in range(4): a(f"v_mov_b32 v{vBP+k}, 0")
        if po:
            a(f"""
            s_cmp_ge_u32 s2, 64
            s_cbranch_scc1 L_npo
            s_cmp_lg_u32 s{sWV}, 0
            s_cbranch_scc1 L_npo
            s_lshl_b32 s{sT0}, s{sI}, 5
            buffer_load_dword v{vE}, off, {srd(OUT_)}, s{sT0}
            L_npo:
            """)
        consumed.add("pre")
    vH1 = R1; vF = R1 + 8
    h1 = [f"buffer_load_dwordx4 {vr(vH1+4*k,4)}, v{aH1}, {srd(WS_)}, s{sH1+k} offen sc1" for k in range(2)]
    if xp & 4: h1 = []

    C = []
    for m, nm in enumerate(("wq", "gate", "up")):
        if m == 0 and xl: C.append((3, lambda: [task_g(0, j) for j in range(4)]))
        else:
            for j in range(4): C.append((idx[f"{nm}{j}"], lambda m=m, j=j: task_g(m, j)))
    C.append((p1_at, lambda: arrive(C_P1)))
    C.append((p2_at, lambda: arrive(C_P2)))
    C.append((q_at, task_qwait))
    for g in range(8): C.append((max(q_at, idx[f"K{g}_3"]), lambda g=g: task_k(g)))
    kend = idx["K7_3"]
    C.append((kend, sm_max))
    for t in range(4): C.append((kend, lambda t=t: sm_exp(t)))
    C.append((kend, sm_fin))
    for t in range(4):
        for uu in range(4): C.append((idx[f"V{t}_{2*uu+1}"], lambda t=t, uu=uu: task_vperm(t, uu)))
    C.append((idx["V1_2"], task_pre1)); C.append((idx["V1_4"], task_pre2))
    C.sort(key=lambda c: c[0])
    n = len(U); stop_at = idx["V3_7"]
    st = {"issued": 4, "c": 0, "ca": CA}
    def run_chunk():
        C[st["c"]][1](); st["c"] += 1
    def issue_upto(lim, arrived, throttle=True):
        while st["issued"] < min(n, lim):
            k = st["issued"]
            nm, lines, nv, pre = U[k]
            if throttle and k - WIN >= stop_at: return
            while pre is not None and pre not in consumed:
                assert C[st["c"]][0] <= arrived, ("issue blocked", nm, names[arrived])
                run_chunk()
            if throttle and k >= dyn0 and lv:
                lk = a.label("Li")
                wlo = WLO
                if tw and idx["V0_0"] + t0 <= k <= idx["V0_0"] + t1: wlo = tw
                if qw and q_at + WMAX - 1 <= k <= q_at + WMAX + 3: wlo = qw
                for w in range(WMAX - 1, wlo - 1, -1):
                    if w < WIN and k - w >= stop_at: break
                    a(f"s_cmp_gt_i32 s{sBOOST}, {w}")
                    a(f"s_cbranch_scc1 {lk}")
                    a(f"s_waitcnt vmcnt({sum(u[2] for u in U[k-w+1:k])})")
                a(f"{lk}:")
            elif throttle and k >= dyn0:
                lk = a.label("Li")
                a(f"s_cmp_gt_u32 s{sBOOST}, {k}")
                a(f"s_cbranch_scc1 {lk}")
                a(f"s_waitcnt vmcnt({sum(u[2] for u in U[k-WIN+1:k])})")
                a(f"{lk}:")
            for x in lines: a(x)
            st["issued"] += 1
    issue_upto(W0, -1)
    for arrived in range(stop_at + 1):
        assert st["issued"] > arrived
        a(f"s_waitcnt vmcnt({sum(u[2] for u in U[arrived + 1:st['issued']])})")
        if arrived == probe: a("s_memrealtime s[100:101]")
        if arrived % 8 == 7: stamp(arrived // 8 + 1, "u")
        if arrived % 6 == 5 and arrived < 60: stamp(arrived // 6 + 1, "s")
        if arrived >= k0 and arrived < stop_at - 3:
            if (arrived - k0) % CK == 0:
                a(f"s_memrealtime s[{sCK}:{sCK+1}]")
                if cal and arrived > p2_at: a(f"ds_read_b32 v{vB3}, v{vE+6} offset:{L_TM}")
            if (arrived - k0) % CK == 1:
                kk = st["issued"] - WIN - 1
                if lv and cal and arrived - 1 > p2_at:
                    a(f"""
                    s_waitcnt lgkmcnt(0)
                    v_readfirstlane_b32 s{sT0}, v{vB3}
                    s_cmp_lg_u32 s{sT0}, 0
                    s_cselect_b32 s{sT0}, s{sT0}, s{sM0}
                    s_mov_b32 s{sT1}, {st["ca"] + CB * kk // 10}
                    s_cselect_b32 s{sT1}, {CM + CV * (kk - KR) // 10}, s{sT1}
                    s_sub_u32 s{sCK}, s{sCK}, s{sT0}
                    s_sub_i32 s{sCK}, s{sCK}, s{sT1}
                    s_ashr_i32 s{sCK}, s{sCK}, {lv}
                    s_add_i32 s{sBOOST}, s{sCK}, {WIN + 1}
                    """)
                elif lv:
                    a(f"""
                    s_waitcnt lgkmcnt(0)
                    s_sub_u32 s{sCK}, s{sCK}, s{sM0}
                    s_sub_i32 s{sCK}, s{sCK}, {st["ca"] + CB * kk // 10}
                    s_ashr_i32 s{sCK}, s{sCK}, {lv}
                    s_add_i32 s{sBOOST}, s{sCK}, {WIN + 1}
                    """)
                else: a(f"""
                s_waitcnt lgkmcnt(0)
                s_sub_u32 s{sCK}, s{sCK}, s{sM0}
                s_sub_i32 s{sCK}, s{sCK}, {st["ca"] + CB * kk // 10}
                s_ashr_i32 s{sCK}, s{sCK}, {gsh}
                s_add_i32 s{sBOOST}, s{sCK}, {st["issued"]}
                s_max_i32 s{sBOOST}, s{sBOOST}, 0
                """)
        if arrived < stop_at: issue_upto(arrived + 1 + (W1 if arrived < dyn0 - W1 else WMAX), arrived)
        ran = 0
        while st["c"] < len(C) and C[st["c"]][0] <= arrived and (ran < 2 or arrived >= stop_at - 1):
            run_chunk(); ran += 1
    assert st["c"] == len(C)

    stamp(5)
    if not cpos: issue_upto(st["issued"] + ca, n, False)
    a("s_mov_b32 exec_lo, 0x00ff00ff")
    a("s_mov_b32 exec_hi, 0x00ff00ff")
    for i in range(8): a(f"ds_write_b128 v{aOW}, {vr(vACC+4*i,4)} offset:{L_ORED+64*i}")
    a("s_mov_b64 exec, -1")
    if cpos: issue_upto(st["issued"] + ca, n, False)
    a(f"""
    s_waitcnt lgkmcnt(0)
    s_barrier
    ds_read_b128 {vr(vF,4)}, v{aF} offset:{L_F}
    ds_read_b128 {vr(vF+4,4)}, v{aF} offset:{L_F+16}
    """)
    for w in range(8): a(f"ds_read_b64 {vr(vS+2*w,2)}, v{aOR} offset:{L_ORED+4224*w}")
    a("s_waitcnt lgkmcnt(7)")
    a(f"v_mul_f32 v{vB0}, v{vS}, v{vF}")
    a(f"v_mul_f32 v{vB2}, v{vS+1}, v{vF}")
    for w in range(1, 8):
        a(f"s_waitcnt lgkmcnt({7-w})")
        a(f"v_fmac_f32 v{vB0}, v{vS+2*w}, v{vF+w}")
        a(f"v_fmac_f32 v{vB2}, v{vS+2*w+1}, v{vF+w}")
    a(f"v_cvt_pk_bf16_f32 v{vB0}, v{vB0}, v{vB2}")
    a(f"buffer_store_dwordx2 {vr(vB0,2)}, v{vT16}, {srd(WS_)}, s{sPA} offen" + ("" if xp & 1 else " sc1"))
    stamp(6)
    k_s = st["issued"]
    issue_upto(st["issued"] + cb, n, False)
    if notail: a("s_branch L_fin")
    def outstanding_after(k): return sum(u[2] for u in U[k:st["issued"]])
    wait_to = min(st["issued"], k_s + h1d)
    a(f"s_waitcnt vmcnt({outstanding_after(wait_to)})")
    if hs: a(f"s_sleep {hs}")
    if h1first:
        for l in h1: a(l)
    k_h = st["issued"]
    issue_upto(n, n, False)
    if not h1first:
        for l in h1: a(l)
    nh = len(h1)
    lastwd = max(idx.get(f"wd{j}", 0) for j in range(4))
    w = outstanding_after(lastwd + 1) + (nh if (not h1first or lastwd + 1 <= k_h) else 0)
    a(f"s_waitcnt vmcnt({w})")
    wperm(vS + 16, WDQ)
    dot16(vS + 16, vHP, vBP)
    for k in range(4): a(f"v_mov_b32 v{vS+8+k}, 0")
    for k in range(4): a(f"v_mul_f32 v{vBP+k}, v{vBP+k}, v{vG+1}")
    a(f"s_waitcnt vmcnt({0 if h1first else nh})")
    wperm(PW, [WOR + 4 * p for p in range(4)])
    a("s_waitcnt vmcnt(0)")
    stamp(7)
    if not xp: poll(h1, [vH1 + 1, vH1 + 3, vH1 + 5, vH1 + 7], vA0, sleep1, first_issued=True)
    stamp(8)
    for r in (0, 2, 4, 6):
        a(f"v_and_b32 v{vH1+r+1}, 0xffff0000, v{vH1+r}")
        a(f"v_lshlrev_b32 v{vH1+r}, 16, v{vH1+r}")
    for r in range(4): a(f"v_add_f32 v{vH1+r}, v{vH1+r}, v{vH1+r+4}")
    tred4(vH1, vH1)
    a(f"""
    ds_write_b32 v{aR1W}, v{vH1} offset:{L_RED1}
    s_waitcnt lgkmcnt(0)
    s_barrier
    ds_read_b64 {vr(vS,2)}, v{aR1R} offset:{L_RED1}
    ds_read_b64 {vr(vS+2,2)}, v{aR1R} offset:{L_RED1+256}
    s_waitcnt lgkmcnt(0)
    v_add_f32 v{vS}, v{vS}, v{vS+2}
    v_add_f32 v{vS+1}, v{vS+1}, v{vS+3}
    v_add_f32_dpp v{vS}, v{vS}, v{vS} row_ror:4 {DPP}
    v_add_f32_dpp v{vS+1}, v{vS+1}, v{vS+1} row_ror:4 {DPP}
    v_add_f32_dpp v{vS}, v{vS}, v{vS} row_ror:8 {DPP}
    v_add_f32_dpp v{vS+1}, v{vS+1}, v{vS+1} row_ror:8 {DPP}
    v_cvt_pk_bf16_f32 v{vA0}, v{vS}, v{vS+1}
    """)
    dot16(PW, vA0, vS + 8)
    for k in range(4): a(f"v_fmac_f32 v{vBP+k}, v{vS+8+k}, v{vG}")
    tred4(vBP, vE)
    a(f"""
    s_cmp_lt_u32 s{sWV}, 4
    s_cbranch_scc1 L_lo
    ds_write_b32 v{aR3}, v{vE} offset:{L_RED3}
    s_waitcnt lgkmcnt(0)
    s_barrier
    s_branch L_st
    L_lo:
    s_barrier
    ds_read_b32 v{vA0}, v{aR3} offset:{L_RED3}
    s_waitcnt lgkmcnt(0)
    v_add_f32 v{vE}, v{vE}, v{vA0}
    buffer_store_dwordx2 {vr(vE,2)}, v{aFP}, {srd(WS_)}, s{sPB} offen sc1
    L_st:
    """)
    stamp(9)
    a("s_cmp_ge_u32 s2, 64")
    a("s_cbranch_scc1 L_fin")
    if h4:
        a(f"""
        s_cmp_ge_u32 s{sWV}, 4
        s_cbranch_scc1 L_h4
        s_barrier
        s_branch L_fin
        L_h4:
        s_sub_u32 s{sT1}, s{sA}, {32*2048}
        """)
        if h4s: a(f"s_sleep {h4s}")
        poll([f"buffer_load_dwordx4 {vr(vS,4)}, v{aH2}, {srd(WS_)}, s{sA} offen sc1", f"buffer_load_dwordx4 {vr(vS+4,4)}, v{aH2}, {srd(WS_)}, s{sT1} offen sc1"],
             [vS + 1, vS + 3, vS + 5, vS + 7], vA0, sleep1)
        stamp(10)
        a(f"v_add_f32 v{vS}, v{vS}, v{vS+4}")
        a(f"v_add_f32 v{vS+2}, v{vS+2}, v{vS+6}")
    else:
        if dry:
            a(f"""
            s_cmp_eq_u32 s{sWV}, 0
            s_cselect_b32 s{sT2}, 1, 0
            s_cbranch_scc1 L_post2
            L_poll2:
            s_mov_b32 s{sT2}, 0
            """)
        if ack2: a("s_waitcnt vmcnt(0)")
        poll([f"buffer_load_dwordx4 {vr(vS,4)}, v{aH2}, {srd(WS_)}, s{sA} offen sc1"], [vS + 1, vS + 3], vA0, sleep1)
        stamp(10)
    if dry: a("L_post2:")
    a(f"""
    v_permlane32_swap_b32 v{vS}, v{vS+2}
    v_add_f32 v{vS}, v{vS}, v{vS+2}
    v_add_f32_dpp v{vS}, v{vS}, v{vS} row_ror:8 {DPP}
    v_mov_b32 v{vA1}, v{vS}
    v_permlane16_swap_b32 v{vS}, v{vA1}
    v_add_f32 v{vS}, v{vS}, v{vA1}
    ds_write_b32 v{aR2W}, v{vS} offset:{L_RED2}
    """)
    if dry:
        a(f"s_cmp_lg_u32 s{sT2}, 0")
        a("s_cbranch_scc1 L_nb2")
    a(f"""
    s_waitcnt lgkmcnt(0)
    s_barrier
    s_cmp_lg_u32 s{sWV}, {4 if h4 else 0}
    s_cbranch_scc1 L_fin
    L_nb2:
    ds_read_b64 {vr(vS,2)}, v{aL8} offset:{L_RED2 + (256 if h4 else 0)}
    v_lshlrev_b32 v{vA2}, 2, v{vL}
    s_lshl_b32 s{sT0}, s{sI}, 5
    """)
    if dry: a(f"s_cmp_lg_u32 s{sT2}, 0")
    a("s_waitcnt lgkmcnt(0)")
    if h4:
        a(f"""
        v_add_f32_dpp v{vS}, v{vS}, v{vS} row_ror:8 {DPP}
        v_add_f32_dpp v{vS+1}, v{vS+1}, v{vS+1} row_ror:8 {DPP}
        v_mov_b32 v{vA0}, v{vS}
        v_mov_b32 v{vA1}, v{vS+1}
        v_permlane16_swap_b32 v{vS}, v{vA0}
        v_permlane16_swap_b32 v{vS+1}, v{vA1}
        v_add_f32 v{vS}, v{vS}, v{vA0}
        v_add_f32 v{vS+1}, v{vS+1}, v{vA1}
        """)
    else: red2_bits345(vS, vS + 1, vA0, vA1)
    a(f"""
    v_cvt_pk_bf16_f32 v{vA0}, v{vS}, v{vS+1}
    """)
    if dry: a("s_cbranch_scc1 L_poll2")
    a(f"""
    s_mov_b64 exec, 0xff
    buffer_store_dword v{vA0}, v{vA2}, {srd(OUT_)}, s{sT0} offen {outf.replace('+',' ')}
    s_cmp_lg_u32 s2, 0
    s_cbranch_scc1 L_fin
    s_mov_b64 exec, 1
    buffer_store_dword v{vTAG}, off, {srd(WS_)}, 0 {'' if ep else 'sc1'}
    L_fin:
    """)
    if probe >= 0:
        a(f"""
        s_cmp_lg_u32 s2, {pwg}
        s_cbranch_scc1 L_end
        s_cmp_lg_u32 s{sWV}, 4
        s_cbranch_scc1 L_end
        s_waitcnt lgkmcnt(0)
        s_sub_u32 s6, s100, s{sM0}
        s_lshl_b32 s6, s6, 2
        s_add_u32 s6, s6, 3000
        L_px:
        s_memrealtime s[4:5]
        s_waitcnt lgkmcnt(0)
        s_sub_u32 s4, s4, s{sM0}
        s_cmp_ge_u32 s4, s6
        s_cbranch_scc1 L_end
        s_sleep 1
        s_branch L_px
        """)
    if fix:
        a(f"""
        L_fx:
        s_memrealtime s[4:5]
        s_waitcnt lgkmcnt(0)
        s_sub_u32 s4, s4, s{sM0}
        s_cmp_ge_u32 s4, {fix}
        s_cbranch_scc1 L_fxd
        s_sleep 1
        s_branch L_fx
        L_fxd:
        """)
    if stamps:
        a("s_mov_b64 exec, -1")
        a("s_waitcnt vmcnt(0)")
        a(f"s_memrealtime s[{sST+22}:{sST+23}]")
        a(f"s_mul_i32 s{sT0}, s2, 9")
        a(f"s_add_u32 s{sT0}, s{sT0}, s{sWV}")
        a(f"s_mul_i32 s{sT0}, s{sT0}, {NS*8}")
        a(f"s_add_u32 s{sT0}, s{sT0}, {STAMP_OFF}")
        a("s_waitcnt lgkmcnt(0)")
        a("s_mov_b64 exec, 1")
        for j in range(NS):
            a(f"v_mov_b32 v{vA0}, s{sST+2*j}")
            a(f"v_mov_b32 v{vA1}, s{sST+2*j+1}")
            a(f"buffer_store_dwordx2 {vr(vA0,2)}, off, {srd(WS_)}, s{sT0} offset:{8*j}")
    a("L_end:")
    a("s_endpgm")

    cX = vACC; cG = vACC + 8
    cL4, cL8, cPA, cPF, cQW, cGP = vWDO, vQ, vQ + 1, vQ + 2, vQ + 3, vQ + 4
    a(f"""
    L_comm:
    """)
    if fast: a(late_s)
    a(f"""
    s_setprio 3
    s_mov_b32 s{sWB}, 0
    v_mov_b32 v{vA0}, 0
    v_lshlrev_b32 v{cL4}, 2, v{vL}
    s_mov_b64 exec, 0xffff
    ds_write_b32 v{cL4}, v{vA0}
    s_mov_b64 exec, -1
    s_mov_b32 s{GW_+2}, 2048
    s_mov_b32 s{GW_+3}, 0x20000
    s_waitcnt lgkmcnt(0)
    s_barrier
    s_mov_b64 s[{X_}:{X_+1}], s[76:77]
    s_mov_b64 s[{GW_}:{GW_+1}], s[94:95]
    """)
    if not ev: a(f"s_load_dword s{sC}, s[{WS_}:{WS_+1}], 0")
    roles()
    def touch_kv(ptr, tiles):
        for n_, t in enumerate(tiles):
            a(f"s_xor_b32 s25, s24, {t*(4<<20)}")
            a(f"s_load_dword s{26+n_}, s[{ptr}:{ptr+1}], s25")
    if touch:
        assert ix == 0
        a(f"""
        s_mov_b64 s[4:5], s[78:79]
        s_mov_b64 s[6:7], s[80:81]
        s_mov_b64 s[8:9], s[84:85]
        s_mov_b64 s[10:11], s[92:93]
        s_mul_i32 s24, s{sG}, {(1<<24) + (gx<<22)}
        s_lshl_b32 s25, s{sI}, 16
        s_add_u32 s24, s24, s25
        """)
        if touch & 1:
            a(f"""
            s_mul_i32 s25, s{sR8}, {128*7168}
            s_load_dword s20, s[88:89], s25
            s_load_dword s21, s[90:91], s25
            s_add_u32 s25, s25, {127*7168}
            s_load_dword s22, s[88:89], s25
            s_load_dword s23, s[90:91], s25
            """)
            touch_kv(4, [0])
    def preread():
        if not prer: return
        a(f"""
        v_lshlrev_b32 v{vA2}, 7, v{vL}
        s_lshl_b32 s{sT1}, s2, 12
        s_add_u32 s{sT1}, s{sT1}, {WS_OP}
        s_lshl_b32 s{sT3}, s{sRB}, 6
        s_add_u32 s{sT3}, s{sT3}, s{sPL}
        s_lshl_b32 s{sT3}, s{sT3}, 11
        s_add_u32 s{sT3}, s{sT3}, {WS_FP}
        s_mov_b32 exec_hi, 0
        """)
        if prer & 1: a(f"buffer_load_dword v{vR}, v{vA2}, {srd(WS_)}, s{sT1} offen")
        a("s_mov_b32 exec_lo, 0xffff")
        if prer & 2: a(f"buffer_load_dword v{vR+2}, v{vA2}, {srd(WS_)}, s{sT3} offen")
        a("s_mov_b64 exec, -1")
    if ev: a(f"buffer_load_dword v{vTAG}, off, {srd(WS_)}, 0 sc1")
    if prs == 1: preread()
    a(f"""
    v_lshlrev_b32 v{cL8}, 3, v{vL}
    v_lshrrev_b32 v{vA0}, 3, v{vL}
    v_and_b32 v{vA1}, 7, v{vL}
    v_lshlrev_b32 v{cPA}, 10, v{vA0}
    v_lshl_add_u32 v{cPA}, v{vA1}, 4, v{cPA}
    v_lshrrev_b32 v{vA0}, 5, v{vL}
    v_and_b32 v{vA1}, 31, v{vL}
    v_lshlrev_b32 v{cPF}, 10, v{vA0}
    v_lshl_add_u32 v{cPF}, v{vA1}, 4, v{cPF}
    v_mul_u32_u24 v{vA0}, 272, v{vA0}
    v_lshl_add_u32 v{cQW}, v{vA1}, 3, v{vA0}
    v_add_u32 v{cGP}, {L_GP}, v{cL8}
    s_lshl_b32 s{sT1}, s{sCB}, 13
    s_add_u32 s{sT1}, s{sT1}, {WS_QP}
    s_lshl_b32 s{sT2}, s{sR8}, 10
    s_add_u32 s{sA}, s{sT1}, s{sT2}
    s_lshl_b32 s{sT2}, s{sR8}, 7
    s_add_u32 s{sPA}, s{sT1}, s{sT2}
    s_lshl_b32 s{sT1}, s{sCB}, {9+gt}
    s_lshl_b32 s{sT2}, s{sR8}, {6+gt}
    s_add_u32 s{sB}, s{sT1}, s{sT2}
    s_add_u32 s{sB}, s{sB}, {WS_QG}
    s_lshl_b32 s{sPB}, s{sG}, {12+gt}
    s_add_u32 s{sPB}, s{sPB}, {WS_QG}
    """)
    if ev:
        a(f"s_waitcnt vmcnt({bin(prer).count('1') if prs == 1 else 0})")
        a(f"v_add_u32 v{vTAG}, 1, v{vTAG}")
    else:
        a("s_waitcnt lgkmcnt(0)")
        a(f"s_add_u32 s{sC}, s{sC}, 1")
        a(f"v_mov_b32 v{vTAG}, s{sC}")
    init_stamps()
    if "x" in dg:
        arrive(C_QS); arrive(C_H); a("s_waitcnt vmcnt(0) lgkmcnt(0)"); a("s_branch L_fin")
    def gp_publish(m, base, so, off):
        for k in range(4): a(f"ds_read2st64_b64 {vr(base+4*k,4)}, v{cGP} offset0:{8*m+2*k} offset1:{8*m+2*k+1}")
        a("s_waitcnt lgkmcnt(0)")
        for step in (2, 4, 8):
            for k in range(0, 16, 2 * step):
                a(f"v_add_f32 v{base+k}, v{base+k}, v{base+k+step}")
                a(f"v_add_f32 v{base+k+1}, v{base+k+1}, v{base+k+step+1}")
        a(f"v_mov_b32 v{base+2}, v{base+1}")
        a(f"v_mov_b32 v{base+1}, v{vTAG}")
        a(f"v_mov_b32 v{base+3}, v{vTAG}")
        a(f"buffer_store_dwordx4 {vr(base,4)}, v{vVO}, {srd(WS_)}, s{so} offen offset:{off}" + ("" if loc else " sc1"))
    wait_cnt(C_Q, 8, csleep)
    gp_publish(0, vT, sA, 0)
    stamp(1)
    if ackA: a("s_waitcnt vmcnt(0)")
    poll([f"buffer_load_dwordx4 {vr(vE,4)}, v{cPA}, {srd(WS_)}, s{sPA} offen sc1"], [vE + 1, vE + 3], vA0, asleep, wb=True)
    red2_bits345(vE, vE + 2, vA0, vA1)
    a(f"""
    v_cvt_pk_bf16_f32 v{vE}, v{vE}, v{vE+2}
    """)
    if gt:
        a("s_mov_b64 exec, 0xff00")
        a(f"v_mov_b32 v{vE}, s{sM0}")
    a(f"""
    s_mov_b64 exec, {0xffff if gt else 0xff}
    buffer_store_dwordx2 {vr(vE,2)}, v{cL8}, {srd(WS_)}, s{sB} offen sc1
    s_mov_b64 exec, -1
    """)
    stamp(2)
    a(f"""
    buffer_load_dwordx4 {vr(cX,4)}, v{vVO}, {srd(X_)}, 0 offen
    buffer_load_dwordx4 {vr(cX+4,4)}, v{vVO}, {srd(X_)}, 0 offen offset:1024
    buffer_load_dwordx4 {vr(cG,4)}, v{vVO}, {srd(GW_)}, 0 offen
    buffer_load_dwordx4 {vr(cG+4,4)}, v{vVO}, {srd(GW_)}, 0 offen offset:1024
    s_lshl_b32 s{sKV}, s{sCB}, 14
    s_add_u32 s{sKV}, s{sKV}, {WS_FG}
    s_lshl_b32 s{sT2}, s{sR8}, 11
    s_add_u32 s{sA}, s{sKV}, s{sT2}
    s_and_b32 s{sT2}, s{sLC}, 1
    s_lshl_b32 s{sT2}, s{sT2}, 9
    s_add_u32 s{sKV}, s{sKV}, s{sT2}
    """)
    if touch & 2: touch_kv(4, [1, 2])
    wait_cnt(C_F, 8, csleep)
    gp_publish(1, vT, sA, 0)
    gp_publish(2, vP, sA, 1024)
    if loc: a(f"""
    s_cmp_eq_u32 s{sWB}, 0
    s_cbranch_scc1 L_nwb
    s_waitcnt vmcnt(0)
    buffer_wbl2 sc1
    s_waitcnt vmcnt(0)
    L_nwb:
    """)
    a(f"""
    s_waitcnt vmcnt(2)
    v_mov_b32 v{vB0}, 0
    """)
    for k in range(8):
        a(f"""
        v_lshlrev_b32 v{vA0}, 16, v{cX+k}
        v_and_b32 v{vA1}, 0xffff0000, v{cX+k}
        v_lshlrev_b32 v{vA2}, 16, v{cG+k}
        v_and_b32 v{vA3}, 0xffff0000, v{cG+k}
        v_mul_f32 v{vA0}, v{vA0}, v{vA2}
        v_mul_f32 v{vA1}, v{vA1}, v{vA3}
        v_cvt_pk_bf16_f32 v{vA0}, v{vA0}, v{vA1}
        v_lshlrev_b32 v{vA1}, 16, v{vA0}
        v_and_b32 v{vA0}, 0xffff0000, v{vA0}
        v_add_f32 v{vB0}, v{vB0}, v{vA0}
        v_add_f32 v{vB0}, v{vB0}, v{vA1}
        """)
    for nn_ in (1, 2, 4): a(f"v_add_f32_dpp v{vB0}, v{vB0}, v{vB0} row_ror:{nn_} {DPP}")
    red_bits345("add", vB0, vA3)
    a(f"""
    v_cvt_pk_bf16_f32 v{vA0}, v{vB0}, v{vB0}
    v_and_b32 v{vA0}, 0xffff0000, v{vA0}
    v_mul_f32 v{vA0}, {hex(f2u(-math.log2(math.e)))}, v{vA0}
    v_exp_f32 v{vA0}, v{vA0}
    v_add_f32 v{vA0}, 1.0, v{vA0}
    v_rcp_f32 v{vA0}, v{vA0}
    v_cvt_pk_bf16_f32 v{vA0}, v{vA0}, v{vA0}
    v_and_b32 v{vA0}, 0xffff0000, v{vA0}
    v_sub_f32 v{vA1}, 1.0, v{vA0}
    v_cvt_pk_bf16_f32 v{vA1}, v{vA1}, v{vA1}
    v_and_b32 v{vA1}, 0xffff0000, v{vA1}
    v_mov_b32 v{vA2}, 0
    s_mov_b64 exec, 1
    ds_write_b64 v{vA2}, {vr(vA0,2)} offset:{L_G}
    ds_write_b32 v{vA2}, v{vTAG} offset:{L_G+8}
    s_mov_b64 exec, -1
    """)
    wait_cnt(C_P1, cpn, 4)
    ql = [f"buffer_load_dwordx4 {vr(vS+4*k,4)}, v{vVO}, {srd(WS_)}, s{sPB} offen offset:{1024*k} sc1" for k in range(4)]
    if gt:
        a(f"""
        v_lshrrev_b32 v{vQ+5}, 2, v{vL}
        v_lshlrev_b32 v{vQ+5}, 6, v{vQ+5}
        v_add_u32 v{vQ+5}, v{vQ+5}, v{vVO}
        v_lshlrev_b32 v{vQ+6}, 7, v{vL}
        s_add_u32 s{sT1}, s{sPB}, 4096
        """)
        ql = [f"buffer_load_dwordx4 {vr(vS+4*k,4)}, v{vQ+5}, {srd(WS_)}, s{sPB if k < 2 else sT1} offen offset:{2048*(k%2)} sc1" for k in range(4)]
        ql.append(f"buffer_load_dwordx2 {vr(vS+16,2)}, v{vQ+6}, {srd(WS_)}, s{sPB} offen offset:64 sc1")
    poll(ql, [vS + 2 * k + 1 for k in range(8 + gt)], vA2, rsleep, wb=True)
    if gt:
        a(f"v_subrev_u32 v{vS+16}, s{sM0}, v{vS+16}")
        a(f"v_cvt_f32_i32 v{vS+16}, v{vS+16}")
        for nn_ in (1, 2, 4): a(f"v_min_f32_dpp v{vS+16}, v{vS+16}, v{vS+16} row_ror:{nn_} {DPP}")
        red_bits345("min", vS + 16, vA3)
        a(f"""
        v_cvt_i32_f32 v{vS+16}, v{vS+16}
        v_add_u32 v{vS+16}, s{sM0}, v{vS+16}
        v_mov_b32 v{vA2}, 0
        s_mov_b64 exec, 1
        ds_write_b32 v{vA2}, v{vS+16} offset:{L_G+12}
        s_mov_b64 exec, -1
        """)
    for k in range(4): a(f"v_mov_b32 v{vS+4*k+1}, v{vS+4*k+2}")
    for k in range(4): a(f"ds_write_b64 v{cQW}, {vr(vS+4*k,2)} offset:{L_QS+544*k}")
    arrive(C_QS)
    stamp(3)
    for k in range(1, 4): a(f"s_add_u32 s{sT0+k}, s{sKV}, {4096*k}")
    fl = [f"buffer_load_dwordx4 {vr(vS+4*k,4)}, v{cPF}, {srd(WS_)}, s{sKV if k < 2 else sT0+k//2} offen offset:{2048*(k%2)} sc1" for k in range(8)]
    poll(fl, [vS + 2 * k + 1 for k in range(16)], vA2, rsleep, wb=True)
    for step in (4, 8, 16):
        for k in range(0, 32, 2 * step):
            a(f"v_add_f32 v{vS+k}, v{vS+k}, v{vS+k+step}")
            a(f"v_add_f32 v{vS+k+2}, v{vS+k+2}, v{vS+k+step+2}")
    a(f"""
    v_cvt_pk_bf16_f32 v{vA0}, v{vS}, v{vS+2}
    v_mov_b32 v{vA1}, v{vA0}
    v_permlane32_swap_b32 v{vA0}, v{vA1}
    v_lshlrev_b32 v{vA2}, 16, v{vA0}
    v_and_b32 v{vA0}, 0xffff0000, v{vA0}
    v_lshlrev_b32 v{vA3}, 16, v{vA1}
    v_and_b32 v{vA1}, 0xffff0000, v{vA1}
    v_max_f32 v{vA2}, 0, v{vA2}
    v_max_f32 v{vA0}, 0, v{vA0}
    v_mul_f32 v{vA2}, v{vA2}, v{vA3}
    v_mul_f32 v{vA0}, v{vA0}, v{vA1}
    v_cvt_pk_bf16_f32 v{vA0}, v{vA2}, v{vA0}
    s_mov_b32 exec_hi, 0
    ds_write_b32 v{cL4}, v{vA0} offset:{L_H}
    s_mov_b64 exec, -1
    """)
    arrive(C_H)
    stamp(4)
    if prs == 0: preread()
    a(f"""
    s_lshl_b32 s{sA}, s2, {6+cal}
    s_add_u32 s{sA}, s{sA}, {WS_ML}
    s_lshl_b32 s{sPA}, s{sG}, {12+cal}
    s_add_u32 s{sPA}, s{sPA}, {WS_ML}
    """)
    if cal: a(f"""
    s_add_u32 s{sT1}, s{sPA}, 4096
    v_lshrrev_b32 v{vQ+5}, 3, v{vL}
    v_lshlrev_b32 v{vQ+5}, 6, v{vQ+5}
    v_add_u32 v{vQ+5}, v{vQ+5}, v{cL8}
    v_lshlrev_b32 v{vQ+6}, 7, v{vL}
    """)
    if touch & 2:
        touch_kv(4, [3]); a("s_waitcnt lgkmcnt(0)"); touch_kv(6, [0, 1])
    wait_cnt(C_ST, 8, 4)
    if cal: a("s_memrealtime s[12:13]")
    a(f"ds_read_b64 {vr(vT,2)}, v{cL8} offset:{L_ST}")
    a("s_waitcnt lgkmcnt(0)")
    a(f"v_mov_b32 v{vB0}, v{vT}")
    red_bits345("max", vB0, vA3)
    a(f"v_sub_f32 v{vA3}, v{vT}, v{vB0}")
    a(f"v_exp_f32 v{vA3}, v{vA3}")
    a(f"v_mul_f32 v{vT+1}, v{vT+1}, v{vA3}")
    red_bits345("add", vT + 1, vA3)
    a(f"""
    v_log_f32 v{vB1}, v{vT+1}
    v_add_f32 v{vB0}, v{vB0}, v{vB1}
    v_mov_b32 v{vB1}, v{vTAG}
    """)
    if cal:
        a("s_mov_b64 exec, 0xff00")
        a(f"v_mov_b32 v{vB0}, s12")
    a(f"""
    s_mov_b64 exec, {0xffff if cal else 0xff}
    buffer_store_dwordx2 {vr(vB0,2)}, v{cL8}, {srd(WS_)}, s{sA} offen sc1
    s_mov_b64 exec, -1
    """)
    stamp(5)
    if prs == 2: preread()
    if midwb:
        a(f"s_cmp_ge_u32 s2, {midwb}")
        a("s_cbranch_scc1 L_nmw")
        a("buffer_wbl2 sc1")
        a("L_nmw:")
    ml = [f"buffer_load_dwordx2 {vr(vS+2*k,2)}, v{cL8}, {srd(WS_)}, s{sPA} offen offset:{512*k} sc1" for k in range(8)]
    if touch & 2:
        touch_kv(6, [2, 3])
        a(f"""
        s_min_u32 s25, s{sLC}, 55
        s_lshl_b32 s25, s25, 17
        s_load_dword s20, s[10:11], s25
        s_lshl_b32 s25, s{sG}, 21
        s_load_dword s21, s[8:9], s25
        """)
    wait_cnt(C_P2, cpn, 4)
    if cal:
        ml = [f"buffer_load_dwordx2 {vr(vS+2*k,2)}, v{vQ+5}, {srd(WS_)}, s{sPA if k < 4 else sT1} offen offset:{1024*(k%4)} sc1" for k in range(8)]
        ml.append(f"buffer_load_dwordx2 {vr(vS+16,2)}, v{vQ+6}, {srd(WS_)}, s{sPA} offen offset:64 sc1")
    poll(ml, [vS + 2 * k + 1 for k in range(len(ml))], vA0, rsleep, wb=True)
    if cal:
        a(f"v_subrev_u32 v{vS+16}, s12, v{vS+16}")
        a(f"v_cvt_f32_i32 v{vS+16}, v{vS+16}")
        for nn_ in (1, 2, 4): a(f"v_add_f32_dpp v{vS+16}, v{vS+16}, v{vS+16} row_ror:{nn_} {DPP}")
        red_bits345("add", vS + 16, vA3)
        a(f"""
        v_mul_f32 v{vS+16}, {hex(f2u(1/64))}, v{vS+16}
        v_cvt_i32_f32 v{vS+16}, v{vS+16}
        v_add_u32 v{vS+16}, s12, v{vS+16}
        v_mov_b32 v{vA2}, 0
        s_mov_b64 exec, 1
        ds_write_b32 v{vA2}, v{vS+16} offset:{L_TM}
        s_mov_b64 exec, -1
        """)
    M = vE
    a(f"v_max3_f32 v{M}, v{vS}, v{vS+2}, v{vS+4}")
    a(f"v_max3_f32 v{M}, v{M}, v{vS+6}, v{vS+8}")
    a(f"v_max3_f32 v{M}, v{M}, v{vS+10}, v{vS+12}")
    a(f"v_max_f32 v{M}, v{M}, v{vS+14}")
    red_bits345("max", M, vA3)
    for k in range(8): a(f"v_sub_f32 v{vS+2*k}, v{vS+2*k}, v{M}")
    for k in range(8): a(f"v_exp_f32 v{vS+2*k}, v{vS+2*k}")
    a(f"v_add_f32 v{M+1}, v{vS}, v{vS+2}")
    for k in range(2, 8): a(f"v_add_f32 v{M+1}, v{M+1}, v{vS+2*k}")
    red_bits345("add", M + 1, vA3)
    a(f"""
    v_sub_f32 v{vA1}, v{vT}, v{M}
    v_exp_f32 v{vA1}, v{vA1}
    v_rcp_f32 v{vA2}, v{M+1}
    v_mul_f32 v{vA1}, v{vA1}, v{vA2}
    v_and_b32 v{vA2}, 7, v{vL}
    v_lshlrev_b32 v{vA2}, 5, v{vA2}
    v_lshrrev_b32 v{vA3}, 3, v{vL}
    v_lshl_add_u32 v{vA2}, v{vA3}, 2, v{vA2}
    ds_write_b32 v{vA2}, v{vA1} offset:{L_F}
    s_waitcnt lgkmcnt(0)
    """)
    if endwb:
        a("s_cmp_lt_u32 s2, 248")
        a("s_cbranch_scc1 L_cend")
        for _ in range(endwb): a("s_barrier")
        a("buffer_wbl2 sc1")
        for _ in range(3 - endwb): a("s_barrier")
        a("L_cend:")
    a("s_branch L_fin" if stamps else "s_endpgm")
    ci = [k for k, l in enumerate(a.lines) if l.strip() == "L_comm:"][0]
    if "m" in dg:
        a.lines = a.lines[:ci] + [l.replace("0x40000", "0") if ("s_cmp_gt" in l and "0x400000" not in l) else l for l in a.lines[ci:] if "buffer_" not in l]
    if "d" in dg:
        a.lines = [l for l in a.lines if "v_dot2c_f32_bf16 " not in l and "v_mfma" not in l]
    lines = hazard.fix([l for l in a.lines if l.strip()])
    body = "\n".join(lines)
    if ipf: body = body.replace("CODE_BYTES", "s8") + "\nL_code_end:"
    return wrap_single(body, 256, 576, lds, NVGPR, header=HEADER)

if __name__ == "__main__":
    kw = {}
    for s in sys.argv[2:]:
        k, v = s.split("=")
        try: v = int(v)
        except: pass
        kw[k] = v
    open(sys.argv[1], "w").write(gen(**kw))
```
